```python
import torch

def _softmax(x, axis=-1):
    return torch.softmax(x, dim=axis)

def _gelu(x):
    return torch.nn.functional.gelu(x, approximate='tanh')

def _silu(x):
    return torch.nn.functional.silu(x)

def _sigmoid(x):
    return torch.sigmoid(x)

def _layernorm(x, axis=-1, eps=1e-05):
    m = x.mean(dim=axis, keepdim=True)
    v = x.var(dim=axis, keepdim=True, unbiased=False)
    return (x - m) / torch.sqrt(v + eps)

def _scatter_add(tgt, idx, src, axis=0):
    return tgt.clone().index_add_(axis, idx, src)

def _segment_sum(src, seg, n):
    out = torch.zeros((n,) + src.shape[1:], dtype=src.dtype)
    return out.index_add_(0, seg, src)

def _pad(x, pw):
    flat = tuple((v for pair in reversed(pw) for v in pair))
    return torch.nn.functional.pad(x, flat)
kernel_name = 'standalone__molecular_angular_painn__graph'

def setup_inputs():

    _w = lambda a: (lambda t: t.to(torch.bfloat16) if t.is_floating_point() else t)(torch.as_tensor(a))
    N, deg, D = (10000, 16, 256)
    n_rbf = max(16, 4)
    E = N * deg
    cutoff = 5.0
    freqs = (torch.arange(1, n_rbf + 1) * torch.pi / cutoff).to(float)
    return {'sv': _w((lambda *s: torch.randn(*s, dtype=torch.bfloat16) * 0.4)(N, 4, D) * 0.3), 'pos': _w((lambda *s: torch.randn(*s, dtype=torch.bfloat16) * 1.6)(N, 3) * 1.2), 'src': _w((lambda lo, hi, *s: torch.randint(lo, hi, s))(0, N, E).to(torch.int64)), 'dst': _w((lambda lo, hi, *s: torch.randint(lo, hi, s))(0, N, E).to(torch.int64)), 'freqs': _w(freqs), 'w_phi1': _w((lambda *s: torch.randn(*s, dtype=torch.bfloat16) * 3.2)(D, D) / D ** 0.5), 'w_phi2': _w((lambda *s: torch.randn(*s, dtype=torch.bfloat16) * 1.6)(D, 3 * D) / D ** 0.5), 'w_rbf': _w((lambda *s: torch.randn(*s, dtype=torch.bfloat16) * 1.6)(n_rbf, 3 * D) / n_rbf ** 0.5)}

def reference(sv, pos, src, dst, freqs, w_phi1, w_phi2, w_rbf):
    N, _, D = sv.shape
    E = src.shape[0]
    PI, cutoff = (3.141592653589793, 5.0)
    s, v = (sv[:, 0, :].clone(), sv[:, 1:, :].clone())
    r_vec = pos[src] - pos[dst]
    d = torch.sqrt((r_vec * r_vec).sum(-1) + 1e-08)
    r_hat = r_vec / d[:, None]
    rbf = torch.sin(d[:, None] * freqs[None, :]) / d[:, None]
    fcut = 0.5 * (torch.cos(PI * d / cutoff) + 1.0)
    fcut = torch.where(d < cutoff, fcut, 0.0 * d)
    Wf = rbf @ w_rbf * fcut[:, None]
    phi = (_silu(s @ w_phi1) @ w_phi2)[src]
    m = phi * Wf
    m_s, m_vv, m_vr = (m[:, :D].clone(), m[:, D:2 * D].clone(), m[:, 2 * D:].clone())
    ds = _segment_sum(m_s, dst, N)
    dv_e = m_vv[:, None, :] * v[src] + m_vr[:, None, :] * r_hat[:, :, None]
    dv = _segment_sum(dv_e.reshape(E, 3 * D), dst, N).reshape(N, 3, D)
    return sv + torch.concatenate([ds[:, None, :], dv], axis=1)
```

```python
class Asm:
    lblc = [0]
    def __init__(self):
        self.lines = []
    def __call__(self, s):
        for l in s.strip("\n").split("\n"):
            l = l.strip()
            if not l: continue
            if l.endswith(":") or l.startswith("."):
                self.lines.append(l)
            else:
                self.lines.append("    " + l)
    def c(self, s):
        self.lines.append("    ; " + s)
    def label(self, base="L"):
        Asm.lblc[0] += 1
        return f"{base}_{Asm.lblc[0]}"
    def text(self):
        return "\n".join(self.lines) + "\n"

class Regs:
    def __init__(self, prefix, start, limit):
        self.p = prefix; self.n = start; self.limit = limit; self.hi = start
        self.names = {}
    def alloc(self, name, cnt=1, align=1):
        while self.n % align: self.n += 1
        b = self.n; self.n += cnt
        assert self.n <= self.limit, f"out of {self.p} regs at {name}: {self.n}"
        self.hi = max(self.hi, self.n)
        self.names[name] = (b, cnt)
        return b
    def mark(self): return self.n
    def reset(self, m): self.n = m

def vr(b, n=1):
    return f"v{b}" if n == 1 else f"v[{b}:{b+n-1}]"
def sr(b, n=1):
    return f"s{b}" if n == 1 else f"s[{b}:{b+n-1}]"

def kernel_header(a, name):
    a(f".globl {name}")
    a(".p2align 8")
    a(f".type {name},@function")
    a(f"{name}:")

def kernel_desc(name, nv, ns):
    acc = (nv + 3) // 4 * 4
    return f""".p2align 6
.amdhsa_kernel {name}
  .amdhsa_next_free_vgpr {nv}
  .amdhsa_next_free_sgpr {ns}
  .amdhsa_accum_offset {acc}
  .amdhsa_group_segment_fixed_size 0
  .amdhsa_kernarg_size 88
  .amdhsa_user_sgpr_count 2
  .amdhsa_user_sgpr_kernarg_segment_ptr 1
  .amdhsa_system_sgpr_workgroup_id_x 1
.end_amdhsa_kernel
"""
```

```python
from asmlib import *
from layout import *

ROWS = 48
NG = (N + ROWS - 1) // ROWS
WG_EDGE0 = 0
WG_LUT0 = NP
NLUTWG = 5
WG_GEMM0 = NP + NLUTWG + 2
assert WG_GEMM0 + NG == 256
HSTR = 544
L_S = 0
L_V = L_S + ROWS * 512
L_H = L_V + 3 * ROWS * 512
GEMM_LDS = L_H + ROWS * HSTR
L_POS = 0
L_EH = 65536
K1_LDS = max(GEMM_LDS, L_EH + 256)

def rne_bf16(a, dst, src):
    a(f"v_cvt_pk_bf16_f32 v{dst}, v{src}, v{src}")
    a(f"v_and_b32 v{dst}, 0xffff0000, v{dst}")

def lut_row(a, vd, out, t, sF, sC):
    rcp, fc = t, t + 1
    a(f"v_rcp_f32 v{rcp}, v{vd}")
    a(f"v_mul_f32 v{fc}, s{sC}, v{vd}")
    rne_bf16(a, fc, fc)
    a(f"v_mul_f32 v{fc}, s{sC+1}, v{fc}")
    rne_bf16(a, fc, fc)
    a(f"v_mul_f32 v{fc}, s{sC+2}, v{fc}")
    a(f"v_cos_f32 v{fc}, v{fc}")
    a("s_nop 0")
    rne_bf16(a, fc, fc)
    a(f"v_add_f32 v{fc}, 1.0, v{fc}")
    rne_bf16(a, fc, fc)
    a(f"v_mul_f32 v{fc}, 0.5, v{fc}")
    for k in range(0, 16, 2):
        x, y, p = t + 2, t + 3, t + 4
        a(f"""
        v_mul_f32 v{x}, s{sF+k}, v{vd}
        v_mul_f32 v{y}, s{sF+k+1}, v{vd}
        v_cvt_pk_bf16_f32 v{p}, v{x}, v{y}
        v_lshlrev_b32 v{x}, 16, v{p}
        v_and_b32 v{y}, 0xffff0000, v{p}
        v_mul_f32 v{x}, s{sC+2}, v{x}
        v_mul_f32 v{y}, s{sC+2}, v{y}
        v_rndne_f32 v{t+5}, v{x}
        v_rndne_f32 v{t+6}, v{y}
        v_sub_f32 v{x}, v{x}, v{t+5}
        v_sub_f32 v{y}, v{y}, v{t+6}
        v_sin_f32 v{x}, v{x}
        v_sin_f32 v{y}, v{y}
        s_nop 0
        v_cvt_pk_bf16_f32 v{p}, v{x}, v{y}
        v_lshlrev_b32 v{x}, 16, v{p}
        v_and_b32 v{y}, 0xffff0000, v{p}
        v_mul_f32 v{x}, v{x}, v{rcp}
        v_mul_f32 v{y}, v{y}, v{rcp}
        v_cvt_pk_bf16_f32 v{p}, v{x}, v{y}
        v_lshlrev_b32 v{x}, 16, v{p}
        v_and_b32 v{y}, 0xffff0000, v{p}
        v_mul_f32 v{x}, v{x}, v{fc}
        v_mul_f32 v{y}, v{y}, v{fc}
        v_cvt_pk_bf16_f32 v{out+k//2}, v{x}, v{y}
        """)

def srd(a, d, lo, off_sreg, off_imm, size):
    hi = lo + 1
    if off_sreg is None and off_imm == 0:
        a(f"s_mov_b32 s{d}, s{lo}\ns_mov_b32 s{d+1}, s{hi}")
    else:
        if off_sreg is not None:
            if off_imm:
                a(f"s_add_u32 s{off_sreg}, s{off_sreg}, {off_imm}")
            a(f"s_add_u32 s{d}, s{lo}, s{off_sreg}")
        else:
            a(f"s_add_u32 s{d}, s{lo}, {off_imm}")
        a(f"s_addc_u32 s{d+1}, s{hi}, 0")
    a(f"s_mov_b32 s{d+2}, {size}\ns_mov_b32 s{d+3}, 0x20000")

def gen_k1(a, name, opt):
    stamps = opt.get("stamps", False)
    tab_fl = opt.get("tab_flags", "")
    sST = 82
    nst = [0]
    def stamp():
        if stamps:
            a(f"s_memrealtime {sr(sST + 2 * nst[0], 2)}")
            nst[0] += 1
            assert nst[0] <= 10
    def dump_stamps(n):
        if not stamps: return
        a(f"""
        s_waitcnt vmcnt(0)
        s_memrealtime {sr(sST+18,2)}
        s_waitcnt lgkmcnt(0)
        s_add_u32 s40, s24, {WS_DIAG}
        s_addc_u32 s41, s25, 0
        s_mov_b32 s42, 0x100000
        s_mov_b32 s43, 0x20000
        s_lshl_b32 s44, s2, 3
        s_add_u32 s44, s44, s3
        s_lshl_b32 s44, s44, 7
        s_mov_b64 exec, 1
        v_mov_b32 v1, s44
        """)
        for i in list(range(n)) + [9]:
            a(f"v_mov_b32 v2, s{sST+2*i}\nv_mov_b32 v3, s{sST+2*i+1}")
            a(f"buffer_store_dwordx2 v[2:3], v1, s[40:43], 0 offen offset:{8*i}")

    kernel_header(a, name)
    Lend = a.label("K1_END"); Lgemm = a.label("K1_GEMM"); Llut = a.label("K1_LUT")
    a(f"""
    s_cmp_ge_u32 s2, 256
    s_cbranch_scc1 {Lend}
    s_load_dwordx16 s[4:19], s[0:1], 0
    s_load_dwordx4 s[20:23], s[0:1], 64
    s_load_dwordx2 s[24:25], s[0:1], 80
    """)
    stamp()
    a(f"""
    v_lshrrev_b32 v1, 6, v0
    s_nop 0
    v_readfirstlane_b32 s3, v1
    s_cmp_ge_u32 s2, {WG_GEMM0}
    s_cbranch_scc1 {Lgemm}
    s_cmp_ge_u32 s2, {WG_LUT0}
    s_cbranch_scc1 {Llut}
    """)
    nvmax = 0
    V = Regs("v", 1, 256)
    vSRC = V.alloc("src", 8, 2); vDST = V.alloc("dst", 8, 2)
    vP = V.alloc("p", 48)
    vREC = V.alloc("rec", 32, 2)
    vRK = V.alloc("rk", 8)
    vT = V.alloc("t", 12, 2)
    nvmax = max(nvmax, V.hi)
    sSRC, sDST, sPOS, sDBG, sLIST, sMISC = 28, 32, 36, 40, 44, 48
    sT = 52; sACT = 60
    a("s_waitcnt lgkmcnt(0)")
    srd(a, sSRC, 8, None, 0, E * 4)
    srd(a, sDST, 10, None, 0, E * 4)
    srd(a, sPOS, 6, None, 0, N * 6)
    a(f"""
    s_mul_i32 s{sT}, s2, {EPW*4}
    s_add_u32 s{sT+1}, s{sT}, {EPW*2}
    v_lshlrev_b32 v{vT}, 4, v0
    v_mov_b32 v{vT+1}, 0x7ffffff0
    v_cmp_gt_u32 vcc, {EPW//8}, v0
    s_mov_b64 s[{sT+2}:{sT+3}], vcc
    s_nop 0
    v_cndmask_b32 v{vT+1}, v{vT+1}, v{vT}, vcc
    buffer_load_dwordx4 {vr(vSRC,4)}, v{vT+1}, {sr(sSRC,4)}, s{sT} offen
    buffer_load_dwordx4 {vr(vDST,4)}, v{vT+1}, {sr(sDST,4)}, s{sT} offen
    buffer_load_dwordx4 {vr(vSRC+4,4)}, v{vT+1}, {sr(sSRC,4)}, s{sT+1} offen
    buffer_load_dwordx4 {vr(vDST+4,4)}, v{vT+1}, {sr(sDST,4)}, s{sT+1} offen
    s_lshl_b32 s{sT+4}, s3, 10
    """)
    for i in range(8):
        a(f"""
        s_add_u32 m0, s{sT+4}, {L_POS + i*8192}
        s_mov_b32 s{sT+5}, {i*8192}
        buffer_load_dwordx4 v{vT}, {sr(sPOS,4)}, s{sT+5} offen lds
        """)
    srd(a, sDBG, 22, None, 0, 256)
    srd(a, sLIST, 24, None, WS_LIST, NR * LIST_STRIDE)
    srd(a, sMISC, 24, None, WS_LUT, MISC_BYTES)
    a(f"""
    v_mov_b32 v{vT+2}, 0
    v_lshlrev_b32 v{vT+3}, 2, v0
    v_add_u32 v{vT+3}, {L_EH}, v{vT+3}
    v_cmp_gt_u32 vcc, 64, v0
    s_and_saveexec_b64 s[{sT+6}:{sT+7}], vcc
    ds_write_b32 v{vT+3}, v{vT+2}
    s_mov_b64 exec, -1
    """)
    for i in range(48):
        a(f"v_mov_b32 v{vP+i}, 0")
    a("s_waitcnt vmcnt(0) lgkmcnt(0)\ns_barrier")
    stamp()
    for e in range(8):
        a(f"v_mul_u32_u24 v{vT+4}, 6, v{vSRC+e}")
        a(f"v_mul_u32_u24 v{vT+5}, 6, v{vDST+e}")
        for c in range(3):
            a(f"ds_read_u16_d16_hi v{vP+6*e+c}, v{vT+4} offset:{L_POS+2*c}")
            a(f"ds_read_u16_d16_hi v{vP+6*e+3+c}, v{vT+5} offset:{L_POS+2*c}")
        if e % 2 == 1: a("s_waitcnt lgkmcnt(0)")
    a(f"s_mov_b32 s{sT}, 0x322bcc77")
    a(f"v_mov_b32 v{vT+11}, 1")
    for e in range(8):
        p = vP + 6 * e; rec = vREC + 4 * e
        x, y, z, q0, q1, q2, d, pk = p, p + 1, p + 2, p + 3, p + 4, p + 5, vT + 4, vT + 5
        a(f"""
        v_sub_f32 v{x}, v{x}, v{q0}
        v_sub_f32 v{y}, v{y}, v{q1}
        v_sub_f32 v{z}, v{z}, v{q2}
        v_cvt_pk_bf16_f32 v{pk}, v{x}, v{y}
        v_cvt_pk_bf16_f32 v{z}, v{z}, v{z}
        v_lshlrev_b32 v{x}, 16, v{pk}
        v_and_b32 v{y}, 0xffff0000, v{pk}
        v_and_b32 v{z}, 0xffff0000, v{z}
        v_mul_f32 v{q0}, v{x}, v{x}
        v_mul_f32 v{q1}, v{y}, v{y}
        v_mul_f32 v{q2}, v{z}, v{z}
        v_cvt_pk_bf16_f32 v{pk}, v{q0}, v{q1}
        v_cvt_pk_bf16_f32 v{q2}, v{q2}, v{q2}
        v_lshlrev_b32 v{q0}, 16, v{pk}
        v_and_b32 v{q1}, 0xffff0000, v{pk}
        v_and_b32 v{q2}, 0xffff0000, v{q2}
        v_add_f32 v{q0}, v{q0}, v{q1}
        v_add_f32 v{q0}, v{q0}, v{q2}
        """)
        rne_bf16(a, q0, q0)
        a(f"v_add_f32 v{q0}, s{sT}, v{q0}")
        rne_bf16(a, q0, q0)
        a(f"v_sqrt_f32 v{q0}, v{q0}\ns_nop 0")
        rne_bf16(a, d, q0)
        a(f"""
        v_rcp_f32 v{q1}, v{d}
        v_cmp_gt_u32 vcc, {DCUT<<16}, v{d}
        v_subrev_u32 v{d}, {DBASE<<16}, v{d}
        v_mul_f32 v{x}, v{x}, v{q1}
        v_mul_f32 v{y}, v{y}, v{q1}
        v_mul_f32 v{z}, v{z}, v{q1}
        s_and_b64 {sr(sACT+2*e,2)}, vcc, s[{sT+2}:{sT+3}]
        v_cvt_pk_bf16_f32 v{pk}, v{x}, v{y}
        v_cvt_pk_bf16_f32 v{z}, v{z}, v{z}
        v_lshrrev_b32 v{q2}, 5, v{vDST+e}
        v_lshl_or_b32 v{rec}, v{pk}, 16, v{q2}
        v_and_b32 v{rec+1}, 0xffff0000, v{pk}
        v_and_b32 v{rec+2}, 0xffff0000, v{z}
        v_or_b32 v{rec+3}, v{d}, v{vSRC+e}
        v_and_b32 v{vDST+e}, 31, v{vDST+e}
        v_lshlrev_b32 v{vSRC+e}, 2, v{vDST+e}
        v_add_u32 v{vSRC+e}, {L_EH}, v{vSRC+e}
        s_mov_b64 exec, {sr(sACT+2*e,2)}
        ds_add_rtn_u32 v{vRK+e}, v{vSRC+e}, v{vT+11}
        s_mov_b64 exec, -1
        """)
    a("s_waitcnt lgkmcnt(0)\ns_barrier")
    stamp()
    Lna = a.label("K1_NOATOM")
    a(f"""
    s_cmp_lg_u32 s3, 0
    s_cbranch_scc1 {Lna}
    s_mov_b32 exec_hi, 0
    ds_read_b32 v{vT+4}, v{vT+3}
    v_lshlrev_b32 v{vT+5}, 2, v0
    s_waitcnt lgkmcnt(0)
    v_mov_b32 v{vT+6}, v{vT+4}
    buffer_atomic_add v{vT+6}, v{vT+5}, {sr(sDBG,4)}, 0 offen sc0
    v_lshlrev_b32 v{vT+7}, 8, v0
    s_lshl_b32 s{sT+1}, s2, 2
    s_add_u32 s{sT+1}, s{sT+1}, {WS_END-WS_LUT}
    s_waitcnt vmcnt(0)
    ds_write_b32 v{vT+3}, v{vT+6} offset:128
    v_add_u32 v{vT+4}, v{vT+4}, v{vT+6}
    buffer_store_dword v{vT+4}, v{vT+7}, {sr(sMISC,4)}, s{sT+1} offen
    s_mov_b64 exec, -1
    s_waitcnt lgkmcnt(0)
{Lna}:
    s_barrier
    """)
    stamp()
    for e in range(8):
        a(f"ds_read_b32 v{vP+e}, v{vSRC+e} offset:128")
    a(f"s_mov_b32 s{sT}, {E}")
    a("s_waitcnt lgkmcnt(0)")
    for e in range(8):
        Ls = a.label("K1_ES")
        a(f"""
        v_add_u32 v{vP+e}, v{vP+e}, v{vRK+e}
        v_mad_u32_u24 v{vP+e}, v{vDST+e}, s{sT}, v{vP+e}
        v_lshlrev_b32 v{vP+e}, 4, v{vP+e}
        s_mov_b64 exec, {sr(sACT+2*e,2)}
        s_cbranch_execz {Ls}
        buffer_store_dwordx4 {vr(vREC+4*e,4)}, v{vP+e}, {sr(sLIST,4)}, 0 offen
{Ls}:
        s_mov_b64 exec, -1
        """)
    dump_stamps(nst[0])
    a("s_endpgm")

    a(f"{Llut}:")
    a(f"""
    s_cmp_ge_u32 s2, {WG_LUT0+NLUTWG}
    s_cbranch_scc1 {Lend}
    s_waitcnt lgkmcnt(0)
    s_load_dwordx8 s[28:35], s[12:13], 0
    """)
    srd(a, 60, 24, None, WS_LUT, LUT_BYTES)
    a(f"""
    s_sub_u32 s56, s2, {WG_LUT0}
    s_lshl_b32 s56, s56, 9
    v_add_u32 v1, s56, v0
    v_add_u32 v2, {DBASE}, v1
    v_lshlrev_b32 v2, 16, v2
    v_lshlrev_b32 v1, 5, v1
    s_mov_b32 s52, 0x40490fdb
    s_mov_b32 s53, 0x3e4ccccd
    s_mov_b32 s54, 0x3e22f983
    s_waitcnt lgkmcnt(0)
    """)
    for k in range(8):
        a(f"s_lshl_b32 s{36+2*k}, s{28+k}, 16\ns_and_b32 s{37+2*k}, s{28+k}, 0xffff0000")
    lut_row(a, 2, 4, 12, 36, 52)
    a("""
    buffer_store_dwordx4 v[4:7], v1, s[60:63], 0 offen
    buffer_store_dwordx4 v[8:11], v1, s[60:63], 0 offen offset:16
    s_endpgm
    """)

    a(f"{Lgemm}:")
    nst[0] = 1 if stamps else 0
    V = Regs("v", 1, 256)
    vLW1 = V.alloc("lw1"); vLW2 = V.alloc("lw2"); vAS = V.alloc("as", 2); vAH = V.alloc("ah"); vHW = V.alloc("hw")
    vVR = V.alloc("vr"); vO4 = V.alloc("o4"); vO1 = V.alloc("o1")
    vT = V.alloc("t", 8, 2)
    vACC = V.alloc("acc", 72, 4)
    vA = V.alloc("a", 24, 4)
    vBF = V.alloc("bf", 24, 4)
    vW = V.alloc("w", 64, 2)
    vW2b = V.alloc("w2b", 48, 2)
    nvmax = max(nvmax, V.hi)
    sSV, sW1, sW2, sT4, sT1 = 28, 32, 36, 40, 44
    sT = 48; sLO, sHI = 58, 59; sROW = 60
    lane, q, j = vT, vT + 1, vT + 2
    a(f"""
    s_sub_u32 s{sROW}, s2, {WG_GEMM0}
    s_mul_i32 s{sROW}, s{sROW}, {ROWS}
    v_and_b32 v{lane}, 63, v0
    v_lshrrev_b32 v{q}, 4, v{lane}
    v_and_b32 v{j}, 15, v0
    s_mov_b32 s{sLO}, 0x05040100
    s_mov_b32 s{sHI}, 0x07060302
    """)
    a(f"""
    v_lshrrev_b32 v{vT+3}, 5, v0
    v_and_b32 v{vT+4}, 31, v0
    v_and_b32 v{vT+5}, 7, v{vT+3}
    v_lshlrev_b32 v{vT+5}, 1, v{vT+5}
    v_xor_b32 v{vT+5}, v{vT+5}, v{vT+4}
    v_lshlrev_b32 v{vT+3}, 11, v{vT+3}
    v_lshl_add_u32 v{vT+4}, v{vT+4}, 4, v{vT+3}
    v_lshl_add_u32 v{vT+5}, v{vT+5}, 4, v{vT+3}
    s_lshl_b32 s{sT}, s3, 6
    v_lshlrev_b32 v{vT+6}, 2, v{j}
    v_add_u32 v{vT+6}, s{sT}, v{vT+6}
    v_lshl_add_u32 v{vLW1}, v{q}, 12, v{vT+6}
    v_mul_u32_u24 v{vLW2}, {8*1536}, v{q}
    v_add_u32 v{vLW2}, v{vLW2}, v{vT+6}
    s_waitcnt lgkmcnt(0)
    """)
    srd(a, sSV, 4, None, 0, N * 2048)
    srd(a, sW1, 14, None, 0, 256 * 512)
    a(f"s_lshl_b32 s{sT+1}, s{sROW}, 11\ns_lshl_b32 s{sT+2}, s3, 10")
    for i in range(3):
        a(f"""
        s_add_u32 m0, s{sT+2}, {L_S + i*8192}
        s_add_u32 s{sT+3}, s{sT+1}, {i*16*2048}
        buffer_load_dwordx4 v{vT+5}, {sr(sSV,4)}, s{sT+3} offen lds
        """)
    def w1_load(ks):
        a(f"s_mov_b32 s{sT+4}, {ks*16384}")
        for m in range(8):
            a(f"buffer_load_dword v{vW+8*ks+m}, v{vLW1}, {sr(sW1,4)}, s{sT+4} offen offset:{m*512}")
    def w2reg(ks):
        return vW2b + 24 * (ks & 1)
    def w2_load(ks):
        b = w2reg(ks)
        for m in range(8):
            a(f"s_mov_b32 s{sT+4+(m&1)}, {ks*49152 + m*1536}")
            for ty in range(3):
                a(f"buffer_load_dword v{b+8*ty+m}, v{vLW2}, {sr(sW2,4)}, s{sT+4+(m&1)} offen offset:{ty*512}")
    for ks in range(6): w1_load(ks)
    srd(a, sW2, 16, None, 0, 256 * 1536)
    a(f"s_mul_i32 s{sT+6}, s3, {T4_SL}")
    srd(a, sT4, 24, sT + 6, WS_T4, T4_SL)
    a(f"s_mul_i32 s{sT+6}, s3, {T1_SL}")
    srd(a, sT1, 24, sT + 6, WS_T1, T1_SL)
    for c in range(3):
        for i in range(3):
            a(f"""
            s_add_u32 m0, s{sT+2}, {L_V + c*ROWS*512 + i*8192}
            s_add_u32 s{sT+3}, s{sT+1}, {i*16*2048 + 512*(c+1)}
            buffer_load_dwordx4 v{vT+4}, {sr(sSV,4)}, s{sT+3} offen lds
            """)
    a(f"""
    v_and_b32 v{vT+3}, 7, v{j}
    v_lshlrev_b32 v{vT+3}, 1, v{vT+3}
    v_xor_b32 v{vT+3}, v{vT+3}, v{q}
    v_lshlrev_b32 v{vT+3}, 4, v{vT+3}
    v_lshl_add_u32 v{vAS}, v{j}, 9, v{vT+3}
    v_mul_u32_u24 v{vAH}, {HSTR}, v{j}
    v_lshl_add_u32 v{vAH}, v{q}, 4, v{vAH}
    v_add_u32 v{vAH}, {L_H}, v{vAH}
    v_mul_u32_u24 v{vHW}, {4*HSTR}, v{q}
    v_add_u32 v{vHW}, v{vHW}, v{vT+6}
    v_add_u32 v{vHW}, {L_H}, v{vHW}
    v_lshl_add_u32 v{vVR}, v{q}, 11, v{vT+6}
    v_add_u32 v{vVR}, {L_V}, v{vVR}
    v_lshl_add_u32 v{vT+3}, v{q}, 2, s{sROW}
    v_lshlrev_b32 v{vO4}, 8, v{vT+3}
    v_lshl_add_u32 v{vO4}, v{j}, 4, v{vO4}
    v_lshrrev_b32 v{vO1}, 2, v{vO4}
    s_waitcnt vmcnt(57)
    s_barrier
    """)
    stamp()
    def a_read_s(ks, dst):
        a(f"v_xor_b32 v{vAS+1}, {(ks&3)*64}, v{vAS}")
        for mt in range(3):
            a(f"ds_read_b128 {vr(dst+4*mt,4)}, v{vAS+1} offset:{L_S + mt*8192 + (ks>>2)*256}")
    def a_read_h(ks, dst):
        for mt in range(3):
            a(f"ds_read_b128 {vr(dst+4*mt,4)}, v{vAH} offset:{mt*16*HSTR + ks*64}")
    a_read_s(0, vA)
    issued_after = {}
    seq = ["S"] * 3 + [("W1", k) for k in range(6) for _ in range(8)] + ["V"] * 9
    def wait_for(tag):
        last = max(i for i, t in enumerate(seq) if t == tag)
        return min(63, len(seq) - 1 - last)
    for ks in range(8):
        cur = vA + 12 * (ks & 1); nxt = vA + 12 * ((ks + 1) & 1)
        if ks < 7: a_read_s(ks + 1, nxt)
        a(f"s_waitcnt vmcnt({wait_for(('W1', ks))})")
        for m in range(4):
            a(f"v_perm_b32 v{vBF+m}, v{vW+8*ks+2*m+1}, v{vW+8*ks+2*m}, s{sLO}")
            a(f"v_perm_b32 v{vBF+4+m}, v{vW+8*ks+2*m+1}, v{vW+8*ks+2*m}, s{sHI}")
        a(f"s_waitcnt lgkmcnt({3 if ks < 7 else 0})")
        a("s_nop 0")
        for mt in range(3):
            for nt in range(2):
                acc = vACC + (mt * 2 + nt) * 4
                c = "0" if ks == 0 else vr(acc, 4)
                a(f"v_mfma_f32_16x16x32_bf16 {vr(acc,4)}, {vr(cur+4*mt,4)}, {vr(vBF+4*nt,4)}, {c}")
        if ks == 0: w1_load(6); seq += [("W1", 6)] * 8
        if ks == 1: w1_load(7); seq += [("W1", 7)] * 8
        if ks == 4: w2_load(0); seq += [("W2", 0)] * 24
        if ks == 7: w2_load(1); seq += [("W2", 1)] * 24
    stamp()
    a(f"s_mov_b32 s{sT+6}, 0xbfb8aa3b\ns_mov_b32 s{sT+7}, 0xbfb8aa3b")
    for mt in range(3):
        for r in range(4):
            a0, a1 = vACC + (mt * 2) * 4 + r, vACC + (mt * 2 + 1) * 4 + r
            x, e_ = vT, vT + 2
            a(f"""
            v_cvt_pk_bf16_f32 v{vT+4}, v{a0}, v{a1}
            v_lshlrev_b32 v{x}, 16, v{vT+4}
            v_and_b32 v{x+1}, 0xffff0000, v{vT+4}
            v_pk_mul_f32 {vr(e_,2)}, {vr(x,2)}, s[{sT+6}:{sT+7}]
            v_exp_f32 v{e_}, v{e_}
            v_exp_f32 v{e_+1}, v{e_+1}
            s_nop 0
            v_pk_add_f32 {vr(e_,2)}, {vr(e_,2)}, 1.0 op_sel_hi:[1,0]
            v_rcp_f32 v{e_}, v{e_}
            v_rcp_f32 v{e_+1}, v{e_+1}
            s_nop 0
            v_pk_mul_f32 {vr(x,2)}, {vr(x,2)}, {vr(e_,2)}
            v_cvt_pk_bf16_f32 v{vT+4}, v{x}, v{x+1}
            ds_write_b32 v{vHW}, v{vT+4} offset:{(mt*16+r)*HSTR}
            """)
    a(f"s_waitcnt vmcnt({wait_for('V')}) lgkmcnt(0)\ns_barrier")
    stamp()
    a_read_h(0, vA)
    for ks in range(8):
        cur = vA + 12 * (ks & 1); nxt = vA + 12 * ((ks + 1) & 1)
        if ks < 7: a_read_h(ks + 1, nxt)
        a(f"s_waitcnt vmcnt({wait_for(('W2', ks))})")
        b = w2reg(ks)
        for ty in range(3):
            for m in range(4):
                a(f"v_perm_b32 v{vBF+8*ty+m}, v{b+8*ty+2*m+1}, v{b+8*ty+2*m}, s{sLO}")
                a(f"v_perm_b32 v{vBF+8*ty+4+m}, v{b+8*ty+2*m+1}, v{b+8*ty+2*m}, s{sHI}")
        if ks + 2 < 8:
            w2_load(ks + 2); seq += [("W2", ks + 2)] * 24
        a(f"s_waitcnt lgkmcnt({3 if ks < 7 else 0})")
        a("s_nop 0")
        for nt in range(6):
            for mt in range(3):
                acc = vACC + (mt * 6 + nt) * 4
                c = "0" if ks == 0 else vr(acc, 4)
                a(f"v_mfma_f32_16x16x32_bf16 {vr(acc,4)}, {vr(cur+4*mt,4)}, {vr(vBF+4*nt,4)}, {c}")
    stamp()
    vV = vW
    a(f"v_add_u32 v{vT+7}, {2*ROWS*512}, v{vVR}")
    for mt in range(3):
        for r in range(4):
            for c in range(3):
                if c < 2: a(f"ds_read_b32 v{vV+(mt*4+r)*3+c}, v{vVR} offset:{c*ROWS*512 + (mt*16+r)*512}")
                else: a(f"ds_read_b32 v{vV+(mt*4+r)*3+c}, v{vT+7} offset:{(mt*16+r)*512}")
        a("s_waitcnt lgkmcnt(0)")
    a(f"s_movk_i32 s{sT+6}, 0x7fff\ns_add_u32 s{sT+6}, s{sT+6}, 1")
    ob = vW + 40
    for mt in range(3):
        for r in range(4):
            A_ = lambda nt: vACC + (mt * 6 + nt) * 4 + r
            o = ob + 6 * ((mt * 4 + r) & 3)
            vv = vV + (mt * 4 + r) * 3
            for c in range(3):
                a(f"""
                v_lshlrev_b32 v{vT}, 16, v{vv+c}
                v_and_b32 v{vT+1}, 0xffff0000, v{vv+c}
                v_mul_f32 v{vT}, v{vT}, v{A_(2)}
                v_mul_f32 v{vT+1}, v{vT+1}, v{A_(3)}
                """)
                if c != 1: a(f"v_add_u32 v{vT}, s{sT+6}, v{vT}")
                a(f"v_perm_b32 v{o+c}, v{vT+1}, v{vT}, s{sHI}")
            a(f"""
            v_perm_b32 v{o+3}, v{A_(1)}, v{A_(0)}, s{sHI}
            v_add_u32 v{vT}, s{sT+6}, v{A_(4)}
            v_perm_b32 v{o+4}, v{A_(5)}, v{vT}, s{sHI}
            s_movk_i32 s{sT+4}, {mt*16*256}
            buffer_store_dwordx4 {vr(o,4)}, v{vO4}, {sr(sT4,4)}, s{sT+4} offen offset:{r*256} {tab_fl}
            buffer_store_dword v{o+4}, v{vO1}, {sr(sT1,4)}, 0 offen offset:{(mt*16+r)*64} {tab_fl}
            """)
    stamp()
    dump_stamps(nst[0])
    a(f"{Lend}:\ns_endpgm")
    return nvmax, 102
```

```python
from asmlib import *
from layout import *

PADS = 10
SCAP = 1024 + CAPN + 80 + 16 * PADS + 2
L_LUT = 0
L_STREAM = LUT_BYTES
STREAM_BYTES = SCAP * 64
L_CNT = L_STREAM + STREAM_BYTES
L_HIST = L_CNT + 1280
L_ALLOC = L_HIST + 256
L_SORT = L_ALLOC + 64
L_NADDR = L_SORT + 1280
K2_LDS = L_NADDR + 1280
DIRS = [0, 1, 0, 1, 1]

def dpp_scan(a, op, v):
    for m in ["row_shr:1", "row_shr:2", "row_shr:4", "row_shr:8"]:
        a("s_nop 1")
        a(f"{op}_dpp v{v}, v{v}, v{v} {m} row_mask:0xf bank_mask:0xf bound_ctrl:0")
    a("s_nop 1")
    a(f"{op}_dpp v{v}, v{v}, v{v} row_bcast:15 row_mask:0xa bank_mask:0xf")
    a("s_nop 1")
    a(f"{op}_dpp v{v}, v{v}, v{v} row_bcast:31 row_mask:0xc bank_mask:0xf")

def gen_k2(a, name, opt):
    stamps = opt.get("stamps", False)
    res_fl = opt.get("res_flags", "sc1")
    st_fl = opt.get("st_flags", "")
    nores = opt.get("nores", False); nost = opt.get("nost", False); not1 = opt.get("not1", False)
    V = Regs("v", 1, 128)
    vB = V.alloc("B", 12, 2)
    vC1 = V.alloc("c1"); vC2 = V.alloc("c2"); vML = V.alloc("ml"); vCL = V.alloc("cl")
    vS = V.alloc("vS"); vA = V.alloc("vA"); vPEND = V.alloc("pend")
    tmp0 = V.mark()
    vO = V.alloc("O", 5)
    vACC = V.alloc("acc", 10, 2)
    HXY, HZS, LXY, LZS, BZ = vACC, vACC + 2, vACC + 4, vACC + 6, vACC + 8
    vR = V.alloc("R", 4)
    tmp1 = V.mark()
    vRING = V.alloc("ring", 48, 2)
    vD = V.alloc("D", 12, 2)
    vRH = V.alloc("RH", 8, 2)
    vAOP = V.alloc("A", 4, 2)
    vE = V.alloc("E", 4, 2)
    vT = V.alloc("T", 2, 2)
    vPK = V.alloc("PK", 2, 2)
    vLI = V.alloc("LI")
    vAD = V.alloc("ad", 4)
    nv = V.hi
    P = Regs("v", tmp1, 128)
    pREC = P.alloc("rec", 16, 2)
    pRANK = P.alloc("rank", 4)
    pDL = P.alloc("dl", 4)
    pW = P.alloc("w", 16)
    pT = P.alloc("t", 12, 2)
    pRARE0 = P.alloc("rare", 24, 2)
    assert P.hi <= nv, (P.hi, nv)
    P2 = Regs("v", tmp0, tmp1)
    pRARE3 = P2.alloc("rare3", 8, 2)
    pEND = P2.alloc("end")
    rare = [pRARE0, pRARE0 + 8, pRARE0 + 16, pRARE3]

    sT4, sT1, sRES, sOUT, sLIST, sMISC, sWR = 12, 16, 20, 24, 28, 32, 36
    sX, sRG, sW, sCB, sTOT = 40, 41, 42, 43, 44
    sN0 = 45
    sCNT, sSLOT, sNB, s256, s64, sMASK = 50, 51, 52, 53, 54, 55
    sT = 56
    sVAL = 64; sRARE = 72; sFLAG = 80; sFIRST = 81
    sST = 82
    nst = [0]
    def stamp():
        if stamps:
            a(f"s_memrealtime {sr(sST + 2 * nst[0], 2)}")
            nst[0] += 1
            assert nst[0] <= 10

    kernel_header(a, name)
    Lend = a.label("K2_END")
    a(f"""
    s_cmp_ge_u32 s2, 256
    s_cbranch_scc1 {Lend}
    s_load_dwordx2 s[4:5], s[0:1], 0
    s_load_dwordx4 s[8:11], s[0:1], 56
    s_load_dwordx2 s[6:7], s[0:1], 80
    """)
    stamp()
    a(f"""
    s_and_b32 s{sX}, s2, 7
    s_lshr_b32 s{sRG}, s2, 3
    v_lshrrev_b32 v{pT}, 6, v0
    s_movk_i32 s{s256}, 256
    s_movk_i32 s{s64}, 64
    v_readfirstlane_b32 s{sW}, v{pT}
    s_mov_b32 s{sMASK}, 0xffff0000
    s_mov_b32 s{sCB}, 0
    s_mov_b32 s{sFIRST}, 1
    v_mov_b32 v{vPEND}, 15
    """)
    lane, q, j = pT + 1, pT + 2, pT + 3
    a(f"""
    v_and_b32 v{lane}, 63, v0
    v_lshrrev_b32 v{q}, 4, v{lane}
    v_and_b32 v{j}, 15, v0
    v_lshlrev_b32 v{vC1}, 4, v{j}
    v_lshlrev_b32 v{vC2}, 2, v{j}
    v_lshrrev_b32 v{pT+4}, 1, v{q}
    v_and_b32 v{pT+5}, 1, v{j}
    v_cmp_eq_u32 vcc, v{pT+4}, v{pT+5}
    v_and_b32 v{pT+6}, 16, v{lane}
    v_mov_b32 v{pT+7}, 32
    v_cndmask_b32 v{vML}, 0, v{pT+7}, vcc
    v_cndmask_b32 v{vCL}, 0, v{pT+6}, vcc
    """)
    a("s_waitcnt lgkmcnt(0)")
    if opt.get("pst"): stamp()
    def srd(d, lo, hi, off_sreg, off_imm, size):
        if off_sreg is None and off_imm == 0:
            a(f"s_mov_b32 s{d}, s{lo}\ns_mov_b32 s{d+1}, s{hi}")
        else:
            if off_sreg is not None:
                if off_imm:
                    a(f"s_add_u32 s{off_sreg}, s{off_sreg}, {off_imm}")
                a(f"s_add_u32 s{d}, s{lo}, s{off_sreg}")
            else:
                a(f"s_add_u32 s{d}, s{lo}, {off_imm}")
            a(f"s_addc_u32 s{d+1}, s{hi}, 0")
        a(f"s_mov_b32 s{d+2}, {size}\ns_mov_b32 s{d+3}, 0x20000")
    a(f"s_mul_i32 s{sT}, s{sRG}, {LIST_STRIDE}")
    srd(sLIST, 6, 7, sT, WS_LIST, LIST_STRIDE)
    srd(sMISC, 6, 7, None, WS_LUT, MISC_BYTES)
    a(f"""
    s_lshl_b32 s{sT+1}, s{sRG}, 8
    s_add_u32 s{sT+1}, s{sT+1}, {WS_END - WS_LUT}
    v_lshlrev_b32 v{pT+4}, 2, v{lane}
    v_lshlrev_b32 v{pT+5}, 4, v0
    buffer_load_dword v{pEND}, v{pT+4}, {sr(sMISC,4)}, s{sT+1} offen
    s_movk_i32 s{sT+2}, 16384
    s_mov_b32 s{sT+3}, 32768
    s_mov_b32 s{sT+4}, 49152
    s_cmp_lt_u32 s{sW}, 8
    s_cselect_b32 s{sT+4}, s{sT+4}, 0x7fff0000
    buffer_load_dwordx4 {vr(pREC,4)}, v{pT+5}, {sr(sLIST,4)}, 0 offen
    buffer_load_dwordx4 {vr(pREC+4,4)}, v{pT+5}, {sr(sLIST,4)}, s{sT+2} offen
    buffer_load_dwordx4 {vr(pREC+8,4)}, v{pT+5}, {sr(sLIST,4)}, s{sT+3} offen
    buffer_load_dwordx4 {vr(pREC+12,4)}, v{pT+5}, {sr(sLIST,4)}, s{sT+4} offen
    """)
    a(f"""
    s_lshl_b32 s{sT+5}, s{sW}, 10
    s_add_u32 s{sT+5}, s{sT+5}, {L_LUT + LUT_THR*32}
    s_mov_b32 m0, s{sT+5}
    s_mov_b32 s{sT+6}, {LUT_THR*32}
    buffer_load_dwordx4 v{pT+5}, {sr(sMISC,4)}, s{sT+6} offen lds
    """)
    srd(sWR, 8, 9, None, 0, 16 * 768 * 2)
    a(f"""
    v_and_b32 v{pT+4}, 1, v{q}
    v_mul_u32_u24 v{pT+4}, {8*1536}, v{pT+4}
    v_add_u32 v{pT+4}, v{pT+4}, v{vC2}
    s_lshl_b32 s{sT}, s{sX}, 6
    v_add_u32 v{pT+4}, s{sT}, v{pT+4}
    v_cmp_gt_u32 vcc, 2, v{q}
    v_add_u32 v{pT+6}, 512, v{pT+4}
    s_nop 0
    v_cndmask_b32 v{pT+6}, v{pT+4}, v{pT+6}, vcc
    """)
    for m in range(8):
        a(f"s_movk_i32 s{sT+1+(m&1)}, {m*1536}")
        a(f"buffer_load_dword v{pW+m}, v{pT+6}, {sr(sWR,4)}, s{sT+1+(m&1)} offen")
        a(f"buffer_load_dword v{pW+8+m}, v{pT+4}, {sr(sWR,4)}, s{sT+1+(m&1)} offen offset:1024")
    a(f"s_mul_i32 s{sT}, s{sX}, {T4_SL}")
    srd(sT4, 6, 7, sT, WS_T4, 0 if opt.get('not4',False) else T4_SL)
    a(f"s_mul_i32 s{sT}, s{sX}, {T1_SL}")
    srd(sT1, 6, 7, sT, WS_T1, 0 if not1 else T1_SL)
    srd(sRES, 4, 5, None, 0, 0 if nores else N * 2048)
    srd(sOUT, 10, 11, None, 0, 0 if nost else N * 2048)

    def lds_init():
        z = pT + 8
        a(f"""
        v_mov_b32 v{z}, 0
        v_mov_b32 v{z+1}, 0
        v_mov_b32 v{z+2}, 0
        v_mov_b32 v{z+3}, 0xffff
        v_lshlrev_b32 v{pT+4}, 4, v0
        v_add_u32 v{pT+4}, {L_STREAM}, v{pT+4}
        v_add_u32 v{pT+6}, 65536, v{pT+4}
        """)
        nfull = STREAM_BYTES // 16384
        rem = (STREAM_BYTES - nfull * 16384) // 16
        for i in range(nfull):
            if i < 4: a(f"ds_write_b128 v{pT+4}, {vr(z,4)} offset:{i*16384}")
            else: a(f"ds_write_b128 v{pT+6}, {vr(z,4)} offset:{(i-4)*16384}")
        a(f"""
        v_cmp_gt_u32 vcc, {rem}, v0
        s_and_saveexec_b64 s[{sT}:{sT+1}], vcc
        ds_write_b128 v{pT+6}, {vr(z,4)} offset:{(nfull-4)*16384}
        s_mov_b64 exec, s[{sT}:{sT+1}]
        v_lshlrev_b32 v{pT+4}, 2, v0
        v_add_u32 v{pT+6}, {L_CNT}, v{pT+4}
        v_cmp_gt_u32 vcc, 400, v0
        s_and_saveexec_b64 s[{sT}:{sT+1}], vcc
        ds_write_b32 v{pT+6}, v{z}
        v_cmp_gt_u32 vcc, 8, v0
        s_and_b64 exec, exec, vcc
        ds_write_b32 v{pT+4}, v{z} offset:{L_LUT}
        s_mov_b64 exec, s[{sT}:{sT+1}]
        s_waitcnt lgkmcnt(0)
        s_barrier
        """)
    if opt.get("pst"): stamp()
    lds_init()
    if opt.get("pst"): stamp()
    Lcommon = a.label("K2_COMMON"); Lround = a.label("K2_ROUND"); Lk3 = a.label("K2_K3")
    a(f"""
    s_waitcnt vmcnt(21)
    v_and_b32 v{pT+4}, 63, v0
    v_cmp_gt_u32 vcc, {NP}, v{pT+4}
    s_nop 1
    v_cndmask_b32 v{pEND}, 0, v{pEND}, vcc
    """)
    dpp_scan(a, "v_max_u32", pEND)
    a(f"""
    s_nop 1
    v_readlane_b32 s{sTOT}, v{pEND}, 63
    s_nop 3
    s_min_u32 s{sTOT}, s{sTOT}, {E}
    s_cmp_lt_u32 s{sW}, 8
    s_cbranch_scc1 {Lk3}
    s_cmp_le_u32 s{sTOT}, 3584
    s_cbranch_scc1 {Lk3}
    s_waitcnt vmcnt(0)
    v_lshlrev_b32 v{pT+5}, 4, v0
    s_mov_b32 s{sT+4}, 49152
    buffer_load_dwordx4 {vr(pREC+12,4)}, v{pT+5}, {sr(sLIST,4)}, s{sT+4} offen
    s_waitcnt vmcnt(0)
{Lk3}:
    s_waitcnt vmcnt(17)
    s_branch {Lcommon}
{Lround}:
    v_add_u32 v{pT+5}, s{sCB}, v0
    v_lshlrev_b32 v{pT+5}, 4, v{pT+5}
    s_movk_i32 s{sT+2}, 16384
    s_mov_b32 s{sT+3}, 32768
    s_mov_b32 s{sT+4}, 49152
    buffer_load_dwordx4 {vr(pREC,4)}, v{pT+5}, {sr(sLIST,4)}, 0 offen
    buffer_load_dwordx4 {vr(pREC+4,4)}, v{pT+5}, {sr(sLIST,4)}, s{sT+2} offen
    buffer_load_dwordx4 {vr(pREC+8,4)}, v{pT+5}, {sr(sLIST,4)}, s{sT+3} offen
    buffer_load_dwordx4 {vr(pREC+12,4)}, v{pT+5}, {sr(sLIST,4)}, s{sT+4} offen
    """)
    lds_init()
    a(f"""
    s_waitcnt vmcnt(0)
{Lcommon}:
    """)
    stamp()
    one = pT + 4
    a(f"v_mov_b32 v{one}, 1")
    a(f"s_sub_u32 s{sT+2}, s{sTOT}, s{sCB}")
    for k in range(4):
        r0 = pREC + 4 * k
        Lskip = a.label("K2_NORARE")
        a(f"""
        v_add_u32 v{pT+5}, {k*1024}, v0
        v_and_b32 v{pT+6}, {1<<k}, v{vPEND}
        v_cmp_gt_u32 vcc, s{sT+2}, v{pT+5}
        v_cmp_ne_u32 s[{sT}:{sT+1}], 0, v{pT+6}
        v_and_b32 v{pDL+k}, 0xffff, v{r0}
        v_lshlrev_b32 v{pDL+k}, 2, v{pDL+k}
        v_add_u32 v{pDL+k}, {L_CNT}, v{pDL+k}
        v_lshrrev_b32 v{pT+7}, 16, v{r0+3}
        s_and_b64 {sr(sVAL+2*k,2)}, vcc, s[{sT}:{sT+1}]
        s_mov_b64 exec, {sr(sVAL+2*k,2)}
        ds_add_rtn_u32 v{pRANK+k}, v{pDL+k}, v{one}
        s_mov_b64 exec, -1
        v_cmp_gt_u32 vcc, {LUT_THR}, v{pT+7}
        v_lshlrev_b32 v{pT+7}, 5, v{pT+7}
        s_and_b64 {sr(sRARE+2*k,2)}, vcc, {sr(sVAL+2*k,2)}
        s_cbranch_scc0 {Lskip}
        s_mov_b64 exec, {sr(sRARE+2*k,2)}
        buffer_load_dwordx4 {vr(rare[k],4)}, v{pT+7}, {sr(sMISC,4)}, 0 offen
        buffer_load_dwordx4 {vr(rare[k]+4,4)}, v{pT+7}, {sr(sMISC,4)}, 0 offen offset:16
        s_mov_b64 exec, -1
{Lskip}:
        """)
    a("s_waitcnt lgkmcnt(0)\ns_barrier")
    if opt.get("pst"): stamp()
    L7 = a.label("K2_P7"); L8 = a.label("K2_P8")
    deg, rk, hh = pT + 5, pT + 6, pT + 7
    a(f"""
    s_cmp_ge_u32 s{sW}, 5
    s_cbranch_scc1 {L7}
    v_lshlrev_b32 v{pT+8}, 2, v0
    v_add_u32 v{pT+8}, {L_CNT}, v{pT+8}
    ds_read_b32 v{deg}, v{pT+8}
    s_waitcnt lgkmcnt(0)
    v_min_u32 v{deg}, {CAPN}, v{deg}
    v_lshlrev_b32 v{pT+8}, 2, v{deg}
    v_add_u32 v{pT+8}, {L_HIST}, v{pT+8}
    ds_add_rtn_u32 v{rk}, v{pT+8}, v{one}
    s_waitcnt lgkmcnt(0)
{L7}:
    s_barrier
    s_cmp_ge_u32 s{sW}, 5
    s_cbranch_scc1 {L8}
    v_and_b32 v{pT+8}, 63, v0
    v_lshlrev_b32 v{pT+8}, 2, v{pT+8}
    v_sub_u32 v{pT+8}, {L_HIST + 252}, v{pT+8}
    ds_read_b32 v{hh}, v{pT+8}
    s_waitcnt lgkmcnt(0)
    v_mov_b32 v{pT+9}, v{hh}
    """)
    dpp_scan(a, "v_add_u32", hh)
    a(f"""
    v_sub_u32 v{hh}, v{hh}, v{pT+9}
    v_lshlrev_b32 v{pT+8}, 2, v{deg}
    v_sub_u32 v{pT+8}, 252, v{pT+8}
    ds_bpermute_b32 v{pT+9}, v{pT+8}, v{hh}
    v_lshl_or_b32 v{pT+10}, v{deg}, 16, v0
    s_waitcnt lgkmcnt(0)
    v_add_lshl_u32 v{pT+9}, v{pT+9}, v{rk}, 2
    v_add_u32 v{pT+9}, {L_SORT}, v{pT+9}
    ds_write_b32 v{pT+9}, v{pT+10}
    s_waitcnt lgkmcnt(0)
{L8}:
    s_barrier
    """)
    if opt.get("pst"): stamp()
    a("s_waitcnt vmcnt(0)")
    for k in range(4):
        Lskip = a.label("K2_NORARE2")
        a(f"""
        s_cmp_eq_u64 {sr(sRARE+2*k,2)}, 0
        s_cbranch_scc1 {Lskip}
        v_lshrrev_b32 v{pT+7}, 16, v{pREC+4*k+3}
        v_lshlrev_b32 v{pT+7}, 5, v{pT+7}
        s_mov_b64 exec, {sr(sRARE+2*k,2)}
        ds_write_b128 v{pT+7}, {vr(rare[k],4)} offset:{L_LUT}
        ds_write_b128 v{pT+7}, {vr(rare[k]+4,4)} offset:{L_LUT+16}
        s_mov_b64 exec, -1
        s_waitcnt lgkmcnt(0)
{Lskip}:
        """)
    LnoB = a.label("K2_NOB")
    a(f"""
    s_cmp_eq_u32 s{sFIRST}, 0
    s_cbranch_scc1 {LnoB}
    s_mov_b32 s{sT}, 0x05040100
    s_mov_b32 s{sT+1}, 0x07060302
    v_and_b32 v{pT+5}, 32, v0
    v_cmp_eq_u32 vcc, 0, v{pT+5}
    v_mov_b32 v{pT+6}, s{sT}
    v_mov_b32 v{pT+7}, s{sT+1}
    v_cndmask_b32 v{pT+6}, v{pT+7}, v{pT+6}, vcc
    """)
    for m in range(4):
        a(f"v_perm_b32 v{vB+m}, v{pW+2*m+1}, v{pW+2*m}, s{sT+1}")
        a(f"v_perm_b32 v{vB+4+m}, v{pW+2*m+1}, v{pW+2*m}, s{sT}")
        a(f"v_perm_b32 v{vB+8+m}, v{pW+8+2*m+1}, v{pW+8+2*m}, v{pT+6}")
    a(f"{LnoB}:")
    ek = pW
    g4 = pT + 5
    a(f"""
    v_bfe_u32 v{g4}, v0, 4, 2
    s_lshl_b32 s{sT}, s{sW}, 4
    s_sub_u32 s{sT+1}, {L_SORT + 240}, s{sT}
    s_add_u32 s{sT}, s{sT}, {L_SORT}
    v_lshl_add_u32 v{pT+6}, v{g4}, 2, s{sT}
    v_lshl_add_u32 v{pT+7}, v{g4}, 2, s{sT+1}
    """)
    for k in range(5):
        a(f"ds_read_b32 v{ek+k}, v{pT+6+DIRS[k]} offset:{256*k}")
    a("s_waitcnt lgkmcnt(0)")
    for k in range(5):
        a(f"v_readfirstlane_b32 s{sN0+k}, v{ek+k}")
    a("s_nop 1")
    for k in range(5):
        a(f"s_add_u32 s{sN0+k}, s{sN0+k}, 0x10000")
        a(f"s_lshr_b32 s{sN0+k}, s{sN0+k}, 17")
    a(f"""
    s_mov_b32 s{sT+1}, s{sN0}
    s_add_u32 s{sT+2}, s{sT+1}, s{sN0+1}
    s_add_u32 s{sT+3}, s{sT+2}, s{sN0+2}
    s_add_u32 s{sT+4}, s{sT+3}, s{sN0+3}
    s_add_u32 s{sT+5}, s{sT+4}, s{sN0+4}
    s_add_u32 s{sT+5}, s{sT+5}, {PADS//2}
    v_mov_b32 v{pT+8}, s{sT+5}
    v_mov_b32 v{pT+9}, {L_ALLOC}
    s_mov_b64 exec, 1
    ds_add_rtn_u32 v{pT+10}, v{pT+9}, v{pT+8}
    s_mov_b64 exec, -1
    """)
    a(f"""
    s_lshl_b32 s{sT+6}, s{sRG}, 11
    s_lshl_b32 s{sT+7}, s{sX}, 6
    s_add_u32 s{sT+6}, s{sT+6}, s{sT+7}
    v_add_u32 v{pT+8}, s{sT+6}, v{vC2}
    """)
    for k in range(5):
        a(f"v_and_b32 v{ek+k}, 0xffff, v{ek+k}")
        a(f"v_lshl_add_u32 v{vO+k}, v{ek+k}, 16, v{pT+8}")
    r0t = pW + 8
    for c in range(4):
        a(f"buffer_load_dword v{r0t+c}, v{vO}, {sr(sRES,4)}, 0 offen offset:{512*c} {res_fl}")
    for c in range(4):
        a(f"buffer_load_dword v{vR+c}, v{vO+1}, {sr(sRES,4)}, 0 offen offset:{512*c} {res_fl}")
    a(f"""
    s_waitcnt lgkmcnt(0)
    v_readfirstlane_b32 s{sT}, v{pT+10}
    s_nop 1
    s_lshl_b32 s{sT}, s{sT}, 7
    s_add_u32 s{sT}, s{sT}, {L_STREAM}
    v_lshl_add_u32 v{vS}, v{g4}, 4, s{sT}
    v_bfe_u32 v{pT+6}, v0, 1, 1
    v_bfe_u32 v{pT+7}, v0, 2, 2
    v_lshlrev_b32 v{pT+6}, 6, v{pT+6}
    v_lshl_add_u32 v{pT+6}, v{pT+7}, 4, v{pT+6}
    v_add_u32 v{vA}, s{sT}, v{pT+6}
    """)
    for k in range(5):
        a(f"v_lshlrev_b32 v{pT+6}, 2, v{ek+k}")
        a(f"v_add_u32 v{pT+6}, {L_NADDR}, v{pT+6}")
        if k == 0:
            a(f"ds_write_b32 v{pT+6}, v{vS}")
        else:
            a(f"s_lshl_b32 s{sT+7}, s{sT+k}, 7")
            a(f"v_add_u32 v{pT+7}, s{sT+7}, v{vS}")
            a(f"ds_write_b32 v{pT+6}, v{pT+7}")
    a("s_waitcnt lgkmcnt(0)\ns_barrier")
    if opt.get("pst"): stamp()
    for k in range(4):
        a(f"ds_read_b32 v{pT+5+k}, v{pDL+k} offset:{L_NADDR - L_CNT}")
    a(f"v_mov_b32 v{vPEND}, 0")
    a(f"v_mov_b32 v{pT+10}, {L_ALLOC}")
    a("s_waitcnt lgkmcnt(0)")
    for k in range(4):
        r0 = pREC + 4 * k
        a(f"""
        v_cmp_gt_u32 vcc, {CAPN}, v{pRANK+k}
        v_lshl_add_u32 v{pT+5+k}, v{pRANK+k}, 6, v{pT+5+k}
        v_and_b32 v{r0}, s{sMASK}, v{r0}
        s_and_b64 exec, vcc, {sr(sVAL+2*k,2)}
        ds_write_b128 v{pT+5+k}, {vr(r0,4)}
        s_andn2_b64 exec, {sr(sVAL+2*k,2)}, vcc
        v_or_b32 v{vPEND}, {1<<k}, v{vPEND}
        ds_write_b32 v{pT+10}, v{one} offset:4
        s_mov_b64 exec, -1
        """)
    a("s_waitcnt lgkmcnt(0)\ns_barrier")
    stamp()
    if stamps and not opt.get("pst"): a(f"s_memtime s[96:97]")
    def ring(bslot, st): return vRING + (bslot * 2 + st) * 6
    def issue(bslot, pk0):
        for st in range(2):
            a(f"v_mad_u32_u16 v{vAD+2*st}, v{pk0+st}, s{s256}, v{vC1}")
            a(f"v_mad_u32_u16 v{vAD+2*st+1}, v{pk0+st}, s{s64}, v{vC2}")
        for st in range(2):
            if opt.get("novmem"): continue
            rg = ring(bslot, st)
            a(f"buffer_load_dwordx4 {vr(rg,4)}, v{vAD+2*st}, {sr(sT4,4)}, 0 offen")
            a(f"buffer_load_dword v{rg+5}, v{vAD+2*st+1}, {sr(sT1,4)}, 0 offen")
    def acc_init(rr):
        a(f"""
        v_and_b32 v{HXY}, s{sMASK}, v{rr+1}
        v_and_b32 v{HXY+1}, s{sMASK}, v{rr+2}
        v_and_b32 v{HZS}, s{sMASK}, v{rr+3}
        v_and_b32 v{HZS+1}, s{sMASK}, v{rr}
        v_lshlrev_b32 v{LXY}, 16, v{rr+1}
        v_lshlrev_b32 v{LXY+1}, 16, v{rr+2}
        v_lshlrev_b32 v{LZS}, 16, v{rr+3}
        v_lshlrev_b32 v{LZS+1}, 16, v{rr}
        v_mov_b64 {vr(BZ,2)}, 0
        """)
    assert not (vD <= r0t < vD + 12), "alias"
    a(f"""
    ds_read_b32 v{vT}, v{pT+10} offset:4
    ds_read2_b32 {vr(vD,2)}, v{vS} offset0:3 offset1:19
    ds_read2_b32 {vr(vD+2,2)}, v{vS} offset0:35 offset1:51
    ds_read2_b32 {vr(vD+4,2)}, v{vS} offset0:67 offset1:83
    ds_read_u16 v{vLI}, v{vA} offset:14
    s_waitcnt vmcnt(4)
    """)
    acc_init(r0t)
    a("s_waitcnt lgkmcnt(0)")
    a(f"v_readfirstlane_b32 s{sFLAG}, v{vT}")
    for b in range(3):
        issue(b, vD + 2 * b)
    a(f"""
    v_mad_u32_u16 v{vAD}, v{vLI}, v{vML}, v{vCL}
    ds_read_b128 {vr(vAOP,4)}, v{vAD} offset:{L_LUT}
    ds_read2_b32 {vr(vPK,2)}, v{vS} offset0:99 offset1:115
    ds_read_u16 v{vLI}, v{vA} offset:{128+14}
    ds_read_b128 {vr(vRH,4)}, v{vS}
    ds_read_b128 {vr(vRH+4,4)}, v{vS} offset:64
    s_mov_b32 s{sSLOT}, 5
    s_mov_b32 s{sCNT}, s{sN0}
    s_mov_b32 s{sNB}, s{sN0}
    """)
    Lph = [a.label(f"K2_PH{p}") for p in range(4)]
    Lep = [a.label(f"K2_EP{p}") for p in range(4)]
    Ldone = a.label("K2_DONE")
    Lep0 = a.label("K2_EPE")
    a(f"s_cmp_eq_u32 s{sCNT}, 0\ns_cbranch_scc1 {Lep0}")
    for p in range(4):
        a(f"{Lph[p]}:")
        a("s_waitcnt lgkmcnt(2)")
        for o in range(3):
            if opt.get("nomfma"): continue
            a(f"v_mfma_f32_16x16x32_bf16 {vr(vD+4*o,4)}, {vr(vAOP,4)}, {vr(vB+4*o,4)}, 0")
        issue((p + 3) % 4, vPK)
        a(f"""
        v_mad_u32_u16 v{vT}, v{vLI}, v{vML}, v{vCL}
        ds_read_b128 {vr(vAOP,4)}, v{vT} offset:{L_LUT}
        ds_read2_b32 {vr(vPK,2)}, v{vS} offset0:{(p+4)*32+3} offset1:{(p+4)*32+19}
        ds_read_u16 v{vLI}, v{vA} offset:{(p+2)*128+14}
        s_waitcnt vmcnt(12) lgkmcnt(3)
        """)
        for st in range(2):
            if opt.get("novalu"): continue
            rg = ring(p, st); rh = vRH + 4 * st
            d1, d2, d3 = vD + 2 * st, vD + 4 + 2 * st, vD + 8 + 2 * st
            a(f"""
            v_lshlrev_b32 v{rg+4}, 16, v{rg+5}
            v_lshlrev_b64 {vr(vE,2)}, 16, {vr(rg,2)}
            v_pk_mul_f32 {vr(vT,2)}, {vr(d3,2)}, {vr(rg+4,2)}
            v_lshlrev_b64 {vr(vE+2,2)}, 16, {vr(rg+2,2)}
            v_pk_fma_f32 {vr(HXY,2)}, {vr(d1,2)}, {vr(rg,2)}, {vr(HXY,2)} op_sel_hi:[0,1,1]
            v_pk_fma_f32 {vr(HZS,2)}, {vr(d1,2)}, {vr(rg+2,2)}, {vr(HZS,2)}
            v_pk_fma_f32 {vr(LXY,2)}, {vr(d2,2)}, {vr(vE,2)}, {vr(LXY,2)} op_sel_hi:[0,1,1]
            v_pk_fma_f32 {vr(LZS,2)}, {vr(d2,2)}, {vr(vE+2,2)}, {vr(LZS,2)}
            v_pk_fma_f32 {vr(BZ,2)}, {vr(vT,2)}, {vr(rh+2,2)}, {vr(BZ,2)} op_sel_hi:[1,0,1]
            v_pk_fma_f32 {vr(HXY,2)}, {vr(vT,2)}, {vr(rh,2)}, {vr(HXY,2)} op_sel:[1,0,0]
            v_pk_fma_f32 {vr(LXY,2)}, {vr(vT,2)}, {vr(rh,2)}, {vr(LXY,2)} op_sel_hi:[0,1,1]
            """)
        a(f"""
        ds_read_b128 {vr(vRH,4)}, v{vS} offset:{(p+1)*128}
        ds_read_b128 {vr(vRH+4,4)}, v{vS} offset:{(p+1)*128+64}
        """)
        if p == 3:
            a(f"v_add_u32 v{vS}, 512, v{vS}\nv_add_u32 v{vA}, 512, v{vA}")
        a(f"s_sub_u32 s{sCNT}, s{sCNT}, 1\ns_cmp_eq_u32 s{sCNT}, 0")
        if p < 3:
            a(f"s_cbranch_scc1 {Lep[p]}")
        else:
            a(f"s_cbranch_scc0 {Lph[0]}")
    for p in [3, 0, 1, 2]:
        a(f"{Lep[p]}:")
        if p == 3: a(f"{Lep0}:")
        Lw = a.label("K2_EW")
        a(f"""
        v_add_f32 v{LZS}, v{LZS}, v{BZ}
        v_add_f32 v{HZS}, v{HZS}, v{BZ+1}
        v_cvt_pk_bf16_f32 v{vE}, v{LZS+1}, v{HZS+1}
        v_cvt_pk_bf16_f32 v{vE+1}, v{LXY}, v{HXY}
        v_cvt_pk_bf16_f32 v{vE+2}, v{LXY+1}, v{HXY+1}
        v_cvt_pk_bf16_f32 v{vE+3}, v{LZS}, v{HZS}
        s_cmp_ge_u32 s{sNB}, 3
        s_cbranch_scc1 {Lw}
        s_waitcnt vmcnt(0)
{Lw}:
        """)
        for c in range(4):
            a(f"buffer_store_dword v{vE+c}, v{vO}, {sr(sOUT,4)}, 0 offen offset:{512*c} {st_fl}")
        a(f"s_sub_u32 s{sSLOT}, s{sSLOT}, 1\ns_cmp_eq_u32 s{sSLOT}, 0\ns_cbranch_scc1 {Ldone}")
        acc_init(vR)
        for k in range(4):
            a(f"v_mov_b32 v{vO+k}, v{vO+k+1}")
            a(f"s_mov_b32 s{sN0+k}, s{sN0+k+1}")
        a(f"v_mov_b32 v{vO+4}, 0x7ffff000")
        for c in range(4):
            a(f"buffer_load_dword v{vR+c}, v{vO+1}, {sr(sRES,4)}, 0 offen offset:{512*c} {res_fl}")
        a(f"""
        s_mov_b32 s{sCNT}, s{sN0}
        s_mov_b32 s{sNB}, s{sN0}
        s_cmp_eq_u32 s{sCNT}, 0
        s_cbranch_scc1 {Lep[p]}
        s_branch {Lph[(p+1)%4]}
        """)
    Lfin = a.label("K2_FIN"); Lnext = a.label("K2_NEXT")
    a(f"""
{Ldone}:
    s_cmp_lg_u32 s{sFLAG}, 0
    s_cbranch_scc1 {Lnext}
    s_add_u32 s{sCB}, s{sCB}, 4096
    s_cmp_ge_u32 s{sCB}, s{sTOT}
    s_cbranch_scc1 {Lfin}
    v_mov_b32 v{vPEND}, 15
{Lnext}:
    s_waitcnt vmcnt(0) lgkmcnt(0)
    s_barrier
    s_mov_b32 s{sFIRST}, 0
    s_mov_b32 s{sRES}, s10
    s_mov_b32 s{sRES+1}, s11
    s_branch {Lround}
{Lfin}:
    """)
    if opt.get("pst"):
        stamp()
    elif stamps:
        stamp()
        a(f"s_memtime s[98:99]")
        a("s_waitcnt vmcnt(0)")
        stamp()
        a(f"s_waitcnt lgkmcnt(0)\ns_sub_u32 s{sST+2*nst[0]}, s98, s96\ns_mov_b32 s{sST+2*nst[0]+1}, 0")
        nst[0] += 1
    if stamps:
        a(f"""
        s_waitcnt lgkmcnt(0)
        s_add_u32 s{sLIST}, s6, {WS_DIAG + (1<<20)}
        s_addc_u32 s{sLIST+1}, s7, 0
        s_lshl_b32 s{sT}, s2, 4
        s_add_u32 s{sT}, s{sT}, s{sW}
        s_lshl_b32 s{sT}, s{sT}, 7
        v_mov_b32 v1, s{sT}
        s_mov_b64 exec, 1
        """)
        for i in range(nst[0]):
            a(f"v_mov_b32 v2, s{sST+2*i}\nv_mov_b32 v3, s{sST+2*i+1}")
            a(f"buffer_store_dwordx2 v[2:3], v1, {sr(sLIST,4)}, 0 offen offset:{8*i}")
    a(f"{Lend}:\ns_endpgm")
    return nv, 102
```

```python
N = 10000
E = 160000
NSL = 8
NR = 32
NP = 40
EPW = E // NP
T4_SL = N * 256
T1_SL = N * 64
WS_T4 = 0
WS_T1 = WS_T4 + NSL * T4_SL
WS_LUT = WS_T1 + NSL * T1_SL
LUT_ROWS = 2080
LUT_BYTES = LUT_ROWS * 32
WS_END = WS_LUT + 67584
MISC_BYTES = 67584 + 8192
WS_LIST = 26 * 1024 * 1024
LIST_STRIDE = E * 16
WS_DIAG = 200 * 1024 * 1024
DBASE = 0x3880
DCUT = 0x409D
LUT_THR = 1568
CAPN = 62
```

```python
import sys, json
from asmlib import *
from layout import *
import gen_k2
HDR = open('standalone__molecular_angular_painn__graph.s.ref').read().split("; Override")[0]
def build(opt):
    a = Asm()
    launches = []; descs = []
    body = Asm()
    if opt.get("k1", True):
        import gen_k1
        nv, ns = gen_k1.gen_k1(body, "painn_prep_kernel", opt)
        launches.append(f"; @launch kernel=painn_prep_kernel grid=(256,1,1) block=(512,1,1) lds={gen_k1.K1_LDS}")
        descs.append(kernel_desc("painn_prep_kernel", nv, ns))
        print("K1 vgprs", nv, "lds", gen_k1.K1_LDS, file=sys.stderr)
    if opt.get("k2", True):
        nv, ns = gen_k2.gen_k2(body, "painn_gather_kernel", opt)
        launches.append(f"; @launch kernel=painn_gather_kernel grid=(256,1,1) block=(1024,1,1) lds={gen_k2.K2_LDS}")
        descs.append(kernel_desc("painn_gather_kernel", nv, ns))
        print("K2 vgprs", nv, "lds", gen_k2.K2_LDS, file=sys.stderr)
    txt = HDR + "\n".join(launches) + "\n" + '.amdgcn_target "amdgcn-amd-amdhsa--gfx950"\n.text\n' + body.text() + '.section .rodata,"a"\n' + "".join(descs)
    return txt
if __name__ == "__main__":
    out = sys.argv[1]
    opt = json.loads(sys.argv[2]) if len(sys.argv) > 2 else {}
    open(out, "w").write(build(opt))
```

```python
import sys, json
from asmlib import *
from layout import *
import gen_k2
HDR = open('standalone__molecular_angular_painn__graph.s.ref').read().split("; Override")[0]
def build(opt):
    a = Asm()
    launches = []; descs = []
    body = Asm()
    if opt.get("k1", True):
        import gen_k1
        nv, ns = gen_k1.gen_k1(body, "painn_prep_kernel", opt)
        launches.append(f"; @launch kernel=painn_prep_kernel grid=(256,1,1) block=(512,1,1) lds={gen_k1.K1_LDS}")
        descs.append(kernel_desc("painn_prep_kernel", nv, ns))
        print("K1 vgprs", nv, "lds", gen_k1.K1_LDS, file=sys.stderr)
    if opt.get("k2", True):
        nv, ns = gen_k2.gen_k2(body, "painn_gather_kernel", opt)
        launches.append(f"; @launch kernel=painn_gather_kernel grid=(256,1,1) block=(512,1,1) lds={gen_k2.K2_LDS}")
        descs.append(kernel_desc("painn_gather_kernel", nv, ns))
        print("K2 vgprs", nv, "lds", gen_k2.K2_LDS, file=sys.stderr)
    if opt.get("probe"):
        offA, offB = opt["probe"]
        kernel_header(body, "probe_kernel")
        body(f"""
        s_memrealtime s[10:11]
        s_cmp_ge_u32 s2, 1
        s_cbranch_scc1 PROBE_END
        s_load_dwordx2 s[4:5], s[0:1], 80
        s_waitcnt lgkmcnt(0)
        s_add_u32 s4, s4, {WS_DIAG}
        s_addc_u32 s5, s5, 0
        s_load_dwordx2 s[6:7], s[4:5], {offA}
        """)
        if offB >= 0:
            body(f"s_add_u32 s4, s4, {offB}\ns_addc_u32 s5, s5, 0\ns_load_dwordx2 s[8:9], s[4:5], 0\ns_waitcnt lgkmcnt(0)")
        else:
            body("s_waitcnt lgkmcnt(0)\ns_mov_b32 s8, s10")
        body("""
        s_sub_u32 s6, s8, s6
        s_min_u32 s6, s6, 20000
        s_mul_i32 s6, s6, 10
PROBE_L:
        s_memrealtime s[12:13]
        s_waitcnt lgkmcnt(0)
        s_sub_u32 s12, s12, s10
        s_cmp_lt_u32 s12, s6
        s_cbranch_scc1 PROBE_L
PROBE_END:
        s_endpgm
        """)
        launches.append("; @launch kernel=probe_kernel grid=(1,1,1) block=(64,1,1) lds=0")
        descs.append(kernel_desc("probe_kernel", 8, 24))
    txt = HDR + "\n".join(launches) + "\n" + '.amdgcn_target "amdgcn-amd-amdhsa--gfx950"\n.text\n' + body.text() + '.section .rodata,"a"\n' + "".join(descs)
    return txt
if __name__ == "__main__":
    out = sys.argv[1]
    opt = json.loads(sys.argv[2]) if len(sys.argv) > 2 else {}
    open(out, "w").write(build(opt))
```

```python
from asmlib import *
from layout import *

ROWS = 48
NG = (N + ROWS - 1) // ROWS
WG_EDGE0 = 0
WG_LUT0 = NP
NLUTWG = 5
WG_GEMM0 = NP + NLUTWG + 2
assert WG_GEMM0 + NG == 256
L_RING = 0
L_V = 65536
L_H = L_V + 3 * ROWS * 512
GEMM_LDS = L_H + ROWS * 512
L_POS = 0
L_IMG = 0
L_EH = 16 * WIN_B
L_CNT = L_EH + 256
L_HIST = L_CNT + 1280
L_MISC = L_HIST + 256
L_SORT = L_MISC + 256
L_NADDR = L_SORT + 1280
K1_LDS = max(GEMM_LDS, L_NADDR + 1280)
DONE_OFF = 192
NRR = 24
WG_BOP = WG_LUT0 + NLUTWG
from gen_k2 import dpp_scan, DIRS, HS

def rne_bf16(a, dst, src):
    a(f"v_cvt_pk_bf16_f32 v{dst}, v{src}, v{src}")
    a(f"v_and_b32 v{dst}, 0xffff0000, v{dst}")

def lut_row(a, vd, out, t, sF, sC):
    rcp, fc = t, t + 1
    a(f"v_rcp_f32 v{rcp}, v{vd}")
    a(f"v_mul_f32 v{fc}, s{sC}, v{vd}")
    rne_bf16(a, fc, fc)
    a(f"v_mul_f32 v{fc}, s{sC+1}, v{fc}")
    rne_bf16(a, fc, fc)
    a(f"v_mul_f32 v{fc}, s{sC+2}, v{fc}")
    a(f"v_cos_f32 v{fc}, v{fc}")
    a("s_nop 0")
    rne_bf16(a, fc, fc)
    a(f"v_add_f32 v{fc}, 1.0, v{fc}")
    rne_bf16(a, fc, fc)
    a(f"v_mul_f32 v{fc}, 0.5, v{fc}")
    for k in range(0, 16, 2):
        x, y, p = t + 2, t + 3, t + 4
        a(f"""
        v_mul_f32 v{x}, s{sF+k}, v{vd}
        v_mul_f32 v{y}, s{sF+k+1}, v{vd}
        v_cvt_pk_bf16_f32 v{p}, v{x}, v{y}
        v_lshlrev_b32 v{x}, 16, v{p}
        v_and_b32 v{y}, 0xffff0000, v{p}
        v_mul_f32 v{x}, s{sC+2}, v{x}
        v_mul_f32 v{y}, s{sC+2}, v{y}
        v_rndne_f32 v{t+5}, v{x}
        v_rndne_f32 v{t+6}, v{y}
        v_sub_f32 v{x}, v{x}, v{t+5}
        v_sub_f32 v{y}, v{y}, v{t+6}
        v_sin_f32 v{x}, v{x}
        v_sin_f32 v{y}, v{y}
        s_nop 0
        v_cvt_pk_bf16_f32 v{p}, v{x}, v{y}
        v_lshlrev_b32 v{x}, 16, v{p}
        v_and_b32 v{y}, 0xffff0000, v{p}
        v_mul_f32 v{x}, v{x}, v{rcp}
        v_mul_f32 v{y}, v{y}, v{rcp}
        v_cvt_pk_bf16_f32 v{p}, v{x}, v{y}
        v_lshlrev_b32 v{x}, 16, v{p}
        v_and_b32 v{y}, 0xffff0000, v{p}
        v_mul_f32 v{x}, v{x}, v{fc}
        v_mul_f32 v{y}, v{y}, v{fc}
        v_cvt_pk_bf16_f32 v{out+k//2}, v{x}, v{y}
        """)

def srd(a, d, lo, off_sreg, off_imm, size):
    hi = lo + 1
    if off_sreg is None and off_imm == 0:
        a(f"s_mov_b32 s{d}, s{lo}\ns_mov_b32 s{d+1}, s{hi}")
    else:
        if off_sreg is not None:
            if off_imm:
                a(f"s_add_u32 s{off_sreg}, s{off_sreg}, {off_imm}")
            a(f"s_add_u32 s{d}, s{lo}, s{off_sreg}")
        else:
            a(f"s_add_u32 s{d}, s{lo}, {off_imm}")
        a(f"s_addc_u32 s{d+1}, s{hi}, 0")
    a(f"s_mov_b32 s{d+2}, {size}\ns_mov_b32 s{d+3}, 0x20000")

def gen_k1(a, name, opt):
    stamps = opt.get("stamps", False)
    tab_fl = opt.get("tab_flags", "")
    sST = 82
    nst = [0]
    def stamp():
        if stamps:
            a(f"s_memrealtime {sr(sST + 2 * nst[0], 2)}")
            nst[0] += 1
            assert nst[0] <= 10
    def dump_stamps(n):
        if not stamps: return
        a(f"""
        s_waitcnt vmcnt(0)
        s_memrealtime {sr(sST+18,2)}
        s_waitcnt lgkmcnt(0)
        s_add_u32 s40, s24, {WS_DIAG}
        s_addc_u32 s41, s25, 0
        s_mov_b32 s42, 0x100000
        s_mov_b32 s43, 0x20000
        s_lshl_b32 s44, s2, 3
        s_add_u32 s44, s44, s3
        s_lshl_b32 s44, s44, 7
        s_mov_b64 exec, 1
        v_mov_b32 v1, s44
        """)
        for i in list(range(n)) + [9]:
            a(f"v_mov_b32 v2, s{sST+2*i}\nv_mov_b32 v3, s{sST+2*i+1}")
            a(f"buffer_store_dwordx2 v[2:3], v1, s[40:43], 0 offen offset:{8*i}")

    kernel_header(a, name)
    Lend = a.label("K1_END"); Lgemm = a.label("K1_GEMM"); Llut = a.label("K1_LUT")
    a(f"""
    s_cmp_ge_u32 s2, 256
    s_cbranch_scc1 {Lend}
    s_load_dwordx16 s[4:19], s[0:1], 0
    s_load_dwordx4 s[20:23], s[0:1], 64
    s_load_dwordx2 s[24:25], s[0:1], 80
    """)
    stamp()
    a(f"""
    v_lshrrev_b32 v1, 6, v0
    s_nop 0
    v_readfirstlane_b32 s3, v1
    s_cmp_ge_u32 s2, {WG_GEMM0}
    s_cbranch_scc1 {Lgemm}
    s_cmp_ge_u32 s2, {WG_LUT0}
    s_cbranch_scc1 {Llut}
    """)
    nvmax = 0
    V = Regs("v", 1, 256)
    vSRC = V.alloc("src", 8, 2); vDST = V.alloc("dst", 8, 2)
    vP = V.alloc("p", 48)
    vREC = V.alloc("rec", 32, 2)
    vRK = V.alloc("rk", 8)
    vT = V.alloc("t", 12, 2)
    nvmax = max(nvmax, V.hi)
    sSRC, sDST, sPOS, sDBG, sLIST, sMISC = 28, 32, 36, 40, 44, 48
    sT = 52; sACT = 60
    a("s_waitcnt lgkmcnt(0)")
    srd(a, sSRC, 8, None, 0, E * 4)
    srd(a, sDST, 10, None, 0, E * 4)
    srd(a, sPOS, 6, None, 0, N * 6)
    a(f"""
    s_mul_i32 s{sT}, s2, {EPW*4}
    s_add_u32 s{sT+1}, s{sT}, {EPW*2}
    v_lshlrev_b32 v{vT}, 4, v0
    v_mov_b32 v{vT+1}, 0x7ffffff0
    v_cmp_gt_u32 vcc, {EPW//8}, v0
    s_mov_b64 s[{sT+2}:{sT+3}], vcc
    s_nop 0
    v_cndmask_b32 v{vT+1}, v{vT+1}, v{vT}, vcc
    buffer_load_dwordx4 {vr(vSRC,4)}, v{vT+1}, {sr(sSRC,4)}, s{sT} offen
    buffer_load_dwordx4 {vr(vDST,4)}, v{vT+1}, {sr(sDST,4)}, s{sT} offen
    buffer_load_dwordx4 {vr(vSRC+4,4)}, v{vT+1}, {sr(sSRC,4)}, s{sT+1} offen
    buffer_load_dwordx4 {vr(vDST+4,4)}, v{vT+1}, {sr(sDST,4)}, s{sT+1} offen
    s_lshl_b32 s{sT+4}, s3, 10
    """)
    for i in range(8):
        a(f"""
        s_add_u32 m0, s{sT+4}, {L_POS + i*8192}
        s_mov_b32 s{sT+5}, {i*8192}
        buffer_load_dwordx4 v{vT}, {sr(sPOS,4)}, s{sT+5} offen lds
        """)
    srd(a, sDBG, 22, None, 0, 256)
    srd(a, sLIST, 24, None, WS_LIST, NR * LIST_STRIDE)
    srd(a, sMISC, 24, None, WS_LUT, MISC_BYTES)
    a(f"""
    v_mov_b32 v{vT+2}, 0
    v_lshlrev_b32 v{vT+3}, 2, v0
    v_add_u32 v{vT+3}, {L_EH}, v{vT+3}
    ds_write_b32 v{vT+3}, v{vT+2}
    """)
    for i in range(48):
        a(f"v_mov_b32 v{vP+i}, 0")
    a("s_waitcnt vmcnt(0) lgkmcnt(0)\ns_barrier")
    stamp()
    for e in range(8):
        a(f"v_mul_u32_u24 v{vT+4}, 6, v{vSRC+e}")
        a(f"v_mul_u32_u24 v{vT+5}, 6, v{vDST+e}")
        for c in range(3):
            a(f"ds_read_u16_d16_hi v{vP+6*e+c}, v{vT+4} offset:{L_POS+2*c}")
            a(f"ds_read_u16_d16_hi v{vP+6*e+3+c}, v{vT+5} offset:{L_POS+2*c}")
        if e % 2 == 1: a("s_waitcnt lgkmcnt(0)")
    a(f"s_mov_b32 s{sT}, 0x322bcc77")
    a(f"v_mov_b32 v{vT+11}, 1")
    for e in range(8):
        p = vP + 6 * e; rec = vREC + 4 * e
        x, y, z, q0, q1, q2, d, pk = p, p + 1, p + 2, p + 3, p + 4, p + 5, vT + 4, vT + 5
        a(f"""
        v_sub_f32 v{x}, v{x}, v{q0}
        v_sub_f32 v{y}, v{y}, v{q1}
        v_sub_f32 v{z}, v{z}, v{q2}
        v_cvt_pk_bf16_f32 v{pk}, v{x}, v{y}
        v_cvt_pk_bf16_f32 v{z}, v{z}, v{z}
        v_lshlrev_b32 v{x}, 16, v{pk}
        v_and_b32 v{y}, 0xffff0000, v{pk}
        v_and_b32 v{z}, 0xffff0000, v{z}
        v_mul_f32 v{q0}, v{x}, v{x}
        v_mul_f32 v{q1}, v{y}, v{y}
        v_mul_f32 v{q2}, v{z}, v{z}
        v_cvt_pk_bf16_f32 v{pk}, v{q0}, v{q1}
        v_cvt_pk_bf16_f32 v{q2}, v{q2}, v{q2}
        v_lshlrev_b32 v{q0}, 16, v{pk}
        v_and_b32 v{q1}, 0xffff0000, v{pk}
        v_and_b32 v{q2}, 0xffff0000, v{q2}
        v_add_f32 v{q0}, v{q0}, v{q1}
        v_add_f32 v{q0}, v{q0}, v{q2}
        """)
        rne_bf16(a, q0, q0)
        a(f"v_add_f32 v{q0}, s{sT}, v{q0}")
        rne_bf16(a, q0, q0)
        a(f"v_sqrt_f32 v{q0}, v{q0}\ns_nop 0")
        rne_bf16(a, d, q0)
        a(f"""
        v_rcp_f32 v{q1}, v{d}
        v_cmp_gt_u32 vcc, {DCUT<<16}, v{d}
        v_subrev_u32 v{d}, {DBASE<<16}, v{d}
        v_mul_f32 v{x}, v{x}, v{q1}
        v_mul_f32 v{y}, v{y}, v{q1}
        v_mul_f32 v{z}, v{z}, v{q1}
        s_and_b64 {sr(sACT+2*e,2)}, vcc, s[{sT+2}:{sT+3}]
        v_cvt_pk_bf16_f32 v{pk}, v{x}, v{y}
        v_cvt_pk_bf16_f32 v{z}, v{z}, v{z}
        v_lshrrev_b32 v{q2}, 5, v{vDST+e}
        v_lshl_or_b32 v{rec}, v{pk}, 16, v{q2}
        v_and_b32 v{rec+1}, 0xffff0000, v{pk}
        v_and_b32 v{rec+2}, 0xffff0000, v{z}
        v_or_b32 v{rec+3}, v{d}, v{vSRC+e}
        v_and_b32 v{vDST+e}, 31, v{vDST+e}
        v_lshlrev_b32 v{vSRC+e}, 2, v{vDST+e}
        v_add_u32 v{vSRC+e}, {L_EH}, v{vSRC+e}
        s_mov_b64 exec, {sr(sACT+2*e,2)}
        ds_add_rtn_u32 v{vRK+e}, v{vSRC+e}, v{vT+11}
        s_mov_b64 exec, -1
        """)
    a("s_waitcnt lgkmcnt(0)\ns_barrier")
    stamp()
    Lna = a.label("K1_NOATOM")
    a(f"""
    s_cmp_lg_u32 s3, 0
    s_cbranch_scc1 {Lna}
    s_mov_b32 exec_hi, 0
    ds_read_b32 v{vT+4}, v{vT+3}
    v_lshlrev_b32 v{vT+5}, 2, v0
    s_waitcnt lgkmcnt(0)
    v_mov_b32 v{vT+6}, v{vT+4}
    buffer_atomic_add v{vT+6}, v{vT+5}, {sr(sDBG,4)}, 0 offen sc0
    s_waitcnt vmcnt(0)
    ds_write_b32 v{vT+3}, v{vT+6} offset:128
    s_mov_b64 exec, -1
    s_waitcnt lgkmcnt(0)
{Lna}:
    s_barrier
    """)
    stamp()
    for e in range(8):
        a(f"ds_read_b32 v{vP+e}, v{vSRC+e} offset:128")
    a(f"s_mov_b32 s{sT}, {E}")
    a("s_waitcnt lgkmcnt(0)")
    for e in range(8):
        Ls = a.label("K1_ES")
        a(f"""
        v_add_u32 v{vP+e}, v{vP+e}, v{vRK+e}
        v_mad_u32_u24 v{vP+e}, v{vDST+e}, s{sT}, v{vP+e}
        v_lshlrev_b32 v{vP+e}, 4, v{vP+e}
        s_mov_b64 exec, {sr(sACT+2*e,2)}
        s_cbranch_execz {Ls}
        buffer_store_dwordx4 {vr(vREC+4*e,4)}, v{vP+e}, {sr(sLIST,4)}, 0 offen sc1
{Ls}:
        s_mov_b64 exec, -1
        """)
    Lpoll = a.label("K1_POLL"); Lnp = a.label("K1_NOPOLL"); Lex = a.label("K1_EXIT")
    z = vP + 8 + ((vP + 8) & 1)
    sFQ = 28
    srd(a, sFQ, 12, None, 0, 32)
    vFQ = vT + 10; one = vT + 11
    a(f"""
    v_and_b32 v{vT+4}, 7, v0
    v_lshlrev_b32 v{vT+4}, 2, v{vT+4}
    buffer_load_dword v{vFQ}, v{vT+4}, {sr(sFQ,4)}, 0 offen
    v_mov_b32 v{z}, 0
    v_mov_b32 v{z+1}, 0
    v_mov_b32 v{z+2}, 0
    v_mov_b32 v{z+3}, 0xffff
    v_lshlrev_b32 v{vT+5}, 4, v0
    v_add_u32 v{vT+6}, 65536, v{vT+5}
    """)
    for i_ in range(10):
        a(f"ds_write_b128 v{vT+5 if i_ < 8 else vT+6}, {vr(z,4)} offset:{L_IMG + (i_ % 8) * 8192}")
    a(f"""
    s_waitcnt vmcnt(0) lgkmcnt(0)
    s_barrier
    """)
    stamp()
    a(f"""
    s_cmp_lg_u32 s3, 0
    s_cbranch_scc1 {Lnp}
    v_mov_b32 v{vT+4}, {DONE_OFF}
    s_mov_b64 exec, 1
    buffer_atomic_add v{one}, v{vT+4}, {sr(sDBG,4)}, 0 offen
    s_mov_b64 exec, -1
    s_cmp_ge_u32 s2, {NR}
    s_cbranch_scc1 {Lnp}
    v_lshlrev_b32 v{vT+4}, 2, v0
{Lpoll}:
    buffer_load_dword v{vT+6}, v{vT+4}, {sr(sDBG,4)}, 0 offen sc1
    s_waitcnt vmcnt(0)
    v_readlane_b32 s{sT}, v{vT+6}, {DONE_OFF//4}
    v_readlane_b32 s{sT+1}, v{vT+6}, s2
    s_nop 1
    s_cmp_lt_u32 s{sT}, {NP}
    s_cbranch_scc1 {Lpoll}
    v_mov_b32 v{vT+6}, s{sT+1}
    v_mov_b32 v{vT+7}, {L_MISC}
    ds_write_b32 v{vT+7}, v{vT+6} offset:8
    s_waitcnt lgkmcnt(0)
{Lnp}:
    s_cmp_ge_u32 s2, {NR}
    s_cbranch_scc1 {Lex}
    s_barrier
    """)
    stamp()
    sTOT = sT + 6; sFAIL = sT + 7
    vMI = vT + 7
    a(f"""
    v_mov_b32 v{vMI}, {L_MISC}
    ds_read_b32 v{vT+6}, v{vMI} offset:8
    s_lshl_b32 s{sT}, s2, 2
    v_mov_b32 v{vT+4}, s{sT}
    buffer_load_dword v{vT+9}, v{vT+4}, {sr(sDBG,4)}, 0 offen sc1
    s_mul_i32 s{sT+1}, s2, {LIST_STRIDE}
    s_waitcnt lgkmcnt(0)
    v_readfirstlane_b32 s{sTOT}, v{vT+6}
    s_nop 1
    s_min_u32 s{sT+2}, s{sTOT}, 4096
    s_lshl_b32 s{sT+2}, s{sT+2}, 4
    """)
    srd(a, sLIST, 24, sT + 1, WS_LIST, 0)
    a(f"s_mov_b32 s{sLIST+2}, s{sT+2}")
    for k in range(8):
        a(f"s_mov_b32 s{sT+3}, {k*8192}")
        a(f"buffer_load_dwordx4 {vr(vREC+4*k,4)}, v{vT+5}, {sr(sLIST,4)}, s{sT+3} offen sc1")
    vDL = vSRC
    for k in range(8):
        r0 = vREC + 4 * k
        Lsk = a.label("K1_NORARE")
        a(f"""
        s_waitcnt vmcnt({7-k})
        v_add_u32 v{vT+4}, {k*512}, v0
        v_cmp_gt_u32 {sr(sACT+2*k,2)}, s{sTOT}, v{vT+4}
        v_and_b32 v{vDL+k}, 0xffff, v{r0}
        v_lshlrev_b32 v{vDL+k}, 2, v{vDL+k}
        v_add_u32 v{vDL+k}, {L_CNT}, v{vDL+k}
        v_and_b32 v{r0}, 0xffff0000, v{r0}
        s_mov_b64 exec, {sr(sACT+2*k,2)}
        ds_add_rtn_u32 v{vRK+k}, v{vDL+k}, v{one}
        v_cmp_gt_u32 vcc, {LUT_THR<<16}, v{r0+3}
        s_and_b64 exec, exec, vcc
        s_cbranch_execz {Lsk}
        ds_add_rtn_u32 v{vT+4}, v{vMI}, v{one}
        v_lshrrev_b32 v{vT+6}, 16, v{r0+3}
        v_and_b32 v{r0+3}, 0xffff, v{r0+3}
        s_waitcnt lgkmcnt(0)
        v_add_u32 v{vT+4}, 1, v{vT+4}
        v_min_u32 v{vT+4}, {NRR}, v{vT+4}
        v_lshl_or_b32 v{r0+3}, v{vT+4}, 16, v{r0+3}
        v_lshl_add_u32 v{vT+4}, v{vT+4}, 2, v{vMI}
        ds_write_b32 v{vT+4}, v{vT+6} offset:64
{Lsk}:
        s_mov_b64 exec, -1
        """)
    a("s_waitcnt lgkmcnt(0)\ns_barrier")
    stamp()
    L7 = a.label("K1_B2R"); L7e = a.label("K1_B2E"); L8 = a.label("K1_B3E"); L9 = a.label("K1_B4E")
    deg, rk, hh = vP, vP + 1, vP + 2
    t = vP + 4
    a(f"""
    s_cmp_ge_u32 s3, 5
    s_cbranch_scc1 {L7}
    ds_read_b32 v{deg}, v{vT+3} offset:{L_CNT - L_EH}
    s_waitcnt lgkmcnt(0)
    v_min_u32 v{deg}, {CAPN+1}, v{deg}
    v_lshlrev_b32 v{t}, 2, v{deg}
    v_add_u32 v{t}, {L_HIST}, v{t}
    ds_add_rtn_u32 v{rk}, v{t}, v{one}
    s_waitcnt lgkmcnt(0)
    s_branch {L7e}
{L7}:
    """)
    d, rcp, fc, x, y, p_ = t, t + 1, t + 2, t + 3, t + 4, t + 5
    a(f"""
    v_subrev_u32 v{t+8}, 320, v0
    v_lshrrev_b32 v{t+9}, 3, v{t+8}
    v_lshl_add_u32 v{t+9}, v{t+9}, 2, v{vMI}
    ds_read_b32 v{t+9}, v{t+9} offset:64
    s_mov_b32 s{sT}, 0x40490fdb
    s_mov_b32 s{sT+1}, 0x3e4ccccd
    s_mov_b32 s{sT+2}, 0x3e22f983
    s_waitcnt lgkmcnt(0)
    v_add_u32 v{d}, {DBASE}, v{t+9}
    v_lshlrev_b32 v{d}, 16, v{d}
    v_rcp_f32 v{rcp}, v{d}
    v_mul_f32 v{fc}, s{sT}, v{d}
    """)
    rne_bf16(a, fc, fc)
    a(f"v_mul_f32 v{fc}, s{sT+1}, v{fc}")
    rne_bf16(a, fc, fc)
    a(f"v_mul_f32 v{fc}, s{sT+2}, v{fc}\nv_cos_f32 v{fc}, v{fc}\ns_nop 0")
    rne_bf16(a, fc, fc)
    a(f"v_add_f32 v{fc}, 1.0, v{fc}")
    rne_bf16(a, fc, fc)
    a(f"""
    v_mul_f32 v{fc}, 0.5, v{fc}
    v_lshlrev_b32 v{x}, 16, v{vFQ}
    v_and_b32 v{y}, 0xffff0000, v{vFQ}
    v_mul_f32 v{x}, v{x}, v{d}
    v_mul_f32 v{y}, v{y}, v{d}
    v_cvt_pk_bf16_f32 v{p_}, v{x}, v{y}
    v_lshlrev_b32 v{x}, 16, v{p_}
    v_and_b32 v{y}, 0xffff0000, v{p_}
    v_mul_f32 v{x}, s{sT+2}, v{x}
    v_mul_f32 v{y}, s{sT+2}, v{y}
    v_rndne_f32 v{t+6}, v{x}
    v_rndne_f32 v{t+7}, v{y}
    v_sub_f32 v{x}, v{x}, v{t+6}
    v_sub_f32 v{y}, v{y}, v{t+7}
    v_sin_f32 v{x}, v{x}
    v_sin_f32 v{y}, v{y}
    s_nop 0
    v_cvt_pk_bf16_f32 v{p_}, v{x}, v{y}
    v_lshlrev_b32 v{x}, 16, v{p_}
    v_and_b32 v{y}, 0xffff0000, v{p_}
    v_mul_f32 v{x}, v{x}, v{rcp}
    v_mul_f32 v{y}, v{y}, v{rcp}
    v_cvt_pk_bf16_f32 v{p_}, v{x}, v{y}
    v_lshlrev_b32 v{x}, 16, v{p_}
    v_and_b32 v{y}, 0xffff0000, v{p_}
    v_mul_f32 v{x}, v{x}, v{fc}
    v_mul_f32 v{y}, v{y}, v{fc}
    v_cmp_ne_u32 vcc, 0, v{t+9}
    v_cvt_pk_bf16_f32 v{p_}, v{x}, v{y}
    v_lshlrev_b32 v{t+8}, 2, v{t+8}
    s_lshl_b32 s{sT}, s2, 10
    s_add_u32 s{sT}, s{sT}, {M_RARE}
    v_cndmask_b32 v{p_}, 0, v{p_}, vcc
    buffer_store_dword v{p_}, v{t+8}, {sr(sMISC,4)}, s{sT} offen
{L7e}:
    s_barrier
    s_cmp_ge_u32 s3, 5
    s_cbranch_scc1 {L8}
    v_and_b32 v{t}, 63, v0
    v_lshlrev_b32 v{t}, 2, v{t}
    v_sub_u32 v{t}, {L_HIST + 252}, v{t}
    ds_read_b32 v{hh}, v{t}
    s_waitcnt lgkmcnt(0)
    v_mov_b32 v{t+1}, v{hh}
    """)
    dpp_scan(a, "v_add_u32", hh)
    pos = t + 3
    a(f"""
    v_sub_u32 v{hh}, v{hh}, v{t+1}
    v_lshlrev_b32 v{t}, 2, v{deg}
    v_sub_u32 v{t}, 252, v{t}
    ds_bpermute_b32 v{t+1}, v{t}, v{hh}
    v_add_u32 v{t+2}, 1, v{deg}
    v_lshrrev_b32 v{t+2}, 1, v{t+2}
    s_waitcnt lgkmcnt(0)
    v_add_u32 v{pos}, v{t+1}, v{rk}
    v_lshlrev_b32 v{t+1}, 2, v{pos}
    v_add_u32 v{t+1}, {L_SORT}, v{t+1}
    ds_write_b32 v{t+1}, v{t+2}
    s_waitcnt lgkmcnt(0)
{L8}:
    s_barrier
    s_cmp_ge_u32 s3, 5
    s_cbranch_scc1 {L9}
    """)
    kk, w_, nb = t + 4, t + 5, t + 8
    dmask = sum(1 << k for k in range(5) if DIRS[k])
    a(f"""
    v_lshrrev_b32 v{kk}, 6, v{pos}
    v_bfe_u32 v{w_}, v{pos}, 2, 4
    v_lshrrev_b32 v{t}, v{kk}, {dmask}
    v_and_b32 v{t}, 1, v{t}
    v_mul_u32_u24 v{t}, 15, v{t}
    v_xor_b32 v{w_}, v{w_}, v{t}
    v_lshlrev_b32 v{t}, 4, v{w_}
    v_add_u32 v{t+1}, {L_SORT}, v{t}
    v_sub_u32 v{t+2}, {L_SORT + 240}, v{t}
    """.replace(f"v_lshrrev_b32 v{t}, v{kk}, {dmask}", f"v_mov_b32 v{t}, {dmask}\n    v_lshrrev_b32 v{t}, v{kk}, v{t}"))
    for k in range(5):
        a(f"ds_read_b32 v{nb+k}, v{t+1+DIRS[k]} offset:{256*k}")
    pre, tot, pc = t + 6, t + 7, t + 13
    a(f"""
    v_mul_u32_u24 v{w_}, {WIN_B}, v{w_}
    v_and_b32 v{t}, 3, v{pos}
    v_mov_b32 v{pre}, 0
    s_waitcnt lgkmcnt(0)
    v_mov_b32 v{tot}, v{nb}
    v_mov_b32 v{pc}, v{nb}
    """)
    for k in range(1, 5):
        a(f"""
        v_cmp_eq_u32 vcc, {k}, v{kk}
        v_lshl_or_b32 v{pc}, v{nb+k}, {6*k}, v{pc}
        s_nop 0
        v_cndmask_b32 v{pre}, v{pre}, v{tot}, vcc
        v_add_u32 v{tot}, v{tot}, v{nb+k}
        """)
    a(f"""
    v_lshl_add_u32 v{pre}, v{pre}, 7, v{w_}
    v_lshl_add_u32 v{pre}, v{t}, 4, v{pre}
    v_add_u32 v{pre}, {L_IMG + HS*64}, v{pre}
    ds_write_b32 v{vT+3}, v{pre} offset:{L_NADDR - L_EH}
    v_lshl_add_u32 v{t}, v{kk}, 2, v{t}
    v_lshl_add_u32 v{t}, v{t}, 2, v{w_}
    s_lshl_b32 s{sT}, s2, 11
    v_lshl_add_u32 v{t+1}, v0, 16, s{sT}
    ds_write_b32 v{t}, v{t+1} offset:{L_IMG}
    ds_write_b32 v{w_}, v{pc} offset:{L_IMG + 80}
    ds_write_b32 v{w_}, v{tot} offset:{L_IMG + 88}
    v_cmp_lt_u32 vcc, {(WIN_B//64 - HS)//2}, v{tot}
    v_cmp_lt_u32 s[{sT+2}:{sT+3}], {CAPN}, v{deg}
    s_or_b64 exec, vcc, s[{sT+2}:{sT+3}]
    ds_write_b32 v{vMI}, v{one} offset:4
    s_mov_b64 exec, -1
    s_waitcnt lgkmcnt(0)
{L9}:
    s_barrier
    """)
    stamp()
    Lbad = a.label("K1_BAD"); Lmode = a.label("K1_MODE")
    a(f"ds_read_b64 {vr(z,2)}, v{vMI}")
    for k in range(8):
        a(f"ds_read_b32 v{vDST+k}, v{vDL+k} offset:{L_NADDR - L_CNT}")
    a(f"""
    s_waitcnt lgkmcnt(8)
    v_readfirstlane_b32 s{sT}, v{z}
    v_readfirstlane_b32 s{sFAIL}, v{z+1}
    v_readfirstlane_b32 s{sT+1}, v{vT+9}
    s_nop 1
    s_cmp_ge_u32 s{sT}, {NRR}
    s_cselect_b32 s{sFAIL}, 1, s{sFAIL}
    s_cmp_gt_u32 s{sTOT}, 4096
    s_cselect_b32 s{sFAIL}, 1, s{sFAIL}
    s_cmp_lg_u32 s{sTOT}, s{sT+1}
    s_cselect_b32 s{sFAIL}, 1, s{sFAIL}
    s_mov_b32 s{sTOT}, s{sT+1}
    s_cmp_lg_u32 s{sFAIL}, 0
    s_cbranch_scc1 {Lbad}
    s_waitcnt lgkmcnt(0)
    """)
    for k in range(8):
        a(f"""
        v_lshl_add_u32 v{vDST+k}, v{vRK+k}, 6, v{vDST+k}
        s_mov_b64 exec, {sr(sACT+2*k,2)}
        ds_write_b128 v{vDST+k}, {vr(vREC+4*k,4)}
        s_mov_b64 exec, -1
        """)
    a(f"""
    s_mul_i32 s{sT}, s3, {2*WIN_B}
    v_and_b32 v{vT+4}, 63, v0
    v_lshlrev_b32 v{vT+4}, 4, v{vT+4}
    v_add_u32 v{vT+4}, s{sT}, v{vT+4}
    v_mov_b32 v{vT+6}, s{sT}
    ds_read_b32 v{z}, v{vT+6} offset:{L_IMG + 88}
    ds_read_b32 v{z+1}, v{vT+6} offset:{L_IMG + WIN_B + 88}
    s_mul_i32 s{sT+1}, s2, {16*WIN_B}
    s_add_u32 s{sT+1}, s{sT+1}, {M_STR}
    s_waitcnt lgkmcnt(0)
    s_barrier
    v_readfirstlane_b32 s{sT+2}, v{z}
    v_readfirstlane_b32 s{sT+3}, v{z+1}
    """)
    stamp()
    cp = vP + (vP & 1)
    for i_ in range(10):
        a(f"ds_read_b128 {vr(cp+4*i_,4)}, v{vT+4} offset:{L_IMG + i_*1024}")
    for i_ in range(10):
        h_, kb = i_ // 5, i_ % 5
        Ls = a.label("K1_CP")
        if kb >= 2:
            a(f"s_cmp_le_u32 s{sT+2+h_}, {kb*8 - HS//2}\ns_cbranch_scc1 {Ls}")
        a(f"""
        s_add_u32 s{sT+4}, s{sT+1}, {i_*1024}
        s_waitcnt lgkmcnt({9-i_})
        buffer_store_dwordx4 {vr(cp+4*i_,4)}, v{vT+4}, {sr(sMISC,4)}, s{sT+4} offen
{Ls}:
        """)
    a(f"""
    v_mov_b32 v{vT}, {MODE_OK}
    s_branch {Lmode}
{Lbad}:
    v_mov_b32 v{vT}, 0
{Lmode}:
    s_cmp_lg_u32 s3, 0
    s_cbranch_scc1 {Lex}
    v_mov_b32 v{vT+1}, s{sTOT}
    s_lshl_b32 s{sT}, s2, 6
    s_add_u32 s{sT}, s{sT}, {M_MODE}
    v_mov_b32 v{vT+2}, s{sT}
    s_mov_b64 exec, 1
    buffer_store_dwordx2 {vr(vT,2)}, v{vT+2}, {sr(sMISC,4)}, 0 offen
{Lex}:
    """)
    dump_stamps(nst[0])
    a("s_endpgm")

    Lbop = a.label("K1_BOP")
    a(f"{Lbop}:")
    a(f"s_cmp_lg_u32 s2, {WG_BOP}\ns_cbranch_scc1 {Lend}\ns_waitcnt lgkmcnt(0)")
    srd(a, 28, 18, None, 0, 16 * 768 * 2)
    srd(a, 32, 24, None, WS_LUT + M_BOP, 24576)
    a(f"""
    v_bfe_u32 v1, v0, 4, 1
    v_mul_u32_u24 v1, {8*1536}, v1
    v_and_b32 v2, 15, v0
    v_lshl_add_u32 v1, v2, 2, v1
    s_lshl_b32 s36, s3, 6
    v_add_u32 v1, s36, v1
    v_bfe_u32 v3, v0, 5, 1
    v_xor_b32 v2, 1, v3
    v_lshl_add_u32 v2, v2, 9, v1
    """)
    for m in range(8):
        a(f"s_movk_i32 s37, {m*1536}")
        a(f"buffer_load_dword v{8+m}, v2, s[28:31], s37 offen")
        a(f"buffer_load_dword v{16+m}, v1, s[28:31], s37 offen offset:1024")
    a(f"""
    s_mov_b32 s38, 0x05040100
    s_mov_b32 s39, 0x07060302
    v_mul_u32_u24 v3, 0x020202, v3
    v_lshl_or_b32 v3, v3, 8, v3
    v_add_u32 v3, s38, v3
    v_and_b32 v4, 63, v0
    v_lshlrev_b32 v4, 4, v4
    s_mul_i32 s36, s3, 3072
    s_waitcnt vmcnt(0)
    """)
    for m in range(4):
        a(f"v_perm_b32 v{24+m}, v{8+2*m+1}, v{8+2*m}, s39")
        a(f"v_perm_b32 v{28+m}, v{8+2*m+1}, v{8+2*m}, s38")
        a(f"v_perm_b32 v{32+m}, v{16+2*m+1}, v{16+2*m}, v3")
    a("""
    buffer_store_dwordx4 v[24:27], v4, s[32:35], s36 offen
    buffer_store_dwordx4 v[28:31], v4, s[32:35], s36 offen offset:1024
    buffer_store_dwordx4 v[32:35], v4, s[32:35], s36 offen offset:2048
    s_endpgm
    """)
    a(f"{Llut}:")
    a(f"""
    s_cmp_ge_u32 s2, {WG_LUT0+NLUTWG}
    s_cbranch_scc1 {Lbop}
    s_waitcnt lgkmcnt(0)
    s_load_dwordx8 s[28:35], s[12:13], 0
    """)
    srd(a, 60, 24, None, WS_LUT, LUT_BYTES)
    a(f"""
    s_sub_u32 s56, s2, {WG_LUT0}
    s_lshl_b32 s56, s56, 9
    v_add_u32 v1, s56, v0
    v_add_u32 v2, {DBASE}, v1
    v_lshlrev_b32 v2, 16, v2
    v_lshlrev_b32 v1, 5, v1
    s_mov_b32 s52, 0x40490fdb
    s_mov_b32 s53, 0x3e4ccccd
    s_mov_b32 s54, 0x3e22f983
    s_waitcnt lgkmcnt(0)
    """)
    for k in range(8):
        a(f"s_lshl_b32 s{36+2*k}, s{28+k}, 16\ns_and_b32 s{37+2*k}, s{28+k}, 0xffff0000")
    lut_row(a, 2, 4, 12, 36, 52)
    a("""
    buffer_store_dwordx4 v[4:7], v1, s[60:63], 0 offen
    buffer_store_dwordx4 v[8:11], v1, s[60:63], 0 offen offset:16
    s_endpgm
    """)

    a(f"{Lgemm}:")
    V = Regs("v", 1, 256)
    vD1 = V.alloc("d1"); vD2 = V.alloc("d2"); vD3 = V.alloc("d3"); vDV = V.alloc("dv")
    vAS = V.alloc("as", 2); vTR = V.alloc("tr", 2); vHW = V.alloc("hw", 4)
    vVR = V.alloc("vr"); vO4 = V.alloc("o4"); vSEL = V.alloc("sel"); vRL = V.alloc("rl")
    vT = V.alloc("t", 12, 2)
    vACC = V.alloc("acc", 72, 4)
    vAF = V.alloc("af", 96, 4)
    vBF = V.alloc("bf", 32, 4)
    vV = V.alloc("v", 12)
    vOB = V.alloc("ob", 12, 4)
    nvmax = max(nvmax, V.hi)
    sSV, sW1, sW2, sT4, sT1 = 28, 32, 36, 40, 44
    sT = 48; sHI = 56; sROW = 57; sM = 58; sRB = 59; sRND = 60; sL = 61; sROT = 62; sMV = 63
    sK1 = 64; sK2 = 72; sEV = 80
    q, j = vT + 1, vT + 2
    hi, ch = vT + 3, vT + 4
    a(f"""
    s_sub_u32 s{sROW}, s2, {WG_GEMM0}
    s_mul_i32 s{sROW}, s{sROW}, {ROWS}
    s_lshl_b32 s{sRB}, s{sROW}, 11
    s_and_b32 s{sL}, s3, 3
    s_lshr_b32 s{sROT}, s2, 3
    s_and_b32 s{sROT}, s{sROT}, {7 if opt.get("rot", 1) else 0}
    s_lshl_b32 s{sMV}, s{sL}, 10
    s_and_b32 s{sT}, s{sL}, 1
    s_lshr_b32 s{sT+1}, s{sL}, 1
    s_lshl_b32 s{sT+2}, s{sT+1}, 2
    s_add_u32 s{sT+2}, s{sT+2}, s{sT}
    s_lshl_b32 s{sM}, s{sT+2}, 10
    v_bfe_u32 v{hi}, v0, 5, 1
    v_and_b32 v{ch}, 31, v0
    """)
    a(f"""
    s_lshl_b32 s{sT+3}, s{sL}, 2
    v_lshl_add_u32 v{vT+5}, v{hi}, 1, s{sT+3}
    v_xor_b32 v{vT+5}, v{vT+5}, v{ch}
    v_lshlrev_b32 v{vT+5}, 4, v{vT+5}
    v_lshl_add_u32 v{vD1}, v{hi}, 9, v{vT+5}
    v_add_u32 v{vD1}, s{sM}, v{vD1}
    """)
    a(f"""
    s_lshl_b32 s{sT+4}, s{sL}, 12
    v_lshl_add_u32 v{vT+6}, v{hi}, 11, v{vT+5}
    v_add_u32 v{vT+6}, s{sT+4}, v{vT+6}
    """)
    for n in range(3):
        a(f"s_xor_b32 s{sK1+n}, s{sROT}, {n}\ns_lshl_b32 s{sK1+n}, s{sK1+n}, 14")
    a("s_waitcnt lgkmcnt(0)")
    srd(a, sSV, 4, None, 0, N * 2048)
    srd(a, sW1, 14, None, 0, 256 * 512)
    units = [("w1", n, 0) for n in range(8)] + [("a", n, 0) for n in range(8)] + [("a", n, 1) for n in range(8)] \
          + [("b", n, 0) for n in range(4)] + [("b", n, 1) for n in range(4)]
    owner = lambda u: units[u][2]
    class C: pass
    st = C(); st.seq = []
    def dma_unit(u, which=(0, 1, 2, 3)):
        kind, n, hf = units[u]
        for i in which:
            rr = 4 * (i & 1) + 16 * (i >> 1)
            kr = 2 * (i & 1) + 8 * (i >> 1)
            a(f"s_add_u32 m0, s{sM}, {L_RING + (u%4)*16384 + rr*512}")
            if kind == "w1":
                a(f"s_add_u32 s{sT}, s{sK1+n}, {rr*512}")
                a(f"buffer_load_dwordx4 v{vD1}, {sr(sW1,4)}, s{sT} offen lds")
            elif kind == "a":
                a(f"s_add_u32 s{sT}, s{sK2+n}, {kr*1536 + hf*256}")
                a(f"buffer_load_dwordx4 v{vD2}, {sr(sW2,4)}, s{sT} offen lds")
            else:
                a(f"s_add_u32 s{sT}, s{sK1+n}, {kr*1536 + hf*256 + 1024}")
                a(f"buffer_load_dwordx4 v{vD3}, {sr(sW2,4)}, s{sT} offen lds")
            st.seq.append(("U", u))
    def dma_v(hf, n):
        c, i = n % 3, n // 3
        a(f"""
        s_add_u32 m0, s{sMV}, {L_V + (hf*3+c)*ROWS*256 + i*4096}
        s_add_u32 s{sT}, s{sRB}, {i*16*2048 + 512*(c+1) + hf*256}
        buffer_load_dwordx4 v{vDV}, {sr(sSV,4)}, s{sT} offen lds
        """)
        st.seq.append(("V", hf))
    LnoB0 = a.label("K1_G0")
    a(f"s_cmp_lt_u32 s3, 4\ns_cbranch_scc1 {LnoB0}")
    for i in range(6):
        a(f"""
        s_add_u32 m0, s{sMV}, {L_H + i*4096}
        s_add_u32 s{sT}, s{sRB}, {i*8*2048}
        buffer_load_dwordx4 v{vT+6}, {sr(sSV,4)}, s{sT} offen lds
        """)
        st.seq.append(("U", 0))
    for u in range(3): dma_unit(u)
    seqB0 = list(st.seq)
    a(f"{LnoB0}:")
    for n in range(3, 8):
        a(f"s_xor_b32 s{sK1+n}, s{sROT}, {n}\ns_lshl_b32 s{sK1+n}, s{sK1+n}, 14")
    for n in range(8):
        a(f"s_mul_i32 s{sK2+n}, s{sK1+n}, 3")
    srd(a, sW2, 16, None, 0, 256 * 1536)
    a(f"s_mul_i32 s{sT+6}, s3, {T4_SL}")
    srd(a, sT4, 24, sT + 6, WS_T4, T4_SL)
    a(f"s_mul_i32 s{sT+6}, s3, {T1_SL}")
    srd(a, sT1, 24, sT + 6, WS_T1, T1_SL)
    a(f"""
    v_lshl_add_u32 v{vT+7}, v{hi}, 4, s{sT+2}
    v_mul_u32_u24 v{vT+7}, 1536, v{vT+7}
    v_and_b32 v{vT+8}, 0xf0, v{vT+5}
    v_add_u32 v{vT+7}, v{vT+7}, v{vT+8}
    v_lshrrev_b32 v{vT+8}, 4, v{ch}
    v_xor_b32 v{vT+9}, 1, v{vT+8}
    v_lshl_add_u32 v{vD2}, v{vT+9}, 9, v{vT+7}
    v_xor_b32 v{vT+8}, s{sROT}, v{vT+8}
    v_and_b32 v{vT+8}, 1, v{vT+8}
    v_mul_u32_u24 v{vT+8}, 49152, v{vT+8}
    v_add_u32 v{vD3}, v{vT+7}, v{vT+8}
    s_mov_b32 s{sHI}, 0x07060302
    s_mov_b32 s{sRND}, 0x8000
    v_bfe_u32 v{q}, v0, 4, 2
    v_and_b32 v{j}, 15, v0
    s_lshl_b32 s{sT+4}, s{sL}, 13
    v_lshlrev_b32 v{vDV}, 11, v{q}
    v_lshl_add_u32 v{vDV}, v{j}, 4, v{vDV}
    v_add_u32 v{vDV}, s{sT+4}, v{vDV}
    v_and_b32 v{vT+3}, 7, v{j}
    v_lshlrev_b32 v{vT+3}, 1, v{vT+3}
    v_xor_b32 v{vT+3}, v{vT+3}, v{q}
    v_lshlrev_b32 v{vT+3}, 4, v{vT+3}
    v_lshl_add_u32 v{vAS}, v{j}, 9, v{vT+3}
    s_lshl_b32 s{sT+4}, s{sROT}, 6
    v_xor_b32 v{vAS}, s{sT+4}, v{vAS}
    v_add_u32 v{vAS}, {L_H}, v{vAS}
    """)
    a(f"""
    v_lshrrev_b32 v{vT+3}, 2, v{j}
    v_and_b32 v{vT+4}, 1, v{q}
    v_lshl_or_b32 v{vT+4}, v{vT+4}, 2, v{vT+3}
    v_lshlrev_b32 v{vT+4}, 1, v{vT+4}
    v_bfe_u32 v{vT+5}, v0, 1, 1
    v_or_b32 v{vT+5}, s{sT+3}, v{vT+5}
    v_xor_b32 v{vT+4}, v{vT+4}, v{vT+5}
    v_lshl_add_u32 v{vT+3}, v{q}, 3, v{vT+3}
    v_lshlrev_b32 v{vT+3}, 9, v{vT+3}
    v_lshl_add_u32 v{vT+3}, v{vT+4}, 4, v{vT+3}
    v_and_b32 v{vT+4}, 1, v0
    v_lshl_add_u32 v{vTR}, v{vT+4}, 3, v{vT+3}
    v_xor_b32 v{vTR+1}, 32, v{vTR}
    """)
    a(f"""
    v_lshrrev_b32 v{vT+3}, 2, v{j}
    v_or_b32 v{vT+3}, s{sT+3}, v{vT+3}
    v_and_b32 v{vT+4}, 1, v{q}
    v_lshlrev_b32 v{vT+4}, 3, v{vT+4}
    v_xor_b32 v{vT+3}, v{vT+3}, v{vT+4}
    v_lshlrev_b32 v{vT+3}, 4, v{vT+3}
    v_and_b32 v{vT+4}, 3, v{j}
    v_lshl_add_u32 v{vT+3}, v{vT+4}, 2, v{vT+3}
    v_lshl_add_u32 v{vT+3}, v{q}, 11, v{vT+3}
    v_add_u32 v{vHW}, {L_H}, v{vT+3}
    v_xor_b32 v{vHW+1}, 32, v{vHW}
    v_xor_b32 v{vHW+2}, 64, v{vHW}
    v_xor_b32 v{vHW+3}, 96, v{vHW}
    """)
    a(f"""
    v_and_b32 v{vT+3}, 1, v{j}
    v_lshlrev_b32 v{vT+3}, 5, v{vT+3}
    v_lshrrev_b32 v{vT+4}, 1, v{j}
    v_lshl_add_u32 v{vT+3}, v{vT+4}, 2, v{vT+3}
    s_lshr_b32 s{sT+1}, s3, 2
    s_mul_i32 s{sT+1}, s{sT+1}, {3*ROWS*256}
    s_lshl_b32 s{sT+4}, s{sL}, 6
    s_add_u32 s{sT+1}, s{sT+1}, s{sT+4}
    s_add_u32 s{sT+1}, s{sT+1}, {L_V}
    v_add_u32 v{vT+3}, s{sT+1}, v{vT+3}
    v_lshl_add_u32 v{vVR}, v{q}, 10, v{vT+3}
    v_lshl_add_u32 v{vT+3}, v{q}, 2, s{sROW}
    v_lshlrev_b32 v{vO4}, 8, v{vT+3}
    v_lshl_add_u32 v{vO4}, v{j}, 4, v{vO4}
    s_mov_b32 s{sEV}, 0x55555555
    s_mov_b32 s{sEV+1}, 0x55555555
    v_mov_b32 v{vT+3}, 0x03020706
    v_mov_b32 v{vT+4}, 0x05040100
    v_mov_b32 v{vT+5}, 0x8000
    v_cndmask_b32 v{vSEL}, v{vT+3}, v{vT+4}, s[{sEV}:{sEV+1}]
    v_cndmask_b32 v{vRL}, 0, v{vT+5}, s[{sEV}:{sEV+1}]
    """)
    def af_read(ns):
        for n in ns:
            if n: a(f"v_xor_b32 v{vAS+1}, {n*64}, v{vAS}")
            for mt in range(3):
                a(f"ds_read_b128 {vr(vAF+(n*3+mt)*4,4)}, v{vAS+1 if n else vAS} offset:{mt*8192}")
    def tr_read(u):
        b = vBF + 16 * (u & 1)
        for side in range(2):
            for t in range(2):
                for h in range(2):
                    a(f"ds_read_b64_tr_b16 {vr(b+8*side+4*t+2*h,2)}, v{vTR+t} offset:{L_RING + (u%4)*16384 + h*2048 + side*256}")
    def mfmas(u, dmu=None):
        kind, n, hf = units[u]
        b = vBF + 16 * (u & 1)
        for side in range(2):
            for t in range(2):
                for mt in range(3):
                    if dmu is not None and mt == 1: dma_unit(dmu, (side * 2 + t,))
                    if kind == "b":
                        nn = 2 * n + side; nt = 4 + t
                    else:
                        nn = n; nt = 2 * side + t
                    acc = vACC + (mt * 6 + nt) * 4
                    c = "0" if nn == 0 else vr(acc, 4)
                    a(f"v_mfma_f32_16x16x32_bf16 {vr(acc,4)}, {vr(vAF+(nn*3+mt)*4,4)}, {vr(b+8*side+4*t,4)}, {c}")
    def silu():
        a(f"s_mov_b32 s{sT+6}, 0xbfb8aa3b\ns_mov_b32 s{sT+7}, 0xbfb8aa3b\ns_nop 7")
        cnt = 0
        for side in range(2):
            for mt in range(3):
                for r in range(0, 4, 2):
                    L = []
                    for rr in range(2):
                        a0, a1 = vACC + (mt * 6 + 2 * side) * 4 + r + rr, vACC + (mt * 6 + 2 * side + 1) * 4 + r + rr
                        x, e_, p = vT + 6 * rr, vT + 2 + 6 * rr, vT + 4 + 6 * rr
                        L.append(f"""v_cvt_pk_bf16_f32 v{p}, v{a0}, v{a1}
                        v_lshlrev_b32 v{x}, 16, v{p}
                        v_and_b32 v{x+1}, 0xffff0000, v{p}
                        v_pk_mul_f32 {vr(e_,2)}, {vr(x,2)}, s[{sT+6}:{sT+7}]
                        v_exp_f32 v{e_}, v{e_}
                        v_exp_f32 v{e_+1}, v{e_+1}
                        v_pk_add_f32 {vr(e_,2)}, {vr(e_,2)}, 1.0 op_sel_hi:[1,0]
                        v_rcp_f32 v{e_}, v{e_}
                        v_rcp_f32 v{e_+1}, v{e_+1}
                        v_pk_mul_f32 {vr(x,2)}, {vr(x,2)}, {vr(e_,2)}
                        v_cvt_pk_bf16_f32 v{p}, v{x}, v{x+1}
                        ds_write_b32 v{vHW+r+rr}, v{p} offset:{(mt*16+r+rr)*512 + side*256}""".split("\n"))
                    for l0, l1 in zip(*L):
                        a(l0); a(l1)
                    cnt += 1
                    if cnt % 3 == 0: a("s_waitcnt lgkmcnt(2)")
    DPP = "quad_perm:[1,0,3,2] row_mask:0xf bank_mask:0xf"
    def v_read(pc):
        mt, r = pc // 4, pc % 4
        for c in range(3):
            a(f"ds_read_b32 v{vV + (pc % 4) * 3 + c}, v{vVR} offset:{c*ROWS*256 + (mt*16+r)*256}")
    def t4_piece(pc):
        mt, r = pc // 4, pc % 4
        A_ = lambda nt: vACC + (mt * 6 + nt) * 4 + r
        o = vOB + 4 * (pc % 3); vv = vV + (pc % 4) * 3
        lo, hi_, P, Q = vT, vT + 1, vT + 2, vT + 3
        x = vT + 4
        a(f"""
        v_perm_b32 v{P}, v{A_(3)}, v{A_(2)}, s{sHI}
        v_mov_b32_dpp v{lo}, v{A_(1)} {DPP}
        v_mov_b32_dpp v{hi_}, v{A_(0)} {DPP}
        v_mov_b32_dpp v{Q}, v{P} {DPP}
        v_cndmask_b32 v{lo}, v{lo}, v{A_(0)}, s[{sEV}:{sEV+1}]
        v_cndmask_b32 v{hi_}, v{A_(1)}, v{hi_}, s[{sEV}:{sEV+1}]
        v_perm_b32 v{o+3}, v{Q}, v{P}, v{vSEL}
        v_lshlrev_b32 v{x}, 16, v{vv}
        v_and_b32 v{x+1}, 0xffff0000, v{vv}
        v_lshlrev_b32 v{x+2}, 16, v{vv+1}
        v_and_b32 v{x+3}, 0xffff0000, v{vv+1}
        v_lshlrev_b32 v{x+4}, 16, v{vv+2}
        v_and_b32 v{x+5}, 0xffff0000, v{vv+2}
        v_mul_f32 v{x}, v{x}, v{lo}
        v_mul_f32 v{x+1}, v{x+1}, v{hi_}
        v_mul_f32 v{x+2}, v{x+2}, v{lo}
        v_mul_f32 v{x+3}, v{x+3}, v{hi_}
        v_mul_f32 v{x+4}, v{x+4}, v{lo}
        v_mul_f32 v{x+5}, v{x+5}, v{hi_}
        v_add_u32 v{x}, s{sRND}, v{x}
        v_add_u32 v{x+4}, s{sRND}, v{x+4}
        v_perm_b32 v{o+1}, v{x+3}, v{x+2}, s{sHI}
        v_perm_b32 v{o}, v{x+1}, v{x}, s{sHI}
        v_perm_b32 v{o+2}, v{x+5}, v{x+4}, s{sHI}
        s_movk_i32 s{sT+4}, {mt*16*256}
        buffer_store_dwordx4 {vr(o,4)}, v{vO4}, {sr(sT4,4)}, s{sT+4} offen offset:{r*256} {tab_fl}
        """)
        st.seq.append("ST")
    def t1_epi():
        a(f"""
        s_mul_i32 s{sT+4}, s3, 3072
        s_add_u32 s{sT+4}, s{sT+4}, {L_H}
        v_mbcnt_lo_u32_b32 v{vT}, -1, 0
        v_mbcnt_hi_u32_b32 v{vT}, -1, v{vT}
        v_lshrrev_b32 v{vT+1}, 4, v{vT}
        v_and_b32 v{vT+2}, 15, v{vT}
        v_lshlrev_b32 v{vT+1}, 8, v{vT+1}
        v_lshl_add_u32 v{vT+1}, v{vT+2}, 1, v{vT+1}
        v_add_u32 v{vT+1}, s{sT+4}, v{vT+1}
        v_lshlrev_b32 v{vT}, 4, v{vT}
        v_add_u32 v{vT+2}, s{sT+4}, v{vT}
        s_lshl_b32 s{sT+4}, s{sROW}, 6
        """)
        for mt in range(3):
            A_ = lambda nt, r: vACC + (mt * 6 + nt) * 4 + r
            for r in range(4):
                for t in range(2):
                    a(f"v_add_u32 v{A_(4+t,r)}, v{A_(4+t,r)}, v{vRL}")
                    a(f"ds_write_b16_d16_hi v{vT+1}, v{A_(4+t,r)} offset:{(mt*16+r)*64 + 32*t}")
                if mt and r == 2:
                    a("s_waitcnt lgkmcnt(6)")
                    a(f"buffer_store_dwordx4 {vr(vOB+4*(mt-1),4)}, v{vT}, {sr(sT1,4)}, s{sT+4} offen offset:{(mt-1)*1024} {tab_fl}")
                    st.seq.append("ST")
            a(f"ds_read_b128 {vr(vOB+4*mt,4)}, v{vT+2} offset:{mt*1024}")
        a("s_waitcnt lgkmcnt(0)")
        a(f"buffer_store_dwordx4 {vr(vOB+8,4)}, v{vT}, {sr(sT1,4)}, s{sT+4} offen offset:2048 {tab_fl}")
        st.seq.append("ST")
    v0_at = opt.get("v0_at", 7); v1_at = opt.get("v1_at", 8); pf_at = opt.get("pf_at", 8); pf_cls = opt.get("pf_cls", 1)
    lsw = opt.get("lsw", [16, 24])
    def loader(u):
        if opt.get("selfload", 1): return 1 if u < 24 else 0
        return 1 if u < lsw[0] else (0 if u < lsw[1] else 1)
    def prefetch():
        a(f"""
        s_lshr_b32 s{sT+1}, s2, 3
        s_add_u32 s{sT+1}, s{sT+1}, {24-6}
        s_cmp_ge_u32 s{sT+1}, 24
        s_cselect_b32 s{sT+2}, 24, 0
        s_sub_u32 s{sT+1}, s{sT+1}, s{sT+2}
        s_lshl_b32 s{sT+2}, s{sT+1}, 2
        s_add_u32 s{sT+2}, s{sT+2}, s{sL}
        s_lshl_b32 s{sT+3}, s{sT+2}, 12
        v_mbcnt_lo_u32_b32 v{vV}, -1, 0
        v_lshlrev_b32 v{vV}, 7, v{vV}
        s_mov_b32 exec_hi, 0
        buffer_load_dword v{vV+1}, v{vV}, {sr(sW2,4)}, s{sT+3} offen
        s_mov_b64 exec, -1
        """)
        st.seq.append("PF")
    pB = opt.get("pB", [3, 3, 3, 3, 0, 0, 0, 0])
    pA = opt.get("pA", [2, 2, 2, 1, 1, 1, 1, 1, 1])
    if len(pB) == 8: pB = [0] + pB
    pieces = [{}, {}]
    for cls, base, pl in ((0, 15, pA), (1, 23, pB)):
        k = 0
        for i_, c_ in enumerate(pl):
            pieces[cls][base + i_] = list(range(k, k + c_)); k += c_
        assert k == 12
    LB = a.label("K1_GB"); Lfin = a.label("K1_GFIN")
    a(f"s_cmp_ge_u32 s3, 4\ns_cbranch_scc1 {LB}")
    stu = opt.get("stu", [0, 9, 15, 24])
    for cls in range(2):
        if cls == 1: a(f"{LB}:")
        nst[0] = 1 if stamps else 0
        st.seq = list(seqB0) if cls == 1 else []
        if pf_at == -1 and cls == pf_cls: prefetch()
        def wait_tags(tags):
            idx = [i for i, t in enumerate(st.seq) if t in tags]
            if idx: a(f"s_waitcnt vmcnt({min(63, len(st.seq) - 1 - max(idx))})")
        for u in range(32):
            tags = [("U", u)]
            if u == 15: tags.append(("V", 0))
            if u == 23: tags.append(("V", 1))
            tr_ = opt.get("trace")
            if tr_:
                a("s_memtime s[98:99]")
            wait_tags(tags)
            a("s_barrier")
            if tr_:
                a(f"s_waitcnt lgkmcnt(0)\nv_writelane_b32 v0, s98, {2*u}\ns_memtime s[98:99]\ns_waitcnt lgkmcnt(0)\nv_writelane_b32 v0, s98, {2*u+1}")
            if u in stu: stamp()
            if u == 8:
                for n in range(4):
                    a(f"s_min_u32 s{sK1+n}, s{sK2+2*n}, s{sK2+2*n+1}")
            lds = False
            if owner(u) == cls: tr_read(u); lds = True
            if cls == 0 and u in (0, 9):
                af_read(range(0, 2)); a("s_waitcnt lgkmcnt(4)")
                af_read(range(2, 5)); a("s_waitcnt lgkmcnt(4)")
                af_read(range(5, 8))
                if u == 9: a("s_waitcnt lgkmcnt(9)")
            early = {8: 7, 16: 15, 24: 23}
            dm = [0, 1, 2, 3] if (loader(u) == cls and u + 3 < 32) else []
            if u >= 1 and owner(u - 1) == cls and early.get(u) != u - 1:
                mfmas(u - 1, u + 3 if dm else None); dm = []
            if u in (7, 15, 23) and owner(u) == cls:
                if u != 7: v_read(0); v_read(1)
                a(f"s_waitcnt lgkmcnt({0 if u == 7 else 6})")
                mfmas(u)
            if cls == 0 and u == 8: silu()
            if u in (15, 23) and owner(u) == cls: a("s_nop 4")
            pcs = list(pieces[cls].get(u, []))
            if pcs:
                if lds: a("s_waitcnt lgkmcnt(0)")
                for pc in pcs:
                    for _ in range(4 // (len(pcs) + 1)):
                        if dm: dma_unit(u + 3, (dm.pop(0),))
                    if pc + 2 < 12: v_read(pc + 2)
                    a(f"s_waitcnt lgkmcnt({min(6, 3 * (11 - pc))})")
                    t4_piece(pc)
            if dm: dma_unit(u + 3, dm)
            if cls == pf_cls and u == pf_at: prefetch()
            if cls == 1 and u == v0_at:
                for n in range(9): dma_v(0, n)
            if cls == 1 and u == v1_at:
                for n in range(9): dma_v(1, n)
            if cls == 1 and 10 <= u < 14: af_read(range(2 * (u - 10), 2 * (u - 10) + 2)); lds = True
            if cls == 0 and u == 28: t1_epi()
            if lds: a("s_waitcnt lgkmcnt(0)")
        if cls == 1:
            mfmas(31); t1_epi()
        stamp()
        if cls == 0: a(f"s_branch {Lfin}")
    a(f"{Lfin}:")
    if opt.get("trace"):
        a(f"""
        s_add_u32 s40, s24, {WS_DIAG + (2<<20)}
        s_addc_u32 s41, s25, 0
        s_mov_b32 s42, 0x100000
        s_mov_b32 s43, 0x20000
        s_lshl_b32 s44, s2, 3
        s_add_u32 s44, s44, s3
        s_lshl_b32 s44, s44, 8
        v_mbcnt_lo_u32_b32 v1, -1, 0
        v_mbcnt_hi_u32_b32 v1, -1, v1
        v_lshlrev_b32 v1, 2, v1
        buffer_store_dword v0, v1, s[40:43], s44 offen
        """)
    dump_stamps(nst[0])
    a(f"{Lend}:\ns_endpgm")
    return nvmax, 102
```

```python
from asmlib import *
from layout import *

HS = 2
SCAP = 1024 + CAPN + 80 + 16 * HS + 10
L_LUT = 0
L_STREAM = LUT_BYTES
STREAM_BYTES = max(SCAP * 64, 16 * WIN_B + 640)
L_CNT = L_STREAM + STREAM_BYTES
L_HIST = L_CNT + 1280
L_ALLOC = L_HIST + 256
L_SORT = L_ALLOC + 64
L_NADDR = L_SORT + 1280
K2_LDS = L_NADDR + 1280
DIRS = [0, 1, 0, 1, 1]

def dpp_scan(a, op, v):
    for m in ["row_shr:1", "row_shr:2", "row_shr:4", "row_shr:8"]:
        a("s_nop 1")
        a(f"{op}_dpp v{v}, v{v}, v{v} {m} row_mask:0xf bank_mask:0xf bound_ctrl:0")
    a("s_nop 1")
    a(f"{op}_dpp v{v}, v{v}, v{v} row_bcast:15 row_mask:0xa bank_mask:0xf")
    a("s_nop 1")
    a(f"{op}_dpp v{v}, v{v}, v{v} row_bcast:31 row_mask:0xc bank_mask:0xf")

def gen_k2(a, name, opt):
    stamps = opt.get("stamps", False)
    res_fl = opt.get("res_flags", "sc1")
    st_fl = opt.get("st_flags", "nt")
    emu4 = opt.get("emu4", False)
    NSLOT = 10 if emu4 else 5
    hs = 4 if emu4 else HS
    HB = hs * 64
    V = Regs("v", 1, 128)
    vB = V.alloc("B", 12, 2)
    vC1 = V.alloc("c1"); vC2 = V.alloc("c2"); vML = V.alloc("ml"); vCL = V.alloc("cl")
    vS = V.alloc("vS"); vA = V.alloc("vA"); vPEND = V.alloc("pend"); vH = V.alloc("vH"); vCO = V.alloc("co"); vL16 = V.alloc("l16")
    tmp0 = V.mark()
    vO = V.alloc("O", 3)
    vACC = V.alloc("acc", 10, 2)
    HXY, HZS, LXY, LZS, BZ = vACC, vACC + 2, vACC + 4, vACC + 6, vACC + 8
    vR = V.alloc("R", 4)
    vRING = V.alloc("ring", 48, 2)
    vD = V.alloc("D", 12, 2)
    vRH = V.alloc("RH", 8, 2)
    vAOP = V.alloc("A", 4, 2)
    vE = V.alloc("E", 4, 2)
    vT = V.alloc("T", 2, 2)
    vPK = V.alloc("PK", 2, 2)
    vLI = V.alloc("LI")
    vAD = V.alloc("ad", 4)
    nv = V.hi
    P = Regs("v", tmp0, 128)
    pT = P.alloc("t", 12, 2)
    pREC = P.alloc("rec", 16, 2)
    pRANK = P.alloc("rank", 4)
    pDL = P.alloc("dl", 4)
    pEK = P.alloc("ek", 5)
    pRARE = P.alloc("rare", 32, 2)
    assert P.hi <= nv, (P.hi, nv)
    rare = [pRARE + 8 * k for k in range(4)]

    sT4, sT1, sRES, sOUT, sLIST, sMISC = 12, 16, 20, 24, 28, 32
    sMD = 36
    sX, sRG, sW, sCB, sTOT = 40, 41, 42, 43, 44
    sREM = 45; sPC = 46
    sBASE = 48; sCH = 49; sGS = 38; sLS = 39
    sCNT, sSLOT, sNB, s256, s64, sMASK = 50, 51, 52, 53, 54, 55
    sT = 56
    sVAL = 64; sRARE = 72; sFLAG = 80
    sST = 82
    nst = [0]
    def stamp():
        if stamps:
            a(f"s_memrealtime {sr(sST + 2 * nst[0], 2)}")
            nst[0] += 1
            assert nst[0] <= 10
    def srd(d, lo, off_sreg, off_imm, size):
        hi = lo + 1
        if off_sreg is None and off_imm == 0:
            a(f"s_mov_b32 s{d}, s{lo}\ns_mov_b32 s{d+1}, s{hi}")
        else:
            if off_sreg is not None:
                if off_imm:
                    a(f"s_add_u32 s{off_sreg}, s{off_sreg}, {off_imm}")
                a(f"s_add_u32 s{d}, s{lo}, s{off_sreg}")
            else:
                a(f"s_add_u32 s{d}, s{lo}, {off_imm}")
            a(f"s_addc_u32 s{d+1}, s{hi}, 0")
        a(f"s_mov_b32 s{d+2}, {size}\ns_mov_b32 s{d+3}, 0x20000")
    def res_load(dst, vo):
        for c in range(4):
            a(f"buffer_load_dword v{dst+c}, v{vo}, {sr(sRES,4)}, 0 offen offset:{512*c} {res_fl}")
    def ring(bslot, st): return vRING + (bslot * 2 + st) * 6
    def issue(bslot, pk0):
        for st in range(2):
            a(f"v_mad_u32_u16 v{vAD+2*st}, v{pk0+st}, s{s256}, v{vC1}")
            a(f"v_mad_u32_u16 v{vAD+2*st+1}, v{pk0+st}, s{s64}, v{vC2}")
        for st in range(2):
            rg = ring(bslot, st)
            a(f"buffer_load_dwordx4 {vr(rg,4)}, v{vAD+2*st}, {sr(sT4,4)}, 0 offen")
            a(f"buffer_load_dword v{rg+5}, v{vAD+2*st+1}, {sr(sT1,4)}, 0 offen")
    def acc_init(rr):
        a(f"""
        v_and_b32 v{HXY}, s{sMASK}, v{rr+1}
        v_and_b32 v{HXY+1}, s{sMASK}, v{rr+2}
        v_and_b32 v{HZS}, s{sMASK}, v{rr+3}
        v_and_b32 v{HZS+1}, s{sMASK}, v{rr}
        v_lshlrev_b32 v{LXY}, 16, v{rr+1}
        v_lshlrev_b32 v{LXY+1}, 16, v{rr+2}
        v_lshlrev_b32 v{LZS}, 16, v{rr+3}
        v_lshlrev_b32 v{LZS+1}, 16, v{rr}
        v_mov_b64 {vr(BZ,2)}, 0
        """)

    kernel_header(a, name)
    Lend = a.label("K2_END"); Lslow = a.label("K2_SLOW"); Ljoin = a.label("K2_JOIN"); Lround = a.label("K2_ROUND")
    a(f"""
    s_cmp_ge_u32 s2, 256
    s_cbranch_scc1 {Lend}
    s_load_dwordx2 s[6:7], s[0:1], 80
    s_load_dwordx2 s[4:5], s[0:1], 0
    s_load_dwordx2 s[10:11], s[0:1], 64
    """)
    stamp()
    fT = vRING + 36
    lane16 = vL16
    a(f"""
    v_lshrrev_b32 v{fT+1}, 6, v0
    s_and_b32 s{sX}, s2, 7
    s_lshr_b32 s{sRG}, s2, 3
    v_readfirstlane_b32 s{sW}, v{fT+1}
    v_and_b32 v{lane16}, 63, v0
    v_lshlrev_b32 v{lane16}, 4, v{lane16}
    """)
    if emu4:
        a(f"s_and_b32 s{sT}, s2, 1\ns_lshl_b32 s{sRG}, s{sRG}, 1\ns_add_u32 s{sRG}, s{sRG}, s{sT}\ns_and_b32 s{sX}, s{sX}, 6")
    a(f"""
    s_lshl_b32 s{sT}, s{sRG}, 4
    s_add_u32 s{sT}, s{sT}, s{sW}
    s_mul_i32 s{sT}, s{sT}, {WIN_B}
    s_add_u32 s{sT}, s{sT}, {M_STR}
    s_mul_i32 s{sBASE}, s{sW}, {WIN_B}
    s_add_u32 s{sBASE}, s{sBASE}, {L_STREAM}
    s_mov_b32 m0, s{sBASE}
    s_lshl_b32 s{sT+1}, s{sW}, 10
    s_add_u32 s{sT+1}, s{sT+1}, {LUT_THR*32}
    s_mul_i32 s{sT+2}, s{sX}, 3072
    s_add_u32 s{sT+2}, s{sT+2}, {M_BOP}
    s_lshl_b32 s{sT+3}, s{sRG}, 6
    s_add_u32 s{sT+3}, s{sT+3}, {M_MODE}
    s_waitcnt lgkmcnt(0)
    """)
    srd(sMISC, 6, None, WS_LUT, MISC_BYTES)
    Lnr0 = a.label("K2_NR0")
    a(f"""
    buffer_load_dwordx4 v{lane16}, {sr(sMISC,4)}, s{sT} offen lds
    s_buffer_load_dwordx2 {sr(sMD,2)}, {sr(sMISC,4)}, s{sT+3}
    buffer_load_dwordx4 v{lane16}, {sr(sMISC,4)}, s{sT} offen offset:1024 lds
    s_mov_b32 m0, s{sT+1}
    s_cmp_lg_u32 s{sW}, 15
    buffer_load_dwordx4 v{lane16}, {sr(sMISC,4)}, s{sT+1} offen lds
    buffer_load_dwordx4 {vr(vB,4)}, v{lane16}, {sr(sMISC,4)}, s{sT+2} offen
    buffer_load_dwordx4 {vr(vB+4,4)}, v{lane16}, {sr(sMISC,4)}, s{sT+2} offen offset:1024
    buffer_load_dwordx4 {vr(vB+8,4)}, v{lane16}, {sr(sMISC,4)}, s{sT+2} offen offset:2048
    s_cbranch_scc1 {Lnr0}
    s_mov_b32 m0, {L_LUT}
    s_lshl_b32 s{sT+4}, s{sRG}, 10
    s_add_u32 s{sT+4}, s{sT+4}, {M_RARE}
    buffer_load_dwordx4 v{lane16}, {sr(sMISC,4)}, s{sT+4} offen lds
{Lnr0}:
    """)
    mul = 2 if emu4 else 1
    a(f"s_mul_i32 s{sT+5}, s{sX}, {T4_SL}")
    srd(sT4, 6, sT + 5, WS_T4, 0 if opt.get("not4") else T4_SL * mul)
    a(f"s_mul_i32 s{sT+5}, s{sX}, {T1_SL}")
    srd(sT1, 6, sT + 5, WS_T1, 0 if opt.get("not1") else T1_SL * mul)
    srd(sRES, 4, None, 0, 0 if opt.get("nores") else N * 2048)
    srd(sOUT, 10, None, 0, 0 if opt.get("nost") else N * 2048)
    a(f"""
    s_movk_i32 s{s256}, {256*mul}
    s_movk_i32 s{s64}, {64*mul}
    s_mov_b32 s{sMASK}, 0xffff0000
    s_mov_b32 s{sFLAG}, 0
    s_mov_b32 s{sCB}, 0
    s_mov_b32 s{sTOT}, 0
    v_and_b32 v{vC1}, 7, v0
    v_bfe_u32 v{vC2}, v0, 3, 1
    v_lshlrev_b32 v{vC1}, 5, v{vC1}
    v_lshl_add_u32 v{vC1}, v{vC2}, 4, v{vC1}
    v_and_b32 v{vC2}, {31 if emu4 else 15}, v0
    {f"v_lshlrev_b32 v{vC1}, 4, v{vC2}" if emu4 else ""}
    v_lshlrev_b32 v{vC2}, 2, v{vC2}
    s_lshl_b32 s{sT+5}, s{sX}, 6
    v_add_u32 v{vCO}, s{sT+5}, v{vC2}
    v_bfe_u32 v{fT+1}, v0, 5, 1
    v_and_b32 v{fT+2}, 1, v0
    v_cmp_eq_u32 vcc, v{fT+1}, v{fT+2}
    v_and_b32 v{fT+3}, 16, v0
    v_mov_b32 v{fT+4}, 32
    v_cndmask_b32 v{vML}, 0, v{fT+4}, vcc
    v_mov_b32 v{vPEND}, 15
    v_cndmask_b32 v{vCL}, 0, v{fT+3}, vcc
    s_waitcnt lgkmcnt(0)
    s_cmp_lg_u32 s{sMD}, {MODE_OK}
    s_cbranch_scc1 {Lslow}
    s_add_u32 s{sGS}, s{sT}, 2048
    s_add_u32 s{sLS}, s{sBASE}, 2048
    s_waitcnt vmcnt(0)
    s_barrier
{Ljoin}:
    """)
    stamp()
    r0t = fT + 4
    L5 = a.label("K2_KB5")
    a(f"""
    v_bfe_u32 v{fT+1}, v0, 4, 2
    v_lshl_add_u32 v{vH}, v{fT+1}, 2, s{sBASE}
    s_add_u32 s{sT+5}, s{sBASE}, {HB}
    v_lshl_add_u32 v{vS}, v{fT+1}, 4, s{sT+5}
    v_mov_b32 v{fT+2}, s{sBASE}
    ds_read2_b32 {vr(vD+6,2)}, v{vH} offset0:0 offset1:4
    ds_read2_b32 {vr(vD,2)}, v{vS} offset0:3 offset1:19
    ds_read2_b32 {vr(vD+2,2)}, v{vS} offset0:35 offset1:51
    ds_read2_b32 {vr(vD+4,2)}, v{vS} offset0:67 offset1:83
    ds_read_b96 {vr(vD+8,3)}, v{fT+2} offset:{NSLOT*16}
    v_bfe_u32 v{fT+2}, v0, 1, 1
    v_bfe_u32 v{fT+3}, v0, 2, 2
    v_lshlrev_b32 v{fT+2}, 6, v{fT+2}
    v_lshl_add_u32 v{fT+2}, v{fT+3}, 4, v{fT+2}
    v_add_u32 v{vA}, s{sT+5}, v{fT+2}
    ds_read_u16 v{vLI}, v{vA} offset:14
    ds_read_b32 v{vO+2}, v{vH} offset:32
    v_add_u32 v{vH}, 48, v{vH}
    s_waitcnt lgkmcnt(6)
    v_add_u32 v{vO}, v{vD+6}, v{vCO}
    v_add_u32 v{vO+1}, v{vD+7}, v{vCO}
    """)
    if opt.get("resall"):
        a(f"ds_read2_b32 {vr(vE,2)}, v{vH} offset0:0 offset1:4\ns_waitcnt lgkmcnt(0)")
        a(f"v_add_u32 v{vE}, v{vE}, v{vCO}\nv_add_u32 v{vE+1}, v{vE+1}, v{vCO}\nv_add_u32 v{vE+2}, v{vO+2}, v{vCO}")
        for k in range(3): res_load(vRH, vE + k)
        if opt.get("strall"):
            a(f"s_mov_b32 m0, s{sLS}\ns_nop 0")
            a(f"buffer_load_dwordx4 v{lane16}, {sr(sMISC,4)}, s{sGS} offen lds")
            a(f"buffer_load_dwordx4 v{lane16}, {sr(sMISC,4)}, s{sGS} offen offset:1024 lds")
        res_load(vR, vO + 1)
    res_load(r0t, vO)
    for b in range(3):
        a(f"s_waitcnt lgkmcnt({5-b})")
        issue(b, vD + 2 * b)
    if not opt.get("resall"): res_load(vR, vO + 1)
    a(f"""
    s_waitcnt lgkmcnt(0)
    v_readfirstlane_b32 s{sPC}, v{vD+8}
    v_readfirstlane_b32 s{sPC+1}, v{vD+9}
    v_readfirstlane_b32 s{sREM}, v{vD+10}
    v_mad_u32_u16 v{vAD}, v{vLI}, v{vML}, v{vCL}
    s_mov_b32 s{sSLOT}, {NSLOT}
    s_and_b32 s{sCNT}, s{sPC}, 63
    s_mov_b32 s{sNB}, s{sCNT}
    s_add_u32 s{sCH}, s{sREM}, {hs//2 + 3}
    s_lshr_b32 s{sCH}, s{sCH}, 2
    s_sub_i32 s{sCH}, s{sCH}, 4
    s_cmp_lg_u32 s{sMD}, {MODE_OK}
    s_cselect_b32 s{sCH}, 0, s{sCH}
    {f"s_mov_b32 s{sCH}, 0" if opt.get("strall") else ""}
    ds_read_b128 {vr(vAOP,4)}, v{vAD} offset:{L_LUT}
    ds_read2_b32 {vr(vPK,2)}, v{vS} offset0:99 offset1:115
    ds_read_u16 v{vLI}, v{vA} offset:{128+14}
    ds_read_b128 {vr(vRH,4)}, v{vS}
    ds_read_b128 {vr(vRH+4,4)}, v{vS} offset:64
    s_waitcnt vmcnt({12 if opt.get("resall") else 16})
    """)
    acc_init(r0t)
    if stamps:
        stamp(); a("s_memtime s[96:97]\ns_waitcnt lgkmcnt(0)")
    Lph = [a.label(f"K2_PH{p}") for p in range(4)]
    Lep = [a.label(f"K2_EP{p}") for p in range(4)]
    Lsk = [a.label(f"K2_SK{p}") for p in range(4)]
    Lbk = [a.label(f"K2_BK{p}") for p in range(4)]
    Ldone = a.label("K2_DONE")
    a(f"s_cmp_eq_u32 s{sCNT}, 0\ns_cbranch_scc1 {Lep[3]}")
    for p in range(4):
        a(f"{Lph[p]}:")
        a("s_waitcnt lgkmcnt(2)")
        for o in range(3):
            if opt.get("nomfma"): continue
            a(f"v_mfma_f32_16x16x32_bf16 {vr(vD+4*o,4)}, {vr(vAOP,4)}, {vr(vB+4*o,4)}, 0")
        a(f"s_sub_u32 s{sREM}, s{sREM}, 1\ns_cmp_lt_u32 s{sREM}, 3\ns_cbranch_scc1 {Lsk[p]}")
        issue((p + 3) % 4, vPK)
        a(f"{Lbk[p]}:")
        a(f"""
        v_mad_u32_u16 v{vT}, v{vLI}, v{vML}, v{vCL}
        ds_read_b128 {vr(vAOP,4)}, v{vT} offset:{L_LUT}
        ds_read2_b32 {vr(vPK,2)}, v{vS} offset0:{(p+4)*32+3} offset1:{(p+4)*32+19}
        ds_read_u16 v{vLI}, v{vA} offset:{(p+2)*128+14}
        s_waitcnt vmcnt(12) lgkmcnt(3)
        """)
        for st in range(2):
            if opt.get("novalu"): continue
            rg = ring(p, st); rh = vRH + 4 * st
            d1, d2, d3 = vD + 2 * st, vD + 4 + 2 * st, vD + 8 + 2 * st
            a(f"""
            v_lshlrev_b32 v{rg+4}, 16, v{rg+5}
            v_lshlrev_b64 {vr(vE,2)}, 16, {vr(rg,2)}
            v_pk_mul_f32 {vr(vT,2)}, {vr(d3,2)}, {vr(rg+4,2)}
            v_lshlrev_b64 {vr(vE+2,2)}, 16, {vr(rg+2,2)}
            v_pk_fma_f32 {vr(HXY,2)}, {vr(d1,2)}, {vr(rg,2)}, {vr(HXY,2)} op_sel_hi:[0,1,1]
            v_pk_fma_f32 {vr(HZS,2)}, {vr(d1,2)}, {vr(rg+2,2)}, {vr(HZS,2)}
            v_pk_fma_f32 {vr(LXY,2)}, {vr(d2,2)}, {vr(vE,2)}, {vr(LXY,2)} op_sel_hi:[0,1,1]
            v_pk_fma_f32 {vr(LZS,2)}, {vr(d2,2)}, {vr(vE+2,2)}, {vr(LZS,2)}
            v_pk_fma_f32 {vr(BZ,2)}, {vr(vT,2)}, {vr(rh+2,2)}, {vr(BZ,2)} op_sel_hi:[1,0,1]
            v_pk_fma_f32 {vr(HXY,2)}, {vr(vT,2)}, {vr(rh,2)}, {vr(HXY,2)} op_sel:[1,0,0]
            v_pk_fma_f32 {vr(LXY,2)}, {vr(vT,2)}, {vr(rh,2)}, {vr(LXY,2)} op_sel_hi:[0,1,1]
            """)
        a(f"""
        ds_read_b128 {vr(vRH,4)}, v{vS} offset:{(p+1)*128}
        ds_read_b128 {vr(vRH+4,4)}, v{vS} offset:{(p+1)*128+64}
        """)
        if p == 3:
            a(f"v_add_u32 v{vS}, 512, v{vS}\nv_add_u32 v{vA}, 512, v{vA}")
            Lnc = a.label("K2_NC")
            a(f"""
            s_cmp_le_i32 s{sCH}, 0
            s_cbranch_scc1 {Lnc}
            s_mov_b32 m0, s{sLS}
            s_mov_b32 exec_hi, 0
            buffer_load_dwordx4 v{lane16}, {sr(sMISC,4)}, s{sGS} offen lds
            s_mov_b32 exec_hi, -1
            s_sub_u32 s{sCH}, s{sCH}, 1
            s_add_u32 s{sLS}, s{sLS}, 512
            s_add_u32 s{sGS}, s{sGS}, 512
{Lnc}:
            """)
        a(f"s_sub_u32 s{sCNT}, s{sCNT}, 1\ns_cmp_eq_u32 s{sCNT}, 0")
        if p < 3:
            a(f"s_cbranch_scc1 {Lep[p]}")
        else:
            a(f"s_cbranch_scc0 {Lph[0]}")
    for p in [3, 0, 1, 2]:
        a(f"{Lep[p]}:")
        Lw = a.label("K2_EW"); Lnr = a.label("K2_NR"); Lns = a.label("K2_NS")
        a(f"""
        v_add_f32 v{LZS}, v{LZS}, v{BZ}
        v_add_f32 v{HZS}, v{HZS}, v{BZ+1}
        v_cvt_pk_bf16_f32 v{vE}, v{LZS+1}, v{HZS+1}
        v_cvt_pk_bf16_f32 v{vE+1}, v{LXY}, v{HXY}
        v_cvt_pk_bf16_f32 v{vE+2}, v{LXY+1}, v{HXY+1}
        v_cvt_pk_bf16_f32 v{vE+3}, v{LZS}, v{HZS}
        s_cmp_ge_u32 s{sNB}, 3
        s_cbranch_scc1 {Lw}
        s_waitcnt vmcnt(0) lgkmcnt(0)
{Lw}:
        """)
        if emu4: a(f"s_cmp_gt_u32 s{sSLOT}, 5\ns_cbranch_scc1 {Lns}")
        for c in range(4):
            a(f"buffer_store_dword v{vE+c}, v{vO}, {sr(sOUT,4)}, 0 offen offset:{512*c} {st_fl}")
        a(f"{Lns}:")
        a(f"s_sub_u32 s{sSLOT}, s{sSLOT}, 1\ns_cmp_eq_u32 s{sSLOT}, 0\ns_cbranch_scc1 {Ldone}")
        if emu4 and opt.get("phbar", 1):
            Lnb = a.label("K2_NB")
            a(f"s_cmp_lg_u32 s{sSLOT}, 5\ns_cbranch_scc1 {Lnb}\ns_barrier\n{Lnb}:")
        acc_init(vR)
        a(f"""
        v_mov_b32 v{vO}, v{vO+1}
        v_add_u32 v{vO+1}, v{vO+2}, v{vCO}
        ds_read_b32 v{vO+2}, v{vH}
        v_add_u32 v{vH}, 16, v{vH}
        s_lshr_b64 {sr(sPC,2)}, {sr(sPC,2)}, 6
        s_cmp_lt_u32 s{sSLOT}, {7 if emu4 else 2}
        s_cbranch_scc1 {Lnr}
        """)
        if not opt.get("resall"): res_load(vR, vO + 1)
        a(f"""
{Lnr}:
        s_and_b32 s{sCNT}, s{sPC}, 63
        s_mov_b32 s{sNB}, s{sCNT}
        s_cbranch_scc0 {Lep[p]}
        s_branch {Lph[(p+1)%4]}
        """)
    for p in range(4):
        a(f"{Lsk[p]}:\ns_waitcnt vmcnt(0)\ns_branch {Lbk[p]}")
    Lfin = a.label("K2_FIN"); Lnext = a.label("K2_NEXT")
    a(f"""
{Ldone}:
    s_cmp_lg_u32 s{sFLAG}, 0
    s_cbranch_scc1 {Lnext}
    s_add_u32 s{sCB}, s{sCB}, 4096
    s_cmp_ge_u32 s{sCB}, s{sTOT}
    s_cbranch_scc1 {Lfin}
    v_mov_b32 v{vPEND}, 15
{Lnext}:
    s_mov_b32 s{sRES}, s10
    s_mov_b32 s{sRES+1}, s11
    s_branch {Lround}
{Lfin}:
    """)
    if stamps:
        stamp()
        a(f"s_memtime s[98:99]")
        a("s_waitcnt vmcnt(0)")
        stamp()
        a(f"s_waitcnt lgkmcnt(0)\ns_sub_u32 s{sST+2*nst[0]}, s98, s96\ns_mov_b32 s{sST+2*nst[0]+1}, 0")
        nst[0] += 1
        a(f"""
        s_add_u32 s{sLIST}, s6, {WS_DIAG + (1<<20)}
        s_addc_u32 s{sLIST+1}, s7, 0
        s_mov_b32 s{sLIST+2}, 0x100000
        s_mov_b32 s{sLIST+3}, 0x20000
        s_lshl_b32 s{sT}, s2, 4
        s_add_u32 s{sT}, s{sT}, s{sW}
        s_lshl_b32 s{sT}, s{sT}, 7
        v_mov_b32 v1, s{sT}
        s_mov_b64 exec, 1
        """)
        for i in range(nst[0]):
            a(f"v_mov_b32 v2, s{sST+2*i}\nv_mov_b32 v3, s{sST+2*i+1}")
            a(f"buffer_store_dwordx2 v[2:3], v1, {sr(sLIST,4)}, 0 offen offset:{8*i}")
    a(f"{Lend}:\ns_endpgm")

    a(f"{Lslow}:")
    if opt.get("noslow"):
        a(f"{Lround}:\ns_endpgm")
        return nv, 102
    a(f"s_min_u32 s{sTOT}, s{sMD+1}, {E}")
    a(f"s_mul_i32 s{sT+5}, s{sRG}, {LIST_STRIDE}")
    srd(sLIST, 6, sT + 5, WS_LIST, LIST_STRIDE)
    z = pT + 8
    a(f"""
{Lround}:
    s_waitcnt vmcnt(0) lgkmcnt(0)
    s_barrier
    v_add_u32 v{pT+5}, s{sCB}, v0
    v_lshlrev_b32 v{pT+5}, 4, v{pT+5}
    s_movk_i32 s{sT+2}, 16384
    s_mov_b32 s{sT+3}, 32768
    s_mov_b32 s{sT+4}, 49152
    buffer_load_dwordx4 {vr(pREC,4)}, v{pT+5}, {sr(sLIST,4)}, 0 offen
    buffer_load_dwordx4 {vr(pREC+4,4)}, v{pT+5}, {sr(sLIST,4)}, s{sT+2} offen
    buffer_load_dwordx4 {vr(pREC+8,4)}, v{pT+5}, {sr(sLIST,4)}, s{sT+3} offen
    buffer_load_dwordx4 {vr(pREC+12,4)}, v{pT+5}, {sr(sLIST,4)}, s{sT+4} offen
    v_mov_b32 v{z}, 0
    v_mov_b32 v{z+1}, 0
    v_mov_b32 v{z+2}, 0
    v_mov_b32 v{z+3}, 0xffff
    v_lshlrev_b32 v{pT+4}, 4, v0
    v_add_u32 v{pT+4}, {L_STREAM}, v{pT+4}
    v_add_u32 v{pT+6}, 65536, v{pT+4}
    """)
    nfull = STREAM_BYTES // 16384
    rem = (STREAM_BYTES - nfull * 16384) // 16
    assert nfull >= 4
    for i in range(nfull):
        if i < 4: a(f"ds_write_b128 v{pT+4}, {vr(z,4)} offset:{i*16384}")
        else: a(f"ds_write_b128 v{pT+6}, {vr(z,4)} offset:{(i-4)*16384}")
    one = pT + 4
    a(f"""
    v_cmp_gt_u32 vcc, {rem}, v0
    s_and_saveexec_b64 s[{sT}:{sT+1}], vcc
    ds_write_b128 v{pT+6}, {vr(z,4)} offset:{(nfull-4)*16384}
    s_mov_b64 exec, s[{sT}:{sT+1}]
    v_lshlrev_b32 v{pT+4}, 2, v0
    v_add_u32 v{pT+6}, {L_CNT}, v{pT+4}
    v_cmp_gt_u32 vcc, 400, v0
    s_and_saveexec_b64 s[{sT}:{sT+1}], vcc
    ds_write_b32 v{pT+6}, v{z}
    v_cmp_gt_u32 vcc, 8, v0
    s_and_b64 exec, exec, vcc
    ds_write_b32 v{pT+4}, v{z} offset:{L_LUT}
    s_mov_b64 exec, s[{sT}:{sT+1}]
    s_waitcnt vmcnt(0) lgkmcnt(0)
    s_barrier
    v_mov_b32 v{one}, 1
    s_sub_u32 s{sT+2}, s{sTOT}, s{sCB}
    """)
    for k in range(4):
        r0 = pREC + 4 * k
        Lskip = a.label("K2_NORARE")
        a(f"""
        v_add_u32 v{pT+5}, {k*1024}, v0
        v_and_b32 v{pT+6}, {1<<k}, v{vPEND}
        v_cmp_gt_u32 vcc, s{sT+2}, v{pT+5}
        v_cmp_ne_u32 s[{sT}:{sT+1}], 0, v{pT+6}
        v_and_b32 v{pDL+k}, 0xffff, v{r0}
        v_lshlrev_b32 v{pDL+k}, 2, v{pDL+k}
        v_add_u32 v{pDL+k}, {L_CNT}, v{pDL+k}
        v_lshrrev_b32 v{pT+7}, 16, v{r0+3}
        s_and_b64 {sr(sVAL+2*k,2)}, vcc, s[{sT}:{sT+1}]
        s_mov_b64 exec, {sr(sVAL+2*k,2)}
        ds_add_rtn_u32 v{pRANK+k}, v{pDL+k}, v{one}
        s_mov_b64 exec, -1
        v_cmp_gt_u32 vcc, {LUT_THR}, v{pT+7}
        v_lshlrev_b32 v{pT+7}, 5, v{pT+7}
        s_and_b64 {sr(sRARE,2)}, vcc, {sr(sVAL+2*k,2)}
        s_cbranch_scc0 {Lskip}
        s_mov_b64 exec, {sr(sRARE,2)}
        buffer_load_dwordx4 {vr(pRARE,4)}, v{pT+7}, {sr(sMISC,4)}, 0 offen
        buffer_load_dwordx4 {vr(pRARE+4,4)}, v{pT+7}, {sr(sMISC,4)}, 0 offen offset:16
        s_waitcnt vmcnt(0)
        ds_write_b128 v{pT+7}, {vr(pRARE,4)} offset:{L_LUT}
        ds_write_b128 v{pT+7}, {vr(pRARE+4,4)} offset:{L_LUT+16}
        s_waitcnt lgkmcnt(0)
        s_mov_b64 exec, -1
{Lskip}:
        """)
    a("s_waitcnt lgkmcnt(0)\ns_barrier")
    L7 = a.label("K2_P7"); L8 = a.label("K2_P8")
    deg, rk, hh = pT + 5, pT + 6, pT + 7
    a(f"""
    s_cmp_ge_u32 s{sW}, 5
    s_cbranch_scc1 {L7}
    v_lshlrev_b32 v{pT+8}, 2, v0
    v_add_u32 v{pT+8}, {L_CNT}, v{pT+8}
    ds_read_b32 v{deg}, v{pT+8}
    s_waitcnt lgkmcnt(0)
    v_min_u32 v{deg}, {CAPN}, v{deg}
    v_lshlrev_b32 v{pT+8}, 2, v{deg}
    v_add_u32 v{pT+8}, {L_HIST}, v{pT+8}
    ds_add_rtn_u32 v{rk}, v{pT+8}, v{one}
    s_waitcnt lgkmcnt(0)
{L7}:
    s_barrier
    s_cmp_ge_u32 s{sW}, 5
    s_cbranch_scc1 {L8}
    v_and_b32 v{pT+8}, 63, v0
    v_lshlrev_b32 v{pT+8}, 2, v{pT+8}
    v_sub_u32 v{pT+8}, {L_HIST + 252}, v{pT+8}
    ds_read_b32 v{hh}, v{pT+8}
    s_waitcnt lgkmcnt(0)
    v_mov_b32 v{pT+9}, v{hh}
    """)
    dpp_scan(a, "v_add_u32", hh)
    a(f"""
    v_sub_u32 v{hh}, v{hh}, v{pT+9}
    v_lshlrev_b32 v{pT+8}, 2, v{deg}
    v_sub_u32 v{pT+8}, 252, v{pT+8}
    ds_bpermute_b32 v{pT+9}, v{pT+8}, v{hh}
    v_lshl_or_b32 v{pT+10}, v{deg}, 16, v0
    s_waitcnt lgkmcnt(0)
    v_add_lshl_u32 v{pT+9}, v{pT+9}, v{rk}, 2
    v_add_u32 v{pT+9}, {L_SORT}, v{pT+9}
    ds_write_b32 v{pT+9}, v{pT+10}
    s_waitcnt lgkmcnt(0)
{L8}:
    s_barrier
    """)
    ek = pEK; g4 = pT + 5
    sN0 = sRARE
    a(f"""
    v_bfe_u32 v{g4}, v0, 4, 2
    s_lshl_b32 s{sT}, s{sW}, 4
    s_sub_u32 s{sT+1}, {L_SORT + 240}, s{sT}
    s_add_u32 s{sT}, s{sT}, {L_SORT}
    v_lshl_add_u32 v{pT+6}, v{g4}, 2, s{sT}
    v_lshl_add_u32 v{pT+7}, v{g4}, 2, s{sT+1}
    """)
    for k in range(5):
        a(f"ds_read_b32 v{ek+k}, v{pT+6+DIRS[k]} offset:{256*k}")
    a("s_waitcnt lgkmcnt(0)")
    for k in range(5):
        a(f"v_readfirstlane_b32 s{sN0+k}, v{ek+k}")
    a(f"s_nop 1\ns_mov_b32 s{sPC}, 0")
    for k in range(5):
        a(f"s_add_u32 s{sN0+k}, s{sN0+k}, 0x10000")
        a(f"s_lshr_b32 s{sN0+k}, s{sN0+k}, 17")
        a(f"s_lshl_b32 s{sT}, s{sN0+k}, {6*k}\ns_or_b32 s{sPC}, s{sPC}, s{sT}")
    a(f"""
    s_mov_b32 s{sT+1}, s{sN0}
    s_add_u32 s{sT+2}, s{sT+1}, s{sN0+1}
    s_add_u32 s{sT+3}, s{sT+2}, s{sN0+2}
    s_add_u32 s{sT+4}, s{sT+3}, s{sN0+3}
    s_add_u32 s{sREM}, s{sT+4}, s{sN0+4}
    s_add_u32 s{sT+5}, s{sREM}, {HS//2}
    v_mov_b32 v{pT+8}, s{sT+5}
    v_mov_b32 v{pT+9}, {L_ALLOC}
    s_mov_b64 exec, 1
    ds_add_rtn_u32 v{pT+10}, v{pT+9}, v{pT+8}
    s_mov_b64 exec, -1
    s_waitcnt lgkmcnt(0)
    v_readfirstlane_b32 s{sBASE}, v{pT+10}
    s_nop 1
    s_lshl_b32 s{sBASE}, s{sBASE}, 7
    s_add_u32 s{sBASE}, s{sBASE}, {L_STREAM}
    s_add_u32 s{sT}, s{sBASE}, {HS*64}
    s_lshl_b32 s{sT+6}, s{sRG}, 11
    v_lshl_add_u32 v{pT+8}, v{g4}, 4, s{sT}
    v_lshl_add_u32 v{pT+9}, v{g4}, 2, s{sBASE}
    v_mov_b32 v{pT+10}, s{sBASE}
    v_mov_b32 v{pT+11}, s{sPC}
    ds_write_b32 v{pT+10}, v{pT+11} offset:80
    v_mov_b32 v{pT+11}, s{sREM}
    ds_write_b32 v{pT+10}, v{pT+11} offset:88
    """)
    for k in range(5):
        a(f"v_and_b32 v{ek+k}, 0xffff, v{ek+k}")
        a(f"v_lshlrev_b32 v{pT+6}, 2, v{ek+k}")
        a(f"v_add_u32 v{pT+6}, {L_NADDR}, v{pT+6}")
        if k == 0:
            a(f"ds_write_b32 v{pT+6}, v{pT+8}")
        else:
            a(f"s_lshl_b32 s{sT+7}, s{sT+k}, 7")
            a(f"v_add_u32 v{pT+7}, s{sT+7}, v{pT+8}")
            a(f"ds_write_b32 v{pT+6}, v{pT+7}")
        a(f"v_lshl_add_u32 v{pT+7}, v{ek+k}, 16, s{sT+6}")
        a(f"ds_write_b32 v{pT+9}, v{pT+7} offset:{16*k}")
    a("s_waitcnt lgkmcnt(0)\ns_barrier")
    for k in range(4):
        a(f"ds_read_b32 v{pT+5+k}, v{pDL+k} offset:{L_NADDR - L_CNT}")
    a(f"v_mov_b32 v{vPEND}, 0")
    a(f"v_mov_b32 v{pT+10}, {L_ALLOC}")
    a("s_waitcnt lgkmcnt(0)")
    for k in range(4):
        r0 = pREC + 4 * k
        a(f"""
        v_cmp_gt_u32 vcc, {CAPN}, v{pRANK+k}
        v_lshl_add_u32 v{pT+5+k}, v{pRANK+k}, 6, v{pT+5+k}
        v_and_b32 v{r0}, s{sMASK}, v{r0}
        s_and_b64 exec, vcc, {sr(sVAL+2*k,2)}
        ds_write_b128 v{pT+5+k}, {vr(r0,4)}
        s_andn2_b64 exec, {sr(sVAL+2*k,2)}, vcc
        v_or_b32 v{vPEND}, {1<<k}, v{vPEND}
        ds_write_b32 v{pT+10}, v{one} offset:4
        s_mov_b64 exec, -1
        """)
    a(f"""
    s_waitcnt lgkmcnt(0)
    s_barrier
    ds_read_b32 v{pT+11}, v{pT+10} offset:4
    s_waitcnt lgkmcnt(0)
    v_readfirstlane_b32 s{sFLAG}, v{pT+11}
    s_branch {Ljoin}
    """)
    return nv, 102
```

```python
N = 10000
E = 160000
NSL = 8
NR = 32
NP = 40
EPW = E // NP
T4_SL = N * 256
T1_SL = N * 64
WS_T4 = 0
WS_T1 = WS_T4 + NSL * T4_SL
WS_LUT = WS_T1 + NSL * T1_SL
LUT_ROWS = 2080
LUT_BYTES = LUT_ROWS * 32
M_LUT = 0
M_END = 67584
M_BOP = M_END + 8192
M_MODE = M_BOP + 24576
M_RARE = M_MODE + 4096
M_STR = M_RARE + 65536
WIN_B = 5120
MISC_BYTES = M_STR + 64 * 16 * WIN_B
WS_END = WS_LUT + M_END
WS_LIST = 32 * 1024 * 1024
assert WS_LUT + MISC_BYTES <= WS_LIST
MODE_OK = 0x600DF00D
NRARE = 32
LIST_STRIDE = E * 16
WS_DIAG = 200 * 1024 * 1024
DBASE = 0x3880
DCUT = 0x409D
LUT_THR = 1568
CAPN = 62
```

```python
from asmlib import *
from layout import *

ROWS = 48
NG = (N + ROWS - 1) // ROWS
WG_EDGE0 = 0
WG_LUT0 = NP
NLUTWG = 5
WG_GEMM0 = NP + NLUTWG + 2
assert WG_GEMM0 + NG == 256
L_RING = 0
L_V = 65536
L_H = L_V + 3 * ROWS * 512
GEMM_LDS = L_H + ROWS * 512
L_POS = 0
L_EH = 65536
L_DLT = L_EH + 512
L_STG = L_EH + 1024
K1_LDS = max(GEMM_LDS, L_STG + 65536)
WG_BOP = WG_LUT0 + NLUTWG
from gen_k2 import dpp_scan

def rne_bf16(a, dst, src):
    a(f"v_cvt_pk_bf16_f32 v{dst}, v{src}, v{src}")
    a(f"v_and_b32 v{dst}, 0xffff0000, v{dst}")

def lut_row(a, vd, out, t, sF, sC):
    rcp, fc = t, t + 1
    a(f"v_rcp_f32 v{rcp}, v{vd}")
    a(f"v_mul_f32 v{fc}, s{sC}, v{vd}")
    rne_bf16(a, fc, fc)
    a(f"v_mul_f32 v{fc}, s{sC+1}, v{fc}")
    rne_bf16(a, fc, fc)
    a(f"v_mul_f32 v{fc}, s{sC+2}, v{fc}")
    a(f"v_cos_f32 v{fc}, v{fc}")
    a("s_nop 0")
    rne_bf16(a, fc, fc)
    a(f"v_add_f32 v{fc}, 1.0, v{fc}")
    rne_bf16(a, fc, fc)
    a(f"v_mul_f32 v{fc}, 0.5, v{fc}")
    for k in range(0, 16, 2):
        x, y, p = t + 2, t + 3, t + 4
        a(f"""
        v_mul_f32 v{x}, s{sF+k}, v{vd}
        v_mul_f32 v{y}, s{sF+k+1}, v{vd}
        v_cvt_pk_bf16_f32 v{p}, v{x}, v{y}
        v_lshlrev_b32 v{x}, 16, v{p}
        v_and_b32 v{y}, 0xffff0000, v{p}
        v_mul_f32 v{x}, s{sC+2}, v{x}
        v_mul_f32 v{y}, s{sC+2}, v{y}
        v_rndne_f32 v{t+5}, v{x}
        v_rndne_f32 v{t+6}, v{y}
        v_sub_f32 v{x}, v{x}, v{t+5}
        v_sub_f32 v{y}, v{y}, v{t+6}
        v_sin_f32 v{x}, v{x}
        v_sin_f32 v{y}, v{y}
        s_nop 0
        v_cvt_pk_bf16_f32 v{p}, v{x}, v{y}
        v_lshlrev_b32 v{x}, 16, v{p}
        v_and_b32 v{y}, 0xffff0000, v{p}
        v_mul_f32 v{x}, v{x}, v{rcp}
        v_mul_f32 v{y}, v{y}, v{rcp}
        v_cvt_pk_bf16_f32 v{p}, v{x}, v{y}
        v_lshlrev_b32 v{x}, 16, v{p}
        v_and_b32 v{y}, 0xffff0000, v{p}
        v_mul_f32 v{x}, v{x}, v{fc}
        v_mul_f32 v{y}, v{y}, v{fc}
        v_cvt_pk_bf16_f32 v{out+k//2}, v{x}, v{y}
        """)

def srd(a, d, lo, off_sreg, off_imm, size):
    hi = lo + 1
    if off_sreg is None and off_imm == 0:
        a(f"s_mov_b32 s{d}, s{lo}\ns_mov_b32 s{d+1}, s{hi}")
    else:
        if off_sreg is not None:
            if off_imm:
                a(f"s_add_u32 s{off_sreg}, s{off_sreg}, {off_imm}")
            a(f"s_add_u32 s{d}, s{lo}, s{off_sreg}")
        else:
            a(f"s_add_u32 s{d}, s{lo}, {off_imm}")
        a(f"s_addc_u32 s{d+1}, s{hi}, 0")
    a(f"s_mov_b32 s{d+2}, {size}\ns_mov_b32 s{d+3}, 0x20000")

def gen_k1(a, name, opt):
    stamps = opt.get("stamps", False)
    tab_fl = opt.get("tab_flags", "sc1")
    sST = 82
    nst = [0]
    def stamp():
        if stamps:
            a(f"s_memrealtime {sr(sST + 2 * nst[0], 2)}")
            nst[0] += 1
            assert nst[0] <= 10
    def dump_stamps(n):
        if not stamps: return
        a(f"""
        s_waitcnt vmcnt(0)
        s_memrealtime {sr(sST+18,2)}
        s_waitcnt lgkmcnt(0)
        s_add_u32 s40, s24, {WS_DIAG}
        s_addc_u32 s41, s25, 0
        s_mov_b32 s42, 0x100000
        s_mov_b32 s43, 0x20000
        s_lshl_b32 s44, s2, 3
        s_add_u32 s44, s44, s3
        s_lshl_b32 s44, s44, 7
        s_mov_b64 exec, 1
        v_mov_b32 v1, s44
        """)
        for i in list(range(n)) + [9]:
            a(f"v_mov_b32 v2, s{sST+2*i}\nv_mov_b32 v3, s{sST+2*i+1}")
            a(f"buffer_store_dwordx2 v[2:3], v1, s[40:43], 0 offen offset:{8*i}")

    kernel_header(a, name)
    Lend = a.label("K1_END"); Lgemm = a.label("K1_GEMM"); Llut = a.label("K1_LUT")
    a(f"""
    s_cmp_ge_u32 s2, 256
    s_cbranch_scc1 {Lend}
    s_load_dwordx16 s[4:19], s[0:1], 0
    s_load_dwordx4 s[20:23], s[0:1], 64
    s_load_dwordx2 s[24:25], s[0:1], 80
    """)
    stamp()
    a(f"""
    v_lshrrev_b32 v1, 6, v0
    s_nop 0
    v_readfirstlane_b32 s3, v1
    s_cmp_ge_u32 s2, {WG_GEMM0}
    s_cbranch_scc1 {Lgemm}
    s_cmp_ge_u32 s2, {WG_LUT0}
    s_cbranch_scc1 {Llut}
    """)
    nvmax = 0
    V = Regs("v", 1, 256)
    vSRC = V.alloc("src", 8, 2); vDST = V.alloc("dst", 8, 2)
    vP = V.alloc("p", 48)
    vREC = V.alloc("rec", 32, 2)
    vRK = V.alloc("rk", 8)
    vT = V.alloc("t", 12, 2)
    nvmax = max(nvmax, V.hi)
    sSRC, sDST, sPOS, sDBG, sLIST, sMISC = 28, 32, 36, 40, 44, 48
    sT = 52; sACT = 60
    a("s_waitcnt lgkmcnt(0)")
    srd(a, sSRC, 8, None, 0, E * 4)
    srd(a, sDST, 10, None, 0, E * 4)
    srd(a, sPOS, 6, None, 0, N * 6)
    a(f"""
    s_mul_i32 s{sT}, s2, {EPW*4}
    s_add_u32 s{sT+1}, s{sT}, {EPW*2}
    v_lshlrev_b32 v{vT}, 4, v0
    v_mov_b32 v{vT+1}, 0x7ffffff0
    v_cmp_gt_u32 vcc, {EPW//8}, v0
    s_mov_b64 s[{sT+2}:{sT+3}], vcc
    s_nop 0
    v_cndmask_b32 v{vT+1}, v{vT+1}, v{vT}, vcc
    buffer_load_dwordx4 {vr(vSRC,4)}, v{vT+1}, {sr(sSRC,4)}, s{sT} offen
    buffer_load_dwordx4 {vr(vDST,4)}, v{vT+1}, {sr(sDST,4)}, s{sT} offen
    buffer_load_dwordx4 {vr(vSRC+4,4)}, v{vT+1}, {sr(sSRC,4)}, s{sT+1} offen
    buffer_load_dwordx4 {vr(vDST+4,4)}, v{vT+1}, {sr(sDST,4)}, s{sT+1} offen
    s_lshl_b32 s{sT+4}, s3, 10
    """)
    for i in range(8):
        a(f"""
        s_add_u32 m0, s{sT+4}, {L_POS + i*8192}
        s_mov_b32 s{sT+5}, {i*8192}
        buffer_load_dwordx4 v{vT}, {sr(sPOS,4)}, s{sT+5} offen lds
        """)
    srd(a, sDBG, 22, None, 0, 256)
    srd(a, sLIST, 24, None, WS_LIST, NR * LIST_STRIDE)
    srd(a, sMISC, 24, None, WS_LUT, MISC_BYTES)
    a(f"""
    v_mov_b32 v{vT+2}, 0
    v_lshlrev_b32 v{vT+3}, 2, v0
    v_add_u32 v{vT+3}, {L_EH}, v{vT+3}
    v_cmp_gt_u32 vcc, 64, v0
    s_and_saveexec_b64 s[{sT+6}:{sT+7}], vcc
    ds_write_b32 v{vT+3}, v{vT+2}
    s_mov_b64 exec, -1
    """)
    for i in range(48):
        a(f"v_mov_b32 v{vP+i}, 0")
    a("s_waitcnt vmcnt(0) lgkmcnt(0)\ns_barrier")
    stamp()
    for e in range(8):
        a(f"v_mul_u32_u24 v{vT+4}, 6, v{vSRC+e}")
        a(f"v_mul_u32_u24 v{vT+5}, 6, v{vDST+e}")
        for c in range(3):
            a(f"ds_read_u16_d16_hi v{vP+6*e+c}, v{vT+4} offset:{L_POS+2*c}")
            a(f"ds_read_u16_d16_hi v{vP+6*e+3+c}, v{vT+5} offset:{L_POS+2*c}")
        if e % 2 == 1: a("s_waitcnt lgkmcnt(0)")
    a(f"s_mov_b32 s{sT}, 0x322bcc77")
    a(f"s_mov_b32 s{sT+1}, 0xffff0000")
    a(f"s_mov_b32 s{sT+6}, {(DBASE+LUT_THR)<<16}")
    a(f"v_mov_b32 v{vT+8}, {((NRS - LUT_THR - DBASE) << 16) & 0xffffffff}")
    a(f"v_mov_b32 v{vT+9}, {((0x8000 - DBASE) << 16) & 0xffffffff}")
    a(f"v_mov_b32 v{vT+10}, {NKEY}")
    a(f"v_mov_b32 v{vT+11}, 1")
    for e in range(8):
        p = vP + 6 * e; rec = vREC + 4 * e
        x, y, z, q0, q1, q2, d, pk = p, p + 1, p + 2, p + 3, p + 4, p + 5, vT + 4, vT + 5
        a(f"""
        v_sub_f32 v{x}, v{x}, v{q0}
        v_sub_f32 v{y}, v{y}, v{q1}
        v_sub_f32 v{z}, v{z}, v{q2}
        v_cvt_pk_bf16_f32 v{pk}, v{x}, v{y}
        v_cvt_pk_bf16_f32 v{z}, v{z}, v{z}
        v_lshlrev_b32 v{x}, 16, v{pk}
        v_and_b32 v{y}, 0xffff0000, v{pk}
        v_and_b32 v{z}, 0xffff0000, v{z}
        v_mul_f32 v{q0}, v{x}, v{x}
        v_mul_f32 v{q1}, v{y}, v{y}
        v_mul_f32 v{q2}, v{z}, v{z}
        v_cvt_pk_bf16_f32 v{pk}, v{q0}, v{q1}
        v_cvt_pk_bf16_f32 v{q2}, v{q2}, v{q2}
        v_lshlrev_b32 v{q0}, 16, v{pk}
        v_and_b32 v{q1}, 0xffff0000, v{pk}
        v_and_b32 v{q2}, 0xffff0000, v{q2}
        v_add_f32 v{q0}, v{q0}, v{q1}
        v_add_f32 v{q0}, v{q0}, v{q2}
        """)
        rne_bf16(a, q0, q0)
        a(f"v_add_f32 v{q0}, s{sT}, v{q0}")
        rne_bf16(a, q0, q0)
        a(f"v_sqrt_f32 v{q0}, v{q0}\ns_nop 0")
        rne_bf16(a, d, q0)
        a(f"""
        v_rcp_f32 v{q1}, v{d}
        v_cmp_gt_u32 vcc, {DCUT<<16}, v{d}
        v_cmp_gt_u32 s[{sT+4}:{sT+5}], s{sT+6}, v{d}
        v_mul_f32 v{x}, v{x}, v{q1}
        v_mul_f32 v{y}, v{y}, v{q1}
        v_mul_f32 v{z}, v{z}, v{q1}
        s_and_b64 {sr(sACT+2*e,2)}, vcc, s[{sT+2}:{sT+3}]
        v_cndmask_b32 v{q0}, v{vT+8}, v{vT+9}, s[{sT+4}:{sT+5}]
        v_cmp_le_u32 vcc, {HALF}, v{vSRC+e}
        v_cvt_pk_bf16_f32 v{pk}, v{x}, v{y}
        v_cvt_pk_bf16_f32 v{z}, v{z}, v{z}
        v_cndmask_b32 v{q1}, 0, v{vT+10}, vcc
        v_lshrrev_b32 v{q2}, 6, v{vDST+e}
        v_add3_u32 v{rec+3}, v{d}, v{q0}, v{vSRC+e}
        v_add_u32 v{q2}, v{q2}, v{q1}
        v_lshl_or_b32 v{rec}, v{pk}, 16, v{q2}
        v_and_b32 v{rec+2}, 0xffff0000, v{z}
        v_and_b32 v{vDST+e}, {NR-1}, v{vDST+e}
        v_lshlrev_b32 v{vDST+e}, 2, v{vDST+e}
        v_and_or_b32 v{rec+1}, v{pk}, s{sT+1}, v{vDST+e}
        v_add_u32 v{vSRC+e}, {L_EH}, v{vDST+e}
        s_mov_b64 exec, {sr(sACT+2*e,2)}
        ds_add_rtn_u32 v{vRK+e}, v{vSRC+e}, v{vT+11}
        s_mov_b64 exec, -1
        """)
    a("s_waitcnt lgkmcnt(0)\ns_barrier")
    stamp()
    Lna = a.label("K1_NOATOM"); Lnb = a.label("K1_NOATOM2")
    a(f"""
    s_cmp_lg_u32 s3, 0
    s_cbranch_scc1 {Lna}
    ds_read_b32 v{vT+4}, v{vT+3}
    v_lshlrev_b32 v{vT+5}, 2, v0
    s_waitcnt lgkmcnt(0)
    v_mov_b32 v{vT+6}, v{vT+4}
    v_mov_b32 v{vT+7}, v{vT+4}
    buffer_atomic_add v{vT+6}, v{vT+5}, {sr(sDBG,4)}, 0 offen sc0
    """)
    dpp_scan(a, "v_add_u32", vT + 7)
    a(f"""
    ds_write_b32 v{vT+3}, v{vT+7} offset:4
    v_sub_u32 v{vT+7}, v{vT+7}, v{vT+4}
    ds_write_b32 v{vT+3}, v{vT+7}
    s_waitcnt lgkmcnt(0)
{Lna}:
    s_barrier
    """)
    for e in range(8):
        a(f"ds_read_b32 v{vP+e}, v{vSRC+e}")
    a(f"v_mov_b32 v{vT+8}, {L_EH}\nds_read_b32 v{vT+9}, v{vT+8} offset:256")
    a("s_waitcnt lgkmcnt(0)")
    for e in range(8):
        a(f"""
        v_add_lshl_u32 v{vP+e}, v{vP+e}, v{vRK+e}, 4
        v_add_u32 v{vP+e}, {L_STG}, v{vP+e}
        s_mov_b64 exec, {sr(sACT+2*e,2)}
        ds_write_b128 v{vP+e}, {vr(vREC+4*e,4)}
        s_mov_b64 exec, -1
        """)
    a(f"""
    v_readfirstlane_b32 s{sT+4}, v{vT+9}
    s_cmp_lg_u32 s3, 0
    s_cbranch_scc1 {Lnb}
    s_mov_b32 s{sT}, {E}
    s_lshl_b32 s{sT+5}, s2, 2
    s_add_u32 s{sT+5}, s{sT+5}, {M_END}
    v_lshlrev_b32 v{vT+8}, 8, v0
    s_waitcnt vmcnt(0)
    v_add_u32 v{vT+4}, v{vT+4}, v{vT+6}
    buffer_store_dword v{vT+4}, v{vT+8}, {sr(sMISC,4)}, s{sT+5} offen
    v_mad_u32_u24 v{vT+6}, v0, s{sT}, v{vT+6}
    v_sub_u32 v{vT+6}, v{vT+6}, v{vT+7}
    v_lshlrev_b32 v{vT+6}, 4, v{vT+6}
    ds_write_b32 v{vT+3}, v{vT+6} offset:{L_DLT - L_EH}
{Lnb}:
    v_lshlrev_b32 v{vT+5}, 4, v0
    v_add_u32 v{vT+2}, {L_STG}, v{vT+5}
    s_waitcnt lgkmcnt(0)
    s_barrier
    """)
    stamp()
    for e in range(8):
        a(f"ds_read_b128 {vr(vREC+4*e,4)}, v{vT+2} offset:{e*8192}")
    for e in range(8):
        a(f"""
        s_waitcnt lgkmcnt(7)
        v_and_b32 v{vP+e}, 0xfc, v{vREC+4*e+1}
        v_add_u32 v{vP+e}, {L_DLT}, v{vP+e}
        ds_read_b32 v{vP+e}, v{vP+e}
        v_and_b32 v{vREC+4*e+1}, s{sT+1}, v{vREC+4*e+1}
        v_add_u32 v{vT+6}, {e*512}, v0
        v_cmp_gt_u32 {sr(sACT+2*e,2)}, s{sT+4}, v{vT+6}
        """)
    for e in range(8):
        Ls = a.label("K1_ES")
        a(f"""
        s_waitcnt lgkmcnt({7-e})
        v_add_u32 v{vP+e}, v{vP+e}, v{vT+5}
        s_mov_b32 s{sT}, {e*8192}
        s_mov_b64 exec, {sr(sACT+2*e,2)}
        s_cbranch_execz {Ls}
        buffer_store_dwordx4 {vr(vREC+4*e,4)}, v{vP+e}, {sr(sLIST,4)}, s{sT} offen
{Ls}:
        s_mov_b64 exec, -1
        """)
    dump_stamps(nst[0])
    a("s_endpgm")

    Lbop = a.label("K1_BOP")
    a(f"{Lbop}:")
    a(f"s_cmp_lg_u32 s2, {WG_BOP}\ns_cbranch_scc1 {Lend}\ns_waitcnt lgkmcnt(0)")
    srd(a, 28, 18, None, 0, 16 * 768 * 2)
    srd(a, 32, 24, None, WS_LUT + M_BOP, 24576)
    a(f"""
    v_bfe_u32 v1, v0, 4, 1
    v_mul_u32_u24 v1, {8*1536}, v1
    v_and_b32 v2, 15, v0
    v_lshl_add_u32 v1, v2, 2, v1
    s_lshl_b32 s36, s3, 6
    v_add_u32 v1, s36, v1
    v_bfe_u32 v3, v0, 5, 1
    v_xor_b32 v2, 1, v3
    v_lshl_add_u32 v2, v2, 9, v1
    """)
    for m in range(8):
        a(f"s_movk_i32 s37, {m*1536}")
        a(f"buffer_load_dword v{8+m}, v2, s[28:31], s37 offen")
        a(f"buffer_load_dword v{16+m}, v1, s[28:31], s37 offen offset:1024")
    a(f"""
    s_mov_b32 s38, 0x05040100
    s_mov_b32 s39, 0x07060302
    v_mul_u32_u24 v3, 0x020202, v3
    v_lshl_or_b32 v3, v3, 8, v3
    v_add_u32 v3, s38, v3
    v_and_b32 v4, 63, v0
    v_lshlrev_b32 v4, 4, v4
    s_mul_i32 s36, s3, 3072
    s_waitcnt vmcnt(0)
    """)
    for m in range(4):
        a(f"v_perm_b32 v{24+m}, v{8+2*m+1}, v{8+2*m}, s39")
        a(f"v_perm_b32 v{28+m}, v{8+2*m+1}, v{8+2*m}, s38")
        a(f"v_perm_b32 v{32+m}, v{16+2*m+1}, v{16+2*m}, v3")
    a("""
    buffer_store_dwordx4 v[24:27], v4, s[32:35], s36 offen
    buffer_store_dwordx4 v[28:31], v4, s[32:35], s36 offen offset:1024
    buffer_store_dwordx4 v[32:35], v4, s[32:35], s36 offen offset:2048
    s_endpgm
    """)
    a(f"{Llut}:")
    a(f"""
    s_cmp_ge_u32 s2, {WG_LUT0+NLUTWG}
    s_cbranch_scc1 {Lbop}
    s_waitcnt lgkmcnt(0)
    s_load_dwordx8 s[28:35], s[12:13], 0
    """)
    srd(a, 60, 24, None, WS_LUT, LUT_BYTES)
    a(f"""
    s_sub_u32 s56, s2, {WG_LUT0}
    s_lshl_b32 s56, s56, 9
    v_add_u32 v1, s56, v0
    v_add_u32 v2, {DBASE}, v1
    v_lshlrev_b32 v2, 16, v2
    v_lshlrev_b32 v1, 5, v1
    s_mov_b32 s52, 0x40490fdb
    s_mov_b32 s53, 0x3e4ccccd
    s_mov_b32 s54, 0x3e22f983
    s_waitcnt lgkmcnt(0)
    """)
    for k in range(8):
        a(f"s_lshl_b32 s{36+2*k}, s{28+k}, 16\ns_and_b32 s{37+2*k}, s{28+k}, 0xffff0000")
    lut_row(a, 2, 4, 12, 36, 52)
    a("""
    buffer_store_dwordx4 v[4:7], v1, s[60:63], 0 offen
    buffer_store_dwordx4 v[8:11], v1, s[60:63], 0 offen offset:16
    s_endpgm
    """)

    a(f"{Lgemm}:")
    V = Regs("v", 1, 256)
    vD1 = V.alloc("d1"); vD2 = V.alloc("d2"); vD3 = V.alloc("d3"); vDV = V.alloc("dv")
    vAS = V.alloc("as", 2); vTR = V.alloc("tr", 2); vHW = V.alloc("hw", 4)
    vVR = V.alloc("vr"); vO4 = V.alloc("o4"); vSEL = V.alloc("sel"); vRL = V.alloc("rl")
    vT = V.alloc("t", 12, 2)
    vACC = V.alloc("acc", 72, 4)
    vAF = V.alloc("af", 96, 4)
    vBF = V.alloc("bf", 32, 4)
    vV = V.alloc("v", 12)
    vOB = V.alloc("ob", 12, 4)
    nvmax = max(nvmax, V.hi)
    sSV, sW1, sW2, sT4, sT1 = 28, 32, 36, 40, 44
    sT = 48; sHI = 56; sROW = 57; sM = 58; sRB = 59; sRND = 60; sL = 61; sROT = 62; sMV = 63
    sK1 = 64; sK2 = 72; sEV = 80
    q, j = vT + 1, vT + 2
    hi, ch = vT + 3, vT + 4
    a(f"""
    s_sub_u32 s{sROW}, s2, {WG_GEMM0}
    s_mul_i32 s{sROW}, s{sROW}, {ROWS}
    s_lshl_b32 s{sRB}, s{sROW}, 11
    s_and_b32 s{sL}, s3, 3
    s_lshr_b32 s{sROT}, s2, 3
    s_and_b32 s{sROT}, s{sROT}, {7 if opt.get("rot", 1) else 0}
    s_lshl_b32 s{sMV}, s{sL}, 10
    s_and_b32 s{sT}, s{sL}, 1
    s_lshr_b32 s{sT+1}, s{sL}, 1
    s_lshl_b32 s{sT+2}, s{sT+1}, 2
    s_add_u32 s{sT+2}, s{sT+2}, s{sT}
    s_lshl_b32 s{sM}, s{sT+2}, 10
    v_bfe_u32 v{hi}, v0, 5, 1
    v_and_b32 v{ch}, 31, v0
    """)
    a(f"""
    s_lshl_b32 s{sT+3}, s{sL}, 2
    v_lshl_add_u32 v{vT+5}, v{hi}, 1, s{sT+3}
    v_xor_b32 v{vT+5}, v{vT+5}, v{ch}
    v_lshlrev_b32 v{vT+5}, 4, v{vT+5}
    v_lshl_add_u32 v{vD1}, v{hi}, 9, v{vT+5}
    v_add_u32 v{vD1}, s{sM}, v{vD1}
    """)
    a(f"""
    s_lshl_b32 s{sT+4}, s{sL}, 12
    v_lshl_add_u32 v{vT+6}, v{hi}, 11, v{vT+5}
    v_add_u32 v{vT+6}, s{sT+4}, v{vT+6}
    """)
    for n in range(3):
        a(f"s_xor_b32 s{sK1+n}, s{sROT}, {n}\ns_lshl_b32 s{sK1+n}, s{sK1+n}, 14")
    a("s_waitcnt lgkmcnt(0)")
    srd(a, sSV, 4, None, 0, N * 2048)
    srd(a, sW1, 14, None, 0, 256 * 512)
    units = [("w1", n, 0) for n in range(8)] + [("a", n, 0) for n in range(8)] + [("a", n, 1) for n in range(8)] \
          + [("b", n, 0) for n in range(4)] + [("b", n, 1) for n in range(4)]
    owner = lambda u: units[u][2]
    class C: pass
    st = C(); st.seq = []
    def dma_unit(u, which=(0, 1, 2, 3)):
        kind, n, hf = units[u]
        for i in which:
            rr = 4 * (i & 1) + 16 * (i >> 1)
            kr = 2 * (i & 1) + 8 * (i >> 1)
            a(f"s_add_u32 m0, s{sM}, {L_RING + (u%4)*16384 + rr*512}")
            if kind == "w1":
                a(f"s_add_u32 s{sT}, s{sK1+n}, {rr*512}")
                a(f"buffer_load_dwordx4 v{vD1}, {sr(sW1,4)}, s{sT} offen lds")
            elif kind == "a":
                a(f"s_add_u32 s{sT}, s{sK2+n}, {kr*1536 + hf*256}")
                a(f"buffer_load_dwordx4 v{vD2}, {sr(sW2,4)}, s{sT} offen lds")
            else:
                a(f"s_add_u32 s{sT}, s{sK1+n}, {kr*1536 + hf*256 + 1024}")
                a(f"buffer_load_dwordx4 v{vD3}, {sr(sW2,4)}, s{sT} offen lds")
            st.seq.append(("U", u))
    def dma_v(hf, n):
        c, i = n % 3, n // 3
        a(f"""
        s_add_u32 m0, s{sMV}, {L_V + (hf*3+c)*ROWS*256 + i*4096}
        s_add_u32 s{sT}, s{sRB}, {i*16*2048 + 512*(c+1) + hf*256}
        buffer_load_dwordx4 v{vDV}, {sr(sSV,4)}, s{sT} offen lds
        """)
        st.seq.append(("V", hf))
    LnoB0 = a.label("K1_G0")
    a(f"s_cmp_lt_u32 s3, 4\ns_cbranch_scc1 {LnoB0}")
    for i in range(6):
        a(f"""
        s_add_u32 m0, s{sMV}, {L_H + i*4096}
        s_add_u32 s{sT}, s{sRB}, {i*8*2048}
        buffer_load_dwordx4 v{vT+6}, {sr(sSV,4)}, s{sT} offen lds
        """)
        st.seq.append(("U", 0))
    for u in range(3): dma_unit(u)
    seqB0 = list(st.seq)
    a(f"{LnoB0}:")
    for n in range(3, 8):
        a(f"s_xor_b32 s{sK1+n}, s{sROT}, {n}\ns_lshl_b32 s{sK1+n}, s{sK1+n}, 14")
    for n in range(8):
        a(f"s_mul_i32 s{sK2+n}, s{sK1+n}, 3")
    srd(a, sW2, 16, None, 0, 256 * 1536)
    a(f"s_lshr_b32 s{sT+6}, s3, 1\ns_mul_i32 s{sT+6}, s{sT+6}, {TAB_SL}")
    srd(a, sT4, 24, sT + 6, WS_TAB, TAB_SL)
    a(f"""
    v_lshl_add_u32 v{vT+7}, v{hi}, 4, s{sT+2}
    v_mul_u32_u24 v{vT+7}, 1536, v{vT+7}
    v_and_b32 v{vT+8}, 0xf0, v{vT+5}
    v_add_u32 v{vT+7}, v{vT+7}, v{vT+8}
    v_lshrrev_b32 v{vT+8}, 4, v{ch}
    v_xor_b32 v{vT+9}, 1, v{vT+8}
    v_lshl_add_u32 v{vD2}, v{vT+9}, 9, v{vT+7}
    v_xor_b32 v{vT+8}, s{sROT}, v{vT+8}
    v_and_b32 v{vT+8}, 1, v{vT+8}
    v_mul_u32_u24 v{vT+8}, 49152, v{vT+8}
    v_add_u32 v{vD3}, v{vT+7}, v{vT+8}
    s_mov_b32 s{sHI}, 0x07060302
    s_mov_b32 s{sRND}, 0x8000
    v_bfe_u32 v{q}, v0, 4, 2
    v_and_b32 v{j}, 15, v0
    s_lshl_b32 s{sT+4}, s{sL}, 13
    v_lshlrev_b32 v{vDV}, 11, v{q}
    v_lshl_add_u32 v{vDV}, v{j}, 4, v{vDV}
    v_add_u32 v{vDV}, s{sT+4}, v{vDV}
    v_and_b32 v{vT+3}, 7, v{j}
    v_lshlrev_b32 v{vT+3}, 1, v{vT+3}
    v_xor_b32 v{vT+3}, v{vT+3}, v{q}
    v_lshlrev_b32 v{vT+3}, 4, v{vT+3}
    v_lshl_add_u32 v{vAS}, v{j}, 9, v{vT+3}
    s_lshl_b32 s{sT+4}, s{sROT}, 6
    v_xor_b32 v{vAS}, s{sT+4}, v{vAS}
    v_add_u32 v{vAS}, {L_H}, v{vAS}
    """)
    a(f"""
    v_lshrrev_b32 v{vT+3}, 2, v{j}
    v_and_b32 v{vT+4}, 1, v{q}
    v_lshl_or_b32 v{vT+4}, v{vT+4}, 2, v{vT+3}
    v_lshlrev_b32 v{vT+4}, 1, v{vT+4}
    v_bfe_u32 v{vT+5}, v0, 1, 1
    v_or_b32 v{vT+5}, s{sT+3}, v{vT+5}
    v_xor_b32 v{vT+4}, v{vT+4}, v{vT+5}
    v_lshl_add_u32 v{vT+3}, v{q}, 3, v{vT+3}
    v_lshlrev_b32 v{vT+3}, 9, v{vT+3}
    v_lshl_add_u32 v{vT+3}, v{vT+4}, 4, v{vT+3}
    v_and_b32 v{vT+4}, 1, v0
    v_lshl_add_u32 v{vTR}, v{vT+4}, 3, v{vT+3}
    v_xor_b32 v{vTR+1}, 32, v{vTR}
    """)
    a(f"""
    v_lshrrev_b32 v{vT+3}, 2, v{j}
    v_or_b32 v{vT+3}, s{sT+3}, v{vT+3}
    v_and_b32 v{vT+4}, 1, v{q}
    v_lshlrev_b32 v{vT+4}, 3, v{vT+4}
    v_xor_b32 v{vT+3}, v{vT+3}, v{vT+4}
    v_lshlrev_b32 v{vT+3}, 4, v{vT+3}
    v_and_b32 v{vT+4}, 3, v{j}
    v_lshl_add_u32 v{vT+3}, v{vT+4}, 2, v{vT+3}
    v_lshl_add_u32 v{vT+3}, v{q}, 11, v{vT+3}
    v_add_u32 v{vHW}, {L_H}, v{vT+3}
    v_xor_b32 v{vHW+1}, 32, v{vHW}
    v_xor_b32 v{vHW+2}, 64, v{vHW}
    v_xor_b32 v{vHW+3}, 96, v{vHW}
    """)
    a(f"""
    v_and_b32 v{vT+3}, 1, v{j}
    v_lshlrev_b32 v{vT+3}, 5, v{vT+3}
    v_lshrrev_b32 v{vT+4}, 1, v{j}
    v_lshl_add_u32 v{vT+3}, v{vT+4}, 2, v{vT+3}
    s_lshr_b32 s{sT+1}, s3, 2
    s_mul_i32 s{sT+1}, s{sT+1}, {3*ROWS*256}
    s_lshl_b32 s{sT+4}, s{sL}, 6
    s_add_u32 s{sT+1}, s{sT+1}, s{sT+4}
    s_add_u32 s{sT+1}, s{sT+1}, {L_V}
    v_add_u32 v{vT+3}, s{sT+1}, v{vT+3}
    v_lshl_add_u32 v{vVR}, v{q}, 10, v{vT+3}
    v_lshl_add_u32 v{vT+3}, v{q}, 2, s{sROW}
    v_mul_u32_u24 v{vO4}, {ROWB}, v{vT+3}
    v_lshl_add_u32 v{vO4}, v{j}, 4, v{vO4}
    s_and_b32 s{sT+4}, s3, 1
    s_lshl_b32 s{sT+4}, s{sT+4}, 8
    v_add_u32 v{vO4}, s{sT+4}, v{vO4}
    s_mov_b32 s{sEV}, 0x55555555
    s_mov_b32 s{sEV+1}, 0x55555555
    v_mov_b32 v{vT+3}, 0x03020706
    v_mov_b32 v{vT+4}, 0x05040100
    v_mov_b32 v{vT+5}, 0x8000
    v_cndmask_b32 v{vSEL}, v{vT+3}, v{vT+4}, s[{sEV}:{sEV+1}]
    v_cndmask_b32 v{vRL}, 0, v{vT+5}, s[{sEV}:{sEV+1}]
    """)
    def af_read(ns):
        for n in ns:
            if n: a(f"v_xor_b32 v{vAS+1}, {n*64}, v{vAS}")
            for mt in range(3):
                a(f"ds_read_b128 {vr(vAF+(n*3+mt)*4,4)}, v{vAS+1 if n else vAS} offset:{mt*8192}")
    def tr_read(u):
        b = vBF + 16 * (u & 1)
        for side in range(2):
            for t in range(2):
                for h in range(2):
                    a(f"ds_read_b64_tr_b16 {vr(b+8*side+4*t+2*h,2)}, v{vTR+t} offset:{L_RING + (u%4)*16384 + h*2048 + side*256}")
    def mfmas(u, dmu=None):
        kind, n, hf = units[u]
        b = vBF + 16 * (u & 1)
        for side in range(2):
            for t in range(2):
                for mt in range(3):
                    if dmu is not None and mt == 1: dma_unit(dmu, (side * 2 + t,))
                    if kind == "b":
                        nn = 2 * n + side; nt = 4 + t
                    else:
                        nn = n; nt = 2 * side + t
                    acc = vACC + (mt * 6 + nt) * 4
                    c = "0" if nn == 0 else vr(acc, 4)
                    a(f"v_mfma_f32_16x16x32_bf16 {vr(acc,4)}, {vr(vAF+(nn*3+mt)*4,4)}, {vr(b+8*side+4*t,4)}, {c}")
    def silu():
        a(f"s_mov_b32 s{sT+6}, 0xbfb8aa3b\ns_mov_b32 s{sT+7}, 0xbfb8aa3b\ns_nop 7")
        cnt = 0
        for side in range(2):
            for mt in range(3):
                for r in range(0, 4, 2):
                    L = []
                    for rr in range(2):
                        a0, a1 = vACC + (mt * 6 + 2 * side) * 4 + r + rr, vACC + (mt * 6 + 2 * side + 1) * 4 + r + rr
                        x, e_, p = vT + 6 * rr, vT + 2 + 6 * rr, vT + 4 + 6 * rr
                        L.append(f"""v_cvt_pk_bf16_f32 v{p}, v{a0}, v{a1}
                        v_lshlrev_b32 v{x}, 16, v{p}
                        v_and_b32 v{x+1}, 0xffff0000, v{p}
                        v_pk_mul_f32 {vr(e_,2)}, {vr(x,2)}, s[{sT+6}:{sT+7}]
                        v_exp_f32 v{e_}, v{e_}
                        v_exp_f32 v{e_+1}, v{e_+1}
                        v_pk_add_f32 {vr(e_,2)}, {vr(e_,2)}, 1.0 op_sel_hi:[1,0]
                        v_rcp_f32 v{e_}, v{e_}
                        v_rcp_f32 v{e_+1}, v{e_+1}
                        v_pk_mul_f32 {vr(x,2)}, {vr(x,2)}, {vr(e_,2)}
                        v_cvt_pk_bf16_f32 v{p}, v{x}, v{x+1}
                        ds_write_b32 v{vHW+r+rr}, v{p} offset:{(mt*16+r+rr)*512 + side*256}""".split("\n"))
                    for l0, l1 in zip(*L):
                        a(l0); a(l1)
                    cnt += 1
                    if cnt % 3 == 0: a("s_waitcnt lgkmcnt(2)")
    DPP = "quad_perm:[1,0,3,2] row_mask:0xf bank_mask:0xf"
    def v_read(pc):
        mt, r = pc // 4, pc % 4
        for c in range(3):
            a(f"ds_read_b32 v{vV + (pc % 4) * 3 + c}, v{vVR} offset:{c*ROWS*256 + (mt*16+r)*256}")
    def t4_piece(pc):
        mt, r = pc // 4, pc % 4
        A_ = lambda nt: vACC + (mt * 6 + nt) * 4 + r
        o = vOB + 4 * (pc % 3); vv = vV + (pc % 4) * 3
        lo, hi_, P, Q = vT, vT + 1, vT + 2, vT + 3
        x = vT + 4
        a(f"""
        v_perm_b32 v{P}, v{A_(3)}, v{A_(2)}, s{sHI}
        v_mov_b32_dpp v{lo}, v{A_(1)} {DPP}
        v_mov_b32_dpp v{hi_}, v{A_(0)} {DPP}
        v_mov_b32_dpp v{Q}, v{P} {DPP}
        v_cndmask_b32 v{lo}, v{lo}, v{A_(0)}, s[{sEV}:{sEV+1}]
        v_cndmask_b32 v{hi_}, v{A_(1)}, v{hi_}, s[{sEV}:{sEV+1}]
        v_perm_b32 v{o+3}, v{Q}, v{P}, v{vSEL}
        v_lshlrev_b32 v{x}, 16, v{vv}
        v_and_b32 v{x+1}, 0xffff0000, v{vv}
        v_lshlrev_b32 v{x+2}, 16, v{vv+1}
        v_and_b32 v{x+3}, 0xffff0000, v{vv+1}
        v_lshlrev_b32 v{x+4}, 16, v{vv+2}
        v_and_b32 v{x+5}, 0xffff0000, v{vv+2}
        v_mul_f32 v{x}, v{x}, v{lo}
        v_mul_f32 v{x+1}, v{x+1}, v{hi_}
        v_mul_f32 v{x+2}, v{x+2}, v{lo}
        v_mul_f32 v{x+3}, v{x+3}, v{hi_}
        v_mul_f32 v{x+4}, v{x+4}, v{lo}
        v_mul_f32 v{x+5}, v{x+5}, v{hi_}
        v_add_u32 v{x}, s{sRND}, v{x}
        v_add_u32 v{x+4}, s{sRND}, v{x+4}
        v_perm_b32 v{o+1}, v{x+3}, v{x+2}, s{sHI}
        v_perm_b32 v{o}, v{x+1}, v{x}, s{sHI}
        v_perm_b32 v{o+2}, v{x+5}, v{x+4}, s{sHI}
        s_movk_i32 s{sT+4}, {mt*16*ROWB}
        buffer_store_dwordx4 {vr(o,4)}, v{vO4}, {sr(sT4,4)}, s{sT+4} offen offset:{r*ROWB} {tab_fl}
        """)
        st.seq.append("ST")
    def t1_epi():
        a(f"""
        s_mul_i32 s{sT+4}, s3, 3072
        s_add_u32 s{sT+4}, s{sT+4}, {L_H}
        v_mbcnt_lo_u32_b32 v{vT}, -1, 0
        v_mbcnt_hi_u32_b32 v{vT}, -1, v{vT}
        v_lshrrev_b32 v{vT+1}, 4, v{vT}
        v_and_b32 v{vT+2}, 15, v{vT}
        v_lshlrev_b32 v{vT+1}, 8, v{vT+1}
        v_lshl_add_u32 v{vT+1}, v{vT+2}, 1, v{vT+1}
        v_add_u32 v{vT+1}, s{sT+4}, v{vT+1}
        v_lshl_add_u32 v{vT+2}, v{vT}, 4, s{sT+4}
        v_lshrrev_b32 v{vT+3}, 2, v{vT}
        v_and_b32 v{vT}, 3, v{vT}
        v_add_u32 v{vT+3}, s{sROW}, v{vT+3}
        v_mul_u32_u24 v{vT+3}, {ROWB}, v{vT+3}
        v_lshl_add_u32 v{vT}, v{vT}, 4, v{vT+3}
        s_and_b32 s{sT+4}, s3, 1
        s_lshl_b32 s{sT+4}, s{sT+4}, 6
        s_add_u32 s{sT+5}, s{sT+4}, {16*ROWB}
        s_add_u32 s{sT+6}, s{sT+4}, {32*ROWB}
        """)
        for mt in range(3):
            A_ = lambda nt, r: vACC + (mt * 6 + nt) * 4 + r
            for r in range(4):
                for t in range(2):
                    a(f"v_add_u32 v{A_(4+t,r)}, v{A_(4+t,r)}, v{vRL}")
                    a(f"ds_write_b16_d16_hi v{vT+1}, v{A_(4+t,r)} offset:{(mt*16+r)*64 + 32*t}")
                if mt and r == 2:
                    a("s_waitcnt lgkmcnt(6)")
                    a(f"buffer_store_dwordx4 {vr(vOB+4*(mt-1),4)}, v{vT}, {sr(sT4,4)}, s{sT+4+mt-1} offen offset:512 {tab_fl}")
                    st.seq.append("ST")
            a(f"ds_read_b128 {vr(vOB+4*mt,4)}, v{vT+2} offset:{mt*1024}")
        a("s_waitcnt lgkmcnt(0)")
        a(f"buffer_store_dwordx4 {vr(vOB+8,4)}, v{vT}, {sr(sT4,4)}, s{sT+6} offen offset:512 {tab_fl}")
        st.seq.append("ST")
    v0_at = opt.get("v0_at", 7); v1_at = opt.get("v1_at", 8); pf_at = opt.get("pf_at", 8); pf_cls = opt.get("pf_cls", 1)
    lsw = opt.get("lsw", [16, 24])
    def loader(u):
        if opt.get("selfload", 1): return 1 if u < 24 else 0
        return 1 if u < lsw[0] else (0 if u < lsw[1] else 1)
    def prefetch():
        a(f"""
        s_lshr_b32 s{sT+1}, s2, 3
        s_add_u32 s{sT+1}, s{sT+1}, {24-6}
        s_cmp_ge_u32 s{sT+1}, 24
        s_cselect_b32 s{sT+2}, 24, 0
        s_sub_u32 s{sT+1}, s{sT+1}, s{sT+2}
        s_lshl_b32 s{sT+2}, s{sT+1}, 2
        s_add_u32 s{sT+2}, s{sT+2}, s{sL}
        s_lshl_b32 s{sT+3}, s{sT+2}, 12
        v_mbcnt_lo_u32_b32 v{vV}, -1, 0
        v_lshlrev_b32 v{vV}, 7, v{vV}
        s_mov_b32 exec_hi, 0
        buffer_load_dword v{vV+1}, v{vV}, {sr(sW2,4)}, s{sT+3} offen
        s_mov_b64 exec, -1
        """)
        st.seq.append("PF")
    pB = opt.get("pB", [3, 3, 3, 3, 0, 0, 0, 0])
    pA = opt.get("pA", [2, 2, 2, 1, 1, 1, 1, 1, 1])
    if len(pB) == 8: pB = [0] + pB
    pieces = [{}, {}]
    for cls, base, pl in ((0, 15, pA), (1, 23, pB)):
        k = 0
        for i_, c_ in enumerate(pl):
            pieces[cls][base + i_] = list(range(k, k + c_)); k += c_
        assert k == 12
    LB = a.label("K1_GB"); Lfin = a.label("K1_GFIN")
    a(f"s_cmp_ge_u32 s3, 4\ns_cbranch_scc1 {LB}")
    stu = opt.get("stu", [0, 9, 15, 24])
    for cls in range(2):
        if cls == 1: a(f"{LB}:")
        nst[0] = 1 if stamps else 0
        st.seq = list(seqB0) if cls == 1 else []
        if pf_at == -1 and cls == pf_cls: prefetch()
        def wait_tags(tags):
            idx = [i for i, t in enumerate(st.seq) if t in tags]
            if idx: a(f"s_waitcnt vmcnt({min(63, len(st.seq) - 1 - max(idx))})")
        for u in range(32):
            tags = [("U", u)]
            if u == 15: tags.append(("V", 0))
            if u == 23: tags.append(("V", 1))
            tr_ = opt.get("trace")
            if tr_:
                a("s_memtime s[98:99]")
            wait_tags(tags)
            a("s_barrier")
            if tr_:
                a(f"s_waitcnt lgkmcnt(0)\nv_writelane_b32 v0, s98, {2*u}\ns_memtime s[98:99]\ns_waitcnt lgkmcnt(0)\nv_writelane_b32 v0, s98, {2*u+1}")
            if u in stu: stamp()
            if u == 8:
                for n in range(4):
                    a(f"s_min_u32 s{sK1+n}, s{sK2+2*n}, s{sK2+2*n+1}")
            lds = False
            if owner(u) == cls: tr_read(u); lds = True
            if cls == 0 and u in (0, 9):
                af_read(range(0, 2)); a("s_waitcnt lgkmcnt(4)")
                af_read(range(2, 5)); a("s_waitcnt lgkmcnt(4)")
                af_read(range(5, 8))
                if u == 9: a("s_waitcnt lgkmcnt(9)")
            early = {8: 7, 16: 15, 24: 23}
            dm = [0, 1, 2, 3] if (loader(u) == cls and u + 3 < 32) else []
            if u >= 1 and owner(u - 1) == cls and early.get(u) != u - 1:
                mfmas(u - 1, u + 3 if dm else None); dm = []
            if u in (7, 15, 23) and owner(u) == cls:
                if u != 7: v_read(0); v_read(1)
                a(f"s_waitcnt lgkmcnt({0 if u == 7 else 6})")
                mfmas(u)
            if cls == 0 and u == 8: silu()
            if u in (15, 23) and owner(u) == cls: a("s_nop 4")
            pcs = list(pieces[cls].get(u, []))
            if pcs:
                if lds: a("s_waitcnt lgkmcnt(0)")
                for pc in pcs:
                    for _ in range(4 // (len(pcs) + 1)):
                        if dm: dma_unit(u + 3, (dm.pop(0),))
                    if pc + 2 < 12: v_read(pc + 2)
                    a(f"s_waitcnt lgkmcnt({min(6, 3 * (11 - pc))})")
                    t4_piece(pc)
            if dm: dma_unit(u + 3, dm)
            if cls == pf_cls and u == pf_at: prefetch()
            if cls == 1 and u == v0_at:
                for n in range(9): dma_v(0, n)
            if cls == 1 and u == v1_at:
                for n in range(9): dma_v(1, n)
            if cls == 1 and 10 <= u < 14: af_read(range(2 * (u - 10), 2 * (u - 10) + 2)); lds = True
            if cls == 0 and u == 28: t1_epi()
            if lds: a("s_waitcnt lgkmcnt(0)")
        if cls == 1:
            mfmas(31); t1_epi()
        stamp()
        if cls == 0: a(f"s_branch {Lfin}")
    a(f"{Lfin}:")
    if opt.get("trace"):
        a(f"""
        s_add_u32 s40, s24, {WS_DIAG + (2<<20)}
        s_addc_u32 s41, s25, 0
        s_mov_b32 s42, 0x100000
        s_mov_b32 s43, 0x20000
        s_lshl_b32 s44, s2, 3
        s_add_u32 s44, s44, s3
        s_lshl_b32 s44, s44, 8
        v_mbcnt_lo_u32_b32 v1, -1, 0
        v_mbcnt_hi_u32_b32 v1, -1, v1
        v_lshlrev_b32 v1, 2, v1
        buffer_store_dword v0, v1, s[40:43], s44 offen
        """)
    dump_stamps(nst[0])
    a(f"{Lend}:\ns_endpgm")
    return nvmax, 102
```

```python
from asmlib import *
from layout import *

CHUNK = 2048
SCAP = CHUNK // 4 + 2 * CAPN + 8 + 12
L_LUT = 0
L_STREAM = (NRS + 512) * 32
STREAM_BYTES = SCAP * 64
L_CNT = L_STREAM + STREAM_BYTES
L_HIST = L_CNT + 1280
L_ALLOC = L_HIST + 256
L_SORT = L_ALLOC + 64
L_NADDR = L_SORT + 1280 + 256
L_PARK = 81920
assert L_NADDR + 1280 <= L_PARK
K2_LDS = L_PARK + NKEY * 512
assert K2_LDS <= 163840
DIRS = [0, 1, 0, 1, 1] * 2

def dpp_scan(a, op, v):
    for m in ["row_shr:1", "row_shr:2", "row_shr:4", "row_shr:8"]:
        a("s_nop 1")
        a(f"{op}_dpp v{v}, v{v}, v{v} {m} row_mask:0xf bank_mask:0xf bound_ctrl:0")
    a("s_nop 1")
    a(f"{op}_dpp v{v}, v{v}, v{v} row_bcast:15 row_mask:0xa bank_mask:0xf")
    a("s_nop 1")
    a(f"{op}_dpp v{v}, v{v}, v{v} row_bcast:31 row_mask:0xc bank_mask:0xf")

def gen_k2(a, name, opt):
    stamps = opt.get("stamps", False)
    st_fl = opt.get("st_flags", "nt")
    NRG = opt.get("ring", 4); DP = NRG - 1
    V = Regs("v", 1, 256)
    vB = V.alloc("B", 24, 2)
    vC1 = V.alloc("c1"); vC2 = V.alloc("c2"); vML = V.alloc("ml"); vCL = V.alloc("cl")
    vS = V.alloc("vS"); vA = V.alloc("vA"); vPEND = V.alloc("pend"); vG4 = V.alloc("g4"); vCO = V.alloc("co"); vCP = V.alloc("cp")
    vEN = V.alloc("en"); vPA = V.alloc("pa"); vO = V.alloc("O"); vPD = V.alloc("pd")
    vACC = V.alloc("acc", 20, 2)
    vD = V.alloc("D", 24, 2)
    vRH = V.alloc("RH", 8, 2)
    vAOP = V.alloc("A", 4, 2)
    vE = V.alloc("E", 8, 2)
    vX = V.alloc("X", 16, 2)
    vT = V.alloc("T", 4, 2)
    vPK = V.alloc("PK", 2, 2)
    vLI = V.alloc("LI")
    vAD = V.alloc("ad", 4)
    vRING = V.alloc("ring", 24 * NRG, 2)
    P = Regs("v", vRING, 256)
    pT = P.alloc("t", 12, 2)
    pREC = P.alloc("rec", 16, 2)
    pRANK = P.alloc("rank", 4)
    pDL = P.alloc("dl", 4)
    pEK = P.alloc("ek", 10)
    pRS = P.alloc("rs", 4)
    pEND = P.alloc("end")
    pRARE = P.alloc("rare", 32, 2)
    nv = max(V.hi, P.hi)
    def ACC(hf): b = vACC + 10 * hf; return b, b + 2, b + 4, b + 6, b + 8

    sTB, sSV, sOUT, sLIST, sMISC = 12, 16, 20, 24, 28
    sM, sRG, sW, sCB, sTOT = 32, 33, 34, 35, 36
    sREM = 37; sPC = 38; sQ = 40; sDIR = 41; sMORE = 42; sPM = 43
    sCNT, sSLOT, sROWB, sMASK, sPS = 44, 45, 46, 47, 48
    sN0 = 49
    sT = 60
    sVAL = 68; sRARE = 76
    sST = 84
    nst = [0]
    def stamp():
        if stamps:
            a(f"s_memrealtime {sr(sST + 2 * nst[0], 2)}")
            nst[0] += 1
            assert nst[0] <= 7
    def srd(d, lo, off_sreg, off_imm, size):
        hi = lo + 1
        if off_sreg is None and off_imm == 0:
            a(f"s_mov_b32 s{d}, s{lo}\ns_mov_b32 s{d+1}, s{hi}")
        else:
            if off_sreg is not None:
                if off_imm:
                    a(f"s_add_u32 s{off_sreg}, s{off_sreg}, {off_imm}")
                a(f"s_add_u32 s{d}, s{lo}, s{off_sreg}")
            else:
                a(f"s_add_u32 s{d}, s{lo}, {off_imm}")
            a(f"s_addc_u32 s{d+1}, s{hi}, 0")
        a(f"s_mov_b32 s{d+2}, {size}\ns_mov_b32 s{d+3}, 0x20000")
    def ring(bslot, st, hf): return vRING + ((bslot * 2 + st) * 2 + hf) * 6
    def issue(bslot, pk0):
        for st in range(2):
            a(f"v_mad_u32_u16 v{vAD+2*st}, v{pk0+st}, s{sROWB}, v{vC1}")
            a(f"v_mad_u32_u16 v{vAD+2*st+1}, v{pk0+st}, s{sROWB}, v{vC2}")
        for st in range(2):
            for hf in range(2):
                a(f"buffer_load_dwordx4 {vr(ring(bslot,st,hf),4)}, v{vAD+2*st}, {sr(sTB,4)}, 0 offen offset:{256*hf}")
            for hf in range(2):
                a(f"buffer_load_dword v{ring(bslot,st,hf)+5}, v{vAD+2*st+1}, {sr(sTB,4)}, 0 offen offset:{512+64*hf}")
    npark = [0]
    def park_dma(n):
        Ls = a.label("K2_NOPARK")
        a(f"s_cmp_eq_u32 s{sPS}, -1\ns_cbranch_scc1 {Ls}")
        for _ in range(n):
            i = npark[0]; npark[0] += 1
            a(f"""
            s_add_u32 m0, s{sPM}, {i*8192}
            s_add_u32 s{sT+7}, s{sPS}, {i*16*64*2048}
            buffer_load_dwordx4 v{vPD}, {sr(sSV,4)}, s{sT+7} offen lds
            """)
        a(f"{Ls}:")
    def slot_setup():
        a(f"""
        v_and_b32 v{vO}, 0xff, v{vEN}
        v_lshl_add_u32 v{vPA}, v{vO}, 9, v{vCP}
        v_lshl_add_u32 v{vO}, v{vO}, 17, v{vCO}
        """)
        for c in range(4):
            a(f"ds_read2_b32 {vr(vE+2*c,2)}, v{vPA} offset0:{32*c} offset1:{32*c+16}")
        a(f"""
        s_add_u32 s{sQ}, s{sQ}, 128
        s_lshr_b32 s{sDIR}, s{sDIR}, 1
        s_bitcmp1_b32 s{sDIR}, 0
        s_cselect_b32 s{sT}, 112, 0
        s_xor_b32 s{sT}, s{sT}, s{sQ}
        v_add_u32 v{vAD}, s{sT}, v{vG4}
        ds_read_b32 v{vEN}, v{vAD}
        s_waitcnt lgkmcnt(1)
        """)
        for hf in range(2):
            HXY, HZS, LXY, LZS, BZ = ACC(hf)
            R = lambda c: vE + 2 * c + hf
            a(f"""
            v_and_b32 v{HXY}, s{sMASK}, v{R(1)}
            v_and_b32 v{HXY+1}, s{sMASK}, v{R(2)}
            v_and_b32 v{HZS}, s{sMASK}, v{R(3)}
            v_and_b32 v{HZS+1}, s{sMASK}, v{R(0)}
            v_lshlrev_b32 v{LXY}, 16, v{R(1)}
            v_lshlrev_b32 v{LXY+1}, 16, v{R(2)}
            v_lshlrev_b32 v{LZS}, 16, v{R(3)}
            v_lshlrev_b32 v{LZS+1}, 16, v{R(0)}
            v_mov_b64 {vr(BZ,2)}, 0
            """)

    kernel_header(a, name)
    Lend = a.label("K2_END"); Lcommon = a.label("K2_COMMON"); Lround = a.label("K2_ROUND"); Lk3 = a.label("K2_K3")
    a(f"""
    s_cmp_ge_u32 s2, 256
    s_cbranch_scc1 {Lend}
    s_load_dwordx2 s[6:7], s[0:1], 80
    s_load_dwordx2 s[4:5], s[0:1], 0
    s_load_dwordx2 s[10:11], s[0:1], 64
    """)
    stamp()
    t16, l16 = pT + 5, pT + 6
    a(f"""
    v_lshrrev_b32 v{pT}, 6, v0
    s_bfe_u32 s{sM}, s2, 0x20001
    s_lshr_b32 s{sRG}, s2, 3
    v_readfirstlane_b32 s{sW}, v{pT}
    s_lshl_b32 s{sRG}, s{sRG}, 1
    s_and_b32 s{sT}, s2, 1
    s_or_b32 s{sRG}, s{sRG}, s{sT}
    v_lshlrev_b32 v{t16}, 4, v0
    v_and_b32 v{pT+1}, 63, v0
    v_lshlrev_b32 v{l16}, 4, v{pT+1}
    v_lshlrev_b32 v{pT+4}, 2, v{pT+1}
    s_mul_i32 s{sT}, s{sRG}, {LIST_STRIDE}
    s_lshl_b32 s{sT+1}, s{sRG}, 8
    s_add_u32 s{sT+1}, s{sT+1}, {M_END}
    s_movk_i32 s{sT+2}, 8192
    s_movk_i32 s{sT+3}, 16384
    s_movk_i32 s{sT+4}, 24576
    s_cmp_lt_u32 s{sW}, 6
    s_cselect_b32 s{sT+4}, s{sT+4}, 0x7fff0000
    s_waitcnt lgkmcnt(0)
    """)
    srd(sLIST, 6, sT, WS_LIST, LIST_STRIDE)
    srd(sMISC, 6, None, WS_LUT, MISC_BYTES)
    a(f"""
    buffer_load_dword v{pEND}, v{pT+4}, {sr(sMISC,4)}, s{sT+1} offen
    buffer_load_dwordx4 {vr(pREC,4)}, v{t16}, {sr(sLIST,4)}, 0 offen
    buffer_load_dwordx4 {vr(pREC+4,4)}, v{t16}, {sr(sLIST,4)}, s{sT+2} offen
    buffer_load_dwordx4 {vr(pREC+8,4)}, v{t16}, {sr(sLIST,4)}, s{sT+3} offen
    buffer_load_dwordx4 {vr(pREC+12,4)}, v{t16}, {sr(sLIST,4)}, s{sT+4} offen
    """)
    srd(sSV, 4, None, 0, 0 if opt.get("nores") else N * 2048)
    a(f"""
    v_lshrrev_b32 v{pT+2}, 5, v0
    v_bfe_u32 v{pT+3}, v0, 3, 2
    v_and_b32 v{vPD}, 7, v0
    v_lshlrev_b32 v{vPD}, 4, v{vPD}
    v_lshl_add_u32 v{vPD}, v{pT+3}, 9, v{vPD}
    v_lshl_add_u32 v{vPD}, v{pT+2}, 17, v{vPD}
    s_lshl_b32 s{sPS}, s{sRG}, 11
    s_lshl_b32 s{sT+5}, s{sM}, 7
    s_add_u32 s{sPS}, s{sPS}, s{sT+5}
    s_lshl_b32 s{sPM}, s{sW}, 10
    s_add_u32 s{sPM}, s{sPM}, {L_PARK}
    s_movk_i32 s{sROWB}, {ROWB}
    s_mov_b32 s{sMASK}, 0xffff0000
    s_mov_b32 s{sCB}, 0
    v_mov_b32 v{vPEND}, 15
    v_and_b32 v{vC1}, 7, v0
    v_bfe_u32 v{vC2}, v0, 3, 1
    v_lshlrev_b32 v{vC1}, 5, v{vC1}
    v_lshl_add_u32 v{vC1}, v{vC2}, 4, v{vC1}
    v_and_b32 v{vC2}, 15, v0
    v_lshlrev_b32 v{vC2}, 2, v{vC2}
    v_add_u32 v{vCO}, s{sPS}, v{vC2}
    v_add_u32 v{vCP}, {L_PARK}, v{vC2}
    v_bfe_u32 v{vG4}, v0, 4, 2
    v_lshlrev_b32 v{vG4}, 2, v{vG4}
    v_bfe_u32 v{pT+1}, v0, 5, 1
    v_and_b32 v{pT+2}, 1, v0
    v_cmp_eq_u32 vcc, v{pT+1}, v{pT+2}
    v_and_b32 v{pT+3}, 16, v0
    v_mov_b32 v{pT+4}, 32
    v_cndmask_b32 v{vML}, 0, v{pT+4}, vcc
    s_mul_i32 s{sT+5}, s{sM}, {TAB_SL}
    v_cndmask_b32 v{vCL}, 0, v{pT+3}, vcc
    """)
    srd(sTB, 6, sT + 5, WS_TAB, 0 if opt.get("notab") else TAB_SL)
    srd(sOUT, 10, None, 0, 0 if opt.get("nost") else N * 2048)
    z = pT + 8
    def lds_init():
        a(f"""
        v_mov_b32 v{z}, 0
        v_mov_b32 v{z+1}, 0
        v_mov_b32 v{z+2}, 0
        v_mov_b32 v{z+3}, 0xffff
        v_lshlrev_b32 v{pT+4}, 4, v0
        v_add_u32 v{pT+4}, {L_STREAM}, v{pT+4}
        """)
        nfull = STREAM_BYTES // 8192
        rem = (STREAM_BYTES - nfull * 8192) // 16
        for i in range(nfull):
            a(f"ds_write_b128 v{pT+4}, {vr(z,4)} offset:{i*8192}")
        a(f"""
        v_cmp_gt_u32 vcc, {rem}, v0
        s_and_saveexec_b64 s[{sT}:{sT+1}], vcc
        ds_write_b128 v{pT+4}, {vr(z,4)} offset:{nfull*8192}
        s_mov_b64 exec, s[{sT}:{sT+1}]
        v_lshlrev_b32 v{pT+4}, 2, v0
        v_add_u32 v{pT+7}, {L_CNT}, v{pT+4}
        v_cmp_gt_u32 vcc, 400, v0
        s_and_saveexec_b64 s[{sT}:{sT+1}], vcc
        ds_write_b32 v{pT+7}, v{z}
        v_cmp_gt_u32 vcc, 8, v0
        s_and_b64 exec, exec, vcc
        ds_write_b32 v{pT+4}, v{z} offset:{L_LUT}
        s_mov_b64 exec, s[{sT}:{sT+1}]
        """)
    lds_init()
    pk = opt.get("pk", [3, 2, 1, 1, 1, 2])
    assert sum(pk) == 10
    park_dma(pk[0])
    a(f"""
    s_waitcnt lgkmcnt(0)
    s_barrier
    s_waitcnt vmcnt({4 + pk[0]})
    v_and_b32 v{pT+4}, 63, v0
    v_cmp_gt_u32 vcc, {NP}, v{pT+4}
    s_nop 1
    v_cndmask_b32 v{pEND}, 0, v{pEND}, vcc
    """)
    dpp_scan(a, "v_max_u32", pEND)
    a(f"""
    s_nop 1
    v_readlane_b32 s{sTOT}, v{pEND}, 63
    s_nop 3
    s_min_u32 s{sTOT}, s{sTOT}, {E}
    s_cmp_lt_u32 s{sW}, 6
    s_cbranch_scc1 {Lk3}
    s_cmp_le_u32 s{sTOT}, 1920
    s_cbranch_scc1 {Lk3}
    s_waitcnt vmcnt(0)
    s_movk_i32 s{sT+4}, 24576
    buffer_load_dwordx4 {vr(pREC+12,4)}, v{t16}, {sr(sLIST,4)}, s{sT+4} offen
    s_waitcnt vmcnt(0)
{Lk3}:
    s_waitcnt vmcnt({pk[0]})
    s_lshl_b32 s{sT+5}, s{sW}, 11
    s_add_u32 m0, s{sT+5}, {L_LUT + NRS*32}
    s_add_u32 s{sT+5}, s{sT+5}, {LUT_THR*32}
    s_mul_i32 s{sT+6}, s{sM}, 6144
    s_add_u32 s{sT+6}, s{sT+6}, {M_BOP}
    s_add_u32 s{sT+7}, s{sT+6}, 3072
    buffer_load_dwordx4 v{l16}, {sr(sMISC,4)}, s{sT+5} offen lds
    buffer_load_dwordx4 v{l16}, {sr(sMISC,4)}, s{sT+5} offen offset:1024 lds
    """)
    for o in range(6):
        a(f"buffer_load_dwordx4 {vr(vB+4*o,4)}, v{l16}, {sr(sMISC,4)}, s{sT+6+o//3} offen offset:{1024*(o%3)}")
    a(f"""
{Lcommon}:
    """)
    stamp()
    one = pT + 4; vAL = pT + 10
    a(f"v_mov_b32 v{one}, 1\nv_mov_b32 v{vAL}, {L_ALLOC}")
    a(f"s_sub_u32 s{sT+2}, s{sTOT}, s{sCB}")
    for k in range(4):
        r0 = pREC + 4 * k
        Lskip = a.label("K2_NORARE")
        a(f"""
        v_add_u32 v{pT+5}, {k*512}, v0
        v_and_b32 v{pT+6}, {1<<k}, v{vPEND}
        v_cmp_gt_u32 vcc, s{sT+2}, v{pT+5}
        v_cmp_ne_u32 s[{sT}:{sT+1}], 0, v{pT+6}
        v_and_b32 v{pDL+k}, 0xffff, v{r0}
        v_lshlrev_b32 v{pDL+k}, 2, v{pDL+k}
        v_add_u32 v{pDL+k}, {L_CNT}, v{pDL+k}
        v_mov_b32 v{pRANK+k}, 0x7fff
        s_and_b64 {sr(sVAL+2*k,2)}, vcc, s[{sT}:{sT+1}]
        v_cmp_gt_i32 vcc, 0, v{r0+3}
        s_mov_b64 s[{sT}:{sT+1}], {sr(sVAL+2*k,2)}
        s_and_b64 {sr(sRARE+2*k,2)}, vcc, {sr(sVAL+2*k,2)}
        s_cbranch_scc0 {Lskip}
        s_mov_b64 exec, {sr(sRARE+2*k,2)}
        ds_add_rtn_u32 v{pRS+k}, v{vAL}, v{one} offset:8
        v_bfe_u32 v{pT+7}, v{r0+3}, 16, 15
        v_lshlrev_b32 v{pT+7}, 5, v{pT+7}
        buffer_load_dwordx4 {vr(pRARE+8*k,4)}, v{pT+7}, {sr(sMISC,4)}, 0 offen
        buffer_load_dwordx4 {vr(pRARE+8*k+4,4)}, v{pT+7}, {sr(sMISC,4)}, 0 offen offset:16
        v_and_b32 v{r0+3}, 0xffff, v{r0+3}
        s_waitcnt lgkmcnt(0)
        v_add_u32 v{pRS+k}, 1, v{pRS+k}
        v_cmp_le_u32 vcc, {NRS}, v{pRS+k}
        v_lshl_or_b32 v{r0+3}, v{pRS+k}, 16, v{r0+3}
        v_lshlrev_b32 v{pRS+k}, 5, v{pRS+k}
        s_andn2_b64 s[{sT}:{sT+1}], s[{sT}:{sT+1}], vcc
        s_andn2_b64 {sr(sRARE+2*k,2)}, {sr(sRARE+2*k,2)}, vcc
{Lskip}:
        s_mov_b64 exec, s[{sT}:{sT+1}]
        ds_add_rtn_u32 v{pRANK+k}, v{pDL+k}, v{one}
        s_mov_b64 exec, -1
        """)
    park_dma(pk[1])
    a("s_waitcnt lgkmcnt(0)\ns_barrier")
    L7 = a.label("K2_P7"); L8 = a.label("K2_P8")
    deg, rk, hh, bn = pT + 5, pT + 6, pT + 7, pT + 11
    a(f"""
    s_cmp_ge_u32 s{sW}, 5
    s_cbranch_scc1 {L7}
    v_lshlrev_b32 v{pT+8}, 2, v0
    v_add_u32 v{pT+8}, {L_CNT}, v{pT+8}
    ds_read_b32 v{deg}, v{pT+8}
    v_cmp_le_u32 vcc, {NKEY}, v0
    v_mov_b32 v{bn}, 31
    v_mov_b32 v{pT+9}, 63
    v_cndmask_b32 v{bn}, v{bn}, v{pT+9}, vcc
    s_waitcnt lgkmcnt(0)
    v_min_u32 v{deg}, {CAPN}, v{deg}
    v_sub_u32 v{bn}, v{bn}, v{deg}
    v_lshlrev_b32 v{bn}, 2, v{bn}
    v_add_u32 v{pT+8}, {L_HIST}, v{bn}
    ds_add_rtn_u32 v{rk}, v{pT+8}, v{one}
    s_waitcnt lgkmcnt(0)
{L7}:
    """)
    park_dma(pk[2])
    a(f"""
    s_barrier
    s_cmp_ge_u32 s{sW}, 5
    s_cbranch_scc1 {L8}
    v_and_b32 v{pT+8}, 63, v0
    v_lshlrev_b32 v{pT+8}, 2, v{pT+8}
    v_add_u32 v{pT+8}, {L_HIST}, v{pT+8}
    ds_read_b32 v{hh}, v{pT+8}
    v_subrev_u32 v{pT+8}, {NKEY}, v0
    v_min_u32 v{pT+8}, v{pT+8}, v0
    v_lshl_or_b32 v{deg}, v{deg}, 16, v{pT+8}
    s_waitcnt lgkmcnt(0)
    v_mov_b32 v{pT+9}, v{hh}
    """)
    dpp_scan(a, "v_add_u32", hh)
    a(f"""
    v_sub_u32 v{hh}, v{hh}, v{pT+9}
    ds_bpermute_b32 v{pT+9}, v{bn}, v{hh}
    s_waitcnt lgkmcnt(0)
    v_add_lshl_u32 v{pT+9}, v{pT+9}, v{rk}, 2
    v_add_u32 v{pT+9}, {L_SORT}, v{pT+9}
    ds_write_b32 v{pT+9}, v{deg}
    s_waitcnt lgkmcnt(0)
{L8}:
    """)
    park_dma(pk[3])
    assert L_SORT % 128 == 0 or True
    ek = pEK
    a(f"""
    s_barrier
    s_lshl_b32 s{sQ}, s{sW}, 4
    s_xor_b32 s{sT+1}, s{sQ}, 112
    v_add_u32 v{vG4}, {L_SORT}, v{vG4}
    v_add_u32 v{pT+6}, s{sQ}, v{vG4}
    v_add_u32 v{pT+7}, s{sT+1}, v{vG4}
    """)
    for k in range(10):
        a(f"ds_read_b32 v{ek+k}, v{pT+6+DIRS[k]} offset:{128*k}")
    a("s_waitcnt lgkmcnt(0)")
    for k in range(10):
        a(f"v_readfirstlane_b32 s{sN0+k}, v{ek+k}")
    a(f"v_mov_b32 v{vEN}, v{ek}\ns_mov_b32 s{sDIR}, {sum(d << k for k, d in enumerate(DIRS))}")
    a(f"s_mov_b64 {sr(sPC,2)}, 0\ns_mov_b32 s{sREM}, 0")
    for k in range(10):
        a(f"s_lshr_b32 s{sT}, s{sN0+k}, 16")
        a(f"s_mov_b32 s{sN0+k}, s{sREM}\ns_add_u32 s{sREM}, s{sREM}, s{sT}")
        a(f"s_lshl_b32 s{sT}, s{sT}, {5*(k%5)}\ns_or_b32 s{sPC+k//5}, s{sPC+k//5}, s{sT}")
    a(f"""
    s_add_u32 s{sREM}, s{sREM}, 1
    s_lshr_b32 s{sREM}, s{sREM}, 1
    v_mov_b32 v{pT+8}, s{sREM}
    s_mov_b64 exec, 1
    ds_add_rtn_u32 v{pT+9}, v{vAL}, v{pT+8}
    s_mov_b64 exec, -1
    """)
    for k in range(10):
        a(f"v_and_b32 v{ek+k}, 0xff, v{ek+k}")
        a(f"v_lshlrev_b32 v{ek+k}, 2, v{ek+k}")
        a(f"v_add_u32 v{ek+k}, {L_NADDR + (NKEY*4 if k >= 5 else 0)}, v{ek+k}")
    a(f"""
    v_bfe_u32 v{pT+5}, v0, 4, 2
    v_bfe_u32 v{pT+6}, v0, 1, 1
    v_bfe_u32 v{pT+7}, v0, 2, 2
    v_lshlrev_b32 v{pT+6}, 6, v{pT+6}
    v_lshl_add_u32 v{pT+6}, v{pT+7}, 4, v{pT+6}
    s_waitcnt lgkmcnt(0)
    v_readfirstlane_b32 s{sT}, v{pT+9}
    s_nop 1
    s_lshl_b32 s{sT}, s{sT}, 7
    s_add_u32 s{sT}, s{sT}, {L_STREAM}
    v_lshl_add_u32 v{vS}, v{pT+5}, 4, s{sT}
    v_add_u32 v{vA}, s{sT}, v{pT+6}
    """)
    for k in range(10):
        a(f"v_lshl_add_u32 v{pT+7+(k&1)}, s{sN0+k}, 6, v{vS}")
        a(f"ds_write_b32 v{ek+k}, v{pT+7+(k&1)}")
    park_dma(pk[4])
    a("s_waitcnt lgkmcnt(0)\ns_barrier")
    for k in range(4):
        a(f"ds_read_b32 v{pT+5+k}, v{pDL+k} offset:{L_NADDR - L_CNT}")
    a(f"v_mov_b32 v{vPEND}, 0")
    a("s_waitcnt lgkmcnt(0)")
    for k in range(4):
        r0 = pREC + 4 * k
        a(f"""
        v_cmp_gt_u32 vcc, {CAPN}, v{pRANK+k}
        v_lshl_add_u32 v{pT+5+k}, v{pRANK+k}, 6, v{pT+5+k}
        v_and_b32 v{r0}, s{sMASK}, v{r0}
        s_and_b64 exec, vcc, {sr(sVAL+2*k,2)}
        ds_write_b128 v{pT+5+k}, {vr(r0,4)}
        s_andn2_b64 exec, {sr(sVAL+2*k,2)}, vcc
        v_or_b32 v{vPEND}, {1<<k}, v{vPEND}
        ds_write_b32 v{vAL}, v{one} offset:4
        s_mov_b64 exec, -1
        """)
    for k in range(4):
        Lskip = a.label("K2_NORARE2")
        a(f"""
        s_cmp_eq_u64 {sr(sRARE+2*k,2)}, 0
        s_cbranch_scc1 {Lskip}
        s_waitcnt vmcnt(0)
        s_mov_b64 exec, {sr(sRARE+2*k,2)}
        ds_write_b128 v{pRS+k}, {vr(pRARE+8*k,4)} offset:{L_LUT}
        ds_write_b128 v{pRS+k}, {vr(pRARE+8*k+4,4)} offset:{L_LUT+16}
        s_mov_b64 exec, -1
        s_waitcnt lgkmcnt(0)
{Lskip}:
        """)
    park_dma(pk[5])
    a("s_waitcnt lgkmcnt(0)\ns_barrier")
    stamp()
    a(f"ds_read_b32 v{vT}, v{vAL} offset:4")
    for b in range(DP):
        a(f"ds_read2_b32 {vr(vD+2*b,2)}, v{vS} offset0:{32*b+3} offset1:{32*b+19}")
    a(f"ds_read_u16 v{vLI}, v{vA} offset:14")
    a("s_waitcnt lgkmcnt(0)")
    a(f"v_readfirstlane_b32 s{sMORE}, v{vT}")
    for b in range(DP):
        issue(b, vD + 2 * b)
    a(f"""
    s_add_u32 s{sT}, s{sCB}, {CHUNK}
    s_cmp_lt_u32 s{sT}, s{sTOT}
    s_cselect_b32 s{sT}, 2, 0
    s_or_b32 s{sMORE}, s{sMORE}, s{sT}
    s_mov_b32 s{sSLOT}, 10
    v_mad_u32_u16 v{vAD}, v{vLI}, v{vML}, v{vCL}
    s_waitcnt vmcnt({8*DP})
    s_barrier
    ds_read_b128 {vr(vAOP,4)}, v{vAD} offset:{L_LUT}
    ds_read2_b32 {vr(vPK,2)}, v{vS} offset0:{32*DP+3} offset1:{32*DP+19}
    ds_read_u16 v{vLI}, v{vA} offset:{128+14}
    ds_read_b128 {vr(vRH,4)}, v{vS}
    ds_read_b128 {vr(vRH+4,4)}, v{vS} offset:64
    """)
    if stamps:
        stamp(); a("s_memtime s[98:99]\ns_waitcnt lgkmcnt(0)")
    sRET = 8
    Lph = [a.label(f"K2_PH{p}") for p in range(NRG)]
    Lsk = [a.label(f"K2_SK{p}") for p in range(NRG)]
    Lbk = [a.label(f"K2_BK{p}") for p in range(NRG)]
    Ltr = [[a.label(f"K2_TR{p}{st}") for st in range(2)] for p in range(NRG)]
    Lrt = [[a.label(f"K2_RT{p}{st}") for st in range(2)] for p in range(NRG)]
    Ldone = a.label("K2_DONE"); Lepi = a.label("K2_EPI"); Lset = a.label("K2_SET")
    Lret = a.label("K2_RET")
    a(f"s_call_b64 {sr(sRET,2)}, {Lset}\ns_cbranch_scc1 {Ldone}")
    for p in range(NRG):
        a(f"{Lph[p]}:")
        a(f"s_waitcnt vmcnt({8*(DP-1)}) lgkmcnt(2)")
        sh = []
        for st in range(2):
            for hf in range(2):
                rg = ring(p, st, hf); e = vX + 4 * (2 * st + hf)
                sh += [f"v_lshlrev_b64 {vr(e,2)}, 16, {vr(rg,2)}", f"v_lshlrev_b64 {vr(e+2,2)}, 16, {vr(rg+2,2)}", f"v_lshlrev_b32 v{rg+4}, 16, v{rg+5}"]
        for o in range(6):
            if not opt.get("nomfma"):
                a(f"v_mfma_f32_16x16x32_bf16 {vr(vD+4*o,4)}, {vr(vAOP,4)}, {vr(vB+4*o,4)}, 0")
            if not opt.get("novalu"):
                a(sh[2 * o]); a(sh[2 * o + 1])
        a(f"s_sub_u32 s{sREM}, s{sREM}, 1\ns_cmp_lt_u32 s{sREM}, {DP}\ns_cbranch_scc1 {Lsk[p]}")
        issue((p + DP) % NRG, vPK)
        a(f"{Lbk[p]}:")
        assert (p + DP + 1) * 32 + 19 < 256
        a(f"""
        v_mad_u32_u16 v{vT}, v{vLI}, v{vML}, v{vCL}
        ds_read_b128 {vr(vAOP,4)}, v{vT} offset:{L_LUT}
        ds_read2_b32 {vr(vPK,2)}, v{vS} offset0:{(p+DP+1)*32+3} offset1:{(p+DP+1)*32+19}
        ds_read_u16 v{vLI}, v{vA} offset:{(p+2)*128+14}
        s_waitcnt lgkmcnt(3)
        """)
        for st in range(2):
            L = []
            for hf in range(2):
                HXY, HZS, LXY, LZS, BZ = ACC(hf)
                rg = ring(p, st, hf); rh = vRH + 4 * st; e = vX + 4 * (2 * st + hf); t = vT + 2 * hf
                d1, d2, d3 = vD + 12 * hf + 2 * st, vD + 12 * hf + 4 + 2 * st, vD + 12 * hf + 8 + 2 * st
                L.append(f"""v_pk_fma_f32 {vr(HXY,2)}, {vr(d1,2)}, {vr(rg,2)}, {vr(HXY,2)} op_sel_hi:[0,1,1]
                v_pk_mul_f32 {vr(t,2)}, {vr(d3,2)}, {vr(rg+4,2)}
                v_pk_fma_f32 {vr(HZS,2)}, {vr(d1,2)}, {vr(rg+2,2)}, {vr(HZS,2)}
                v_pk_fma_f32 {vr(LXY,2)}, {vr(d2,2)}, {vr(e,2)}, {vr(LXY,2)} op_sel_hi:[0,1,1]
                v_pk_fma_f32 {vr(LZS,2)}, {vr(d2,2)}, {vr(e+2,2)}, {vr(LZS,2)}
                v_pk_fma_f32 {vr(BZ,2)}, {vr(t,2)}, {vr(rh+2,2)}, {vr(BZ,2)} op_sel_hi:[1,0,1]
                v_pk_fma_f32 {vr(HXY,2)}, {vr(t,2)}, {vr(rh,2)}, {vr(HXY,2)} op_sel:[1,0,0]
                v_pk_fma_f32 {vr(LXY,2)}, {vr(t,2)}, {vr(rh,2)}, {vr(LXY,2)} op_sel_hi:[0,1,1]""".split("\n"))
            if not opt.get("novalu"):
                for l0, l1 in zip(*L):
                    a(l0); a(l1)
            a(f"ds_read_b128 {vr(vRH+4*st,4)}, v{vS} offset:{(p+1)*128+64*st}")
            if st == 1 and p == NRG - 1:
                a(f"v_add_u32 v{vS}, {128*NRG}, v{vS}\nv_add_u32 v{vA}, {128*NRG}, v{vA}")
            a(f"s_sub_u32 s{sCNT}, s{sCNT}, 1")
            if st == 1 and p == NRG - 1:
                a(f"s_cbranch_scc0 {Lph[0]}\ns_call_b64 {sr(sRET,2)}, {Lepi}\ns_cbranch_scc0 {Lph[0]}\ns_branch {Ldone}")
            else:
                a(f"s_cbranch_scc1 {Ltr[p][st]}\n{Lrt[p][st]}:")
    for p in range(NRG):
        for st in range(2):
            if st == 1 and p == NRG - 1: continue
            a(f"{Ltr[p][st]}:\ns_call_b64 {sr(sRET,2)}, {Lepi}\ns_cbranch_scc0 {Lrt[p][st]}\ns_branch {Ldone}")
    for p in range(NRG):
        a(f"{Lsk[p]}:\ns_waitcnt vmcnt(0)\ns_branch {Lbk[p]}")
    a(f"{Lepi}:")
    Lpw = a.label("K2_PW"); Lnx = a.label("K2_NX"); Lnb = a.label("K2_NB")
    for hf in range(2):
        HXY, HZS, LXY, LZS, BZ = ACC(hf)
        R = lambda c: vE + 2 * c + hf
        a(f"""
        v_add_f32 v{LZS}, v{LZS}, v{BZ}
        v_add_f32 v{HZS}, v{HZS}, v{BZ+1}
        v_cvt_pk_bf16_f32 v{R(0)}, v{LZS+1}, v{HZS+1}
        v_cvt_pk_bf16_f32 v{R(1)}, v{LXY}, v{HXY}
        v_cvt_pk_bf16_f32 v{R(2)}, v{LXY+1}, v{HXY+1}
        v_cvt_pk_bf16_f32 v{R(3)}, v{LZS}, v{HZS}
        """)
    a(f"""
    s_cmp_gt_u32 s{sSLOT}, 5
    s_cbranch_scc1 {Lpw}
    s_cmp_lg_u32 s{sMORE}, 0
    s_cbranch_scc1 {Lpw}
    """)
    for c in range(4):
        for hf in range(2):
            a(f"buffer_store_dword v{vE+2*c+hf}, v{vO}, {sr(sOUT,4)}, 0 offen offset:{512*c+64*hf} {st_fl}")
    a(f"s_branch {Lnx}\n{Lpw}:")
    for c in range(4):
        a(f"ds_write2_b32 v{vPA}, v{vE+2*c}, v{vE+2*c+1} offset0:{32*c} offset1:{32*c+16}")
    a(f"""
{Lnx}:
    s_sub_u32 s{sSLOT}, s{sSLOT}, 1
    s_cmp_eq_u32 s{sSLOT}, 0
    s_cbranch_scc1 {Lret}
    s_lshr_b32 s{sPC}, s{sPC}, 5
    s_waitcnt lgkmcnt(0)
    s_cmp_lg_u32 s{sSLOT}, 5
    s_cbranch_scc1 {Lset}
    s_mov_b32 s{sPC}, s{sPC+1}
    s_barrier
{Lset}:
    """)
    slot_setup()
    a(f"""
    s_and_b32 s{sCNT}, s{sPC}, 31
    s_cbranch_scc0 {Lepi}
    s_sub_u32 s{sCNT}, s{sCNT}, 1
{Lret}:
    s_setpc_b64 {sr(sRET,2)}
    """)
    Lfin = a.label("K2_FIN"); Lnext = a.label("K2_NEXT")
    a(f"""
{Ldone}:
    s_cmp_eq_u32 s{sMORE}, 0
    s_cbranch_scc1 {Lfin}
    s_bitcmp1_b32 s{sMORE}, 0
    s_cbranch_scc1 {Lnext}
    s_add_u32 s{sCB}, s{sCB}, {CHUNK}
    v_mov_b32 v{vPEND}, 15
{Lnext}:
    s_mov_b32 s{sPS}, -1
    s_waitcnt vmcnt(0) lgkmcnt(0)
    s_barrier
    v_subrev_u32 v{vG4}, {L_SORT}, v{vG4}
    v_add_u32 v{t16}, s{sCB}, v0
    v_lshlrev_b32 v{t16}, 4, v{t16}
    s_movk_i32 s{sT+2}, 8192
    s_movk_i32 s{sT+3}, 16384
    s_movk_i32 s{sT+4}, 24576
    buffer_load_dwordx4 {vr(pREC,4)}, v{t16}, {sr(sLIST,4)}, 0 offen
    buffer_load_dwordx4 {vr(pREC+4,4)}, v{t16}, {sr(sLIST,4)}, s{sT+2} offen
    buffer_load_dwordx4 {vr(pREC+8,4)}, v{t16}, {sr(sLIST,4)}, s{sT+3} offen
    buffer_load_dwordx4 {vr(pREC+12,4)}, v{t16}, {sr(sLIST,4)}, s{sT+4} offen
    """)
    lds_init()
    a(f"""
    s_waitcnt vmcnt(0) lgkmcnt(0)
    s_barrier
    s_branch {Lcommon}
{Lfin}:
    """)
    if stamps:
        stamp()
        a(f"s_memtime s[100:101]")
        a("s_waitcnt vmcnt(0)")
        stamp()
        a(f"s_waitcnt lgkmcnt(0)\ns_sub_u32 s{sST+2*nst[0]}, s100, s98\ns_mov_b32 s{sST+2*nst[0]+1}, 0")
        nst[0] += 1
        a(f"""
        s_add_u32 s{sLIST}, s6, {WS_DIAG + (1<<20)}
        s_addc_u32 s{sLIST+1}, s7, 0
        s_lshl_b32 s{sT}, s2, 3
        s_add_u32 s{sT}, s{sT}, s{sW}
        s_lshl_b32 s{sT}, s{sT}, 7
        v_mov_b32 v1, s{sT}
        s_mov_b64 exec, 1
        """)
        for i in range(nst[0]):
            a(f"v_mov_b32 v2, s{sST+2*i}\nv_mov_b32 v3, s{sST+2*i+1}")
            a(f"buffer_store_dwordx2 v[2:3], v1, {sr(sLIST,4)}, 0 offen offset:{8*i}")
    a(f"{Lend}:\ns_endpgm")
    return nv, 102
```

```python
N = 10000
E = 160000
NSL = 4
NR = 64
NKEY = 160
HALF = 5000
NP = 40
EPW = E // NP
ROWB = 640
TAB_SL = N * ROWB
WS_TAB = 0
WS_LUT = WS_TAB + NSL * TAB_SL
LUT_ROWS = 2080
LUT_BYTES = LUT_ROWS * 32
M_LUT = 0
M_END = 67584
M_BOP = M_END + 16384
MISC_BYTES = M_BOP + 24576
WS_LIST = 26 * 1024 * 1024
LIST_STRIDE = E * 16
WS_DIAG = 200 * 1024 * 1024
assert WS_LIST + NR * LIST_STRIDE <= WS_DIAG
DBASE = 0x3880
DCUT = 0x409D
LUT_THR = 1568
NRS = 512
CAPN = 30
```

```python
from asmlib import *
from layout import *

ROWS = 48
NG = (N + ROWS - 1) // ROWS
WG_EDGE0 = 0
WG_LUT0 = NP
NLUTWG = 5
assert WG_GEMM0 == NP + NLUTWG + 2 and NG == NGEMM
assert WG_GEMM0 + NG == 256
L_RING = 0
L_V = 65536
L_H = L_V + 3 * ROWS * 512
GEMM_LDS = L_H + ROWS * 512
assert L_H == L_PASS
L_POS = 0
L_EH = 65536
L_DLT = L_EH + 512
L_STG = L_EH + 1024
K1_LDS = max(GEMM_LDS, L_STG + 65536)
WG_BOP = WG_LUT0 + NLUTWG
from gen_k2 import dpp_scan

def rne_bf16(a, dst, src):
    a(f"v_cvt_pk_bf16_f32 v{dst}, v{src}, v{src}")
    a(f"v_and_b32 v{dst}, 0xffff0000, v{dst}")

def lut_row(a, vd, out, t, sF, sC):
    rcp, fc = t, t + 1
    a(f"v_rcp_f32 v{rcp}, v{vd}")
    a(f"v_mul_f32 v{fc}, s{sC}, v{vd}")
    rne_bf16(a, fc, fc)
    a(f"v_mul_f32 v{fc}, s{sC+1}, v{fc}")
    rne_bf16(a, fc, fc)
    a(f"v_mul_f32 v{fc}, s{sC+2}, v{fc}")
    a(f"v_cos_f32 v{fc}, v{fc}")
    a("s_nop 0")
    rne_bf16(a, fc, fc)
    a(f"v_add_f32 v{fc}, 1.0, v{fc}")
    rne_bf16(a, fc, fc)
    a(f"v_mul_f32 v{fc}, 0.5, v{fc}")
    for k in range(0, 16, 2):
        x, y, p = t + 2, t + 3, t + 4
        a(f"""
        v_mul_f32 v{x}, s{sF+k}, v{vd}
        v_mul_f32 v{y}, s{sF+k+1}, v{vd}
        v_cvt_pk_bf16_f32 v{p}, v{x}, v{y}
        v_lshlrev_b32 v{x}, 16, v{p}
        v_and_b32 v{y}, 0xffff0000, v{p}
        v_mul_f32 v{x}, s{sC+2}, v{x}
        v_mul_f32 v{y}, s{sC+2}, v{y}
        v_rndne_f32 v{t+5}, v{x}
        v_rndne_f32 v{t+6}, v{y}
        v_sub_f32 v{x}, v{x}, v{t+5}
        v_sub_f32 v{y}, v{y}, v{t+6}
        v_sin_f32 v{x}, v{x}
        v_sin_f32 v{y}, v{y}
        s_nop 0
        v_cvt_pk_bf16_f32 v{p}, v{x}, v{y}
        v_lshlrev_b32 v{x}, 16, v{p}
        v_and_b32 v{y}, 0xffff0000, v{p}
        v_mul_f32 v{x}, v{x}, v{rcp}
        v_mul_f32 v{y}, v{y}, v{rcp}
        v_cvt_pk_bf16_f32 v{p}, v{x}, v{y}
        v_lshlrev_b32 v{x}, 16, v{p}
        v_and_b32 v{y}, 0xffff0000, v{p}
        v_mul_f32 v{x}, v{x}, v{fc}
        v_mul_f32 v{y}, v{y}, v{fc}
        v_cvt_pk_bf16_f32 v{out+k//2}, v{x}, v{y}
        """)

def srd(a, d, lo, off_sreg, off_imm, size):
    hi = lo + 1
    if off_sreg is None and off_imm == 0:
        a(f"s_mov_b32 s{d}, s{lo}\ns_mov_b32 s{d+1}, s{hi}")
    else:
        if off_sreg is not None:
            if off_imm:
                a(f"s_add_u32 s{off_sreg}, s{off_sreg}, {off_imm}")
            a(f"s_add_u32 s{d}, s{lo}, s{off_sreg}")
        else:
            a(f"s_add_u32 s{d}, s{lo}, {off_imm}")
        a(f"s_addc_u32 s{d+1}, s{hi}, 0")
    a(f"s_mov_b32 s{d+2}, {size}\ns_mov_b32 s{d+3}, 0x20000")

def gen_k1(a0, name, opt, phase2):
    class Sw:
        cur = a0
        def __call__(self, x): return self.cur(x)
        def label(self, b): return self.cur.label(b)
    a = Sw()
    side = Asm()
    stamps = opt.get("stamps", False)
    tab_fl = opt.get("tab_flags", "sc1")
    sST = 82
    nst = [0]
    def stamp():
        if stamps:
            a(f"s_memrealtime {sr(sST + 2 * nst[0], 2)}")
            nst[0] += 1
            assert nst[0] <= 10
    def dump_stamps(n):
        if not stamps: return
        a(f"""
        s_memrealtime {sr(sST+18,2)}
        s_waitcnt lgkmcnt(0)
        s_add_u32 s40, s24, {WS_DIAG}
        s_addc_u32 s41, s25, 0
        s_mov_b32 s42, 0x100000
        s_mov_b32 s43, 0x20000
        s_lshl_b32 s44, s2, 3
        s_add_u32 s44, s44, s3
        s_lshl_b32 s44, s44, 7
        s_mov_b64 exec, 1
        v_mov_b32 v1, s44
        """)
        for i in list(range(n)) + [9]:
            a(f"v_mov_b32 v2, s{sST+2*i}\nv_mov_b32 v3, s{sST+2*i+1}")
            a(f"buffer_store_dwordx2 v[2:3], v1, s[40:43], 0 offen offset:{8*i}")
        a("s_mov_b64 exec, -1")
    Lp2 = a.label("P2"); Lside = a.label("K1_SIDE"); Larr = a.label("K1_ARRIVE"); Lcend = a.label("CODE_END"); Lpc = a.label("PC")
    kernel_header(a, name)
    Lend = a.label("K1_END"); Lgemm = a.label("K1_GEMM"); Llut = a.label("K1_LUT")
    a(f"""
    s_cmp_ge_u32 s2, 256
    s_cbranch_scc1 {Lend}
    s_load_dwordx16 s[4:19], s[0:1], 0
    s_load_dwordx4 s[20:23], s[0:1], 64
    s_load_dwordx2 s[24:25], s[0:1], 80
    """)
    stamp()
    a(f"""
    v_lshrrev_b32 v1, 6, v0
    s_nop 0
    v_readfirstlane_b32 s3, v1
    """)
    if opt.get("cpf", 1):
        Lnc = a.label("K1_NOCPF")
        a(f"""
        s_lshr_b32 s26, s2, 3
        s_cmp_lg_u32 s26, 5
        s_cbranch_scc1 {Lnc}
        s_getpc_b64 s[28:29]
{Lpc}:
        s_mov_b32 s30, {Lcend}-{Lpc}
        s_mov_b32 s31, 0x20000
        v_lshlrev_b32 v1, 7, v0
        buffer_load_dword v255, v1, s[28:31], 0 offen
{Lnc}:
        """)
    Lncl = a.label("K1_NOCLR")
    a(f"""
    s_cmp_lg_u32 s3, 0
    s_cbranch_scc1 {Lncl}
    s_waitcnt lgkmcnt(0)
    """)
    srd(a, 28, 24, None, WS_LUT + M_FLG, 32768)
    a(f"""
    s_lshl_b32 s26, s2, 7
    v_mov_b32 v2, 0
    v_mov_b32 v3, 0
    s_mov_b64 exec, 1
    buffer_store_dwordx2 v[2:3], v2, s[28:31], s26 offen sc1
    s_mov_b64 exec, -1
{Lncl}:
    s_cmp_lt_u32 s2, {WG_GEMM0}
    s_cbranch_scc1 {Lside}
    """)
    a.cur = side
    a(f"""
{Lside}:
    s_cmp_ge_u32 s2, {WG_LUT0}
    s_cbranch_scc1 {Llut}
    """)
    nvmax = 256
    V = Regs("v", 1, 256)
    vSRC = V.alloc("src", 8, 2); vDST = V.alloc("dst", 8, 2)
    vP = V.alloc("p", 48, 2)
    vREC = V.alloc("rec", 32, 2)
    vRK = V.alloc("rk", 8)
    vT = V.alloc("t", 12, 2)
    nvmax = max(nvmax, V.hi)
    sSRC, sDST, sPOS, sDBG, sLIST, sMISC = 28, 32, 36, 40, 44, 48
    sT = 52; sACT = 60
    a("s_waitcnt lgkmcnt(0)")
    srd(a, sSRC, 8, None, 0, E * 4)
    srd(a, sDST, 10, None, 0, E * 4)
    srd(a, sPOS, 6, None, 0, N * 6)
    a(f"""
    s_mul_i32 s{sT}, s2, {EPW*4}
    s_add_u32 s{sT+1}, s{sT}, {EPW*2}
    v_lshlrev_b32 v{vT}, 4, v0
    v_mov_b32 v{vT+1}, 0x7ffffff0
    v_cmp_gt_u32 vcc, {EPW//8}, v0
    s_mov_b64 s[{sT+2}:{sT+3}], vcc
    s_nop 0
    v_cndmask_b32 v{vT+1}, v{vT+1}, v{vT}, vcc
    buffer_load_dwordx4 {vr(vSRC,4)}, v{vT+1}, {sr(sSRC,4)}, s{sT} offen
    buffer_load_dwordx4 {vr(vDST,4)}, v{vT+1}, {sr(sDST,4)}, s{sT} offen
    buffer_load_dwordx4 {vr(vSRC+4,4)}, v{vT+1}, {sr(sSRC,4)}, s{sT+1} offen
    buffer_load_dwordx4 {vr(vDST+4,4)}, v{vT+1}, {sr(sDST,4)}, s{sT+1} offen
    s_lshl_b32 s{sT+4}, s3, 10
    """)
    for i in range(8):
        a(f"""
        s_add_u32 m0, s{sT+4}, {L_POS + i*8192}
        s_mov_b32 s{sT+5}, {i*8192}
        buffer_load_dwordx4 v{vT}, {sr(sPOS,4)}, s{sT+5} offen lds
        """)
    srd(a, sDBG, 22, None, 0, 256)
    srd(a, sLIST, 24, None, WS_LIST, NR * LIST_STRIDE)
    srd(a, sMISC, 24, None, WS_LUT, MISC_BYTES)
    a(f"""
    v_mov_b32 v{vT+2}, 0
    v_lshlrev_b32 v{vT+3}, 2, v0
    v_add_u32 v{vT+3}, {L_EH}, v{vT+3}
    v_cmp_gt_u32 vcc, 64, v0
    s_and_saveexec_b64 s[{sT+6}:{sT+7}], vcc
    ds_write_b32 v{vT+3}, v{vT+2}
    s_mov_b64 exec, -1
    """)
    vAS_, vAD_ = vREC, vREC + 8
    vKEY = V.alloc("key", 8); vHA = V.alloc("ha", 8); vDD = V.alloc("dd", 8, 2); vQ = V.alloc("q", 8, 2)
    for i in range(48):
        a(f"v_mov_b32 v{vP+i}, 0")
    a(f"""
    s_mov_b32 s{sT+4}, 0x322bcc77
    s_mov_b32 s{sT+5}, 0x322bcc77
    s_mov_b32 s{sT+1}, 0xffff0000
    s_mov_b32 s{sT+6}, {(DBASE+LUT_THR)<<16}
    v_mov_b32 v{vT+8}, {((NRS - LUT_THR - DBASE) << 16) & 0xffffffff}
    v_mov_b32 v{vT+9}, {((0x8000 - DBASE) << 16) & 0xffffffff}
    v_mov_b32 v{vT+10}, {NKEY}
    v_mov_b32 v{vT+11}, 1
    s_waitcnt vmcnt(8)
    """)
    for e in range(8):
        a(f"""
        v_cmp_le_u32 vcc, {HALF}, v{vSRC+e}
        v_mul_u32_u24 v{vAS_+e}, 6, v{vSRC+e}
        v_mul_u32_u24 v{vAD_+e}, 6, v{vDST+e}
        v_cndmask_b32 v{vT+4}, 0, v{vT+10}, vcc
        v_lshrrev_b32 v{vKEY+e}, 6, v{vDST+e}
        v_and_b32 v{vDST+e}, {NR-1}, v{vDST+e}
        v_add_u32 v{vKEY+e}, v{vKEY+e}, v{vT+4}
        v_lshlrev_b32 v{vDST+e}, 2, v{vDST+e}
        v_add_u32 v{vHA+e}, {L_EH}, v{vDST+e}
        """)
    a("s_waitcnt vmcnt(0) lgkmcnt(0)\ns_barrier")
    stamp()
    def pos_read(pr):
        for e in range(2):
            for c in range(3):
                a(f"ds_read_u16_d16_hi v{vP+12*pr+2*c+e}, v{vAS_+2*pr+e} offset:{L_POS+2*c}")
                a(f"ds_read_u16_d16_hi v{vP+12*pr+6+2*c+e}, v{vAD_+2*pr+e} offset:{L_POS+2*c}")
    def rnd2(dst, src, t):
        a(f"v_cvt_pk_bf16_f32 v{t}, v{src}, v{src+1}")
        a(f"v_lshlrev_b32 v{dst}, 16, v{t}")
        a(f"v_and_b32 v{dst+1}, s{sT+1}, v{t}")
    pos_read(0)
    for pr in range(4):
        p = vP + 12 * pr; q = p + 6; d = vDD + 2 * pr
        a("s_waitcnt lgkmcnt(0)" if pr == 0 else "s_waitcnt lgkmcnt(2)")
        if pr < 3: pos_read(pr + 1)
        for c in range(3):
            a(f"v_pk_add_f32 {vr(p+2*c,2)}, {vr(p+2*c,2)}, {vr(q+2*c,2)} neg_lo:[0,1] neg_hi:[0,1]")
        for c in range(3): rnd2(p + 2 * c, p + 2 * c, vT + 4 + c)
        for c in range(3):
            a(f"v_pk_mul_f32 {vr(q+2*c,2)}, {vr(p+2*c,2)}, {vr(p+2*c,2)}")
        for c in range(3): rnd2(q + 2 * c, q + 2 * c, vT + 4 + c)
        a(f"v_pk_add_f32 {vr(q,2)}, {vr(q,2)}, {vr(q+2,2)}")
        a(f"v_pk_add_f32 {vr(q,2)}, {vr(q,2)}, {vr(q+4,2)}")
        rnd2(q, q, vT + 4)
        a(f"v_pk_add_f32 {vr(q,2)}, {vr(q,2)}, s[{sT+4}:{sT+5}]")
        rnd2(q, q, vT + 4)
        a(f"v_sqrt_f32 v{q}, v{q}\nv_sqrt_f32 v{q+1}, v{q+1}\ns_nop 0")
        rnd2(d, q, vT + 4)
        for e in range(2):
            ee = 2 * pr + e
            a(f"""
            v_cmp_gt_u32 vcc, {DCUT<<16}, v{d+e}
            s_and_b64 {sr(sACT+2*ee,2)}, vcc, s[{sT+2}:{sT+3}]
            s_mov_b64 exec, {sr(sACT+2*ee,2)}
            ds_add_rtn_u32 v{vRK+ee}, v{vHA+ee}, v{vT+11}
            s_mov_b64 exec, -1
            """)
    a("s_waitcnt lgkmcnt(0)\ns_barrier")
    stamp()
    Lna = a.label("K1_NOATOM"); Lnb = a.label("K1_NOATOM2")
    a(f"""
    s_cmp_lg_u32 s3, 0
    s_cbranch_scc1 {Lna}
    ds_read_b32 v{vQ+4}, v{vT+3}
    v_lshlrev_b32 v{vT+5}, 2, v0
    s_waitcnt lgkmcnt(0)
    v_mov_b32 v{vQ+6}, v{vQ+4}
    v_mov_b32 v{vQ+7}, v{vQ+4}
    buffer_atomic_add v{vQ+6}, v{vT+5}, {sr(sDBG,4)}, 0 offen sc0
    """)
    dpp_scan(a, "v_add_u32", vQ + 7)
    a(f"""
    ds_write_b32 v{vT+3}, v{vQ+7} offset:4
    v_sub_u32 v{vQ+7}, v{vQ+7}, v{vQ+4}
    ds_write_b32 v{vT+3}, v{vQ+7}
{Lna}:
    """)
    for pr in range(4):
        p = vP + 12 * pr; d = vDD + 2 * pr
        r0, r1 = vREC + 8 * pr, vREC + 8 * pr + 4
        a(f"""
        v_rcp_f32 v{vQ}, v{d}
        v_rcp_f32 v{vQ+1}, v{d+1}
        v_cmp_gt_u32 vcc, s{sT+6}, v{d}
        v_cmp_gt_u32 s[{sT+4}:{sT+5}], s{sT+6}, v{d+1}
        v_pk_mul_f32 {vr(p,2)}, {vr(p,2)}, {vr(vQ,2)}
        v_pk_mul_f32 {vr(p+2,2)}, {vr(p+2,2)}, {vr(vQ,2)}
        v_pk_mul_f32 {vr(p+4,2)}, {vr(p+4,2)}, {vr(vQ,2)}
        v_cndmask_b32 v{vQ+2}, v{vT+8}, v{vT+9}, vcc
        v_cndmask_b32 v{vQ+3}, v{vT+8}, v{vT+9}, s[{sT+4}:{sT+5}]
        v_cvt_pk_bf16_f32 v{vT+4}, v{p}, v{p+1}
        v_cvt_pk_bf16_f32 v{vT+5}, v{p+2}, v{p+3}
        v_cvt_pk_bf16_f32 v{vT+6}, v{p+4}, v{p+5}
        v_add3_u32 v{r0+3}, v{d}, v{vQ+2}, v{vSRC+2*pr}
        v_add3_u32 v{r1+3}, v{d+1}, v{vQ+3}, v{vSRC+2*pr+1}
        v_lshl_or_b32 v{r0}, v{vT+4}, 16, v{vKEY+2*pr}
        v_and_or_b32 v{r1}, v{vT+4}, s{sT+1}, v{vKEY+2*pr+1}
        v_lshl_or_b32 v{r0+1}, v{vT+5}, 16, v{vDST+2*pr}
        v_and_or_b32 v{r1+1}, v{vT+5}, s{sT+1}, v{vDST+2*pr+1}
        v_lshlrev_b32 v{r0+2}, 16, v{vT+6}
        v_and_b32 v{r1+2}, s{sT+1}, v{vT+6}
        """)
    a("s_waitcnt lgkmcnt(0)\ns_barrier")
    for e in range(8):
        a(f"ds_read_b32 v{vP+e}, v{vHA+e}")
    a(f"v_mov_b32 v{vT+8}, {L_EH}\nds_read_b32 v{vT+9}, v{vT+8} offset:256")
    a("s_waitcnt lgkmcnt(0)")
    for e in range(8):
        a(f"""
        v_add_lshl_u32 v{vP+e}, v{vP+e}, v{vRK+e}, 4
        v_add_u32 v{vP+e}, {L_STG}, v{vP+e}
        s_mov_b64 exec, {sr(sACT+2*e,2)}
        ds_write_b128 v{vP+e}, {vr(vREC+4*e,4)}
        s_mov_b64 exec, -1
        """)
    a(f"""
    v_readfirstlane_b32 s{sT+4}, v{vT+9}
    s_cmp_lg_u32 s3, 0
    s_cbranch_scc1 {Lnb}
    s_mov_b32 s{sT}, {E}
    s_waitcnt vmcnt(0)
    v_and_b32 v{vQ+6}, 0x3ffff, v{vQ+6}
    v_mad_u32_u24 v{vT+6}, v0, s{sT}, v{vQ+6}
    v_sub_u32 v{vT+6}, v{vT+6}, v{vQ+7}
    v_lshlrev_b32 v{vT+6}, 4, v{vT+6}
    ds_write_b32 v{vT+3}, v{vT+6} offset:{L_DLT - L_EH}
{Lnb}:
    v_lshlrev_b32 v{vT+5}, 4, v0
    v_add_u32 v{vT+2}, {L_STG}, v{vT+5}
    s_waitcnt lgkmcnt(0)
    s_barrier
    """)
    stamp()
    for e in range(8):
        a(f"ds_read_b128 {vr(vREC+4*e,4)}, v{vT+2} offset:{e*8192}")
    for e in range(8):
        a(f"""
        s_waitcnt lgkmcnt(7)
        v_and_b32 v{vP+e}, 0xfc, v{vREC+4*e+1}
        v_add_u32 v{vP+e}, {L_DLT}, v{vP+e}
        ds_read_b32 v{vP+e}, v{vP+e}
        v_and_b32 v{vREC+4*e+1}, s{sT+1}, v{vREC+4*e+1}
        v_add_u32 v{vT+6}, {e*512}, v0
        v_cmp_gt_u32 {sr(sACT+2*e,2)}, s{sT+4}, v{vT+6}
        """)
    for e in range(8):
        Ls = a.label("K1_ES")
        a(f"""
        s_waitcnt lgkmcnt({7-e})
        v_add_u32 v{vP+e}, v{vP+e}, v{vT+5}
        s_mov_b32 s{sT}, {e*8192}
        s_mov_b64 exec, {sr(sACT+2*e,2)}
        s_cbranch_execz {Ls}
        buffer_store_dwordx4 {vr(vREC+4*e,4)}, v{vP+e}, {sr(sLIST,4)}, s{sT} offen sc1
{Ls}:
        s_mov_b64 exec, -1
        """)
    dump_stamps(nst[0])
    a(f"""
{Larr}:
    s_waitcnt vmcnt(0)
    s_barrier
    s_cmp_lg_u32 s3, 0
    s_cbranch_scc1 {Lp2}
    """)
    srd(a, 28, 22, None, 0, 256)
    a(f"""
    v_mov_b32 v1, 0
    v_mov_b32 v2, {1<<18}
    s_mov_b64 exec, 1
    buffer_atomic_add v2, v1, s[28:31], 0 offen
    s_mov_b64 exec, -1
    s_branch {Lp2}
    """)

    Lbop = a.label("K1_BOP")
    a(f"{Lbop}:")
    a(f"s_waitcnt lgkmcnt(0)\ns_cmp_lg_u32 s2, {WG_BOP}\ns_cbranch_scc1 {Larr}")
    srd(a, 28, 18, None, 0, 16 * 768 * 2)
    srd(a, 32, 24, None, WS_LUT + M_BOP, 24576)
    a(f"""
    v_bfe_u32 v1, v0, 4, 1
    v_mul_u32_u24 v1, {8*1536}, v1
    v_and_b32 v2, 15, v0
    v_lshl_add_u32 v1, v2, 2, v1
    s_lshl_b32 s36, s3, 6
    v_add_u32 v1, s36, v1
    v_bfe_u32 v3, v0, 5, 1
    v_xor_b32 v2, 1, v3
    v_lshl_add_u32 v2, v2, 9, v1
    """)
    for m in range(8):
        a(f"s_movk_i32 s37, {m*1536}")
        a(f"buffer_load_dword v{8+m}, v2, s[28:31], s37 offen")
        a(f"buffer_load_dword v{16+m}, v1, s[28:31], s37 offen offset:1024")
    a(f"""
    s_mov_b32 s38, 0x05040100
    s_mov_b32 s39, 0x07060302
    v_mul_u32_u24 v3, 0x020202, v3
    v_lshl_or_b32 v3, v3, 8, v3
    v_add_u32 v3, s38, v3
    v_and_b32 v4, 63, v0
    v_lshlrev_b32 v4, 4, v4
    s_mul_i32 s36, s3, 3072
    s_waitcnt vmcnt(0)
    """)
    for m in range(4):
        a(f"v_perm_b32 v{24+m}, v{8+2*m+1}, v{8+2*m}, s39")
        a(f"v_perm_b32 v{28+m}, v{8+2*m+1}, v{8+2*m}, s38")
        a(f"v_perm_b32 v{32+m}, v{16+2*m+1}, v{16+2*m}, v3")
    a(f"""
    buffer_store_dwordx4 v[24:27], v4, s[32:35], s36 offen sc1
    buffer_store_dwordx4 v[28:31], v4, s[32:35], s36 offen offset:1024 sc1
    buffer_store_dwordx4 v[32:35], v4, s[32:35], s36 offen offset:2048 sc1
    s_branch {Larr}
    """)
    a(f"{Llut}:")
    a(f"""
    s_cmp_ge_u32 s2, {WG_LUT0+NLUTWG}
    s_cbranch_scc1 {Lbop}
    s_waitcnt lgkmcnt(0)
    s_load_dwordx8 s[28:35], s[12:13], 0
    """)
    srd(a, 60, 24, None, WS_LUT, LUT_BYTES)
    a(f"""
    s_sub_u32 s56, s2, {WG_LUT0}
    s_lshl_b32 s56, s56, 9
    v_add_u32 v1, s56, v0
    v_add_u32 v2, {DBASE}, v1
    v_lshlrev_b32 v2, 16, v2
    v_lshlrev_b32 v1, 5, v1
    s_mov_b32 s52, 0x40490fdb
    s_mov_b32 s53, 0x3e4ccccd
    s_mov_b32 s54, 0x3e22f983
    s_waitcnt lgkmcnt(0)
    """)
    for k in range(8):
        a(f"s_lshl_b32 s{36+2*k}, s{28+k}, 16\ns_and_b32 s{37+2*k}, s{28+k}, 0xffff0000")
    lut_row(a, 2, 4, 12, 36, 52)
    a(f"""
    buffer_store_dwordx4 v[4:7], v1, s[60:63], 0 offen sc1
    buffer_store_dwordx4 v[8:11], v1, s[60:63], 0 offen offset:16 sc1
    s_branch {Larr}
{Lcend}:
    """)
    a.cur = a0

    a(f"{Lgemm}:")
    V = Regs("v", 1, 256)
    vD1 = V.alloc("d1"); vD2 = V.alloc("d2"); vD3 = V.alloc("d3"); vDV = V.alloc("dv")
    vAS = V.alloc("as", 2); vTR = V.alloc("tr", 2); vHW = V.alloc("hw", 4)
    vVR = V.alloc("vr"); vO4 = V.alloc("o4"); vSEL = V.alloc("sel"); vRL = V.alloc("rl")
    vT = V.alloc("t", 12, 2)
    vACC = V.alloc("acc", 72, 4)
    vAF = V.alloc("af", 96, 4)
    vBF = V.alloc("bf", 32, 4)
    vV = V.alloc("v", 12)
    vOB = V.alloc("ob", 12, 4)
    nvmax = max(nvmax, V.hi)
    sSV, sW1, sW2, sT4, sT1 = 28, 32, 36, 40, 44
    sT = 48; sHI = 56; sROW = 57; sM = 58; sRB = 59; sRND = 60; sL = 61; sROT = 62; sMV = 63
    sK1 = 64; sK2 = 72; sEV = 80
    q, j = vT + 1, vT + 2
    hi, ch = vT + 3, vT + 4
    a(f"""
    s_sub_u32 s{sROW}, s2, {WG_GEMM0}
    s_mul_i32 s{sROW}, s{sROW}, {ROWS}
    s_lshl_b32 s{sRB}, s{sROW}, 11
    s_and_b32 s{sL}, s3, 3
    s_lshr_b32 s{sROT}, s2, 3
    s_and_b32 s{sROT}, s{sROT}, {7 if opt.get("rot", 1) else 0}
    s_lshl_b32 s{sMV}, s{sL}, 10
    s_and_b32 s{sT}, s{sL}, 1
    s_lshr_b32 s{sT+1}, s{sL}, 1
    s_lshl_b32 s{sT+2}, s{sT+1}, 2
    s_add_u32 s{sT+2}, s{sT+2}, s{sT}
    s_lshl_b32 s{sM}, s{sT+2}, 10
    v_bfe_u32 v{hi}, v0, 5, 1
    v_and_b32 v{ch}, 31, v0
    """)
    a(f"""
    s_lshl_b32 s{sT+3}, s{sL}, 2
    v_lshl_add_u32 v{vT+5}, v{hi}, 1, s{sT+3}
    v_xor_b32 v{vT+5}, v{vT+5}, v{ch}
    v_lshlrev_b32 v{vT+5}, 4, v{vT+5}
    v_lshl_add_u32 v{vD1}, v{hi}, 9, v{vT+5}
    v_add_u32 v{vD1}, s{sM}, v{vD1}
    """)
    a(f"""
    s_lshl_b32 s{sT+4}, s{sL}, 12
    v_lshl_add_u32 v{vT+6}, v{hi}, 11, v{vT+5}
    v_add_u32 v{vT+6}, s{sT+4}, v{vT+6}
    """)
    for n in range(3):
        a(f"s_xor_b32 s{sK1+n}, s{sROT}, {n}\ns_lshl_b32 s{sK1+n}, s{sK1+n}, 14")
    a("s_waitcnt lgkmcnt(0)")
    srd(a, sSV, 4, None, 0, N * 2048)
    srd(a, sW1, 14, None, 0, 256 * 512)
    units = [("w1", n, 0) for n in range(8)] + [("a", n, 0) for n in range(8)] + [("a", n, 1) for n in range(8)] \
          + [("b", n, 0) for n in range(4)] + [("b", n, 1) for n in range(4)]
    owner = lambda u: units[u][2]
    class C: pass
    st = C(); st.seq = []
    def dma_unit(u, which=(0, 1, 2, 3)):
        kind, n, hf = units[u]
        for i in which:
            rr = 4 * (i & 1) + 16 * (i >> 1)
            kr = 2 * (i & 1) + 8 * (i >> 1)
            a(f"s_add_u32 m0, s{sM}, {L_RING + (u%4)*16384 + rr*512}")
            if kind == "w1":
                a(f"s_add_u32 s{sT}, s{sK1+n}, {rr*512}")
                a(f"buffer_load_dwordx4 v{vD1}, {sr(sW1,4)}, s{sT} offen lds")
            elif kind == "a":
                a(f"s_add_u32 s{sT}, s{sK2+n}, {kr*1536 + hf*256}")
                a(f"buffer_load_dwordx4 v{vD2}, {sr(sW2,4)}, s{sT} offen lds")
            else:
                a(f"s_add_u32 s{sT}, s{sK1+n}, {kr*1536 + hf*256 + 1024}")
                a(f"buffer_load_dwordx4 v{vD3}, {sr(sW2,4)}, s{sT} offen lds")
            st.seq.append(("U", u))
    def dma_v(hf, n):
        c, i = n % 3, n // 3
        a(f"""
        s_add_u32 m0, s{sMV}, {L_V + (hf*3+c)*ROWS*256 + i*4096}
        s_add_u32 s{sT}, s{sRB}, {i*16*2048 + 512*(c+1) + hf*256}
        buffer_load_dwordx4 v{vDV}, {sr(sSV,4)}, s{sT} offen lds
        """)
        st.seq.append(("V", hf))
    LnoB0 = a.label("K1_G0")
    a(f"s_cmp_lt_u32 s3, 4\ns_cbranch_scc1 {LnoB0}")
    for i in range(6):
        a(f"""
        s_add_u32 m0, s{sMV}, {L_H + i*4096}
        s_add_u32 s{sT}, s{sRB}, {i*8*2048}
        buffer_load_dwordx4 v{vT+6}, {sr(sSV,4)}, s{sT} offen lds
        """)
        st.seq.append(("U", 0))
    for u in range(3): dma_unit(u)
    seqB0 = list(st.seq)
    a(f"{LnoB0}:")
    for n in range(3, 8):
        a(f"s_xor_b32 s{sK1+n}, s{sROT}, {n}\ns_lshl_b32 s{sK1+n}, s{sK1+n}, 14")
    for n in range(8):
        a(f"s_mul_i32 s{sK2+n}, s{sK1+n}, 3")
    srd(a, sW2, 16, None, 0, 256 * 1536)
    a(f"s_lshr_b32 s{sT+6}, s3, 1\ns_mul_i32 s{sT+6}, s{sT+6}, {TAB_SL}")
    srd(a, sT4, 24, sT + 6, WS_TAB, TAB_SL)
    a(f"""
    v_lshl_add_u32 v{vT+7}, v{hi}, 4, s{sT+2}
    v_mul_u32_u24 v{vT+7}, 1536, v{vT+7}
    v_and_b32 v{vT+8}, 0xf0, v{vT+5}
    v_add_u32 v{vT+7}, v{vT+7}, v{vT+8}
    v_lshrrev_b32 v{vT+8}, 4, v{ch}
    v_xor_b32 v{vT+9}, 1, v{vT+8}
    v_lshl_add_u32 v{vD2}, v{vT+9}, 9, v{vT+7}
    v_xor_b32 v{vT+8}, s{sROT}, v{vT+8}
    v_and_b32 v{vT+8}, 1, v{vT+8}
    v_mul_u32_u24 v{vT+8}, 49152, v{vT+8}
    v_add_u32 v{vD3}, v{vT+7}, v{vT+8}
    s_mov_b32 s{sHI}, 0x07060302
    s_mov_b32 s{sRND}, 0x8000
    v_bfe_u32 v{q}, v0, 4, 2
    v_and_b32 v{j}, 15, v0
    s_lshl_b32 s{sT+4}, s{sL}, 13
    v_lshlrev_b32 v{vDV}, 11, v{q}
    v_lshl_add_u32 v{vDV}, v{j}, 4, v{vDV}
    v_add_u32 v{vDV}, s{sT+4}, v{vDV}
    v_and_b32 v{vT+3}, 7, v{j}
    v_lshlrev_b32 v{vT+3}, 1, v{vT+3}
    v_xor_b32 v{vT+3}, v{vT+3}, v{q}
    v_lshlrev_b32 v{vT+3}, 4, v{vT+3}
    v_lshl_add_u32 v{vAS}, v{j}, 9, v{vT+3}
    s_lshl_b32 s{sT+4}, s{sROT}, 6
    v_xor_b32 v{vAS}, s{sT+4}, v{vAS}
    v_add_u32 v{vAS}, {L_H}, v{vAS}
    """)
    a(f"""
    v_lshrrev_b32 v{vT+3}, 2, v{j}
    v_and_b32 v{vT+4}, 1, v{q}
    v_lshl_or_b32 v{vT+4}, v{vT+4}, 2, v{vT+3}
    v_lshlrev_b32 v{vT+4}, 1, v{vT+4}
    v_bfe_u32 v{vT+5}, v0, 1, 1
    v_or_b32 v{vT+5}, s{sT+3}, v{vT+5}
    v_xor_b32 v{vT+4}, v{vT+4}, v{vT+5}
    v_lshl_add_u32 v{vT+3}, v{q}, 3, v{vT+3}
    v_lshlrev_b32 v{vT+3}, 9, v{vT+3}
    v_lshl_add_u32 v{vT+3}, v{vT+4}, 4, v{vT+3}
    v_and_b32 v{vT+4}, 1, v0
    v_lshl_add_u32 v{vTR}, v{vT+4}, 3, v{vT+3}
    v_xor_b32 v{vTR+1}, 32, v{vTR}
    """)
    a(f"""
    v_lshrrev_b32 v{vT+3}, 2, v{j}
    v_or_b32 v{vT+3}, s{sT+3}, v{vT+3}
    v_and_b32 v{vT+4}, 1, v{q}
    v_lshlrev_b32 v{vT+4}, 3, v{vT+4}
    v_xor_b32 v{vT+3}, v{vT+3}, v{vT+4}
    v_lshlrev_b32 v{vT+3}, 4, v{vT+3}
    v_and_b32 v{vT+4}, 3, v{j}
    v_lshl_add_u32 v{vT+3}, v{vT+4}, 2, v{vT+3}
    v_lshl_add_u32 v{vT+3}, v{q}, 11, v{vT+3}
    v_add_u32 v{vHW}, {L_H}, v{vT+3}
    v_xor_b32 v{vHW+1}, 32, v{vHW}
    v_xor_b32 v{vHW+2}, 64, v{vHW}
    v_xor_b32 v{vHW+3}, 96, v{vHW}
    """)
    a(f"""
    v_and_b32 v{vT+3}, 1, v{j}
    v_lshlrev_b32 v{vT+3}, 5, v{vT+3}
    v_lshrrev_b32 v{vT+4}, 1, v{j}
    v_lshl_add_u32 v{vT+3}, v{vT+4}, 2, v{vT+3}
    s_lshr_b32 s{sT+1}, s3, 2
    s_mul_i32 s{sT+1}, s{sT+1}, {3*ROWS*256}
    s_lshl_b32 s{sT+4}, s{sL}, 6
    s_add_u32 s{sT+1}, s{sT+1}, s{sT+4}
    s_add_u32 s{sT+1}, s{sT+1}, {L_V}
    v_add_u32 v{vT+3}, s{sT+1}, v{vT+3}
    v_lshl_add_u32 v{vVR}, v{q}, 10, v{vT+3}
    v_lshl_add_u32 v{vT+3}, v{q}, 2, s{sROW}
    v_mul_u32_u24 v{vO4}, {ROWB}, v{vT+3}
    v_lshl_add_u32 v{vO4}, v{j}, 4, v{vO4}
    s_and_b32 s{sT+4}, s3, 1
    s_lshl_b32 s{sT+4}, s{sT+4}, 8
    v_add_u32 v{vO4}, s{sT+4}, v{vO4}
    s_mov_b32 s{sEV}, 0x55555555
    s_mov_b32 s{sEV+1}, 0x55555555
    v_mov_b32 v{vT+3}, 0x03020706
    v_mov_b32 v{vT+4}, 0x05040100
    v_mov_b32 v{vT+5}, 0x8000
    v_cndmask_b32 v{vSEL}, v{vT+3}, v{vT+4}, s[{sEV}:{sEV+1}]
    v_cndmask_b32 v{vRL}, 0, v{vT+5}, s[{sEV}:{sEV+1}]
    """)
    def af_read(ns):
        for n in ns:
            if n: a(f"v_xor_b32 v{vAS+1}, {n*64}, v{vAS}")
            for mt in range(3):
                a(f"ds_read_b128 {vr(vAF+(n*3+mt)*4,4)}, v{vAS+1 if n else vAS} offset:{mt*8192}")
    def tr_read(u):
        b = vBF + 16 * (u & 1)
        for side in range(2):
            for t in range(2):
                for h in range(2):
                    a(f"ds_read_b64_tr_b16 {vr(b+8*side+4*t+2*h,2)}, v{vTR+t} offset:{L_RING + (u%4)*16384 + h*2048 + side*256}")
    def mfmas(u, dmu=None):
        kind, n, hf = units[u]
        b = vBF + 16 * (u & 1)
        for side in range(2):
            for t in range(2):
                for mt in range(3):
                    if dmu is not None and mt == 1: dma_unit(dmu, (side * 2 + t,))
                    if kind == "b":
                        nn = 2 * n + side; nt = 4 + t
                    else:
                        nn = n; nt = 2 * side + t
                    acc = vACC + (mt * 6 + nt) * 4
                    c = "0" if nn == 0 else vr(acc, 4)
                    a(f"v_mfma_f32_16x16x32_bf16 {vr(acc,4)}, {vr(vAF+(nn*3+mt)*4,4)}, {vr(b+8*side+4*t,4)}, {c}")
    def silu():
        a(f"s_mov_b32 s{sT+6}, 0xbfb8aa3b\ns_mov_b32 s{sT+7}, 0xbfb8aa3b\ns_nop 7")
        cnt = 0
        for side in range(2):
            for mt in range(3):
                for r in range(0, 4, 2):
                    L = []
                    for rr in range(2):
                        a0, a1 = vACC + (mt * 6 + 2 * side) * 4 + r + rr, vACC + (mt * 6 + 2 * side + 1) * 4 + r + rr
                        x, e_, p = vT + 6 * rr, vT + 2 + 6 * rr, vT + 4 + 6 * rr
                        L.append(f"""v_cvt_pk_bf16_f32 v{p}, v{a0}, v{a1}
                        v_lshlrev_b32 v{x}, 16, v{p}
                        v_and_b32 v{x+1}, 0xffff0000, v{p}
                        v_pk_mul_f32 {vr(e_,2)}, {vr(x,2)}, s[{sT+6}:{sT+7}]
                        v_exp_f32 v{e_}, v{e_}
                        v_exp_f32 v{e_+1}, v{e_+1}
                        v_pk_add_f32 {vr(e_,2)}, {vr(e_,2)}, 1.0 op_sel_hi:[1,0]
                        v_rcp_f32 v{e_}, v{e_}
                        v_rcp_f32 v{e_+1}, v{e_+1}
                        v_pk_mul_f32 {vr(x,2)}, {vr(x,2)}, {vr(e_,2)}
                        v_cvt_pk_bf16_f32 v{p}, v{x}, v{x+1}
                        ds_write_b32 v{vHW+r+rr}, v{p} offset:{(mt*16+r+rr)*512 + side*256}""".split("\n"))
                    for l0, l1 in zip(*L):
                        a(l0); a(l1)
                    cnt += 1
                    if cnt % 3 == 0: a("s_waitcnt lgkmcnt(2)")
    DPP = "quad_perm:[1,0,3,2] row_mask:0xf bank_mask:0xf"
    def v_read(pc):
        mt, r = pc // 4, pc % 4
        for c in range(3):
            a(f"ds_read_b32 v{vV + (pc % 4) * 3 + c}, v{vVR} offset:{c*ROWS*256 + (mt*16+r)*256}")
    def t4_piece(pc):
        mt, r = pc // 4, pc % 4
        A_ = lambda nt: vACC + (mt * 6 + nt) * 4 + r
        o = vOB + 4 * (pc % 3); vv = vV + (pc % 4) * 3
        lo, hi_, P, Q = vT, vT + 1, vT + 2, vT + 3
        x = vT + 4
        a(f"""
        v_perm_b32 v{P}, v{A_(3)}, v{A_(2)}, s{sHI}
        v_mov_b32_dpp v{lo}, v{A_(1)} {DPP}
        v_mov_b32_dpp v{hi_}, v{A_(0)} {DPP}
        v_mov_b32_dpp v{Q}, v{P} {DPP}
        v_cndmask_b32 v{lo}, v{lo}, v{A_(0)}, s[{sEV}:{sEV+1}]
        v_cndmask_b32 v{hi_}, v{A_(1)}, v{hi_}, s[{sEV}:{sEV+1}]
        v_perm_b32 v{o+3}, v{Q}, v{P}, v{vSEL}
        v_lshlrev_b32 v{x}, 16, v{vv}
        v_and_b32 v{x+1}, 0xffff0000, v{vv}
        v_lshlrev_b32 v{x+2}, 16, v{vv+1}
        v_and_b32 v{x+3}, 0xffff0000, v{vv+1}
        v_lshlrev_b32 v{x+4}, 16, v{vv+2}
        v_and_b32 v{x+5}, 0xffff0000, v{vv+2}
        v_mul_f32 v{x}, v{x}, v{lo}
        v_mul_f32 v{x+1}, v{x+1}, v{hi_}
        v_mul_f32 v{x+2}, v{x+2}, v{lo}
        v_mul_f32 v{x+3}, v{x+3}, v{hi_}
        v_mul_f32 v{x+4}, v{x+4}, v{lo}
        v_mul_f32 v{x+5}, v{x+5}, v{hi_}
        v_add_u32 v{x}, s{sRND}, v{x}
        v_add_u32 v{x+4}, s{sRND}, v{x+4}
        v_perm_b32 v{o+1}, v{x+3}, v{x+2}, s{sHI}
        v_perm_b32 v{o}, v{x+1}, v{x}, s{sHI}
        v_perm_b32 v{o+2}, v{x+5}, v{x+4}, s{sHI}
        s_movk_i32 s{sT+4}, {mt*16*ROWB}
        buffer_store_dwordx4 {vr(o,4)}, v{vO4}, {sr(sT4,4)}, s{sT+4} offen offset:{r*ROWB} {tab_fl}
        """)
        st.seq.append("ST")
    def t1_epi():
        a(f"""
        s_mul_i32 s{sT+4}, s3, 3072
        s_add_u32 s{sT+4}, s{sT+4}, {L_H}
        v_mbcnt_lo_u32_b32 v{vT}, -1, 0
        v_mbcnt_hi_u32_b32 v{vT}, -1, v{vT}
        v_lshrrev_b32 v{vT+1}, 4, v{vT}
        v_and_b32 v{vT+2}, 15, v{vT}
        v_lshlrev_b32 v{vT+1}, 8, v{vT+1}
        v_lshl_add_u32 v{vT+1}, v{vT+2}, 1, v{vT+1}
        v_add_u32 v{vT+1}, s{sT+4}, v{vT+1}
        v_lshl_add_u32 v{vT+2}, v{vT}, 4, s{sT+4}
        v_lshrrev_b32 v{vT+3}, 2, v{vT}
        v_and_b32 v{vT}, 3, v{vT}
        v_add_u32 v{vT+3}, s{sROW}, v{vT+3}
        v_mul_u32_u24 v{vT+3}, {ROWB}, v{vT+3}
        v_lshl_add_u32 v{vT}, v{vT}, 4, v{vT+3}
        s_and_b32 s{sT+4}, s3, 1
        s_lshl_b32 s{sT+4}, s{sT+4}, 6
        s_add_u32 s{sT+5}, s{sT+4}, {16*ROWB}
        s_add_u32 s{sT+6}, s{sT+4}, {32*ROWB}
        """)
        for mt in range(3):
            A_ = lambda nt, r: vACC + (mt * 6 + nt) * 4 + r
            for r in range(4):
                for t in range(2):
                    a(f"v_add_u32 v{A_(4+t,r)}, v{A_(4+t,r)}, v{vRL}")
                    a(f"ds_write_b16_d16_hi v{vT+1}, v{A_(4+t,r)} offset:{(mt*16+r)*64 + 32*t}")
                if mt and r == 2:
                    a("s_waitcnt lgkmcnt(6)")
                    a(f"buffer_store_dwordx4 {vr(vOB+4*(mt-1),4)}, v{vT}, {sr(sT4,4)}, s{sT+4+mt-1} offen offset:512 {tab_fl}")
                    st.seq.append("ST")
            a(f"ds_read_b128 {vr(vOB+4*mt,4)}, v{vT+2} offset:{mt*1024}")
        a("s_waitcnt lgkmcnt(0)")
        a(f"buffer_store_dwordx4 {vr(vOB+8,4)}, v{vT}, {sr(sT4,4)}, s{sT+6} offen offset:512 {tab_fl}")
        st.seq.append("ST")
    v0_at = opt.get("v0_at", 7); v1_at = opt.get("v1_at", 8); pf_at = opt.get("pf_at", 8); pf_cls = opt.get("pf_cls", 1)
    lsw = opt.get("lsw", [16, 24])
    def loader(u):
        if opt.get("selfload", 1): return 1 if u < 24 else 0
        return 1 if u < lsw[0] else (0 if u < lsw[1] else 1)
    def prefetch():
        a(f"""
        s_lshr_b32 s{sT+1}, s2, 3
        s_add_u32 s{sT+1}, s{sT+1}, {24-6}
        s_cmp_ge_u32 s{sT+1}, 24
        s_cselect_b32 s{sT+2}, 24, 0
        s_sub_u32 s{sT+1}, s{sT+1}, s{sT+2}
        s_lshl_b32 s{sT+2}, s{sT+1}, 2
        s_add_u32 s{sT+2}, s{sT+2}, s{sL}
        s_lshl_b32 s{sT+3}, s{sT+2}, 12
        v_mbcnt_lo_u32_b32 v{vV}, -1, 0
        v_lshlrev_b32 v{vV}, 7, v{vV}
        s_mov_b32 exec_hi, 0
        buffer_load_dword v{vV+1}, v{vV}, {sr(sW2,4)}, s{sT+3} offen
        s_mov_b64 exec, -1
        """)
        st.seq.append("PF")
    pB = opt.get("pB", [3, 3, 3, 3, 0, 0, 0, 0])
    pA = opt.get("pA", [2, 2, 2, 1, 1, 1, 1, 1, 1])
    if len(pB) == 8: pB = [0] + pB
    pieces = [{}, {}]
    for cls, base, pl in ((0, 15, pA), (1, 23, pB)):
        k = 0
        for i_, c_ in enumerate(pl):
            pieces[cls][base + i_] = list(range(k, k + c_)); k += c_
        assert k == 12
    LB = a.label("K1_GB"); Lfin = a.label("K1_GFIN")
    a(f"s_cmp_ge_u32 s3, 4\ns_cbranch_scc1 {LB}")
    stu = opt.get("stu", [0, 9, 15, 24])
    for cls in range(2):
        if cls == 1: a(f"{LB}:")
        nst[0] = 1 if stamps else 0
        st.seq = list(seqB0) if cls == 1 else []
        if pf_at == -1 and cls == pf_cls: prefetch()
        if cls == 0:
            Lne = a.label("K1_NOEARLY")
            a(f"s_cmp_lg_u32 s3, 0\ns_cbranch_scc1 {Lne}")
            srd(a, sT1, 22, None, 0, 256)
            a(f"""
            v_mov_b32 v{vT}, 0
            v_mov_b32 v{vT+1}, {1<<18}
            s_waitcnt vmcnt(0)
            s_mov_b64 exec, 1
            buffer_atomic_add v{vT+1}, v{vT}, {sr(sT1,4)}, 0 offen
            s_mov_b64 exec, -1
{Lne}:
            """)
        def wait_tags(tags):
            idx = [i for i, t in enumerate(st.seq) if t in tags]
            if idx: a(f"s_waitcnt vmcnt({min(63, len(st.seq) - 1 - max(idx))})")
        for u in range(32):
            tags = [("U", u)]
            if u == 15: tags.append(("V", 0))
            if u == 23: tags.append(("V", 1))
            if u == 29: tags += [("U", 30), ("U", 31)]
            if u <= 29:
                wait_tags(tags)
                a("s_barrier")
            if u in stu: stamp()
            if u == 8:
                for n in range(4):
                    a(f"s_min_u32 s{sK1+n}, s{sK2+2*n}, s{sK2+2*n+1}")
            lds = False
            if owner(u) == cls: tr_read(u); lds = True
            if cls == 0 and u in (0, 9):
                af_read(range(0, 2)); a("s_waitcnt lgkmcnt(4)")
                af_read(range(2, 5)); a("s_waitcnt lgkmcnt(4)")
                af_read(range(5, 8))
                if u == 9: a("s_waitcnt lgkmcnt(9)")
            early = {8: 7, 16: 15, 24: 23}
            dm = [0, 1, 2, 3] if (loader(u) == cls and u + 3 < 32) else []
            if u >= 1 and owner(u - 1) == cls and early.get(u) != u - 1:
                mfmas(u - 1, u + 3 if dm else None); dm = []
            if u in (7, 15, 23) and owner(u) == cls:
                if u != 7: v_read(0); v_read(1)
                a(f"s_waitcnt lgkmcnt({0 if u == 7 else 6})")
                mfmas(u)
            if cls == 0 and u == 8: silu()
            if u in (15, 23) and owner(u) == cls: a("s_nop 4")
            pcs = list(pieces[cls].get(u, []))
            if pcs:
                if lds: a("s_waitcnt lgkmcnt(0)")
                for pc in pcs:
                    for _ in range(4 // (len(pcs) + 1)):
                        if dm: dma_unit(u + 3, (dm.pop(0),))
                    if pc + 2 < 12: v_read(pc + 2)
                    a(f"s_waitcnt lgkmcnt({min(6, 3 * (11 - pc))})")
                    t4_piece(pc)
            if dm: dma_unit(u + 3, dm)
            if cls == pf_cls and u == pf_at: prefetch()
            if cls == 1 and u == v0_at:
                for n in range(9): dma_v(0, n)
            if cls == 1 and u == v1_at:
                for n in range(9): dma_v(1, n)
            if cls == 1 and 10 <= u < 14: af_read(range(2 * (u - 10), 2 * (u - 10) + 2)); lds = True
            if cls == 0 and u == 28: t1_epi()
            if lds: a("s_waitcnt lgkmcnt(0)")
        if cls == 1:
            mfmas(31); t1_epi()
        stamp()
        if cls == 0: a(f"s_branch {Lfin}")
    a(f"{Lfin}:")
    dump_stamps(nst[0])
    a(f"{Lp2}:")
    phase2(a0, opt, Lend)
    a0.lines += side.lines
    return nvmax, 102
```

```python
from asmlib import *
from layout import *

CHUNK = 2048
SCAP = CHUNK // 4 + 2 * CAPN + 8 + 12
L_LUT = 0
L_STREAM = (NRS + 512) * 32
STREAM_BYTES = SCAP * 64
L_CNT = L_STREAM + STREAM_BYTES
L_HIST = L_CNT + 1280
L_ALLOC = L_HIST + 256
L_SORT = L_ALLOC + 64
L_NADDR = L_SORT + 1280 + 256
L_PARK = 81920
assert L_NADDR + 1280 <= L_PARK
K2_LDS = L_PARK + NKEY * 512
assert K2_LDS <= 163840
DIRS = [0, 1, 0, 1, 1] * 2

def dpp_scan(a, op, v):
    for m in ["row_shr:1", "row_shr:2", "row_shr:4", "row_shr:8"]:
        a("s_nop 1")
        a(f"{op}_dpp v{v}, v{v}, v{v} {m} row_mask:0xf bank_mask:0xf bound_ctrl:0")
    a("s_nop 1")
    a(f"{op}_dpp v{v}, v{v}, v{v} row_bcast:15 row_mask:0xa bank_mask:0xf")
    a("s_nop 1")
    a(f"{op}_dpp v{v}, v{v}, v{v} row_bcast:31 row_mask:0xc bank_mask:0xf")

def gen_k2(a, opt, Lend):
    stamps = opt.get("stamps", False)
    st_fl = opt.get("st_flags", "nt")
    NRG = opt.get("ring", 4); DP = NRG - 1
    V = Regs("v", 1, 256)
    vB = V.alloc("B", 24, 2)
    vC1 = V.alloc("c1"); vC2 = V.alloc("c2"); vML = V.alloc("ml"); vCL = V.alloc("cl")
    vS = V.alloc("vS"); vA = V.alloc("vA"); vPEND = V.alloc("pend"); vG4 = V.alloc("g4"); vCO = V.alloc("co"); vCP = V.alloc("cp")
    vEN = V.alloc("en"); vPA = V.alloc("pa"); vO = V.alloc("O"); vPD = V.alloc("pd")
    vACC = V.alloc("acc", 20, 2)
    vD = V.alloc("D", 24, 2)
    vRH = V.alloc("RH", 8, 2)
    vAOP = V.alloc("A", 4, 2)
    vE = V.alloc("E", 8, 2)
    vX = V.alloc("X", 16, 2)
    vT = V.alloc("T", 4, 2)
    vPK = V.alloc("PK", 2, 2)
    vLI = V.alloc("LI")
    vAD = V.alloc("ad", 4)
    vRING = V.alloc("ring", 24 * NRG, 2)
    P = Regs("v", vRING, 256)
    pT = P.alloc("t", 12, 2)
    pREC = P.alloc("rec", 16, 2)
    pRANK = P.alloc("rank", 4)
    pDL = P.alloc("dl", 4)
    pEK = P.alloc("ek", 10)
    pRS = P.alloc("rs", 4)
    pEND = P.alloc("end")
    pRARE = P.alloc("rare", 32, 2)
    nv = max(V.hi, P.hi)
    def ACC(hf): b = vACC + 10 * hf; return b, b + 2, b + 4, b + 6, b + 8

    sTB, sSV, sOUT, sLIST, sMISC, sDBG = 28, 32, 36, 40, 44, 48
    sM, sRG, sW, sCB, sTOT = 52, 53, 3, 54, 26
    sREM = 55; sPC = 56; sQ = 58; sDIR = 59; sMORE = 60; sPM = 61
    sCNT, sSLOT, sROWB, sMASK, sPS, sSPIN = 62, 63, 64, 65, 66, 67
    sN0 = 8
    sT = 68
    sVAL = 76; sRARE = 84
    STR = [92, 94, 96, 98, 100, 18]
    nst = [0]
    def stamp():
        if stamps:
            a(f"s_memrealtime {sr(STR[nst[0]], 2)}")
            nst[0] += 1
    def srd(d, lo, off_sreg, off_imm, size):
        hi = lo + 1
        if off_sreg is None and off_imm == 0:
            a(f"s_mov_b32 s{d}, s{lo}\ns_mov_b32 s{d+1}, s{hi}")
        else:
            if off_sreg is not None:
                if off_imm:
                    a(f"s_add_u32 s{off_sreg}, s{off_sreg}, {off_imm}")
                a(f"s_add_u32 s{d}, s{lo}, s{off_sreg}")
            else:
                a(f"s_add_u32 s{d}, s{lo}, {off_imm}")
            a(f"s_addc_u32 s{d+1}, s{hi}, 0")
        a(f"s_mov_b32 s{d+2}, {size}\ns_mov_b32 s{d+3}, 0x20000")
    def ring(bslot, st, hf): return vRING + ((bslot * 2 + st) * 2 + hf) * 6
    def issue(bslot, pk0):
        for st in range(2):
            a(f"v_mad_u32_u16 v{vAD+2*st}, v{pk0+st}, s{sROWB}, v{vC1}")
            a(f"v_mad_u32_u16 v{vAD+2*st+1}, v{pk0+st}, s{sROWB}, v{vC2}")
        for st in range(2):
            for hf in range(2):
                a(f"buffer_load_dwordx4 {vr(ring(bslot,st,hf),4)}, v{vAD+2*st}, {sr(sTB,4)}, 0 offen offset:{256*hf}")
            for hf in range(2):
                a(f"buffer_load_dword v{ring(bslot,st,hf)+5}, v{vAD+2*st+1}, {sr(sTB,4)}, 0 offen offset:{512+64*hf}")
    npark = [0]
    def park_dma(n):
        Ls = a.label("K2_NOPARK")
        a(f"s_cmp_eq_u32 s{sPS}, -1\ns_cbranch_scc1 {Ls}")
        for _ in range(n):
            i = npark[0]; npark[0] += 1
            a(f"""
            s_add_u32 m0, s{sPM}, {i*8192}
            s_add_u32 s{sT+7}, s{sPS}, {i*16*64*2048}
            buffer_load_dwordx4 v{vPD}, {sr(sSV,4)}, s{sT+7} offen lds
            """)
        a(f"{Ls}:")
    def slot_setup():
        a(f"""
        v_and_b32 v{vO}, 0xff, v{vEN}
        v_lshl_add_u32 v{vPA}, v{vO}, 9, v{vCP}
        v_lshl_add_u32 v{vO}, v{vO}, 17, v{vCO}
        """)
        for c in range(4):
            a(f"ds_read2_b32 {vr(vE+2*c,2)}, v{vPA} offset0:{32*c} offset1:{32*c+16}")
        a(f"""
        s_add_u32 s{sQ}, s{sQ}, 128
        s_lshr_b32 s{sDIR}, s{sDIR}, 1
        s_bitcmp1_b32 s{sDIR}, 0
        s_cselect_b32 s{sT}, 112, 0
        s_xor_b32 s{sT}, s{sT}, s{sQ}
        v_add_u32 v{vAD}, s{sT}, v{vG4}
        ds_read_b32 v{vEN}, v{vAD}
        s_waitcnt lgkmcnt(1)
        """)
        for hf in range(2):
            HXY, HZS, LXY, LZS, BZ = ACC(hf)
            R = lambda c: vE + 2 * c + hf
            a(f"""
            v_and_b32 v{HXY}, s{sMASK}, v{R(1)}
            v_and_b32 v{HXY+1}, s{sMASK}, v{R(2)}
            v_and_b32 v{HZS}, s{sMASK}, v{R(3)}
            v_and_b32 v{HZS+1}, s{sMASK}, v{R(0)}
            v_lshlrev_b32 v{LXY}, 16, v{R(1)}
            v_lshlrev_b32 v{LXY+1}, 16, v{R(2)}
            v_lshlrev_b32 v{LZS}, 16, v{R(3)}
            v_lshlrev_b32 v{LZS+1}, 16, v{R(0)}
            v_mov_b64 {vr(BZ,2)}, 0
            """)

    Lcommon = a.label("K2_COMMON"); Lnp = a.label("K2_NOPOLL"); Lpl = a.label("K2_POLL"); Lpo = a.label("K2_POLLOK")
    stamp()
    t16, l16 = pT + 5, pT + 6
    a(f"""
    s_bfe_u32 s{sM}, s2, 0x20001
    s_lshr_b32 s{sRG}, s2, 3
    s_lshl_b32 s{sRG}, s{sRG}, 1
    s_and_b32 s{sT}, s2, 1
    s_or_b32 s{sRG}, s{sRG}, s{sT}
    v_mov_b32 v{pT+7}, {L_PASS}
    """)
    srd(sDBG, 22, None, 0, 256)
    srd(sMISC, 24, None, WS_LUT, MISC_BYTES)
    def poll(srd_, soff, ioff, shift, target, sleep):
        L0 = a.label("K2_POLL"); L1 = a.label("K2_POLLOK")
        a(f"""
        v_mov_b32 v{pT+1}, 0
        s_mov_b32 s{sSPIN}, {SPIN_MAX}
        s_mov_b64 exec, 1
{L0}:
        buffer_load_dword v{pT+2}, v{pT+1}, {sr(srd_,4)}, {soff} offen offset:{ioff} sc1
        s_waitcnt vmcnt(0)
        v_readfirstlane_b32 s{sT+1}, v{pT+2}
        s_sub_u32 s{sSPIN}, s{sSPIN}, 1
        s_cbranch_scc1 {L1}
        s_lshr_b32 s{sT+1}, s{sT+1}, {shift}
        s_cmp_eq_u32 s{sT+1}, {target}
        s_cbranch_scc1 {L1}
        s_sleep {sleep}
        s_branch {L0}
{L1}:
        s_mov_b64 exec, -1
        """)
    def publish(val, ioff):
        a(f"v_and_b32 v{pT+1}, 63, v0\nv_lshlrev_b32 v{pT+1}, 7, v{pT+1}")
        for i in range(4):
            a(f"s_mov_b32 s{sT+1}, {M_FLG + 8192*i}")
            a(f"buffer_store_dword v{val(i)}, v{pT+1}, {sr(sMISC,4)}, s{sT+1} offen offset:{ioff} sc1")
    Lnag = a.label("K2_NOAGG")
    a(f"""
    s_cmp_lg_u32 s{sW}, 0
    s_cbranch_scc1 {Lnp}
    s_cmp_lg_u32 s2, {WG_AGG}
    s_cbranch_scc1 {Lnag}
    """)
    poll(sDBG, "0", 0, 18, 256, 2)
    a(f"""
    v_lshrrev_b32 v{pT+1}, 3, v0
    v_and_b32 v{pT+2}, 1, v0
    v_lshl_or_b32 v{pT+1}, v{pT+1}, 1, v{pT+2}
    v_lshlrev_b32 v{pT+1}, 2, v{pT+1}
    """)
    for i in range(4):
        a(f"buffer_load_dword v{pT+8+i}, v{pT+1}, {sr(sDBG,4)}, 0 offen offset:{64*i} sc1")
    a("s_waitcnt vmcnt(0)")
    for i in range(4):
        a(f"v_and_b32 v{pT+8+i}, 0x3ffff, v{pT+8+i}\nv_or_b32 v{pT+8+i}, 0x80000000, v{pT+8+i}")
    publish(lambda i: pT + 8 + i, 0)
    a(f"""
{Lnag}:
    s_lshl_b32 s{sT}, s2, 7
    s_add_u32 s{sT}, s{sT}, {M_FLG}
    """)
    poll(sMISC, f"s{sT}", 0, 31, 1, opt.get("sl1", 8))
    a(f"""
    s_mov_b64 exec, 1
    ds_write_b32 v{pT+7}, v{pT+2}
    s_mov_b64 exec, -1
{Lnp}:
    v_lshlrev_b32 v{t16}, 4, v0
    v_and_b32 v{pT+1}, 63, v0
    v_lshlrev_b32 v{l16}, 4, v{pT+1}
    s_mul_i32 s{sT}, s{sRG}, {LIST_STRIDE}
    s_movk_i32 s{sT+2}, 8192
    s_movk_i32 s{sT+3}, 16384
    s_movk_i32 s{sT+4}, 24576
    """)
    srd(sLIST, 24, sT, WS_LIST, LIST_STRIDE)
    Lna = a.label("K2_NOARR")
    a(f"""
    s_waitcnt vmcnt(0) lgkmcnt(0)
    s_barrier
    ds_read_b32 v{pT+2}, v{pT+7}
    s_cmp_lg_u32 s{sW}, 0
    s_cbranch_scc1 {Lna}
    s_cmp_lt_u32 s2, {WG_GEMM0}
    s_cbranch_scc1 {Lna}
    v_mov_b32 v{pT+1}, 128
    v_mov_b32 v{pEND}, {1<<18}
    s_mov_b64 exec, 1
    buffer_atomic_add v{pEND}, v{pT+1}, {sr(sDBG,4)}, 0 offen
    s_mov_b64 exec, -1
{Lna}:
    s_waitcnt lgkmcnt(0)
    v_readfirstlane_b32 s{sTOT}, v{pT+2}
    s_nop 1
    s_and_b32 s{sTOT}, s{sTOT}, 0x3ffff
    s_min_u32 s{sTOT}, s{sTOT}, {E}
    s_lshl_b32 s{sLIST+2}, s{sTOT}, 4
    buffer_load_dwordx4 {vr(pREC,4)}, v{t16}, {sr(sLIST,4)}, 0 offen sc1
    buffer_load_dwordx4 {vr(pREC+4,4)}, v{t16}, {sr(sLIST,4)}, s{sT+2} offen sc1
    buffer_load_dwordx4 {vr(pREC+8,4)}, v{t16}, {sr(sLIST,4)}, s{sT+3} offen sc1
    buffer_load_dwordx4 {vr(pREC+12,4)}, v{t16}, {sr(sLIST,4)}, s{sT+4} offen sc1
    """)
    srd(sSV, 4, None, 0, 0 if opt.get("nores") else N * 2048)
    a(f"""
    v_lshrrev_b32 v{pT+2}, 5, v0
    v_bfe_u32 v{pT+3}, v0, 3, 2
    v_and_b32 v{vPD}, 7, v0
    v_lshlrev_b32 v{vPD}, 4, v{vPD}
    v_lshl_add_u32 v{vPD}, v{pT+3}, 9, v{vPD}
    v_lshl_add_u32 v{vPD}, v{pT+2}, 17, v{vPD}
    s_lshl_b32 s{sPS}, s{sRG}, 11
    s_lshl_b32 s{sT+5}, s{sM}, 7
    s_add_u32 s{sPS}, s{sPS}, s{sT+5}
    s_lshl_b32 s{sPM}, s{sW}, 10
    s_add_u32 s{sPM}, s{sPM}, {L_PARK}
    s_movk_i32 s{sROWB}, {ROWB}
    s_mov_b32 s{sMASK}, 0xffff0000
    s_mov_b32 s{sCB}, 0
    v_mov_b32 v{vPEND}, 15
    v_and_b32 v{vC1}, 7, v0
    v_bfe_u32 v{vC2}, v0, 3, 1
    v_lshlrev_b32 v{vC1}, 5, v{vC1}
    v_lshl_add_u32 v{vC1}, v{vC2}, 4, v{vC1}
    v_and_b32 v{vC2}, 15, v0
    v_lshlrev_b32 v{vC2}, 2, v{vC2}
    v_add_u32 v{vCO}, s{sPS}, v{vC2}
    v_add_u32 v{vCP}, {L_PARK}, v{vC2}
    v_bfe_u32 v{vG4}, v0, 4, 2
    v_lshlrev_b32 v{vG4}, 2, v{vG4}
    v_bfe_u32 v{pT+1}, v0, 5, 1
    v_and_b32 v{pT+2}, 1, v0
    v_cmp_eq_u32 vcc, v{pT+1}, v{pT+2}
    v_and_b32 v{pT+3}, 16, v0
    v_mov_b32 v{pT+4}, 32
    v_cndmask_b32 v{vML}, 0, v{pT+4}, vcc
    s_mul_i32 s{sT+5}, s{sM}, {TAB_SL}
    v_cndmask_b32 v{vCL}, 0, v{pT+3}, vcc
    """)
    srd(sTB, 24, sT + 5, WS_TAB, 0 if opt.get("notab") else TAB_SL)
    srd(sOUT, 20, None, 0, 0 if opt.get("nost") else N * 2048)
    z = pT + 8
    def lds_init():
        a(f"""
        v_mov_b32 v{z}, 0
        v_mov_b32 v{z+1}, 0
        v_mov_b32 v{z+2}, 0
        v_mov_b32 v{z+3}, 0xffff
        v_lshlrev_b32 v{pT+4}, 4, v0
        v_add_u32 v{pT+4}, {L_STREAM}, v{pT+4}
        """)
        nfull = STREAM_BYTES // 8192
        rem = (STREAM_BYTES - nfull * 8192) // 16
        for i in range(nfull):
            a(f"ds_write_b128 v{pT+4}, {vr(z,4)} offset:{i*8192}")
        a(f"""
        v_cmp_gt_u32 vcc, {rem}, v0
        s_and_saveexec_b64 s[{sT}:{sT+1}], vcc
        ds_write_b128 v{pT+4}, {vr(z,4)} offset:{nfull*8192}
        s_mov_b64 exec, s[{sT}:{sT+1}]
        v_lshlrev_b32 v{pT+4}, 2, v0
        v_add_u32 v{pT+7}, {L_CNT}, v{pT+4}
        v_cmp_gt_u32 vcc, 400, v0
        s_and_saveexec_b64 s[{sT}:{sT+1}], vcc
        ds_write_b32 v{pT+7}, v{z}
        v_cmp_gt_u32 vcc, 8, v0
        s_and_b64 exec, exec, vcc
        ds_write_b32 v{pT+4}, v{z} offset:{L_LUT}
        s_mov_b64 exec, s[{sT}:{sT+1}]
        """)
    lds_init()
    pk = opt.get("pk", [3, 2, 1, 1, 1, 2])
    assert sum(pk) == 10
    park_dma(pk[0])
    vLT = vX
    a(f"""
    s_waitcnt lgkmcnt(0)
    s_barrier
    s_waitcnt vmcnt({pk[0]})
    s_lshl_b32 s{sT+5}, s{sW}, 11
    v_add_u32 v{vLI}, s{sT+5}, v{l16}
    s_add_u32 s{sT+5}, s{sT+5}, {LUT_THR*32}
    s_mul_i32 s{sT+6}, s{sM}, 6144
    s_add_u32 s{sT+6}, s{sT+6}, {M_BOP}
    s_add_u32 s{sT+7}, s{sT+6}, 3072
    buffer_load_dwordx4 {vr(vLT,4)}, v{l16}, {sr(sMISC,4)}, s{sT+5} offen sc1
    buffer_load_dwordx4 {vr(vLT+4,4)}, v{l16}, {sr(sMISC,4)}, s{sT+5} offen offset:1024 sc1
    """)
    for o in range(6):
        a(f"buffer_load_dwordx4 {vr(vB+4*o,4)}, v{l16}, {sr(sMISC,4)}, s{sT+6+o//3} offen offset:{1024*(o%3)} sc1")
    a(f"""
{Lcommon}:
    """)
    one = pT + 4; vAL = pT + 10
    a(f"v_mov_b32 v{one}, 1\nv_mov_b32 v{vAL}, {L_ALLOC}")
    a(f"s_sub_u32 s{sT+2}, s{sTOT}, s{sCB}")
    for k in range(4):
        r0 = pREC + 4 * k
        Lskip = a.label("K2_NORARE")
        a(f"""
        v_add_u32 v{pT+5}, {k*512}, v0
        v_and_b32 v{pT+6}, {1<<k}, v{vPEND}
        v_cmp_gt_u32 vcc, s{sT+2}, v{pT+5}
        v_cmp_ne_u32 s[{sT}:{sT+1}], 0, v{pT+6}
        v_and_b32 v{pDL+k}, 0xffff, v{r0}
        v_lshlrev_b32 v{pDL+k}, 2, v{pDL+k}
        v_add_u32 v{pDL+k}, {L_CNT}, v{pDL+k}
        v_mov_b32 v{pRANK+k}, 0x7fff
        s_and_b64 {sr(sVAL+2*k,2)}, vcc, s[{sT}:{sT+1}]
        v_cmp_gt_i32 vcc, 0, v{r0+3}
        s_mov_b64 s[{sT}:{sT+1}], {sr(sVAL+2*k,2)}
        s_and_b64 {sr(sRARE+2*k,2)}, vcc, {sr(sVAL+2*k,2)}
        s_cbranch_scc0 {Lskip}
        s_mov_b64 exec, {sr(sRARE+2*k,2)}
        ds_add_rtn_u32 v{pRS+k}, v{vAL}, v{one} offset:8
        v_bfe_u32 v{pT+7}, v{r0+3}, 16, 15
        v_lshlrev_b32 v{pT+7}, 5, v{pT+7}
        buffer_load_dwordx4 {vr(pRARE+8*k,4)}, v{pT+7}, {sr(sMISC,4)}, 0 offen sc1
        buffer_load_dwordx4 {vr(pRARE+8*k+4,4)}, v{pT+7}, {sr(sMISC,4)}, 0 offen offset:16 sc1
        v_and_b32 v{r0+3}, 0xffff, v{r0+3}
        s_waitcnt lgkmcnt(0)
        v_add_u32 v{pRS+k}, 1, v{pRS+k}
        v_cmp_le_u32 vcc, {NRS}, v{pRS+k}
        v_lshl_or_b32 v{r0+3}, v{pRS+k}, 16, v{r0+3}
        v_lshlrev_b32 v{pRS+k}, 5, v{pRS+k}
        s_andn2_b64 s[{sT}:{sT+1}], s[{sT}:{sT+1}], vcc
        s_andn2_b64 {sr(sRARE+2*k,2)}, {sr(sRARE+2*k,2)}, vcc
{Lskip}:
        s_mov_b64 exec, s[{sT}:{sT+1}]
        ds_add_rtn_u32 v{pRANK+k}, v{pDL+k}, v{one}
        s_mov_b64 exec, -1
        """)
    park_dma(pk[1])
    a("s_waitcnt lgkmcnt(0)\ns_barrier")
    L7 = a.label("K2_P7"); L8 = a.label("K2_P8")
    deg, rk, hh, bn = pT + 5, pT + 6, pT + 7, pT + 11
    a(f"""
    s_cmp_ge_u32 s{sW}, 5
    s_cbranch_scc1 {L7}
    v_lshlrev_b32 v{pT+8}, 2, v0
    v_add_u32 v{pT+8}, {L_CNT}, v{pT+8}
    ds_read_b32 v{deg}, v{pT+8}
    v_cmp_le_u32 vcc, {NKEY}, v0
    v_mov_b32 v{bn}, 31
    v_mov_b32 v{pT+9}, 63
    v_cndmask_b32 v{bn}, v{bn}, v{pT+9}, vcc
    s_waitcnt lgkmcnt(0)
    v_min_u32 v{deg}, {CAPN}, v{deg}
    v_sub_u32 v{bn}, v{bn}, v{deg}
    v_lshlrev_b32 v{bn}, 2, v{bn}
    v_add_u32 v{pT+8}, {L_HIST}, v{bn}
    ds_add_rtn_u32 v{rk}, v{pT+8}, v{one}
    s_waitcnt lgkmcnt(0)
{L7}:
    """)
    park_dma(pk[2])
    a(f"""
    s_barrier
    s_cmp_ge_u32 s{sW}, 5
    s_cbranch_scc1 {L8}
    v_and_b32 v{pT+8}, 63, v0
    v_lshlrev_b32 v{pT+8}, 2, v{pT+8}
    v_add_u32 v{pT+8}, {L_HIST}, v{pT+8}
    ds_read_b32 v{hh}, v{pT+8}
    v_subrev_u32 v{pT+8}, {NKEY}, v0
    v_min_u32 v{pT+8}, v{pT+8}, v0
    v_lshl_or_b32 v{deg}, v{deg}, 16, v{pT+8}
    s_waitcnt lgkmcnt(0)
    v_mov_b32 v{pT+9}, v{hh}
    """)
    dpp_scan(a, "v_add_u32", hh)
    a(f"""
    v_sub_u32 v{hh}, v{hh}, v{pT+9}
    ds_bpermute_b32 v{pT+9}, v{bn}, v{hh}
    s_waitcnt lgkmcnt(0)
    v_add_lshl_u32 v{pT+9}, v{pT+9}, v{rk}, 2
    v_add_u32 v{pT+9}, {L_SORT}, v{pT+9}
    ds_write_b32 v{pT+9}, v{deg}
    s_waitcnt lgkmcnt(0)
{L8}:
    """)
    park_dma(pk[3])
    assert L_SORT % 128 == 0 or True
    ek = pEK
    a(f"""
    s_barrier
    s_lshl_b32 s{sQ}, s{sW}, 4
    s_xor_b32 s{sT+1}, s{sQ}, 112
    v_add_u32 v{vG4}, {L_SORT}, v{vG4}
    v_add_u32 v{pT+6}, s{sQ}, v{vG4}
    v_add_u32 v{pT+7}, s{sT+1}, v{vG4}
    """)
    for k in range(10):
        a(f"ds_read_b32 v{ek+k}, v{pT+6+DIRS[k]} offset:{128*k}")
    a("s_waitcnt lgkmcnt(0)")
    for k in range(10):
        a(f"v_readfirstlane_b32 s{sN0+k}, v{ek+k}")
    a(f"v_mov_b32 v{vEN}, v{ek}\ns_mov_b32 s{sDIR}, {sum(d << k for k, d in enumerate(DIRS))}")
    a(f"s_mov_b64 {sr(sPC,2)}, 0\ns_mov_b32 s{sREM}, 0")
    for k in range(10):
        a(f"s_lshr_b32 s{sT}, s{sN0+k}, 16")
        a(f"s_mov_b32 s{sN0+k}, s{sREM}\ns_add_u32 s{sREM}, s{sREM}, s{sT}")
        a(f"s_lshl_b32 s{sT}, s{sT}, {5*(k%5)}\ns_or_b32 s{sPC+k//5}, s{sPC+k//5}, s{sT}")
    a(f"""
    s_add_u32 s{sREM}, s{sREM}, 1
    s_lshr_b32 s{sREM}, s{sREM}, 1
    v_mov_b32 v{pT+8}, s{sREM}
    s_mov_b64 exec, 1
    ds_add_rtn_u32 v{pT+9}, v{vAL}, v{pT+8}
    s_mov_b64 exec, -1
    """)
    for k in range(10):
        a(f"v_and_b32 v{ek+k}, 0xff, v{ek+k}")
        a(f"v_lshlrev_b32 v{ek+k}, 2, v{ek+k}")
        a(f"v_add_u32 v{ek+k}, {L_NADDR + (NKEY*4 if k >= 5 else 0)}, v{ek+k}")
    a(f"""
    v_bfe_u32 v{pT+5}, v0, 4, 2
    v_bfe_u32 v{pT+6}, v0, 1, 1
    v_bfe_u32 v{pT+7}, v0, 2, 2
    v_lshlrev_b32 v{pT+6}, 6, v{pT+6}
    v_lshl_add_u32 v{pT+6}, v{pT+7}, 4, v{pT+6}
    s_waitcnt lgkmcnt(0)
    v_readfirstlane_b32 s{sT}, v{pT+9}
    s_nop 1
    s_lshl_b32 s{sT}, s{sT}, 7
    s_add_u32 s{sT}, s{sT}, {L_STREAM}
    v_lshl_add_u32 v{vS}, v{pT+5}, 4, s{sT}
    v_add_u32 v{vA}, s{sT}, v{pT+6}
    """)
    for k in range(10):
        a(f"v_lshl_add_u32 v{pT+7+(k&1)}, s{sN0+k}, 6, v{vS}")
        a(f"ds_write_b32 v{ek+k}, v{pT+7+(k&1)}")
    park_dma(pk[4])
    a("s_waitcnt lgkmcnt(0)\ns_barrier")
    for k in range(4):
        a(f"ds_read_b32 v{pT+5+k}, v{pDL+k} offset:{L_NADDR - L_CNT}")
    a(f"v_mov_b32 v{vPEND}, 0")
    a("s_waitcnt lgkmcnt(0)")
    for k in range(4):
        r0 = pREC + 4 * k
        a(f"""
        v_cmp_gt_u32 vcc, {CAPN}, v{pRANK+k}
        v_lshl_add_u32 v{pT+5+k}, v{pRANK+k}, 6, v{pT+5+k}
        v_and_b32 v{r0}, s{sMASK}, v{r0}
        s_and_b64 exec, vcc, {sr(sVAL+2*k,2)}
        ds_write_b128 v{pT+5+k}, {vr(r0,4)}
        s_andn2_b64 exec, {sr(sVAL+2*k,2)}, vcc
        v_or_b32 v{vPEND}, {1<<k}, v{vPEND}
        ds_write_b32 v{vAL}, v{one} offset:4
        s_mov_b64 exec, -1
        """)
    for k in range(4):
        Lskip = a.label("K2_NORARE2")
        a(f"""
        s_cmp_eq_u64 {sr(sRARE+2*k,2)}, 0
        s_cbranch_scc1 {Lskip}
        s_waitcnt vmcnt(0)
        s_mov_b64 exec, {sr(sRARE+2*k,2)}
        ds_write_b128 v{pRS+k}, {vr(pRARE+8*k,4)} offset:{L_LUT}
        ds_write_b128 v{pRS+k}, {vr(pRARE+8*k+4,4)} offset:{L_LUT+16}
        s_mov_b64 exec, -1
        s_waitcnt lgkmcnt(0)
{Lskip}:
        """)
    Lnf = a.label("K2_NOTFIRST"); Lnt = a.label("K2_NOTP"); Ltp = a.label("K2_TPOLL"); Lto = a.label("K2_TOK")
    a(f"""
    s_cmp_eq_u32 s{sPS}, -1
    s_cbranch_scc1 {Lnf}
    s_waitcnt vmcnt({6 + sum(pk[1:5])})
    ds_write_b128 v{vLI}, {vr(vLT,4)} offset:{L_LUT + NRS*32}
    ds_write_b128 v{vLI}, {vr(vLT+4,4)} offset:{L_LUT + NRS*32 + 1024}
    s_cmp_lg_u32 s{sW}, 7
    s_cbranch_scc1 {Lnt}
    """)
    stamp()
    Lnag2 = a.label("K2_NOAGG2")
    a(f"s_cmp_lg_u32 s2, {WG_AGG}\ns_cbranch_scc1 {Lnag2}")
    poll(sDBG, "0", 128, 18, NGEMM, 1)
    publish(lambda i: one, 4)
    a(f"""
{Lnag2}:
    s_lshl_b32 s{sT}, s2, 7
    s_add_u32 s{sT}, s{sT}, {M_FLG}
    """)
    poll(sMISC, f"s{sT}", 4, 0, 1, opt.get("sl2", 2))
    a(f"""
    {"buffer_inv sc1" if opt.get("inv", 1) else ""}
    s_waitcnt vmcnt(0)
{Lnt}:
{Lnf}:
    """)
    park_dma(pk[5])
    a("s_waitcnt lgkmcnt(0)\ns_barrier")
    stamp()
    a(f"ds_read_b32 v{vT}, v{vAL} offset:4")
    for b in range(DP):
        a(f"ds_read2_b32 {vr(vD+2*b,2)}, v{vS} offset0:{32*b+3} offset1:{32*b+19}")
    a(f"ds_read_u16 v{vLI}, v{vA} offset:14")
    a("s_waitcnt lgkmcnt(0)")
    a(f"v_readfirstlane_b32 s{sMORE}, v{vT}")
    for b in range(DP):
        issue(b, vD + 2 * b)
    a(f"""
    s_add_u32 s{sT}, s{sCB}, {CHUNK}
    s_cmp_lt_u32 s{sT}, s{sTOT}
    s_cselect_b32 s{sT}, 2, 0
    s_or_b32 s{sMORE}, s{sMORE}, s{sT}
    s_mov_b32 s{sSLOT}, 10
    v_mad_u32_u16 v{vAD}, v{vLI}, v{vML}, v{vCL}
    s_waitcnt vmcnt({8*DP})
    s_barrier
    ds_read_b128 {vr(vAOP,4)}, v{vAD} offset:{L_LUT}
    ds_read2_b32 {vr(vPK,2)}, v{vS} offset0:{32*DP+3} offset1:{32*DP+19}
    ds_read_u16 v{vLI}, v{vA} offset:{128+14}
    ds_read_b128 {vr(vRH,4)}, v{vS}
    ds_read_b128 {vr(vRH+4,4)}, v{vS} offset:64
    """)
    if stamps:
        stamp(); a("s_waitcnt lgkmcnt(0)")
    sRET = 6
    Lph = [a.label(f"K2_PH{p}") for p in range(NRG)]
    Lsk = [a.label(f"K2_SK{p}") for p in range(NRG)]
    Lbk = [a.label(f"K2_BK{p}") for p in range(NRG)]
    Ltr = [[a.label(f"K2_TR{p}{st}") for st in range(2)] for p in range(NRG)]
    Lrt = [[a.label(f"K2_RT{p}{st}") for st in range(2)] for p in range(NRG)]
    Ldone = a.label("K2_DONE"); Lepi = a.label("K2_EPI"); Lset = a.label("K2_SET")
    Lret = a.label("K2_RET")
    a(f"s_call_b64 {sr(sRET,2)}, {Lset}\ns_cbranch_scc1 {Ldone}")
    for p in range(NRG):
        a(f"{Lph[p]}:")
        a(f"s_waitcnt vmcnt({8*(DP-1)}) lgkmcnt(2)")
        sh = []
        for st in range(2):
            for hf in range(2):
                rg = ring(p, st, hf); e = vX + 4 * (2 * st + hf)
                sh += [f"v_lshlrev_b64 {vr(e,2)}, 16, {vr(rg,2)}", f"v_lshlrev_b64 {vr(e+2,2)}, 16, {vr(rg+2,2)}", f"v_lshlrev_b32 v{rg+4}, 16, v{rg+5}"]
        for o in range(6):
            if not opt.get("nomfma"):
                a(f"v_mfma_f32_16x16x32_bf16 {vr(vD+4*o,4)}, {vr(vAOP,4)}, {vr(vB+4*o,4)}, 0")
            if not opt.get("novalu"):
                a(sh[2 * o]); a(sh[2 * o + 1])
        a(f"s_sub_u32 s{sREM}, s{sREM}, 1\ns_cmp_lt_u32 s{sREM}, {DP}\ns_cbranch_scc1 {Lsk[p]}")
        issue((p + DP) % NRG, vPK)
        a(f"{Lbk[p]}:")
        assert (p + DP + 1) * 32 + 19 < 256
        a(f"""
        v_mad_u32_u16 v{vT}, v{vLI}, v{vML}, v{vCL}
        ds_read_b128 {vr(vAOP,4)}, v{vT} offset:{L_LUT}
        ds_read2_b32 {vr(vPK,2)}, v{vS} offset0:{(p+DP+1)*32+3} offset1:{(p+DP+1)*32+19}
        ds_read_u16 v{vLI}, v{vA} offset:{(p+2)*128+14}
        s_waitcnt lgkmcnt(3)
        """)
        for st in range(2):
            L = []
            for hf in range(2):
                HXY, HZS, LXY, LZS, BZ = ACC(hf)
                rg = ring(p, st, hf); rh = vRH + 4 * st; e = vX + 4 * (2 * st + hf); t = vT + 2 * hf
                d1, d2, d3 = vD + 12 * hf + 2 * st, vD + 12 * hf + 4 + 2 * st, vD + 12 * hf + 8 + 2 * st
                L.append(f"""v_pk_fma_f32 {vr(HXY,2)}, {vr(d1,2)}, {vr(rg,2)}, {vr(HXY,2)} op_sel_hi:[0,1,1]
                v_pk_mul_f32 {vr(t,2)}, {vr(d3,2)}, {vr(rg+4,2)}
                v_pk_fma_f32 {vr(HZS,2)}, {vr(d1,2)}, {vr(rg+2,2)}, {vr(HZS,2)}
                v_pk_fma_f32 {vr(LXY,2)}, {vr(d2,2)}, {vr(e,2)}, {vr(LXY,2)} op_sel_hi:[0,1,1]
                v_pk_fma_f32 {vr(LZS,2)}, {vr(d2,2)}, {vr(e+2,2)}, {vr(LZS,2)}
                v_pk_fma_f32 {vr(BZ,2)}, {vr(t,2)}, {vr(rh+2,2)}, {vr(BZ,2)} op_sel_hi:[1,0,1]
                v_pk_fma_f32 {vr(HXY,2)}, {vr(t,2)}, {vr(rh,2)}, {vr(HXY,2)} op_sel:[1,0,0]
                v_pk_fma_f32 {vr(LXY,2)}, {vr(t,2)}, {vr(rh,2)}, {vr(LXY,2)} op_sel_hi:[0,1,1]""".split("\n"))
            if not opt.get("novalu"):
                for l0, l1 in zip(*L):
                    a(l0); a(l1)
            a(f"ds_read_b128 {vr(vRH+4*st,4)}, v{vS} offset:{(p+1)*128+64*st}")
            if st == 1 and p == NRG - 1:
                a(f"v_add_u32 v{vS}, {128*NRG}, v{vS}\nv_add_u32 v{vA}, {128*NRG}, v{vA}")
            a(f"s_sub_u32 s{sCNT}, s{sCNT}, 1")
            if st == 1 and p == NRG - 1:
                a(f"s_cbranch_scc0 {Lph[0]}\ns_call_b64 {sr(sRET,2)}, {Lepi}\ns_cbranch_scc0 {Lph[0]}\ns_branch {Ldone}")
            else:
                a(f"s_cbranch_scc1 {Ltr[p][st]}\n{Lrt[p][st]}:")
    for p in range(NRG):
        for st in range(2):
            if st == 1 and p == NRG - 1: continue
            a(f"{Ltr[p][st]}:\ns_call_b64 {sr(sRET,2)}, {Lepi}\ns_cbranch_scc0 {Lrt[p][st]}\ns_branch {Ldone}")
    for p in range(NRG):
        a(f"{Lsk[p]}:\ns_waitcnt vmcnt(0)\ns_branch {Lbk[p]}")
    a(f"{Lepi}:")
    Lpw = a.label("K2_PW"); Lnx = a.label("K2_NX"); Lnb = a.label("K2_NB")
    for hf in range(2):
        HXY, HZS, LXY, LZS, BZ = ACC(hf)
        R = lambda c: vE + 2 * c + hf
        a(f"""
        v_add_f32 v{LZS}, v{LZS}, v{BZ}
        v_add_f32 v{HZS}, v{HZS}, v{BZ+1}
        v_cvt_pk_bf16_f32 v{R(0)}, v{LZS+1}, v{HZS+1}
        v_cvt_pk_bf16_f32 v{R(1)}, v{LXY}, v{HXY}
        v_cvt_pk_bf16_f32 v{R(2)}, v{LXY+1}, v{HXY+1}
        v_cvt_pk_bf16_f32 v{R(3)}, v{LZS}, v{HZS}
        """)
    a(f"""
    s_cmp_gt_u32 s{sSLOT}, 5
    s_cbranch_scc1 {Lpw}
    s_cmp_lg_u32 s{sMORE}, 0
    s_cbranch_scc1 {Lpw}
    """)
    for c in range(4):
        for hf in range(2):
            a(f"buffer_store_dword v{vE+2*c+hf}, v{vO}, {sr(sOUT,4)}, 0 offen offset:{512*c+64*hf} {st_fl}")
    a(f"s_branch {Lnx}\n{Lpw}:")
    for c in range(4):
        a(f"ds_write2_b32 v{vPA}, v{vE+2*c}, v{vE+2*c+1} offset0:{32*c} offset1:{32*c+16}")
    a(f"""
{Lnx}:
    s_sub_u32 s{sSLOT}, s{sSLOT}, 1
    s_cmp_eq_u32 s{sSLOT}, 0
    s_cbranch_scc1 {Lret}
    s_lshr_b32 s{sPC}, s{sPC}, 5
    s_waitcnt lgkmcnt(0)
    s_cmp_lg_u32 s{sSLOT}, 5
    s_cbranch_scc1 {Lset}
    s_mov_b32 s{sPC}, s{sPC+1}
    s_barrier
{Lset}:
    """)
    slot_setup()
    a(f"""
    s_and_b32 s{sCNT}, s{sPC}, 31
    s_cbranch_scc0 {Lepi}
    s_sub_u32 s{sCNT}, s{sCNT}, 1
{Lret}:
    s_setpc_b64 {sr(sRET,2)}
    """)
    Lfin = a.label("K2_FIN"); Lnext = a.label("K2_NEXT")
    a(f"""
{Ldone}:
    s_cmp_eq_u32 s{sMORE}, 0
    s_cbranch_scc1 {Lfin}
    s_bitcmp1_b32 s{sMORE}, 0
    s_cbranch_scc1 {Lnext}
    s_add_u32 s{sCB}, s{sCB}, {CHUNK}
    v_mov_b32 v{vPEND}, 15
{Lnext}:
    s_mov_b32 s{sPS}, -1
    s_waitcnt vmcnt(0) lgkmcnt(0)
    s_barrier
    v_subrev_u32 v{vG4}, {L_SORT}, v{vG4}
    v_add_u32 v{t16}, s{sCB}, v0
    v_lshlrev_b32 v{t16}, 4, v{t16}
    s_movk_i32 s{sT+2}, 8192
    s_movk_i32 s{sT+3}, 16384
    s_movk_i32 s{sT+4}, 24576
    buffer_load_dwordx4 {vr(pREC,4)}, v{t16}, {sr(sLIST,4)}, 0 offen sc1
    buffer_load_dwordx4 {vr(pREC+4,4)}, v{t16}, {sr(sLIST,4)}, s{sT+2} offen sc1
    buffer_load_dwordx4 {vr(pREC+8,4)}, v{t16}, {sr(sLIST,4)}, s{sT+3} offen sc1
    buffer_load_dwordx4 {vr(pREC+12,4)}, v{t16}, {sr(sLIST,4)}, s{sT+4} offen sc1
    """)
    lds_init()
    a(f"""
    s_waitcnt vmcnt(0) lgkmcnt(0)
    s_barrier
    s_branch {Lcommon}
{Lfin}:
    """)
    if stamps:
        stamp()
        a("s_waitcnt vmcnt(0)")
        stamp()
        a(f"""
        s_waitcnt lgkmcnt(0)
        s_add_u32 s{sLIST}, s24, {WS_DIAG + (1<<20)}
        s_addc_u32 s{sLIST+1}, s25, 0
        s_mov_b32 s{sLIST+2}, 0x100000
        s_lshl_b32 s{sT}, s2, 3
        s_add_u32 s{sT}, s{sT}, s{sW}
        s_lshl_b32 s{sT}, s{sT}, 7
        v_mov_b32 v1, s{sT}
        s_mov_b64 exec, 1
        """)
        for i in range(nst[0]):
            a(f"v_mov_b32 v2, s{STR[i]}\nv_mov_b32 v3, s{STR[i]+1}")
            a(f"buffer_store_dwordx2 v[2:3], v1, {sr(sLIST,4)}, 0 offen offset:{8*i}")
    a(f"{Lend}:\ns_endpgm")
    return nv, 102
```

```python
N = 10000
E = 160000
NSL = 4
NR = 64
NKEY = 160
HALF = 5000
NP = 40
EPW = E // NP
ROWB = 640
TAB_SL = N * ROWB
WS_TAB = 0
WS_LUT = WS_TAB + NSL * TAB_SL
LUT_ROWS = 2080
LUT_BYTES = LUT_ROWS * 32
M_LUT = 0
M_END = 67584
M_BOP = M_END + 16384
M_FLG = M_BOP + 24576
MISC_BYTES = M_FLG + 32768
WS_LIST = 26 * 1024 * 1024
LIST_STRIDE = E * 16
WS_DIAG = 200 * 1024 * 1024
assert WS_LIST + NR * LIST_STRIDE <= WS_DIAG
DBASE = 0x3880
DCUT = 0x409D
LUT_THR = 1568
NRS = 512
CAPN = 30
NPROD = NP + 5 + 1
NGEMM = 209
WG_GEMM0 = 47
L_PASS = 139264
SPIN_MAX = 1 << 17
WG_AGG = 46
```

```python
import sys, json
from asmlib import *
from layout import *
import gen_k1, gen_k2
HDR = open('standalone__molecular_angular_painn__graph.s.ref').read().split("; Override")[0]
NAME = "standalone__molecular_angular_painn__graph_kernel"
def build(opt):
    body = Asm()
    nv, ns = gen_k1.gen_k1(body, NAME, opt, gen_k2.gen_k2)
    lds = max(gen_k1.K1_LDS, gen_k2.K2_LDS)
    k = f"kernel={NAME} " if opt.get("list") else ""
    launches = [f"; @launch {k}grid=(256,1,1) block=(512,1,1) lds={lds}"]
    descs = [kernel_desc(NAME, nv, ns)]
    return HDR + "\n".join(launches) + "\n" + '.amdgcn_target "amdgcn-amd-amdhsa--gfx950"\n.text\n' + body.text() + '.section .rodata,"a"\n' + "".join(descs)
if __name__ == "__main__":
    opt = json.loads(sys.argv[2]) if len(sys.argv) > 2 else {}
    open(sys.argv[1], "w").write(build(opt))
```

```python
from asmlib import *
from layout import *

ROWS = 48
NG = (N + ROWS - 1) // ROWS
WG_EDGE0 = 0
WG_LUT0 = NP
NLUTWG = 5
assert WG_GEMM0 == NP + NLUTWG + 2 and NG == NGEMM
assert WG_GEMM0 + NG == 256
L_RING = 0
L_V = 65536
L_H = L_V + 3 * ROWS * 512
GEMM_LDS = L_H + ROWS * 512
assert L_H == L_PASS
L_POS = 0
L_EH = 65536
L_DLT = L_EH + 512
L_STG = L_EH + 1024
K1_LDS = max(GEMM_LDS, L_STG + 65536)
WG_BOP = WG_LUT0 + NLUTWG
from gen_k2 import dpp_scan

def rne_bf16(a, dst, src):
    a(f"v_cvt_pk_bf16_f32 v{dst}, v{src}, v{src}")
    a(f"v_and_b32 v{dst}, 0xffff0000, v{dst}")

def lut_row(a, vd, out, t, sF, sC):
    rcp, fc = t, t + 1
    a(f"v_rcp_f32 v{rcp}, v{vd}")
    a(f"v_mul_f32 v{fc}, s{sC}, v{vd}")
    rne_bf16(a, fc, fc)
    a(f"v_mul_f32 v{fc}, s{sC+1}, v{fc}")
    rne_bf16(a, fc, fc)
    a(f"v_mul_f32 v{fc}, s{sC+2}, v{fc}")
    a(f"v_cos_f32 v{fc}, v{fc}")
    a("s_nop 0")
    rne_bf16(a, fc, fc)
    a(f"v_add_f32 v{fc}, 1.0, v{fc}")
    rne_bf16(a, fc, fc)
    a(f"v_mul_f32 v{fc}, 0.5, v{fc}")
    for k in range(0, 16, 2):
        x, y, p = t + 2, t + 3, t + 4
        a(f"""
        v_mul_f32 v{x}, s{sF+k}, v{vd}
        v_mul_f32 v{y}, s{sF+k+1}, v{vd}
        v_cvt_pk_bf16_f32 v{p}, v{x}, v{y}
        v_lshlrev_b32 v{x}, 16, v{p}
        v_and_b32 v{y}, 0xffff0000, v{p}
        v_mul_f32 v{x}, s{sC+2}, v{x}
        v_mul_f32 v{y}, s{sC+2}, v{y}
        v_rndne_f32 v{t+5}, v{x}
        v_rndne_f32 v{t+6}, v{y}
        v_sub_f32 v{x}, v{x}, v{t+5}
        v_sub_f32 v{y}, v{y}, v{t+6}
        v_sin_f32 v{x}, v{x}
        v_sin_f32 v{y}, v{y}
        s_nop 0
        v_cvt_pk_bf16_f32 v{p}, v{x}, v{y}
        v_lshlrev_b32 v{x}, 16, v{p}
        v_and_b32 v{y}, 0xffff0000, v{p}
        v_mul_f32 v{x}, v{x}, v{rcp}
        v_mul_f32 v{y}, v{y}, v{rcp}
        v_cvt_pk_bf16_f32 v{p}, v{x}, v{y}
        v_lshlrev_b32 v{x}, 16, v{p}
        v_and_b32 v{y}, 0xffff0000, v{p}
        v_mul_f32 v{x}, v{x}, v{fc}
        v_mul_f32 v{y}, v{y}, v{fc}
        v_cvt_pk_bf16_f32 v{out+k//2}, v{x}, v{y}
        """)

def srd(a, d, lo, off_sreg, off_imm, size):
    hi = lo + 1
    if off_sreg is None and off_imm == 0:
        a(f"s_mov_b32 s{d}, s{lo}\ns_mov_b32 s{d+1}, s{hi}")
    else:
        if off_sreg is not None:
            if off_imm:
                a(f"s_add_u32 s{off_sreg}, s{off_sreg}, {off_imm}")
            a(f"s_add_u32 s{d}, s{lo}, s{off_sreg}")
        else:
            a(f"s_add_u32 s{d}, s{lo}, {off_imm}")
        a(f"s_addc_u32 s{d+1}, s{hi}, 0")
    a(f"s_mov_b32 s{d+2}, {size}\ns_mov_b32 s{d+3}, 0x20000")

def gen_k1(a0, name, opt, phase2):
    class Sw:
        cur = a0
        def __call__(self, x): return self.cur(x)
        def label(self, b): return self.cur.label(b)
    a = Sw()
    side = Asm()
    stamps = opt.get("stamps", False)
    tab_fl = opt.get("tab_flags", "sc1")
    sST = 82
    nst = [0]
    def stamp():
        if stamps:
            a(f"s_memrealtime {sr(sST + 2 * nst[0], 2)}")
            nst[0] += 1
            assert nst[0] <= 10
    def dump_stamps(n):
        if not stamps: return
        a(f"""
        s_memrealtime {sr(sST+18,2)}
        s_waitcnt lgkmcnt(0)
        s_add_u32 s40, s24, {WS_DIAG}
        s_addc_u32 s41, s25, 0
        s_mov_b32 s42, 0x100000
        s_mov_b32 s43, 0x20000
        s_lshl_b32 s44, s2, 3
        s_add_u32 s44, s44, s3
        s_lshl_b32 s44, s44, 7
        s_mov_b64 exec, 1
        v_mov_b32 v1, s44
        """)
        for i in list(range(n)) + [9]:
            a(f"v_mov_b32 v2, s{sST+2*i}\nv_mov_b32 v3, s{sST+2*i+1}")
            a(f"buffer_store_dwordx2 v[2:3], v1, s[40:43], 0 offen offset:{8*i}")
        a("s_mov_b64 exec, -1")
    Lp2 = a.label("P2"); Lside = a.label("K1_SIDE"); Larr = a.label("K1_ARRIVE"); Lcend = a.label("CODE_END"); Lpc = a.label("PC")
    kernel_header(a, name)
    Lend = a.label("K1_END"); Lgemm = a.label("K1_GEMM"); Llut = a.label("K1_LUT")
    a(f"""
    s_cmp_ge_u32 s2, 256
    s_cbranch_scc1 {Lend}
    s_load_dwordx16 s[4:19], s[0:1], 0
    s_load_dwordx4 s[20:23], s[0:1], 64
    s_load_dwordx2 s[24:25], s[0:1], 80
    """)
    stamp()
    a(f"""
    v_lshrrev_b32 v1, 6, v0
    s_nop 0
    v_readfirstlane_b32 s3, v1
    """)
    if opt.get("cpf", 1):
        Lnc = a.label("K1_NOCPF")
        a(f"""
        s_lshr_b32 s26, s2, 3
        s_cmp_lg_u32 s26, 5
        s_cbranch_scc1 {Lnc}
        s_getpc_b64 s[28:29]
{Lpc}:
        s_mov_b32 s30, {Lcend}-{Lpc}
        s_mov_b32 s31, 0x20000
        v_lshlrev_b32 v1, 7, v0
        buffer_load_dword v255, v1, s[28:31], 0 offen
{Lnc}:
        """)
    Lncl = a.label("K1_NOCLR")
    a(f"""
    s_cmp_lg_u32 s3, 0
    s_cbranch_scc1 {Lncl}
    s_waitcnt lgkmcnt(0)
    """)
    srd(a, 28, 24, None, WS_LUT + M_FLG, 32768)
    a(f"""
    s_lshl_b32 s26, s2, 7
    v_mov_b32 v2, 0
    v_mov_b32 v3, 0
    s_mov_b64 exec, 1
    buffer_store_dwordx2 v[2:3], v2, s[28:31], s26 offen sc1
    s_mov_b64 exec, -1
{Lncl}:
    s_cmp_lt_u32 s2, {WG_GEMM0}
    s_cbranch_scc1 {Lside}
    """)
    a.cur = side
    a(f"""
{Lside}:
    s_cmp_ge_u32 s2, {WG_LUT0}
    s_cbranch_scc1 {Llut}
    """)
    nvmax = 256
    V = Regs("v", 1, 256)
    vSRC = V.alloc("src", 8, 2); vDST = V.alloc("dst", 8, 2)
    vP = V.alloc("p", 48, 2)
    vREC = V.alloc("rec", 32, 2)
    vRK = V.alloc("rk", 8)
    vT = V.alloc("t", 12, 2)
    nvmax = max(nvmax, V.hi)
    sSRC, sDST, sPOS, sDBG, sLIST, sMISC = 28, 32, 36, 40, 44, 48
    sT = 52; sACT = 60
    a("s_waitcnt lgkmcnt(0)")
    srd(a, sSRC, 8, None, 0, E * 4)
    srd(a, sDST, 10, None, 0, E * 4)
    srd(a, sPOS, 6, None, 0, N * 6)
    a(f"""
    s_mul_i32 s{sT}, s2, {EPW*4}
    s_add_u32 s{sT+1}, s{sT}, {EPW*2}
    v_lshlrev_b32 v{vT}, 4, v0
    v_mov_b32 v{vT+1}, 0x7ffffff0
    v_cmp_gt_u32 vcc, {EPW//8}, v0
    s_mov_b64 s[{sT+2}:{sT+3}], vcc
    s_nop 0
    v_cndmask_b32 v{vT+1}, v{vT+1}, v{vT}, vcc
    buffer_load_dwordx4 {vr(vSRC,4)}, v{vT+1}, {sr(sSRC,4)}, s{sT} offen
    buffer_load_dwordx4 {vr(vDST,4)}, v{vT+1}, {sr(sDST,4)}, s{sT} offen
    buffer_load_dwordx4 {vr(vSRC+4,4)}, v{vT+1}, {sr(sSRC,4)}, s{sT+1} offen
    buffer_load_dwordx4 {vr(vDST+4,4)}, v{vT+1}, {sr(sDST,4)}, s{sT+1} offen
    s_lshl_b32 s{sT+4}, s3, 10
    """)
    for i in range(8):
        a(f"""
        s_add_u32 m0, s{sT+4}, {L_POS + i*8192}
        s_mov_b32 s{sT+5}, {i*8192}
        buffer_load_dwordx4 v{vT}, {sr(sPOS,4)}, s{sT+5} offen lds
        """)
    srd(a, sDBG, 22, None, 0, 256)
    srd(a, sLIST, 24, None, WS_LIST, NR * LIST_STRIDE)
    srd(a, sMISC, 24, None, WS_LUT, MISC_BYTES)
    a(f"""
    v_mov_b32 v{vT+2}, 0
    v_lshlrev_b32 v{vT+3}, 2, v0
    v_add_u32 v{vT+3}, {L_EH}, v{vT+3}
    v_cmp_gt_u32 vcc, 64, v0
    s_and_saveexec_b64 s[{sT+6}:{sT+7}], vcc
    ds_write_b32 v{vT+3}, v{vT+2}
    s_mov_b64 exec, -1
    """)
    vAS_, vAD_ = vREC, vREC + 8
    vKEY = V.alloc("key", 8); vHA = V.alloc("ha", 8); vDD = V.alloc("dd", 8, 2); vQ = V.alloc("q", 8, 2)
    for i in range(48):
        a(f"v_mov_b32 v{vP+i}, 0")
    a(f"""
    s_mov_b32 s{sT+4}, 0x322bcc77
    s_mov_b32 s{sT+5}, 0x322bcc77
    s_mov_b32 s{sT+1}, 0xffff0000
    s_mov_b32 s{sT+6}, {(DBASE+LUT_THR)<<16}
    v_mov_b32 v{vT+8}, {((NRS - LUT_THR - DBASE) << 16) & 0xffffffff}
    v_mov_b32 v{vT+9}, {((0x8000 - DBASE) << 16) & 0xffffffff}
    v_mov_b32 v{vT+10}, {NKEY}
    v_mov_b32 v{vT+11}, 1
    s_waitcnt vmcnt(8)
    """)
    for e in range(8):
        a(f"""
        v_cmp_le_u32 vcc, {HALF}, v{vSRC+e}
        v_mul_u32_u24 v{vAS_+e}, 6, v{vSRC+e}
        v_mul_u32_u24 v{vAD_+e}, 6, v{vDST+e}
        v_cndmask_b32 v{vT+4}, 0, v{vT+10}, vcc
        v_lshrrev_b32 v{vKEY+e}, 6, v{vDST+e}
        v_and_b32 v{vDST+e}, {NR-1}, v{vDST+e}
        v_add_u32 v{vKEY+e}, v{vKEY+e}, v{vT+4}
        v_lshlrev_b32 v{vDST+e}, 2, v{vDST+e}
        v_add_u32 v{vHA+e}, {L_EH}, v{vDST+e}
        """)
    a("s_waitcnt vmcnt(0) lgkmcnt(0)\ns_barrier")
    stamp()
    def pos_read(pr):
        for e in range(2):
            for c in range(3):
                a(f"ds_read_u16_d16_hi v{vP+12*pr+2*c+e}, v{vAS_+2*pr+e} offset:{L_POS+2*c}")
                a(f"ds_read_u16_d16_hi v{vP+12*pr+6+2*c+e}, v{vAD_+2*pr+e} offset:{L_POS+2*c}")
    def rnd2(dst, src, t):
        a(f"v_cvt_pk_bf16_f32 v{t}, v{src}, v{src+1}")
        a(f"v_lshlrev_b32 v{dst}, 16, v{t}")
        a(f"v_and_b32 v{dst+1}, s{sT+1}, v{t}")
    pos_read(0)
    for pr in range(4):
        p = vP + 12 * pr; q = p + 6; d = vDD + 2 * pr
        a("s_waitcnt lgkmcnt(0)" if pr == 0 else "s_waitcnt lgkmcnt(2)")
        if pr < 3: pos_read(pr + 1)
        for c in range(3):
            a(f"v_pk_add_f32 {vr(p+2*c,2)}, {vr(p+2*c,2)}, {vr(q+2*c,2)} neg_lo:[0,1] neg_hi:[0,1]")
        for c in range(3): rnd2(p + 2 * c, p + 2 * c, vT + 4 + c)
        for c in range(3):
            a(f"v_pk_mul_f32 {vr(q+2*c,2)}, {vr(p+2*c,2)}, {vr(p+2*c,2)}")
        for c in range(3): rnd2(q + 2 * c, q + 2 * c, vT + 4 + c)
        a(f"v_pk_add_f32 {vr(q,2)}, {vr(q,2)}, {vr(q+2,2)}")
        a(f"v_pk_add_f32 {vr(q,2)}, {vr(q,2)}, {vr(q+4,2)}")
        rnd2(q, q, vT + 4)
        a(f"v_pk_add_f32 {vr(q,2)}, {vr(q,2)}, s[{sT+4}:{sT+5}]")
        rnd2(q, q, vT + 4)
        a(f"v_sqrt_f32 v{q}, v{q}\nv_sqrt_f32 v{q+1}, v{q+1}\ns_nop 0")
        rnd2(d, q, vT + 4)
        for e in range(2):
            ee = 2 * pr + e
            a(f"""
            v_cmp_gt_u32 vcc, {DCUT<<16}, v{d+e}
            s_and_b64 {sr(sACT+2*ee,2)}, vcc, s[{sT+2}:{sT+3}]
            s_mov_b64 exec, {sr(sACT+2*ee,2)}
            ds_add_rtn_u32 v{vRK+ee}, v{vHA+ee}, v{vT+11}
            s_mov_b64 exec, -1
            """)
    a("s_waitcnt lgkmcnt(0)\ns_barrier")
    stamp()
    Lna = a.label("K1_NOATOM"); Lnb = a.label("K1_NOATOM2")
    a(f"""
    s_cmp_lg_u32 s3, 0
    s_cbranch_scc1 {Lna}
    ds_read_b32 v{vQ+4}, v{vT+3}
    v_lshlrev_b32 v{vT+5}, 2, v0
    s_waitcnt lgkmcnt(0)
    v_mov_b32 v{vQ+6}, v{vQ+4}
    v_mov_b32 v{vQ+7}, v{vQ+4}
    buffer_atomic_add v{vQ+6}, v{vT+5}, {sr(sDBG,4)}, 0 offen sc0
    """)
    dpp_scan(a, "v_add_u32", vQ + 7)
    a(f"""
    ds_write_b32 v{vT+3}, v{vQ+7} offset:4
    v_sub_u32 v{vQ+7}, v{vQ+7}, v{vQ+4}
    ds_write_b32 v{vT+3}, v{vQ+7}
{Lna}:
    """)
    for pr in range(4):
        p = vP + 12 * pr; d = vDD + 2 * pr
        r0, r1 = vREC + 8 * pr, vREC + 8 * pr + 4
        a(f"""
        v_rcp_f32 v{vQ}, v{d}
        v_rcp_f32 v{vQ+1}, v{d+1}
        v_cmp_gt_u32 vcc, s{sT+6}, v{d}
        v_cmp_gt_u32 s[{sT+4}:{sT+5}], s{sT+6}, v{d+1}
        v_pk_mul_f32 {vr(p,2)}, {vr(p,2)}, {vr(vQ,2)}
        v_pk_mul_f32 {vr(p+2,2)}, {vr(p+2,2)}, {vr(vQ,2)}
        v_pk_mul_f32 {vr(p+4,2)}, {vr(p+4,2)}, {vr(vQ,2)}
        v_cndmask_b32 v{vQ+2}, v{vT+8}, v{vT+9}, vcc
        v_cndmask_b32 v{vQ+3}, v{vT+8}, v{vT+9}, s[{sT+4}:{sT+5}]
        v_cvt_pk_bf16_f32 v{vT+4}, v{p}, v{p+1}
        v_cvt_pk_bf16_f32 v{vT+5}, v{p+2}, v{p+3}
        v_cvt_pk_bf16_f32 v{vT+6}, v{p+4}, v{p+5}
        v_add3_u32 v{r0+3}, v{d}, v{vQ+2}, v{vSRC+2*pr}
        v_add3_u32 v{r1+3}, v{d+1}, v{vQ+3}, v{vSRC+2*pr+1}
        v_lshl_or_b32 v{r0}, v{vT+4}, 16, v{vKEY+2*pr}
        v_and_or_b32 v{r1}, v{vT+4}, s{sT+1}, v{vKEY+2*pr+1}
        v_lshl_or_b32 v{r0+1}, v{vT+5}, 16, v{vDST+2*pr}
        v_and_or_b32 v{r1+1}, v{vT+5}, s{sT+1}, v{vDST+2*pr+1}
        v_lshlrev_b32 v{r0+2}, 16, v{vT+6}
        v_and_b32 v{r1+2}, s{sT+1}, v{vT+6}
        """)
    a("s_waitcnt lgkmcnt(0)\ns_barrier")
    for e in range(8):
        a(f"ds_read_b32 v{vP+e}, v{vHA+e}")
    a(f"v_mov_b32 v{vT+8}, {L_EH}\nds_read_b32 v{vT+9}, v{vT+8} offset:256")
    a("s_waitcnt lgkmcnt(0)")
    for e in range(8):
        a(f"""
        v_add_lshl_u32 v{vP+e}, v{vP+e}, v{vRK+e}, 4
        v_add_u32 v{vP+e}, {L_STG}, v{vP+e}
        s_mov_b64 exec, {sr(sACT+2*e,2)}
        ds_write_b128 v{vP+e}, {vr(vREC+4*e,4)}
        s_mov_b64 exec, -1
        """)
    a(f"""
    v_readfirstlane_b32 s{sT+4}, v{vT+9}
    s_cmp_lg_u32 s3, 0
    s_cbranch_scc1 {Lnb}
    s_mov_b32 s{sT}, {E}
    s_waitcnt vmcnt(0)
    v_and_b32 v{vQ+6}, 0x3ffff, v{vQ+6}
    v_mad_u32_u24 v{vT+6}, v0, s{sT}, v{vQ+6}
    v_sub_u32 v{vT+6}, v{vT+6}, v{vQ+7}
    v_lshlrev_b32 v{vT+6}, 4, v{vT+6}
    ds_write_b32 v{vT+3}, v{vT+6} offset:{L_DLT - L_EH}
{Lnb}:
    v_lshlrev_b32 v{vT+5}, 4, v0
    v_add_u32 v{vT+2}, {L_STG}, v{vT+5}
    s_waitcnt lgkmcnt(0)
    s_barrier
    """)
    stamp()
    for e in range(8):
        a(f"ds_read_b128 {vr(vREC+4*e,4)}, v{vT+2} offset:{e*8192}")
    for e in range(8):
        a(f"""
        s_waitcnt lgkmcnt(7)
        v_and_b32 v{vP+e}, 0xfc, v{vREC+4*e+1}
        v_add_u32 v{vP+e}, {L_DLT}, v{vP+e}
        ds_read_b32 v{vP+e}, v{vP+e}
        v_and_b32 v{vREC+4*e+1}, s{sT+1}, v{vREC+4*e+1}
        v_add_u32 v{vT+6}, {e*512}, v0
        v_cmp_gt_u32 {sr(sACT+2*e,2)}, s{sT+4}, v{vT+6}
        """)
    for e in range(8):
        Ls = a.label("K1_ES")
        a(f"""
        s_waitcnt lgkmcnt({7-e})
        v_add_u32 v{vP+e}, v{vP+e}, v{vT+5}
        s_mov_b32 s{sT}, {e*8192}
        s_mov_b64 exec, {sr(sACT+2*e,2)}
        s_cbranch_execz {Ls}
        buffer_store_dwordx4 {vr(vREC+4*e,4)}, v{vP+e}, {sr(sLIST,4)}, s{sT} offen sc1
{Ls}:
        s_mov_b64 exec, -1
        """)
    dump_stamps(nst[0])
    a(f"""
{Larr}:
    s_waitcnt vmcnt(0)
    s_barrier
    s_cmp_lg_u32 s3, 0
    s_cbranch_scc1 {Lp2}
    """)
    srd(a, 28, 22, None, 0, 256)
    a(f"""
    v_mov_b32 v1, 0
    v_mov_b32 v2, {1<<18}
    s_mov_b64 exec, 1
    buffer_atomic_add v2, v1, s[28:31], 0 offen
    s_mov_b64 exec, -1
    s_branch {Lp2}
    """)

    Lbop = a.label("K1_BOP")
    a(f"{Lbop}:")
    a(f"s_waitcnt lgkmcnt(0)\ns_cmp_lg_u32 s2, {WG_BOP}\ns_cbranch_scc1 {Larr}")
    srd(a, 28, 18, None, 0, 16 * 768 * 2)
    srd(a, 32, 24, None, WS_LUT + M_BOP, 24576)
    a(f"""
    v_bfe_u32 v1, v0, 4, 1
    v_mul_u32_u24 v1, {8*1536}, v1
    v_and_b32 v2, 15, v0
    v_lshl_add_u32 v1, v2, 2, v1
    s_lshl_b32 s36, s3, 6
    v_add_u32 v1, s36, v1
    v_bfe_u32 v3, v0, 5, 1
    v_xor_b32 v2, 1, v3
    v_lshl_add_u32 v2, v2, 9, v1
    """)
    for m in range(8):
        a(f"s_movk_i32 s37, {m*1536}")
        a(f"buffer_load_dword v{8+m}, v2, s[28:31], s37 offen")
        a(f"buffer_load_dword v{16+m}, v1, s[28:31], s37 offen offset:1024")
    a(f"""
    s_mov_b32 s38, 0x05040100
    s_mov_b32 s39, 0x07060302
    v_mul_u32_u24 v3, 0x020202, v3
    v_lshl_or_b32 v3, v3, 8, v3
    v_add_u32 v3, s38, v3
    v_and_b32 v4, 63, v0
    v_lshlrev_b32 v4, 4, v4
    s_mul_i32 s36, s3, 3072
    s_waitcnt vmcnt(0)
    """)
    for m in range(4):
        a(f"v_perm_b32 v{24+m}, v{8+2*m+1}, v{8+2*m}, s39")
        a(f"v_perm_b32 v{28+m}, v{8+2*m+1}, v{8+2*m}, s38")
        a(f"v_perm_b32 v{32+m}, v{16+2*m+1}, v{16+2*m}, v3")
    a(f"""
    buffer_store_dwordx4 v[24:27], v4, s[32:35], s36 offen sc1
    buffer_store_dwordx4 v[28:31], v4, s[32:35], s36 offen offset:1024 sc1
    buffer_store_dwordx4 v[32:35], v4, s[32:35], s36 offen offset:2048 sc1
    s_branch {Larr}
    """)
    a(f"{Llut}:")
    a(f"""
    s_cmp_ge_u32 s2, {WG_LUT0+NLUTWG}
    s_cbranch_scc1 {Lbop}
    s_waitcnt lgkmcnt(0)
    s_load_dwordx8 s[28:35], s[12:13], 0
    """)
    srd(a, 60, 24, None, WS_LUT, LUT_BYTES)
    a(f"""
    s_sub_u32 s56, s2, {WG_LUT0}
    s_lshl_b32 s56, s56, 9
    v_add_u32 v1, s56, v0
    v_add_u32 v2, {DBASE}, v1
    v_lshlrev_b32 v2, 16, v2
    v_lshlrev_b32 v1, 5, v1
    s_mov_b32 s52, 0x40490fdb
    s_mov_b32 s53, 0x3e4ccccd
    s_mov_b32 s54, 0x3e22f983
    s_waitcnt lgkmcnt(0)
    """)
    for k in range(8):
        a(f"s_lshl_b32 s{36+2*k}, s{28+k}, 16\ns_and_b32 s{37+2*k}, s{28+k}, 0xffff0000")
    lut_row(a, 2, 4, 12, 36, 52)
    a(f"""
    buffer_store_dwordx4 v[4:7], v1, s[60:63], 0 offen sc1
    buffer_store_dwordx4 v[8:11], v1, s[60:63], 0 offen offset:16 sc1
    s_branch {Larr}
{Lcend}:
    """)
    a.cur = a0

    a(f"{Lgemm}:")
    V = Regs("v", 1, 256)
    vD1 = V.alloc("d1"); vD2 = V.alloc("d2"); vD3 = V.alloc("d3"); vDV = V.alloc("dv")
    vAS = V.alloc("as", 2); vTR = V.alloc("tr", 2); vHW = V.alloc("hw", 4)
    vVR = V.alloc("vr"); vO4 = V.alloc("o4"); vSEL = V.alloc("sel"); vRL = V.alloc("rl")
    vT = V.alloc("t", 12, 2)
    vACC = V.alloc("acc", 72, 4)
    vAF = V.alloc("af", 96, 4)
    vBF = V.alloc("bf", 32, 4)
    vV = V.alloc("v", 12)
    vOB = V.alloc("ob", 12, 4)
    nvmax = max(nvmax, V.hi)
    sSV, sW1, sW2, sT4, sT1 = 28, 32, 36, 40, 44
    sT = 48; sHI = 56; sROW = 57; sM = 58; sRB = 59; sRND = 60; sL = 61; sROT = 62; sMV = 63
    sK1 = 64; sK2 = 72; sEV = 80
    q, j = vT + 1, vT + 2
    hi, ch = vT + 3, vT + 4
    a(f"""
    s_sub_u32 s{sROW}, s2, {WG_GEMM0}
    s_mul_i32 s{sROW}, s{sROW}, {ROWS}
    s_lshl_b32 s{sRB}, s{sROW}, 11
    s_and_b32 s{sL}, s3, 3
    s_lshr_b32 s{sROT}, s2, 3
    s_and_b32 s{sROT}, s{sROT}, {7 if opt.get("rot", 1) else 0}
    s_lshl_b32 s{sMV}, s{sL}, 10
    s_and_b32 s{sT}, s{sL}, 1
    s_lshr_b32 s{sT+1}, s{sL}, 1
    s_lshl_b32 s{sT+2}, s{sT+1}, 2
    s_add_u32 s{sT+2}, s{sT+2}, s{sT}
    s_lshl_b32 s{sM}, s{sT+2}, 10
    v_bfe_u32 v{hi}, v0, 5, 1
    v_and_b32 v{ch}, 31, v0
    """)
    a(f"""
    s_lshl_b32 s{sT+3}, s{sL}, 2
    v_lshl_add_u32 v{vT+5}, v{hi}, 1, s{sT+3}
    v_xor_b32 v{vT+5}, v{vT+5}, v{ch}
    v_lshlrev_b32 v{vT+5}, 4, v{vT+5}
    v_lshl_add_u32 v{vD1}, v{hi}, 9, v{vT+5}
    v_add_u32 v{vD1}, s{sM}, v{vD1}
    """)
    a(f"""
    s_lshl_b32 s{sT+4}, s{sL}, 12
    v_lshl_add_u32 v{vT+6}, v{hi}, 11, v{vT+5}
    v_add_u32 v{vT+6}, s{sT+4}, v{vT+6}
    """)
    for n in range(3):
        a(f"s_xor_b32 s{sK1+n}, s{sROT}, {n}\ns_lshl_b32 s{sK1+n}, s{sK1+n}, 14")
    a("s_waitcnt lgkmcnt(0)")
    srd(a, sSV, 4, None, 0, N * 2048)
    srd(a, sW1, 14, None, 0, 256 * 512)
    units = [("w1", n, 0) for n in range(8)] + [("a", n, 0) for n in range(8)] + [("a", n, 1) for n in range(8)] \
          + [("b", n, 0) for n in range(4)] + [("b", n, 1) for n in range(4)]
    owner = lambda u: units[u][2]
    class C: pass
    st = C(); st.seq = []
    def dma_unit(u, which=(0, 1, 2, 3)):
        kind, n, hf = units[u]
        for i in which:
            rr = 4 * (i & 1) + 16 * (i >> 1)
            kr = 2 * (i & 1) + 8 * (i >> 1)
            a(f"s_add_u32 m0, s{sM}, {L_RING + (u%4)*16384 + rr*512}")
            if kind == "w1":
                a(f"s_add_u32 s{sT}, s{sK1+n}, {rr*512}")
                a(f"buffer_load_dwordx4 v{vD1}, {sr(sW1,4)}, s{sT} offen lds")
            elif kind == "a":
                a(f"s_add_u32 s{sT}, s{sK2+n}, {kr*1536 + hf*256}")
                a(f"buffer_load_dwordx4 v{vD2}, {sr(sW2,4)}, s{sT} offen lds")
            else:
                a(f"s_add_u32 s{sT}, s{sK1+n}, {kr*1536 + hf*256 + 1024}")
                a(f"buffer_load_dwordx4 v{vD3}, {sr(sW2,4)}, s{sT} offen lds")
            st.seq.append(("U", u))
    def dma_v(hf, n):
        c, i = n % 3, n // 3
        a(f"""
        s_add_u32 m0, s{sMV}, {L_V + (hf*3+c)*ROWS*256 + i*4096}
        s_add_u32 s{sT}, s{sRB}, {i*16*2048 + 512*(c+1) + hf*256}
        buffer_load_dwordx4 v{vDV}, {sr(sSV,4)}, s{sT} offen lds
        """)
        st.seq.append(("V", hf))
    LnoB0 = a.label("K1_G0")
    a(f"s_cmp_lt_u32 s3, 4\ns_cbranch_scc1 {LnoB0}")
    for i in range(6):
        a(f"""
        s_add_u32 m0, s{sMV}, {L_H + i*4096}
        s_add_u32 s{sT}, s{sRB}, {i*8*2048}
        buffer_load_dwordx4 v{vT+6}, {sr(sSV,4)}, s{sT} offen lds
        """)
        st.seq.append(("U", 0))
    for u in range(3): dma_unit(u)
    seqB0 = list(st.seq)
    a(f"{LnoB0}:")
    for n in range(3, 8):
        a(f"s_xor_b32 s{sK1+n}, s{sROT}, {n}\ns_lshl_b32 s{sK1+n}, s{sK1+n}, 14")
    for n in range(8):
        a(f"s_mul_i32 s{sK2+n}, s{sK1+n}, 3")
    srd(a, sW2, 16, None, 0, 256 * 1536)
    a(f"s_lshr_b32 s{sT+6}, s3, 1\ns_mul_i32 s{sT+6}, s{sT+6}, {TAB_SL}")
    srd(a, sT4, 24, sT + 6, WS_TAB, TAB_SL)
    a(f"""
    v_lshl_add_u32 v{vT+7}, v{hi}, 4, s{sT+2}
    v_mul_u32_u24 v{vT+7}, 1536, v{vT+7}
    v_and_b32 v{vT+8}, 0xf0, v{vT+5}
    v_add_u32 v{vT+7}, v{vT+7}, v{vT+8}
    v_lshrrev_b32 v{vT+8}, 4, v{ch}
    v_xor_b32 v{vT+9}, 1, v{vT+8}
    v_lshl_add_u32 v{vD2}, v{vT+9}, 9, v{vT+7}
    v_xor_b32 v{vT+8}, s{sROT}, v{vT+8}
    v_and_b32 v{vT+8}, 1, v{vT+8}
    v_mul_u32_u24 v{vT+8}, 49152, v{vT+8}
    v_add_u32 v{vD3}, v{vT+7}, v{vT+8}
    s_mov_b32 s{sHI}, 0x07060302
    s_mov_b32 s{sRND}, 0x8000
    v_bfe_u32 v{q}, v0, 4, 2
    v_and_b32 v{j}, 15, v0
    s_lshl_b32 s{sT+4}, s{sL}, 13
    v_lshlrev_b32 v{vDV}, 11, v{q}
    v_lshl_add_u32 v{vDV}, v{j}, 4, v{vDV}
    v_add_u32 v{vDV}, s{sT+4}, v{vDV}
    v_and_b32 v{vT+3}, 7, v{j}
    v_lshlrev_b32 v{vT+3}, 1, v{vT+3}
    v_xor_b32 v{vT+3}, v{vT+3}, v{q}
    v_lshlrev_b32 v{vT+3}, 4, v{vT+3}
    v_lshl_add_u32 v{vAS}, v{j}, 9, v{vT+3}
    s_lshl_b32 s{sT+4}, s{sROT}, 6
    v_xor_b32 v{vAS}, s{sT+4}, v{vAS}
    v_add_u32 v{vAS}, {L_H}, v{vAS}
    """)
    a(f"""
    v_lshrrev_b32 v{vT+3}, 2, v{j}
    v_and_b32 v{vT+4}, 1, v{q}
    v_lshl_or_b32 v{vT+4}, v{vT+4}, 2, v{vT+3}
    v_lshlrev_b32 v{vT+4}, 1, v{vT+4}
    v_bfe_u32 v{vT+5}, v0, 1, 1
    v_or_b32 v{vT+5}, s{sT+3}, v{vT+5}
    v_xor_b32 v{vT+4}, v{vT+4}, v{vT+5}
    v_lshl_add_u32 v{vT+3}, v{q}, 3, v{vT+3}
    v_lshlrev_b32 v{vT+3}, 9, v{vT+3}
    v_lshl_add_u32 v{vT+3}, v{vT+4}, 4, v{vT+3}
    v_and_b32 v{vT+4}, 1, v0
    v_lshl_add_u32 v{vTR}, v{vT+4}, 3, v{vT+3}
    v_xor_b32 v{vTR+1}, 32, v{vTR}
    """)
    a(f"""
    v_lshrrev_b32 v{vT+3}, 2, v{j}
    v_or_b32 v{vT+3}, s{sT+3}, v{vT+3}
    v_and_b32 v{vT+4}, 1, v{q}
    v_lshlrev_b32 v{vT+4}, 3, v{vT+4}
    v_xor_b32 v{vT+3}, v{vT+3}, v{vT+4}
    v_lshlrev_b32 v{vT+3}, 4, v{vT+3}
    v_and_b32 v{vT+4}, 3, v{j}
    v_lshl_add_u32 v{vT+3}, v{vT+4}, 2, v{vT+3}
    v_lshl_add_u32 v{vT+3}, v{q}, 11, v{vT+3}
    v_add_u32 v{vHW}, {L_H}, v{vT+3}
    v_xor_b32 v{vHW+1}, 32, v{vHW}
    v_xor_b32 v{vHW+2}, 64, v{vHW}
    v_xor_b32 v{vHW+3}, 96, v{vHW}
    """)
    a(f"""
    v_and_b32 v{vT+3}, 1, v{j}
    v_lshlrev_b32 v{vT+3}, 5, v{vT+3}
    v_lshrrev_b32 v{vT+4}, 1, v{j}
    v_lshl_add_u32 v{vT+3}, v{vT+4}, 2, v{vT+3}
    s_lshr_b32 s{sT+1}, s3, 2
    s_mul_i32 s{sT+1}, s{sT+1}, {3*ROWS*256}
    s_lshl_b32 s{sT+4}, s{sL}, 6
    s_add_u32 s{sT+1}, s{sT+1}, s{sT+4}
    s_add_u32 s{sT+1}, s{sT+1}, {L_V}
    v_add_u32 v{vT+3}, s{sT+1}, v{vT+3}
    v_lshl_add_u32 v{vVR}, v{q}, 10, v{vT+3}
    v_lshl_add_u32 v{vT+3}, v{q}, 2, s{sROW}
    v_mul_u32_u24 v{vO4}, {ROWB}, v{vT+3}
    v_lshl_add_u32 v{vO4}, v{j}, 4, v{vO4}
    s_and_b32 s{sT+4}, s3, 1
    s_lshl_b32 s{sT+4}, s{sT+4}, 8
    v_add_u32 v{vO4}, s{sT+4}, v{vO4}
    s_mov_b32 s{sEV}, 0x55555555
    s_mov_b32 s{sEV+1}, 0x55555555
    v_mov_b32 v{vT+3}, 0x03020706
    v_mov_b32 v{vT+4}, 0x05040100
    v_mov_b32 v{vT+5}, 0x8000
    v_cndmask_b32 v{vSEL}, v{vT+3}, v{vT+4}, s[{sEV}:{sEV+1}]
    v_cndmask_b32 v{vRL}, 0, v{vT+5}, s[{sEV}:{sEV+1}]
    """)
    def af_read(ns):
        for n in ns:
            if n: a(f"v_xor_b32 v{vAS+1}, {n*64}, v{vAS}")
            for mt in range(3):
                a(f"ds_read_b128 {vr(vAF+(n*3+mt)*4,4)}, v{vAS+1 if n else vAS} offset:{mt*8192}")
    def tr_read(u):
        b = vBF + 16 * (u & 1)
        for side in range(2):
            for t in range(2):
                for h in range(2):
                    a(f"ds_read_b64_tr_b16 {vr(b+8*side+4*t+2*h,2)}, v{vTR+t} offset:{L_RING + (u%4)*16384 + h*2048 + side*256}")
    def mfmas(u, dmu=None):
        kind, n, hf = units[u]
        b = vBF + 16 * (u & 1)
        for side in range(2):
            for t in range(2):
                for mt in range(3):
                    if dmu is not None and mt == 1: dma_unit(dmu, (side * 2 + t,))
                    if kind == "b":
                        nn = 2 * n + side; nt = 4 + t
                    else:
                        nn = n; nt = 2 * side + t
                    acc = vACC + (mt * 6 + nt) * 4
                    c = "0" if nn == 0 else vr(acc, 4)
                    a(f"v_mfma_f32_16x16x32_bf16 {vr(acc,4)}, {vr(vAF+(nn*3+mt)*4,4)}, {vr(b+8*side+4*t,4)}, {c}")
    def silu():
        a(f"s_mov_b32 s{sT+6}, 0xbfb8aa3b\ns_mov_b32 s{sT+7}, 0xbfb8aa3b\ns_nop 7")
        cnt = 0
        for side in range(2):
            for mt in range(3):
                for r in range(0, 4, 2):
                    L = []
                    for rr in range(2):
                        a0, a1 = vACC + (mt * 6 + 2 * side) * 4 + r + rr, vACC + (mt * 6 + 2 * side + 1) * 4 + r + rr
                        x, e_, p = vT + 6 * rr, vT + 2 + 6 * rr, vT + 4 + 6 * rr
                        L.append(f"""v_cvt_pk_bf16_f32 v{p}, v{a0}, v{a1}
                        v_lshlrev_b32 v{x}, 16, v{p}
                        v_and_b32 v{x+1}, 0xffff0000, v{p}
                        v_pk_mul_f32 {vr(e_,2)}, {vr(x,2)}, s[{sT+6}:{sT+7}]
                        v_exp_f32 v{e_}, v{e_}
                        v_exp_f32 v{e_+1}, v{e_+1}
                        v_pk_add_f32 {vr(e_,2)}, {vr(e_,2)}, 1.0 op_sel_hi:[1,0]
                        v_rcp_f32 v{e_}, v{e_}
                        v_rcp_f32 v{e_+1}, v{e_+1}
                        v_pk_mul_f32 {vr(x,2)}, {vr(x,2)}, {vr(e_,2)}
                        v_cvt_pk_bf16_f32 v{p}, v{x}, v{x+1}
                        ds_write_b32 v{vHW+r+rr}, v{p} offset:{(mt*16+r+rr)*512 + side*256}""".split("\n"))
                    for l0, l1 in zip(*L):
                        a(l0); a(l1)
                    cnt += 1
                    if cnt % 3 == 0: a("s_waitcnt lgkmcnt(2)")
    DPP = "quad_perm:[1,0,3,2] row_mask:0xf bank_mask:0xf"
    def v_read(pc):
        mt, r = pc // 4, pc % 4
        for c in range(3):
            a(f"ds_read_b32 v{vV + (pc % 4) * 3 + c}, v{vVR} offset:{c*ROWS*256 + (mt*16+r)*256}")
    def t4_piece(pc):
        mt, r = pc // 4, pc % 4
        A_ = lambda nt: vACC + (mt * 6 + nt) * 4 + r
        o = vOB + 4 * (pc % 3); vv = vV + (pc % 4) * 3
        lo, hi_, P, Q = vT, vT + 1, vT + 2, vT + 3
        x = vT + 4
        a(f"""
        v_perm_b32 v{P}, v{A_(3)}, v{A_(2)}, s{sHI}
        v_mov_b32_dpp v{lo}, v{A_(1)} {DPP}
        v_mov_b32_dpp v{hi_}, v{A_(0)} {DPP}
        v_mov_b32_dpp v{Q}, v{P} {DPP}
        v_cndmask_b32 v{lo}, v{lo}, v{A_(0)}, s[{sEV}:{sEV+1}]
        v_cndmask_b32 v{hi_}, v{A_(1)}, v{hi_}, s[{sEV}:{sEV+1}]
        v_perm_b32 v{o+3}, v{Q}, v{P}, v{vSEL}
        v_lshlrev_b32 v{x}, 16, v{vv}
        v_and_b32 v{x+1}, 0xffff0000, v{vv}
        v_lshlrev_b32 v{x+2}, 16, v{vv+1}
        v_and_b32 v{x+3}, 0xffff0000, v{vv+1}
        v_lshlrev_b32 v{x+4}, 16, v{vv+2}
        v_and_b32 v{x+5}, 0xffff0000, v{vv+2}
        v_mul_f32 v{x}, v{x}, v{lo}
        v_mul_f32 v{x+1}, v{x+1}, v{hi_}
        v_mul_f32 v{x+2}, v{x+2}, v{lo}
        v_mul_f32 v{x+3}, v{x+3}, v{hi_}
        v_mul_f32 v{x+4}, v{x+4}, v{lo}
        v_mul_f32 v{x+5}, v{x+5}, v{hi_}
        v_add_u32 v{x}, s{sRND}, v{x}
        v_add_u32 v{x+4}, s{sRND}, v{x+4}
        v_perm_b32 v{o+1}, v{x+3}, v{x+2}, s{sHI}
        v_perm_b32 v{o}, v{x+1}, v{x}, s{sHI}
        v_perm_b32 v{o+2}, v{x+5}, v{x+4}, s{sHI}
        s_movk_i32 s{sT+4}, {mt*16*ROWB}
        buffer_store_dwordx4 {vr(o,4)}, v{vO4}, {sr(sT4,4)}, s{sT+4} offen offset:{r*ROWB} {tab_fl}
        """)
        st.seq.append("ST")
    def t1_epi():
        a(f"""
        s_mul_i32 s{sT+4}, s3, 3072
        s_add_u32 s{sT+4}, s{sT+4}, {L_H}
        v_mbcnt_lo_u32_b32 v{vT}, -1, 0
        v_mbcnt_hi_u32_b32 v{vT}, -1, v{vT}
        v_lshrrev_b32 v{vT+1}, 4, v{vT}
        v_and_b32 v{vT+2}, 15, v{vT}
        v_lshlrev_b32 v{vT+1}, 8, v{vT+1}
        v_lshl_add_u32 v{vT+1}, v{vT+2}, 1, v{vT+1}
        v_add_u32 v{vT+1}, s{sT+4}, v{vT+1}
        v_lshl_add_u32 v{vT+2}, v{vT}, 4, s{sT+4}
        v_lshrrev_b32 v{vT+3}, 2, v{vT}
        v_and_b32 v{vT}, 3, v{vT}
        v_add_u32 v{vT+3}, s{sROW}, v{vT+3}
        v_mul_u32_u24 v{vT+3}, {ROWB}, v{vT+3}
        v_lshl_add_u32 v{vT}, v{vT}, 4, v{vT+3}
        s_and_b32 s{sT+4}, s3, 1
        s_lshl_b32 s{sT+4}, s{sT+4}, 6
        s_add_u32 s{sT+5}, s{sT+4}, {16*ROWB}
        s_add_u32 s{sT+6}, s{sT+4}, {32*ROWB}
        """)
        for mt in range(3):
            A_ = lambda nt, r: vACC + (mt * 6 + nt) * 4 + r
            for r in range(4):
                for t in range(2):
                    a(f"v_add_u32 v{A_(4+t,r)}, v{A_(4+t,r)}, v{vRL}")
                    a(f"ds_write_b16_d16_hi v{vT+1}, v{A_(4+t,r)} offset:{(mt*16+r)*64 + 32*t}")
                if mt and r == 2:
                    a("s_waitcnt lgkmcnt(6)")
                    a(f"buffer_store_dwordx4 {vr(vOB+4*(mt-1),4)}, v{vT}, {sr(sT4,4)}, s{sT+4+mt-1} offen offset:512 {tab_fl}")
                    st.seq.append("ST")
            a(f"ds_read_b128 {vr(vOB+4*mt,4)}, v{vT+2} offset:{mt*1024}")
        a("s_waitcnt lgkmcnt(0)")
        a(f"buffer_store_dwordx4 {vr(vOB+8,4)}, v{vT}, {sr(sT4,4)}, s{sT+6} offen offset:512 {tab_fl}")
        st.seq.append("ST")
    v0_at = opt.get("v0_at", 7); v1_at = opt.get("v1_at", 8); pf_at = opt.get("pf_at", 8); pf_cls = opt.get("pf_cls", 1)
    lsw = opt.get("lsw", [16, 24])
    def loader(u):
        if opt.get("selfload", 1): return 1 if u < 24 else 0
        return 1 if u < lsw[0] else (0 if u < lsw[1] else 1)
    def prefetch():
        a(f"""
        s_lshr_b32 s{sT+1}, s2, 3
        s_add_u32 s{sT+1}, s{sT+1}, {24-6}
        s_cmp_ge_u32 s{sT+1}, 24
        s_cselect_b32 s{sT+2}, 24, 0
        s_sub_u32 s{sT+1}, s{sT+1}, s{sT+2}
        s_lshl_b32 s{sT+2}, s{sT+1}, 2
        s_add_u32 s{sT+2}, s{sT+2}, s{sL}
        s_lshl_b32 s{sT+3}, s{sT+2}, 12
        v_mbcnt_lo_u32_b32 v{vV}, -1, 0
        v_lshlrev_b32 v{vV}, 7, v{vV}
        s_mov_b32 exec_hi, 0
        buffer_load_dword v{vV+1}, v{vV}, {sr(sW2,4)}, s{sT+3} offen
        s_mov_b64 exec, -1
        """)
        st.seq.append("PF")
    pB = opt.get("pB", [3, 3, 3, 3, 0, 0, 0, 0])
    pA = opt.get("pA", [2, 2, 2, 1, 1, 1, 1, 1, 1])
    if len(pB) == 8: pB = [0] + pB
    pieces = [{}, {}]
    for cls, base, pl in ((0, 15, pA), (1, 23, pB)):
        k = 0
        for i_, c_ in enumerate(pl):
            pieces[cls][base + i_] = list(range(k, k + c_)); k += c_
        assert k == 12
    LB = a.label("K1_GB"); Lfin = a.label("K1_GFIN")
    a(f"s_cmp_ge_u32 s3, 4\ns_cbranch_scc1 {LB}")
    stu = opt.get("stu", [0, 9, 15, 24])
    for cls in range(2):
        if cls == 1: a(f"{LB}:")
        nst[0] = 1 if stamps else 0
        st.seq = list(seqB0) if cls == 1 else []
        if pf_at == -1 and cls == pf_cls: prefetch()
        def wait_tags(tags):
            idx = [i for i, t in enumerate(st.seq) if t in tags]
            if idx: a(f"s_waitcnt vmcnt({min(63, len(st.seq) - 1 - max(idx))})")
        for u in range(32):
            tags = [("U", u)]
            if u == 15: tags.append(("V", 0))
            if u == 23: tags.append(("V", 1))
            if u == 29: tags += [("U", 30), ("U", 31)]
            if u <= 29:
                wait_tags(tags)
                a("s_barrier")
            if u in stu: stamp()
            if u == 8:
                for n in range(4):
                    a(f"s_min_u32 s{sK1+n}, s{sK2+2*n}, s{sK2+2*n+1}")
            lds = False
            if owner(u) == cls: tr_read(u); lds = True
            if cls == 0 and u in (0, 9):
                af_read(range(0, 2)); a("s_waitcnt lgkmcnt(4)")
                af_read(range(2, 5)); a("s_waitcnt lgkmcnt(4)")
                af_read(range(5, 8))
                if u == 9: a("s_waitcnt lgkmcnt(9)")
            early = {8: 7, 16: 15, 24: 23}
            dm = [0, 1, 2, 3] if (loader(u) == cls and u + 3 < 32) else []
            if u >= 1 and owner(u - 1) == cls and early.get(u) != u - 1:
                mfmas(u - 1, u + 3 if dm else None); dm = []
            if u in (7, 15, 23) and owner(u) == cls:
                if u != 7: v_read(0); v_read(1)
                a(f"s_waitcnt lgkmcnt({0 if u == 7 else 6})")
                mfmas(u)
            if cls == 0 and u == 8:
                Lne = a.label("K1_NOEARLY")
                a(f"s_cmp_lg_u32 s3, 0\ns_cbranch_scc1 {Lne}")
                srd(a, sT1, 22, None, 0, 256)
                a(f"""
                v_mov_b32 v{vT}, 0
                v_mov_b32 v{vT+1}, {1<<18}
                s_waitcnt vmcnt(0)
                s_mov_b64 exec, 1
                buffer_atomic_add v{vT+1}, v{vT}, {sr(sT1,4)}, 0 offen
                s_mov_b64 exec, -1
{Lne}:
                """)
            if cls == 0 and u == 8: silu()
            if u in (15, 23) and owner(u) == cls: a("s_nop 4")
            pcs = list(pieces[cls].get(u, []))
            if pcs:
                if lds: a("s_waitcnt lgkmcnt(0)")
                for pc in pcs:
                    for _ in range(4 // (len(pcs) + 1)):
                        if dm: dma_unit(u + 3, (dm.pop(0),))
                    if pc + 2 < 12: v_read(pc + 2)
                    a(f"s_waitcnt lgkmcnt({min(6, 3 * (11 - pc))})")
                    t4_piece(pc)
            if dm: dma_unit(u + 3, dm)
            if cls == pf_cls and u == pf_at: prefetch()
            if cls == 1 and u == v0_at:
                for n in range(9): dma_v(0, n)
            if cls == 1 and u == v1_at:
                for n in range(9): dma_v(1, n)
            if cls == 1 and 10 <= u < 14: af_read(range(2 * (u - 10), 2 * (u - 10) + 2)); lds = True
            if cls == 0 and u == 28: t1_epi()
            if lds: a("s_waitcnt lgkmcnt(0)")
        if cls == 1:
            mfmas(31); t1_epi()
        stamp()
        if cls == 0: a(f"s_branch {Lfin}")
    a(f"{Lfin}:")
    dump_stamps(nst[0])
    a(f"{Lp2}:")
    phase2(a0, opt, Lend)
    a0.lines += side.lines
    return nvmax, 102
```

```python
import sys, json
from asmlib import *
from layout import *
import gen_k1, gen_k2
HDR = open('standalone__molecular_angular_painn__graph.s.ref').read().split("; Override")[0]
NAME = "standalone__molecular_angular_painn__graph_kernel"
def build(opt):
    body = Asm()
    nv, ns = gen_k1.gen_k1(body, NAME, opt, gen_k2.gen_k2)
    lds = max(gen_k1.K1_LDS, gen_k2.K2_LDS)
    k = f"kernel={NAME} " if opt.get("list") else ""
    launches = [f"; @launch {k}grid=(256,1,1) block=(512,1,1) lds={lds}"]
    descs = [kernel_desc(NAME, nv, ns)]
    if opt.get("probe"):
        offA, offB = opt["probe"]
        kernel_header(body, "probe_kernel")
        body(f"""
        s_memrealtime s[10:11]
        s_cmp_ge_u32 s2, 1
        s_cbranch_scc1 PROBE_END
        s_load_dwordx2 s[4:5], s[0:1], 80
        s_waitcnt lgkmcnt(0)
        s_add_u32 s4, s4, {WS_DIAG}
        s_addc_u32 s5, s5, 0
        s_load_dwordx2 s[6:7], s[4:5], {offA}
        """)
        if offB >= 0:
            body(f"s_add_u32 s4, s4, {offB}\ns_addc_u32 s5, s5, 0\ns_load_dwordx2 s[8:9], s[4:5], 0\ns_waitcnt lgkmcnt(0)")
        else:
            body("s_waitcnt lgkmcnt(0)\ns_mov_b32 s8, s10")
        body("""
        s_sub_u32 s6, s8, s6
        s_min_u32 s6, s6, 20000
        s_mul_i32 s6, s6, 10
PROBE_L:
        s_memrealtime s[12:13]
        s_waitcnt lgkmcnt(0)
        s_sub_u32 s12, s12, s10
        s_cmp_lt_u32 s12, s6
        s_cbranch_scc1 PROBE_L
PROBE_END:
        s_endpgm
        """)
        launches.append("; @launch kernel=probe_kernel grid=(1,1,1) block=(64,1,1) lds=0")
        descs.append(kernel_desc("probe_kernel", 8, 24))
    return HDR + "\n".join(launches) + "\n" + '.amdgcn_target "amdgcn-amd-amdhsa--gfx950"\n.text\n' + body.text() + '.section .rodata,"a"\n' + "".join(descs)
if __name__ == "__main__":
    opt = json.loads(sys.argv[2]) if len(sys.argv) > 2 else {}
    open(sys.argv[1], "w").write(build(opt))
```

```python
import sys, json
from asmlib import *
from layout import *
import gen_k1, gen_k2
HDR = open('standalone__molecular_angular_painn__graph.s.ref').read().split("; Override")[0]
NAME = "standalone__molecular_angular_painn__graph_kernel"
def build(opt):
    body = Asm()
    nv, ns = gen_k1.gen_k1(body, NAME, opt, gen_k2.gen_k2)
    lds = max(gen_k1.K1_LDS, gen_k2.K2_LDS)
    k = f"kernel={NAME} " if opt.get("list") else ""
    launches = [f"; @launch {k}grid=(256,1,1) block=(512,1,1) lds={lds}"]
    descs = [kernel_desc(NAME, nv, ns)]
    if opt.get("probe") is not None:
        from gen_k2 import dpp_scan
        G0 = WG_GEMM0 * 8
        K2 = 1 << 20
        items = [(0, 0, G0, 2048, "min"), (0, 0, G0, 2048, "max"), (0, 1, G0, 2048, "max"), (0, 3, G0, 2048, "min"), (0, 3, G0, 2048, "max"),
                 (0, 5, G0, 2048, "min"), (0, 5, G0, 2048, "max"), (K2, 0, 0, G0, "max"), (K2, 2, 0, 2048, "min"), (K2, 2, 0, 2048, "max"),
                 (K2, 3, 0, 2048, "min"), (K2, 3, 0, 2048, "max"), (K2, 5, 0, 2048, "min"), (K2, 5, 0, 2048, "max")]
        kernel_header(body, "probe_kernel")
        body(f"""
        s_memrealtime s[10:11]
        s_cmp_ge_u32 s2, 1
        s_cbranch_scc1 PROBE_END
        s_load_dwordx4 s[4:7], s[0:1], 72
        s_waitcnt lgkmcnt(0)
        s_add_u32 s12, s6, {WS_DIAG}
        s_addc_u32 s13, s7, 0
        s_mov_b32 s14, 0x200000
        s_mov_b32 s15, 0x20000
        s_mov_b32 s16, s4
        s_mov_b32 s17, s5
        s_mov_b32 s18, 256
        s_mov_b32 s19, 0x20000
        v_mov_b32 v40, 0
        """)
        for n, (base, col, lo, hi, op) in enumerate(items):
            cnt = (hi - lo + 63) // 64
            for k in range(cnt):
                body(f"v_add_u32 v1, {lo + 64*k}, v0\nv_min_u32 v1, {hi-1}, v1\nv_lshlrev_b32 v1, 7, v1\ns_mov_b32 s20, {base}")
                body(f"buffer_load_dword v{2+k}, v1, s[12:15], s20 offen offset:{8*col}")
            body("s_waitcnt vmcnt(0)")
            for k in range(cnt):
                body(f"v_sub_u32 v{2+k}, s10, v{2+k}")
            o = "v_max_u32" if op == "min" else "v_min_u32"
            for k in range(1, cnt): body(f"{o} v2, v2, v{2+k}")
            if op == "max": body("v_not_b32 v2, v2")
            dpp_scan(body, "v_max_u32", 2)
            body("s_nop 1\nv_readlane_b32 s21, v2, 63\ns_nop 3")
            if op == "max": body("s_not_b32 s21, s21")
            if n == 0: body("s_mov_b32 s22, s21\ns_mov_b32 s23, s21")
            else: body("s_sub_u32 s23, s22, s21")
            body(f"v_writelane_b32 v40, s23, {n}")
            if n == opt["probe"]: body("s_mov_b32 s24, s23")
        body("""
        v_lshlrev_b32 v1, 2, v0
        buffer_store_dword v40, v1, s[16:19], 0 offen
        """)
        if opt["probe"] >= 0:
            body("""
        s_min_u32 s24, s24, 20000
        s_mul_i32 s24, s24, 10
PROBE_L:
        s_memrealtime s[12:13]
        s_waitcnt lgkmcnt(0)
        s_sub_u32 s12, s12, s10
        s_cmp_lt_u32 s12, s24
        s_cbranch_scc1 PROBE_L
            """)
        body("PROBE_END:\ns_endpgm")
        launches.append("; @launch kernel=probe_kernel grid=(1,1,1) block=(64,1,1) lds=0")
        descs.append(kernel_desc("probe_kernel", 48, 32))
    return HDR + "\n".join(launches) + "\n" + '.amdgcn_target "amdgcn-amd-amdhsa--gfx950"\n.text\n' + body.text() + '.section .rodata,"a"\n' + "".join(descs)
if __name__ == "__main__":
    opt = json.loads(sys.argv[2]) if len(sys.argv) > 2 else {}
    open(sys.argv[1], "w").write(build(opt))
```

```python
class Asm:
    lblc = [0]
    def __init__(self):
        self.lines = []
    def __call__(self, s):
        for l in s.strip("\n").split("\n"):
            l = l.strip()
            if not l: continue
            if l.endswith(":") or l.startswith("."):
                self.lines.append(l)
            else:
                self.lines.append("    " + l)
    def c(self, s):
        self.lines.append("    ; " + s)
    def label(self, base="L"):
        Asm.lblc[0] += 1
        return f"{base}_{Asm.lblc[0]}"
    def text(self):
        return "\n".join(self.lines) + "\n"

class Regs:
    def __init__(self, prefix, start, limit):
        self.p = prefix; self.n = start; self.limit = limit; self.hi = start
        self.names = {}
    def alloc(self, name, cnt=1, align=1):
        while self.n % align: self.n += 1
        b = self.n; self.n += cnt
        assert self.n <= self.limit, f"out of {self.p} regs at {name}: {self.n}"
        self.hi = max(self.hi, self.n)
        self.names[name] = (b, cnt)
        return b
    def mark(self): return self.n
    def reset(self, m): self.n = m

def vr(b, n=1):
    return f"v{b}" if n == 1 else f"v[{b}:{b+n-1}]"
def sr(b, n=1):
    return f"s{b}" if n == 1 else f"s[{b}:{b+n-1}]"

def kernel_header(a, name):
    a(f".globl {name}")
    a(".p2align 8")
    a(f".type {name},@function")
    a(f"{name}:")

def kernel_desc(name, nv, ns):
    acc = (nv + 3) // 4 * 4
    return f""".p2align 6
.amdhsa_kernel {name}
  .amdhsa_next_free_vgpr {nv}
  .amdhsa_next_free_sgpr {ns}
  .amdhsa_accum_offset {acc}
  .amdhsa_group_segment_fixed_size 0
  .amdhsa_kernarg_size 88
  .amdhsa_user_sgpr_count 2
  .amdhsa_user_sgpr_kernarg_segment_ptr 1
  .amdhsa_system_sgpr_workgroup_id_x 1
.end_amdhsa_kernel
"""

def token_decode(a, v, sdst, st):
    a(f"""
    v_readfirstlane_b32 s{sdst}, v{v}
    v_readfirstlane_b32 s{st}, v{v+1}
    s_nop 1
    s_lshr_b32 s{sdst}, s{sdst}, 18
    s_lshr_b32 s{st}, s{st}, 18
    s_min_u32 s{st+1}, s{sdst}, s{st}
    s_lshl_b32 s{st}, s{st}, 14
    s_or_b32 s{sdst}, s{sdst}, s{st}
    s_cmp_lg_u32 s{st+1}, 0
    """)
```

```python
from asmlib import *
from layout import *

ROWS = 48
NG = (N + ROWS - 1) // ROWS
WG_EDGE0 = 0
WG_LUT0 = NP
NLUTWG = 5
assert WG_GEMM0 == NP + NLUTWG + 2 and NG == NGEMM
assert WG_GEMM0 + NG == 256
L_RING = 0
L_V = 65536
L_H = L_V + 3 * ROWS * 512
GEMM_LDS = L_H + ROWS * 512
assert L_H == L_PASS
L_POS = 0
L_EH = 65536
L_DLT = L_EH + 512
L_STG = L_EH + 1024
K1_LDS = max(GEMM_LDS, L_STG + 65536)
WG_BOP = WG_LUT0 + NLUTWG
from gen_k2 import dpp_scan

def rne_bf16(a, dst, src):
    a(f"v_cvt_pk_bf16_f32 v{dst}, v{src}, v{src}")
    a(f"v_and_b32 v{dst}, 0xffff0000, v{dst}")

def lut_row(a, vd, out, t, sF, sC):
    rcp, fc = t, t + 1
    a(f"v_rcp_f32 v{rcp}, v{vd}")
    a(f"v_mul_f32 v{fc}, s{sC}, v{vd}")
    rne_bf16(a, fc, fc)
    a(f"v_mul_f32 v{fc}, s{sC+1}, v{fc}")
    rne_bf16(a, fc, fc)
    a(f"v_mul_f32 v{fc}, s{sC+2}, v{fc}")
    a(f"v_cos_f32 v{fc}, v{fc}")
    a("s_nop 0")
    rne_bf16(a, fc, fc)
    a(f"v_add_f32 v{fc}, 1.0, v{fc}")
    rne_bf16(a, fc, fc)
    a(f"v_mul_f32 v{fc}, 0.5, v{fc}")
    for k in range(0, 16, 2):
        x, y, p = t + 2, t + 3, t + 4
        a(f"""
        v_mul_f32 v{x}, s{sF+k}, v{vd}
        v_mul_f32 v{y}, s{sF+k+1}, v{vd}
        v_cvt_pk_bf16_f32 v{p}, v{x}, v{y}
        v_lshlrev_b32 v{x}, 16, v{p}
        v_and_b32 v{y}, 0xffff0000, v{p}
        v_mul_f32 v{x}, s{sC+2}, v{x}
        v_mul_f32 v{y}, s{sC+2}, v{y}
        v_rndne_f32 v{t+5}, v{x}
        v_rndne_f32 v{t+6}, v{y}
        v_sub_f32 v{x}, v{x}, v{t+5}
        v_sub_f32 v{y}, v{y}, v{t+6}
        v_sin_f32 v{x}, v{x}
        v_sin_f32 v{y}, v{y}
        s_nop 0
        v_cvt_pk_bf16_f32 v{p}, v{x}, v{y}
        v_lshlrev_b32 v{x}, 16, v{p}
        v_and_b32 v{y}, 0xffff0000, v{p}
        v_mul_f32 v{x}, v{x}, v{rcp}
        v_mul_f32 v{y}, v{y}, v{rcp}
        v_cvt_pk_bf16_f32 v{p}, v{x}, v{y}
        v_lshlrev_b32 v{x}, 16, v{p}
        v_and_b32 v{y}, 0xffff0000, v{p}
        v_mul_f32 v{x}, v{x}, v{fc}
        v_mul_f32 v{y}, v{y}, v{fc}
        v_cvt_pk_bf16_f32 v{out+k//2}, v{x}, v{y}
        """)

def srd(a, d, lo, off_sreg, off_imm, size):
    hi = lo + 1
    if off_sreg is None and off_imm == 0:
        a(f"s_mov_b32 s{d}, s{lo}\ns_mov_b32 s{d+1}, s{hi}")
    else:
        if off_sreg is not None:
            if off_imm:
                a(f"s_add_u32 s{off_sreg}, s{off_sreg}, {off_imm}")
            a(f"s_add_u32 s{d}, s{lo}, s{off_sreg}")
        else:
            a(f"s_add_u32 s{d}, s{lo}, {off_imm}")
        a(f"s_addc_u32 s{d+1}, s{hi}, 0")
    a(f"s_mov_b32 s{d+2}, {size}\ns_mov_b32 s{d+3}, 0x20000")

def gen_k1(a0, name, opt, phase2):
    class Sw:
        cur = a0
        def __call__(self, x): return self.cur(x)
        def label(self, b): return self.cur.label(b)
    a = Sw()
    side = Asm()
    stamps = opt.get("stamps", False)
    tab_fl = opt.get("tab_flags", "sc1")
    sST = 82
    nst = [0]
    def stamp():
        if stamps:
            a(f"s_memrealtime {sr(sST + 2 * nst[0], 2)}")
            nst[0] += 1
            assert nst[0] <= 10
    def dump_stamps(n):
        if not stamps: return
        a(f"""
        s_memrealtime {sr(sST+18,2)}
        s_waitcnt lgkmcnt(0)
        s_add_u32 s40, s24, {WS_DIAG}
        s_addc_u32 s41, s25, 0
        s_mov_b32 s42, 0x100000
        s_mov_b32 s43, 0x20000
        s_lshl_b32 s44, s2, 3
        s_add_u32 s44, s44, s3
        s_lshl_b32 s44, s44, 7
        s_mov_b64 exec, 1
        v_mov_b32 v1, s44
        """)
        for i in list(range(n)) + [9]:
            a(f"v_mov_b32 v2, s{sST+2*i}\nv_mov_b32 v3, s{sST+2*i+1}")
            a(f"buffer_store_dwordx2 v[2:3], v1, s[40:43], 0 offen offset:{8*i}")
        a("s_mov_b64 exec, -1")
    Lp2 = a.label("P2"); Lside = a.label("K1_SIDE"); Larr = a.label("K1_ARRIVE"); Lcend = a.label("CODE_END"); Lpc = a.label("PC")
    kernel_header(a, name)
    Lend = a.label("K1_END"); Lgemm = a.label("K1_GEMM"); Llut = a.label("K1_LUT")
    a(f"""
    s_cmp_ge_u32 s2, 256
    s_cbranch_scc1 {Lend}
    s_load_dwordx16 s[4:19], s[0:1], 0
    s_load_dwordx4 s[20:23], s[0:1], 64
    s_load_dwordx2 s[24:25], s[0:1], 80
    """)
    stamp()
    a(f"""
    v_lshrrev_b32 v1, 6, v0
    s_nop 0
    v_readfirstlane_b32 s3, v1
    """)
    if opt.get("cpf", 1):
        Lnc = a.label("K1_NOCPF")
        a(f"""
        s_lshr_b32 s26, s2, 3
        s_cmp_lg_u32 s26, 5
        s_cbranch_scc1 {Lnc}
        s_getpc_b64 s[28:29]
{Lpc}:
        s_mov_b32 s30, {Lcend}-{Lpc}
        s_mov_b32 s31, 0x20000
        v_lshlrev_b32 v1, 7, v0
        buffer_load_dword v255, v1, s[28:31], 0 offen
{Lnc}:
        """)
    a(f"""
    s_cmp_lt_u32 s2, {WG_GEMM0}
    s_cbranch_scc1 {Lside}
    """)
    a.cur = side
    a(f"""
{Lside}:
    s_cmp_ge_u32 s2, {WG_LUT0}
    s_cbranch_scc1 {Llut}
    """)
    nvmax = 256
    V = Regs("v", 1, 256)
    vSRC = V.alloc("src", 8, 2); vDST = V.alloc("dst", 8, 2)
    vP = V.alloc("p", 48, 2)
    vREC = V.alloc("rec", 32, 2)
    vRK = V.alloc("rk", 8)
    vT = V.alloc("t", 12, 2)
    nvmax = max(nvmax, V.hi)
    sSRC, sDST, sPOS, sDBG, sLIST, sMISC = 28, 32, 36, 40, 44, 48
    sT = 52; sACT = 60
    a("s_waitcnt lgkmcnt(0)")
    srd(a, sSRC, 8, None, 0, E * 4)
    srd(a, sDST, 10, None, 0, E * 4)
    srd(a, sPOS, 6, None, 0, N * 6)
    a(f"""
    s_mul_i32 s{sT}, s2, {EPW*4}
    s_add_u32 s{sT+1}, s{sT}, {EPW*2}
    v_lshlrev_b32 v{vT}, 4, v0
    v_mov_b32 v{vT+1}, 0x7ffffff0
    v_cmp_gt_u32 vcc, {EPW//8}, v0
    s_mov_b64 s[{sT+2}:{sT+3}], vcc
    s_nop 0
    v_cndmask_b32 v{vT+1}, v{vT+1}, v{vT}, vcc
    buffer_load_dwordx4 {vr(vSRC,4)}, v{vT+1}, {sr(sSRC,4)}, s{sT} offen
    buffer_load_dwordx4 {vr(vDST,4)}, v{vT+1}, {sr(sDST,4)}, s{sT} offen
    buffer_load_dwordx4 {vr(vSRC+4,4)}, v{vT+1}, {sr(sSRC,4)}, s{sT+1} offen
    buffer_load_dwordx4 {vr(vDST+4,4)}, v{vT+1}, {sr(sDST,4)}, s{sT+1} offen
    s_lshl_b32 s{sT+4}, s3, 10
    """)
    for i in range(8):
        a(f"""
        s_add_u32 m0, s{sT+4}, {L_POS + i*8192}
        s_mov_b32 s{sT+5}, {i*8192}
        buffer_load_dwordx4 v{vT}, {sr(sPOS,4)}, s{sT+5} offen lds
        """)
    srd(a, sDBG, 22, None, 0, 256)
    srd(a, sLIST, 24, None, WS_LIST, NR * LIST_STRIDE)
    srd(a, sMISC, 24, None, WS_LUT, MISC_BYTES)
    a(f"""
    v_mov_b32 v{vT+2}, 0
    v_lshlrev_b32 v{vT+3}, 2, v0
    v_add_u32 v{vT+3}, {L_EH}, v{vT+3}
    v_cmp_gt_u32 vcc, 64, v0
    s_and_saveexec_b64 s[{sT+6}:{sT+7}], vcc
    ds_write_b32 v{vT+3}, v{vT+2}
    s_mov_b64 exec, -1
    """)
    vAS_, vAD_ = vREC, vREC + 8
    vKEY = V.alloc("key", 8); vHA = V.alloc("ha", 8); vDD = V.alloc("dd", 8, 2); vQ = V.alloc("q", 8, 2)
    for i in range(48):
        a(f"v_mov_b32 v{vP+i}, 0")
    a(f"""
    s_mov_b32 s{sT+4}, 0x322bcc77
    s_mov_b32 s{sT+5}, 0x322bcc77
    s_mov_b32 s{sT+1}, 0xffff0000
    s_mov_b32 s{sT+6}, {(DBASE+LUT_THR)<<16}
    v_mov_b32 v{vT+8}, {((NRS - LUT_THR - DBASE) << 16) & 0xffffffff}
    v_mov_b32 v{vT+9}, {((0x8000 - DBASE) << 16) & 0xffffffff}
    v_mov_b32 v{vT+10}, {NKEY}
    v_mov_b32 v{vT+11}, 1
    s_waitcnt vmcnt(8)
    """)
    for e in range(8):
        a(f"""
        v_cmp_le_u32 vcc, {HALF}, v{vSRC+e}
        v_mul_u32_u24 v{vAS_+e}, 6, v{vSRC+e}
        v_mul_u32_u24 v{vAD_+e}, 6, v{vDST+e}
        v_cndmask_b32 v{vT+4}, 0, v{vT+10}, vcc
        v_lshrrev_b32 v{vKEY+e}, 6, v{vDST+e}
        v_and_b32 v{vDST+e}, {NR-1}, v{vDST+e}
        v_add_u32 v{vKEY+e}, v{vKEY+e}, v{vT+4}
        v_lshlrev_b32 v{vDST+e}, 2, v{vDST+e}
        v_add_u32 v{vHA+e}, {L_EH}, v{vDST+e}
        """)
    a("s_waitcnt vmcnt(0) lgkmcnt(0)\ns_barrier")
    stamp()
    def pos_read(pr):
        for e in range(2):
            for c in range(3):
                a(f"ds_read_u16_d16_hi v{vP+12*pr+2*c+e}, v{vAS_+2*pr+e} offset:{L_POS+2*c}")
                a(f"ds_read_u16_d16_hi v{vP+12*pr+6+2*c+e}, v{vAD_+2*pr+e} offset:{L_POS+2*c}")
    def rnd2(dst, src, t):
        a(f"v_cvt_pk_bf16_f32 v{t}, v{src}, v{src+1}")
        a(f"v_lshlrev_b32 v{dst}, 16, v{t}")
        a(f"v_and_b32 v{dst+1}, s{sT+1}, v{t}")
    pos_read(0)
    for pr in range(4):
        p = vP + 12 * pr; q = p + 6; d = vDD + 2 * pr
        a("s_waitcnt lgkmcnt(0)" if pr == 0 else "s_waitcnt lgkmcnt(2)")
        if pr < 3: pos_read(pr + 1)
        for c in range(3):
            a(f"v_pk_add_f32 {vr(p+2*c,2)}, {vr(p+2*c,2)}, {vr(q+2*c,2)} neg_lo:[0,1] neg_hi:[0,1]")
        for c in range(3): rnd2(p + 2 * c, p + 2 * c, vT + 4 + c)
        for c in range(3):
            a(f"v_pk_mul_f32 {vr(q+2*c,2)}, {vr(p+2*c,2)}, {vr(p+2*c,2)}")
        for c in range(3): rnd2(q + 2 * c, q + 2 * c, vT + 4 + c)
        a(f"v_pk_add_f32 {vr(q,2)}, {vr(q,2)}, {vr(q+2,2)}")
        a(f"v_pk_add_f32 {vr(q,2)}, {vr(q,2)}, {vr(q+4,2)}")
        rnd2(q, q, vT + 4)
        a(f"v_pk_add_f32 {vr(q,2)}, {vr(q,2)}, s[{sT+4}:{sT+5}]")
        rnd2(q, q, vT + 4)
        a(f"v_sqrt_f32 v{q}, v{q}\nv_sqrt_f32 v{q+1}, v{q+1}\ns_nop 0")
        rnd2(d, q, vT + 4)
        for e in range(2):
            ee = 2 * pr + e
            a(f"""
            v_cmp_gt_u32 vcc, {DCUT<<16}, v{d+e}
            s_and_b64 {sr(sACT+2*ee,2)}, vcc, s[{sT+2}:{sT+3}]
            s_mov_b64 exec, {sr(sACT+2*ee,2)}
            ds_add_rtn_u32 v{vRK+ee}, v{vHA+ee}, v{vT+11}
            s_mov_b64 exec, -1
            """)
    a("s_waitcnt lgkmcnt(0)\ns_barrier")
    stamp()
    Lna = a.label("K1_NOATOM"); Lnb = a.label("K1_NOATOM2")
    a(f"""
    s_cmp_lg_u32 s3, 0
    s_cbranch_scc1 {Lna}
    ds_read_b32 v{vQ+4}, v{vT+3}
    v_lshlrev_b32 v{vT+5}, 2, v0
    s_waitcnt lgkmcnt(0)
    v_mov_b32 v{vQ+6}, v{vQ+4}
    v_mov_b32 v{vQ+7}, v{vQ+4}
    buffer_atomic_add v{vQ+6}, v{vT+5}, {sr(sDBG,4)}, 0 offen sc0
    """)
    dpp_scan(a, "v_add_u32", vQ + 7)
    a(f"""
    ds_write_b32 v{vT+3}, v{vQ+7} offset:4
    v_sub_u32 v{vQ+7}, v{vQ+7}, v{vQ+4}
    ds_write_b32 v{vT+3}, v{vQ+7}
{Lna}:
    """)
    for pr in range(4):
        p = vP + 12 * pr; d = vDD + 2 * pr
        r0, r1 = vREC + 8 * pr, vREC + 8 * pr + 4
        a(f"""
        v_rcp_f32 v{vQ}, v{d}
        v_rcp_f32 v{vQ+1}, v{d+1}
        v_cmp_gt_u32 vcc, s{sT+6}, v{d}
        v_cmp_gt_u32 s[{sT+4}:{sT+5}], s{sT+6}, v{d+1}
        v_pk_mul_f32 {vr(p,2)}, {vr(p,2)}, {vr(vQ,2)}
        v_pk_mul_f32 {vr(p+2,2)}, {vr(p+2,2)}, {vr(vQ,2)}
        v_pk_mul_f32 {vr(p+4,2)}, {vr(p+4,2)}, {vr(vQ,2)}
        v_cndmask_b32 v{vQ+2}, v{vT+8}, v{vT+9}, vcc
        v_cndmask_b32 v{vQ+3}, v{vT+8}, v{vT+9}, s[{sT+4}:{sT+5}]
        v_cvt_pk_bf16_f32 v{vT+4}, v{p}, v{p+1}
        v_cvt_pk_bf16_f32 v{vT+5}, v{p+2}, v{p+3}
        v_cvt_pk_bf16_f32 v{vT+6}, v{p+4}, v{p+5}
        v_add3_u32 v{r0+3}, v{d}, v{vQ+2}, v{vSRC+2*pr}
        v_add3_u32 v{r1+3}, v{d+1}, v{vQ+3}, v{vSRC+2*pr+1}
        v_lshl_or_b32 v{r0}, v{vT+4}, 16, v{vKEY+2*pr}
        v_and_or_b32 v{r1}, v{vT+4}, s{sT+1}, v{vKEY+2*pr+1}
        v_lshl_or_b32 v{r0+1}, v{vT+5}, 16, v{vDST+2*pr}
        v_and_or_b32 v{r1+1}, v{vT+5}, s{sT+1}, v{vDST+2*pr+1}
        v_lshlrev_b32 v{r0+2}, 16, v{vT+6}
        v_and_b32 v{r1+2}, s{sT+1}, v{vT+6}
        """)
    a("s_waitcnt lgkmcnt(0)\ns_barrier")
    for e in range(8):
        a(f"ds_read_b32 v{vP+e}, v{vHA+e}")
    a(f"v_mov_b32 v{vT+8}, {L_EH}\nds_read_b32 v{vT+9}, v{vT+8} offset:256")
    a("s_waitcnt lgkmcnt(0)")
    for e in range(8):
        a(f"""
        v_add_lshl_u32 v{vP+e}, v{vP+e}, v{vRK+e}, 4
        v_add_u32 v{vP+e}, {L_STG}, v{vP+e}
        s_mov_b64 exec, {sr(sACT+2*e,2)}
        ds_write_b128 v{vP+e}, {vr(vREC+4*e,4)}
        s_mov_b64 exec, -1
        """)
    a(f"""
    v_readfirstlane_b32 s{sT+4}, v{vT+9}
    s_cmp_lg_u32 s3, 0
    s_cbranch_scc1 {Lnb}
    s_mov_b32 s{sT}, {E}
    s_waitcnt vmcnt(0)
    v_and_b32 v{vQ+6}, 0x3ffff, v{vQ+6}
    v_mad_u32_u24 v{vT+6}, v0, s{sT}, v{vQ+6}
    v_sub_u32 v{vT+6}, v{vT+6}, v{vQ+7}
    v_lshlrev_b32 v{vT+6}, 4, v{vT+6}
    ds_write_b32 v{vT+3}, v{vT+6} offset:{L_DLT - L_EH}
{Lnb}:
    v_lshlrev_b32 v{vT+5}, 4, v0
    v_add_u32 v{vT+2}, {L_STG}, v{vT+5}
    s_waitcnt lgkmcnt(0)
    s_barrier
    """)
    stamp()
    for e in range(8):
        a(f"ds_read_b128 {vr(vREC+4*e,4)}, v{vT+2} offset:{e*8192}")
    for e in range(8):
        a(f"""
        s_waitcnt lgkmcnt(7)
        v_and_b32 v{vP+e}, 0xfc, v{vREC+4*e+1}
        v_add_u32 v{vP+e}, {L_DLT}, v{vP+e}
        ds_read_b32 v{vP+e}, v{vP+e}
        v_and_b32 v{vREC+4*e+1}, s{sT+1}, v{vREC+4*e+1}
        v_add_u32 v{vT+6}, {e*512}, v0
        v_cmp_gt_u32 {sr(sACT+2*e,2)}, s{sT+4}, v{vT+6}
        """)
    for e in range(8):
        Ls = a.label("K1_ES")
        a(f"""
        s_waitcnt lgkmcnt({7-e})
        v_add_u32 v{vP+e}, v{vP+e}, v{vT+5}
        s_mov_b32 s{sT}, {e*8192}
        s_mov_b64 exec, {sr(sACT+2*e,2)}
        s_cbranch_execz {Ls}
        buffer_store_dwordx4 {vr(vREC+4*e,4)}, v{vP+e}, {sr(sLIST,4)}, s{sT} offen sc1
{Ls}:
        s_mov_b64 exec, -1
        """)
    dump_stamps(nst[0])
    a(f"""
{Larr}:
    s_cmp_lg_u32 s3, 0
    s_cbranch_scc1 {Lp2}
    """)
    srd(a, 28, 22, None, 0, 256)
    a(f"""
    v_mov_b32 v1, 0
    s_mov_b64 exec, 1
    buffer_load_dwordx2 v[{VTOK}:{VTOK+1}], v1, s[28:31], 0 offen sc1
    s_mov_b64 exec, -1
    s_branch {Lp2}
    """)
    Lagg = a.label("K1_AGG")
    a(f"""
{Lagg}:
    s_cmp_lg_u32 s3, 0
    s_cbranch_scc1 {Lp2}
    """)
    srd(a, 28, 22, None, 0, 256)
    srd(a, 32, 24, None, WS_LUT + M_EPO, 128)
    a(f"""
    v_mov_b32 v1, 0
    s_mov_b64 exec, 1
    buffer_load_dword v2, v1, s[32:35], 0 offen sc1
    s_waitcnt vmcnt(0)
    v_add_u32 v2, 0x09e3779b, v2
    buffer_store_dword v2, v1, s[32:35], 0 offen sc1
    v_and_b32 v3, 0x1fff, v2
    v_bfe_u32 v4, v2, 13, 13
    v_lshl_or_b32 v3, v3, 1, 1
    v_lshl_or_b32 v4, v4, 1, 1
    v_lshlrev_b32 v3, 18, v3
    v_lshlrev_b32 v4, 18, v4
    s_waitcnt vmcnt(0)
    buffer_atomic_add v3, v1, s[28:31], 0 offen
    buffer_atomic_add v4, v1, s[28:31], 0 offen offset:4
    v_mov_b32 v{VTOK}, v3
    v_mov_b32 v{VTOK+1}, v4
    s_mov_b64 exec, -1
    s_branch {Lp2}
    """)

    Lbop = a.label("K1_BOP")
    a(f"{Lbop}:")
    a(f"s_waitcnt lgkmcnt(0)\ns_cmp_lg_u32 s2, {WG_BOP}\ns_cbranch_scc1 {Lagg}")
    srd(a, 28, 18, None, 0, 16 * 768 * 2)
    srd(a, 32, 24, None, WS_LUT + M_BOP, 24576)
    a(f"""
    v_bfe_u32 v1, v0, 4, 1
    v_mul_u32_u24 v1, {8*1536}, v1
    v_and_b32 v2, 15, v0
    v_lshl_add_u32 v1, v2, 2, v1
    s_lshl_b32 s36, s3, 6
    v_add_u32 v1, s36, v1
    v_bfe_u32 v3, v0, 5, 1
    v_xor_b32 v2, 1, v3
    v_lshl_add_u32 v2, v2, 9, v1
    """)
    for m in range(8):
        a(f"s_movk_i32 s37, {m*1536}")
        a(f"buffer_load_dword v{8+m}, v2, s[28:31], s37 offen")
        a(f"buffer_load_dword v{16+m}, v1, s[28:31], s37 offen offset:1024")
    a(f"""
    s_mov_b32 s38, 0x05040100
    s_mov_b32 s39, 0x07060302
    v_mul_u32_u24 v3, 0x020202, v3
    v_lshl_or_b32 v3, v3, 8, v3
    v_add_u32 v3, s38, v3
    v_and_b32 v4, 63, v0
    v_lshlrev_b32 v4, 4, v4
    s_mul_i32 s36, s3, 3072
    s_waitcnt vmcnt(0)
    """)
    for m in range(4):
        a(f"v_perm_b32 v{24+m}, v{8+2*m+1}, v{8+2*m}, s39")
        a(f"v_perm_b32 v{28+m}, v{8+2*m+1}, v{8+2*m}, s38")
        a(f"v_perm_b32 v{32+m}, v{16+2*m+1}, v{16+2*m}, v3")
    a(f"""
    buffer_store_dwordx4 v[24:27], v4, s[32:35], s36 offen sc1
    buffer_store_dwordx4 v[28:31], v4, s[32:35], s36 offen offset:1024 sc1
    buffer_store_dwordx4 v[32:35], v4, s[32:35], s36 offen offset:2048 sc1
    s_branch {Larr}
    """)
    a(f"{Llut}:")
    a(f"""
    s_cmp_ge_u32 s2, {WG_LUT0+NLUTWG}
    s_cbranch_scc1 {Lbop}
    s_waitcnt lgkmcnt(0)
    s_load_dwordx8 s[28:35], s[12:13], 0
    """)
    srd(a, 60, 24, None, WS_LUT, LUT_BYTES)
    a(f"""
    s_sub_u32 s56, s2, {WG_LUT0}
    s_lshl_b32 s56, s56, 9
    v_add_u32 v1, s56, v0
    v_add_u32 v2, {DBASE}, v1
    v_lshlrev_b32 v2, 16, v2
    v_lshlrev_b32 v1, 5, v1
    s_mov_b32 s52, 0x40490fdb
    s_mov_b32 s53, 0x3e4ccccd
    s_mov_b32 s54, 0x3e22f983
    s_waitcnt lgkmcnt(0)
    """)
    for k in range(8):
        a(f"s_lshl_b32 s{36+2*k}, s{28+k}, 16\ns_and_b32 s{37+2*k}, s{28+k}, 0xffff0000")
    lut_row(a, 2, 4, 12, 36, 52)
    a(f"""
    buffer_store_dwordx4 v[4:7], v1, s[60:63], 0 offen sc1
    buffer_store_dwordx4 v[8:11], v1, s[60:63], 0 offen offset:16 sc1
    s_branch {Larr}
{Lcend}:
    """)
    a.cur = a0

    a(f"{Lgemm}:")
    V = Regs("v", 1, 256)
    vD1 = V.alloc("d1"); vD2 = V.alloc("d2"); vD3 = V.alloc("d3"); vDV = V.alloc("dv")
    vAS = V.alloc("as", 2); vTR = V.alloc("tr", 2); vHW = V.alloc("hw", 4)
    vVR = V.alloc("vr"); vO4 = V.alloc("o4"); vSEL = V.alloc("sel"); vRL = V.alloc("rl")
    vT = V.alloc("t", 12, 2)
    vACC = V.alloc("acc", 72, 4)
    vAF = V.alloc("af", 96, 4)
    vBF = V.alloc("bf", 32, 4)
    vV = V.alloc("v", 12)
    vOB = V.alloc("ob", 12, 4)
    nvmax = max(nvmax, V.hi)
    assert vHW < VTOK and VTOK + 1 <= vHW + 3, (vHW, VTOK)
    sSV, sW1, sW2, sT4, sT1 = 28, 32, 36, 40, 44
    sT = 48; sHI = 56; sROW = 57; sM = 58; sRB = 59; sRND = 60; sL = 61; sROT = 62; sMV = 63
    sK1 = 64; sK2 = 72; sEV = 80
    q, j = vT + 1, vT + 2
    hi, ch = vT + 3, vT + 4
    a(f"""
    s_sub_u32 s{sROW}, s2, {WG_GEMM0}
    s_mul_i32 s{sROW}, s{sROW}, {ROWS}
    s_lshl_b32 s{sRB}, s{sROW}, 11
    s_and_b32 s{sL}, s3, 3
    s_lshr_b32 s{sROT}, s2, 3
    s_and_b32 s{sROT}, s{sROT}, {7 if opt.get("rot", 1) else 0}
    s_lshl_b32 s{sMV}, s{sL}, 10
    s_and_b32 s{sT}, s{sL}, 1
    s_lshr_b32 s{sT+1}, s{sL}, 1
    s_lshl_b32 s{sT+2}, s{sT+1}, 2
    s_add_u32 s{sT+2}, s{sT+2}, s{sT}
    s_lshl_b32 s{sM}, s{sT+2}, 10
    v_bfe_u32 v{hi}, v0, 5, 1
    v_and_b32 v{ch}, 31, v0
    """)
    a(f"""
    s_lshl_b32 s{sT+3}, s{sL}, 2
    v_lshl_add_u32 v{vT+5}, v{hi}, 1, s{sT+3}
    v_xor_b32 v{vT+5}, v{vT+5}, v{ch}
    v_lshlrev_b32 v{vT+5}, 4, v{vT+5}
    v_lshl_add_u32 v{vD1}, v{hi}, 9, v{vT+5}
    v_add_u32 v{vD1}, s{sM}, v{vD1}
    """)
    a(f"""
    s_lshl_b32 s{sT+4}, s{sL}, 12
    v_lshl_add_u32 v{vT+6}, v{hi}, 11, v{vT+5}
    v_add_u32 v{vT+6}, s{sT+4}, v{vT+6}
    """)
    for n in range(3):
        a(f"s_xor_b32 s{sK1+n}, s{sROT}, {n}\ns_lshl_b32 s{sK1+n}, s{sK1+n}, 14")
    a("s_waitcnt lgkmcnt(0)")
    srd(a, sSV, 4, None, 0, N * 2048)
    srd(a, sW1, 14, None, 0, 256 * 512)
    units = [("w1", n, 0) for n in range(8)] + [("a", n, 0) for n in range(8)] + [("a", n, 1) for n in range(8)] \
          + [("b", n, 0) for n in range(4)] + [("b", n, 1) for n in range(4)]
    owner = lambda u: units[u][2]
    class C: pass
    st = C(); st.seq = []
    def dma_unit(u, which=(0, 1, 2, 3)):
        kind, n, hf = units[u]
        for i in which:
            rr = 4 * (i & 1) + 16 * (i >> 1)
            kr = 2 * (i & 1) + 8 * (i >> 1)
            a(f"s_add_u32 m0, s{sM}, {L_RING + (u%4)*16384 + rr*512}")
            if kind == "w1":
                a(f"s_add_u32 s{sT}, s{sK1+n}, {rr*512}")
                a(f"buffer_load_dwordx4 v{vD1}, {sr(sW1,4)}, s{sT} offen lds")
            elif kind == "a":
                a(f"s_add_u32 s{sT}, s{sK2+n}, {kr*1536 + hf*256}")
                a(f"buffer_load_dwordx4 v{vD2}, {sr(sW2,4)}, s{sT} offen lds")
            else:
                a(f"s_add_u32 s{sT}, s{sK1+n}, {kr*1536 + hf*256 + 1024}")
                a(f"buffer_load_dwordx4 v{vD3}, {sr(sW2,4)}, s{sT} offen lds")
            st.seq.append(("U", u))
    def dma_v(hf, n):
        c, i = n % 3, n // 3
        a(f"""
        s_add_u32 m0, s{sMV}, {L_V + (hf*3+c)*ROWS*256 + i*4096}
        s_add_u32 s{sT}, s{sRB}, {i*16*2048 + 512*(c+1) + hf*256}
        buffer_load_dwordx4 v{vDV}, {sr(sSV,4)}, s{sT} offen lds
        """)
        st.seq.append(("V", hf))
    LnoB0 = a.label("K1_G0")
    a(f"s_cmp_lt_u32 s3, 4\ns_cbranch_scc1 {LnoB0}")
    for i in range(6):
        a(f"""
        s_add_u32 m0, s{sMV}, {L_H + i*4096}
        s_add_u32 s{sT}, s{sRB}, {i*8*2048}
        buffer_load_dwordx4 v{vT+6}, {sr(sSV,4)}, s{sT} offen lds
        """)
        st.seq.append(("U", 0))
    for u in range(3): dma_unit(u)
    seqB0 = list(st.seq)
    a(f"{LnoB0}:")
    for n in range(3, 8):
        a(f"s_xor_b32 s{sK1+n}, s{sROT}, {n}\ns_lshl_b32 s{sK1+n}, s{sK1+n}, 14")
    for n in range(8):
        a(f"s_mul_i32 s{sK2+n}, s{sK1+n}, 3")
    srd(a, sW2, 16, None, 0, 256 * 1536)
    a(f"s_lshr_b32 s{sT+6}, s3, 1\ns_mul_i32 s{sT+6}, s{sT+6}, {TAB_SL}")
    srd(a, sT4, 24, sT + 6, WS_TAB, TAB_SL)
    a(f"""
    v_lshl_add_u32 v{vT+7}, v{hi}, 4, s{sT+2}
    v_mul_u32_u24 v{vT+7}, 1536, v{vT+7}
    v_and_b32 v{vT+8}, 0xf0, v{vT+5}
    v_add_u32 v{vT+7}, v{vT+7}, v{vT+8}
    v_lshrrev_b32 v{vT+8}, 4, v{ch}
    v_xor_b32 v{vT+9}, 1, v{vT+8}
    v_lshl_add_u32 v{vD2}, v{vT+9}, 9, v{vT+7}
    v_xor_b32 v{vT+8}, s{sROT}, v{vT+8}
    v_and_b32 v{vT+8}, 1, v{vT+8}
    v_mul_u32_u24 v{vT+8}, 49152, v{vT+8}
    v_add_u32 v{vD3}, v{vT+7}, v{vT+8}
    s_mov_b32 s{sHI}, 0x07060302
    s_mov_b32 s{sRND}, 0x8000
    v_bfe_u32 v{q}, v0, 4, 2
    v_and_b32 v{j}, 15, v0
    s_lshl_b32 s{sT+4}, s{sL}, 13
    v_lshlrev_b32 v{vDV}, 11, v{q}
    v_lshl_add_u32 v{vDV}, v{j}, 4, v{vDV}
    v_add_u32 v{vDV}, s{sT+4}, v{vDV}
    v_and_b32 v{vT+3}, 7, v{j}
    v_lshlrev_b32 v{vT+3}, 1, v{vT+3}
    v_xor_b32 v{vT+3}, v{vT+3}, v{q}
    v_lshlrev_b32 v{vT+3}, 4, v{vT+3}
    v_lshl_add_u32 v{vAS}, v{j}, 9, v{vT+3}
    s_lshl_b32 s{sT+4}, s{sROT}, 6
    v_xor_b32 v{vAS}, s{sT+4}, v{vAS}
    v_add_u32 v{vAS}, {L_H}, v{vAS}
    """)
    a(f"""
    v_lshrrev_b32 v{vT+3}, 2, v{j}
    v_and_b32 v{vT+4}, 1, v{q}
    v_lshl_or_b32 v{vT+4}, v{vT+4}, 2, v{vT+3}
    v_lshlrev_b32 v{vT+4}, 1, v{vT+4}
    v_bfe_u32 v{vT+5}, v0, 1, 1
    v_or_b32 v{vT+5}, s{sT+3}, v{vT+5}
    v_xor_b32 v{vT+4}, v{vT+4}, v{vT+5}
    v_lshl_add_u32 v{vT+3}, v{q}, 3, v{vT+3}
    v_lshlrev_b32 v{vT+3}, 9, v{vT+3}
    v_lshl_add_u32 v{vT+3}, v{vT+4}, 4, v{vT+3}
    v_and_b32 v{vT+4}, 1, v0
    v_lshl_add_u32 v{vTR}, v{vT+4}, 3, v{vT+3}
    v_xor_b32 v{vTR+1}, 32, v{vTR}
    """)
    a(f"""
    v_lshrrev_b32 v{vT+3}, 2, v{j}
    v_or_b32 v{vT+3}, s{sT+3}, v{vT+3}
    v_and_b32 v{vT+4}, 1, v{q}
    v_lshlrev_b32 v{vT+4}, 3, v{vT+4}
    v_xor_b32 v{vT+3}, v{vT+3}, v{vT+4}
    v_lshlrev_b32 v{vT+3}, 4, v{vT+3}
    v_and_b32 v{vT+4}, 3, v{j}
    v_lshl_add_u32 v{vT+3}, v{vT+4}, 2, v{vT+3}
    v_lshl_add_u32 v{vT+3}, v{q}, 11, v{vT+3}
    v_add_u32 v{vHW}, {L_H}, v{vT+3}
    v_xor_b32 v{vHW+1}, 32, v{vHW}
    v_xor_b32 v{vHW+2}, 64, v{vHW}
    v_xor_b32 v{vHW+3}, 96, v{vHW}
    """)
    a(f"""
    v_and_b32 v{vT+3}, 1, v{j}
    v_lshlrev_b32 v{vT+3}, 5, v{vT+3}
    v_lshrrev_b32 v{vT+4}, 1, v{j}
    v_lshl_add_u32 v{vT+3}, v{vT+4}, 2, v{vT+3}
    s_lshr_b32 s{sT+1}, s3, 2
    s_mul_i32 s{sT+1}, s{sT+1}, {3*ROWS*256}
    s_lshl_b32 s{sT+4}, s{sL}, 6
    s_add_u32 s{sT+1}, s{sT+1}, s{sT+4}
    s_add_u32 s{sT+1}, s{sT+1}, {L_V}
    v_add_u32 v{vT+3}, s{sT+1}, v{vT+3}
    v_lshl_add_u32 v{vVR}, v{q}, 10, v{vT+3}
    v_lshl_add_u32 v{vT+3}, v{q}, 2, s{sROW}
    v_mul_u32_u24 v{vO4}, {ROWB}, v{vT+3}
    v_lshl_add_u32 v{vO4}, v{j}, 4, v{vO4}
    s_and_b32 s{sT+4}, s3, 1
    s_lshl_b32 s{sT+4}, s{sT+4}, 8
    v_add_u32 v{vO4}, s{sT+4}, v{vO4}
    s_mov_b32 s{sEV}, 0x55555555
    s_mov_b32 s{sEV+1}, 0x55555555
    v_mov_b32 v{vT+3}, 0x03020706
    v_mov_b32 v{vT+4}, 0x05040100
    v_mov_b32 v{vT+5}, 0x8000
    v_cndmask_b32 v{vSEL}, v{vT+3}, v{vT+4}, s[{sEV}:{sEV+1}]
    v_cndmask_b32 v{vRL}, 0, v{vT+5}, s[{sEV}:{sEV+1}]
    """)
    def af_read(ns):
        for n in ns:
            if n: a(f"v_xor_b32 v{vAS+1}, {n*64}, v{vAS}")
            for mt in range(3):
                a(f"ds_read_b128 {vr(vAF+(n*3+mt)*4,4)}, v{vAS+1 if n else vAS} offset:{mt*8192}")
    def tr_read(u):
        b = vBF + 16 * (u & 1)
        for side in range(2):
            for t in range(2):
                for h in range(2):
                    a(f"ds_read_b64_tr_b16 {vr(b+8*side+4*t+2*h,2)}, v{vTR+t} offset:{L_RING + (u%4)*16384 + h*2048 + side*256}")
    def mfmas(u, dmu=None):
        kind, n, hf = units[u]
        b = vBF + 16 * (u & 1)
        for side in range(2):
            for t in range(2):
                for mt in range(3):
                    if dmu is not None and mt == 1: dma_unit(dmu, (side * 2 + t,))
                    if kind == "b":
                        nn = 2 * n + side; nt = 4 + t
                    else:
                        nn = n; nt = 2 * side + t
                    acc = vACC + (mt * 6 + nt) * 4
                    c = "0" if nn == 0 else vr(acc, 4)
                    a(f"v_mfma_f32_16x16x32_bf16 {vr(acc,4)}, {vr(vAF+(nn*3+mt)*4,4)}, {vr(b+8*side+4*t,4)}, {c}")
    def silu():
        a(f"s_mov_b32 s{sT+6}, 0xbfb8aa3b\ns_mov_b32 s{sT+7}, 0xbfb8aa3b\ns_nop 7")
        cnt = 0
        for side in range(2):
            for mt in range(3):
                for r in range(0, 4, 2):
                    L = []
                    for rr in range(2):
                        a0, a1 = vACC + (mt * 6 + 2 * side) * 4 + r + rr, vACC + (mt * 6 + 2 * side + 1) * 4 + r + rr
                        x, e_, p = vT + 6 * rr, vT + 2 + 6 * rr, vT + 4 + 6 * rr
                        L.append(f"""v_cvt_pk_bf16_f32 v{p}, v{a0}, v{a1}
                        v_lshlrev_b32 v{x}, 16, v{p}
                        v_and_b32 v{x+1}, 0xffff0000, v{p}
                        v_pk_mul_f32 {vr(e_,2)}, {vr(x,2)}, s[{sT+6}:{sT+7}]
                        v_exp_f32 v{e_}, v{e_}
                        v_exp_f32 v{e_+1}, v{e_+1}
                        v_pk_add_f32 {vr(e_,2)}, {vr(e_,2)}, 1.0 op_sel_hi:[1,0]
                        v_rcp_f32 v{e_}, v{e_}
                        v_rcp_f32 v{e_+1}, v{e_+1}
                        v_pk_mul_f32 {vr(x,2)}, {vr(x,2)}, {vr(e_,2)}
                        v_cvt_pk_bf16_f32 v{p}, v{x}, v{x+1}
                        ds_write_b32 v{vHW+r+rr}, v{p} offset:{(mt*16+r+rr)*512 + side*256}""".split("\n"))
                    for l0, l1 in zip(*L):
                        a(l0); a(l1)
                    cnt += 1
                    if cnt % 3 == 0: a("s_waitcnt lgkmcnt(2)")
    DPP = "quad_perm:[1,0,3,2] row_mask:0xf bank_mask:0xf"
    def v_read(pc):
        mt, r = pc // 4, pc % 4
        for c in range(3):
            a(f"ds_read_b32 v{vV + (pc % 4) * 3 + c}, v{vVR} offset:{c*ROWS*256 + (mt*16+r)*256}")
    def t4_piece(pc):
        mt, r = pc // 4, pc % 4
        A_ = lambda nt: vACC + (mt * 6 + nt) * 4 + r
        o = vOB + 4 * (pc % 3); vv = vV + (pc % 4) * 3
        lo, hi_, P, Q = vT, vT + 1, vT + 2, vT + 3
        x = vT + 4
        a(f"""
        v_perm_b32 v{P}, v{A_(3)}, v{A_(2)}, s{sHI}
        v_mov_b32_dpp v{lo}, v{A_(1)} {DPP}
        v_mov_b32_dpp v{hi_}, v{A_(0)} {DPP}
        v_mov_b32_dpp v{Q}, v{P} {DPP}
        v_cndmask_b32 v{lo}, v{lo}, v{A_(0)}, s[{sEV}:{sEV+1}]
        v_cndmask_b32 v{hi_}, v{A_(1)}, v{hi_}, s[{sEV}:{sEV+1}]
        v_perm_b32 v{o+3}, v{Q}, v{P}, v{vSEL}
        v_lshlrev_b32 v{x}, 16, v{vv}
        v_and_b32 v{x+1}, 0xffff0000, v{vv}
        v_lshlrev_b32 v{x+2}, 16, v{vv+1}
        v_and_b32 v{x+3}, 0xffff0000, v{vv+1}
        v_lshlrev_b32 v{x+4}, 16, v{vv+2}
        v_and_b32 v{x+5}, 0xffff0000, v{vv+2}
        v_mul_f32 v{x}, v{x}, v{lo}
        v_mul_f32 v{x+1}, v{x+1}, v{hi_}
        v_mul_f32 v{x+2}, v{x+2}, v{lo}
        v_mul_f32 v{x+3}, v{x+3}, v{hi_}
        v_mul_f32 v{x+4}, v{x+4}, v{lo}
        v_mul_f32 v{x+5}, v{x+5}, v{hi_}
        v_add_u32 v{x}, s{sRND}, v{x}
        v_add_u32 v{x+4}, s{sRND}, v{x+4}
        v_perm_b32 v{o+1}, v{x+3}, v{x+2}, s{sHI}
        v_perm_b32 v{o}, v{x+1}, v{x}, s{sHI}
        v_perm_b32 v{o+2}, v{x+5}, v{x+4}, s{sHI}
        s_movk_i32 s{sT+4}, {mt*16*ROWB}
        buffer_store_dwordx4 {vr(o,4)}, v{vO4}, {sr(sT4,4)}, s{sT+4} offen offset:{r*ROWB} {tab_fl}
        """)
        st.seq.append("ST")
    def t1_epi():
        a(f"""
        s_mul_i32 s{sT+4}, s3, 3072
        s_add_u32 s{sT+4}, s{sT+4}, {L_H}
        v_mbcnt_lo_u32_b32 v{vT}, -1, 0
        v_mbcnt_hi_u32_b32 v{vT}, -1, v{vT}
        v_lshrrev_b32 v{vT+1}, 4, v{vT}
        v_and_b32 v{vT+2}, 15, v{vT}
        v_lshlrev_b32 v{vT+1}, 8, v{vT+1}
        v_lshl_add_u32 v{vT+1}, v{vT+2}, 1, v{vT+1}
        v_add_u32 v{vT+1}, s{sT+4}, v{vT+1}
        v_lshl_add_u32 v{vT+2}, v{vT}, 4, s{sT+4}
        v_lshrrev_b32 v{vT+3}, 2, v{vT}
        v_and_b32 v{vT}, 3, v{vT}
        v_add_u32 v{vT+3}, s{sROW}, v{vT+3}
        v_mul_u32_u24 v{vT+3}, {ROWB}, v{vT+3}
        v_lshl_add_u32 v{vT}, v{vT}, 4, v{vT+3}
        s_and_b32 s{sT+4}, s3, 1
        s_lshl_b32 s{sT+4}, s{sT+4}, 6
        s_add_u32 s{sT+5}, s{sT+4}, {16*ROWB}
        s_add_u32 s{sT+6}, s{sT+4}, {32*ROWB}
        """)
        for mt in range(3):
            A_ = lambda nt, r: vACC + (mt * 6 + nt) * 4 + r
            for r in range(4):
                for t in range(2):
                    a(f"v_add_u32 v{A_(4+t,r)}, v{A_(4+t,r)}, v{vRL}")
                    a(f"ds_write_b16_d16_hi v{vT+1}, v{A_(4+t,r)} offset:{(mt*16+r)*64 + 32*t}")
                if mt and r == 2:
                    a("s_waitcnt lgkmcnt(6)")
                    a(f"buffer_store_dwordx4 {vr(vOB+4*(mt-1),4)}, v{vT}, {sr(sT4,4)}, s{sT+4+mt-1} offen offset:512 {tab_fl}")
                    st.seq.append("ST")
            a(f"ds_read_b128 {vr(vOB+4*mt,4)}, v{vT+2} offset:{mt*1024}")
        a("s_waitcnt lgkmcnt(0)")
        a(f"buffer_store_dwordx4 {vr(vOB+8,4)}, v{vT}, {sr(sT4,4)}, s{sT+6} offen offset:512 {tab_fl}")
        st.seq.append("ST")
    v0_at = opt.get("v0_at", 7); v1_at = opt.get("v1_at", 8); pf_at = opt.get("pf_at", 8); pf_cls = opt.get("pf_cls", 1)
    lsw = opt.get("lsw", [16, 24])
    def loader(u):
        if opt.get("selfload", 1): return 1 if u < 24 else 0
        return 1 if u < lsw[0] else (0 if u < lsw[1] else 1)
    def prefetch():
        a(f"""
        s_lshr_b32 s{sT+1}, s2, 3
        s_add_u32 s{sT+1}, s{sT+1}, {24-6}
        s_cmp_ge_u32 s{sT+1}, 24
        s_cselect_b32 s{sT+2}, 24, 0
        s_sub_u32 s{sT+1}, s{sT+1}, s{sT+2}
        s_lshl_b32 s{sT+2}, s{sT+1}, 2
        s_add_u32 s{sT+2}, s{sT+2}, s{sL}
        s_lshl_b32 s{sT+3}, s{sT+2}, 12
        v_mbcnt_lo_u32_b32 v{vV}, -1, 0
        v_lshlrev_b32 v{vV}, 7, v{vV}
        s_mov_b32 exec_hi, 0
        buffer_load_dword v{vV+1}, v{vV}, {sr(sW2,4)}, s{sT+3} offen
        s_mov_b64 exec, -1
        """)
        st.seq.append("PF")
    pB = opt.get("pB", [3, 3, 3, 3, 0, 0, 0, 0])
    pA = opt.get("pA", [2, 2, 2, 1, 1, 1, 1, 1, 1])
    if len(pB) == 8: pB = [0] + pB
    pieces = [{}, {}]
    for cls, base, pl in ((0, 15, pA), (1, 23, pB)):
        k = 0
        for i_, c_ in enumerate(pl):
            pieces[cls][base + i_] = list(range(k, k + c_)); k += c_
        assert k == 12
    LB = a.label("K1_GB"); Lfin = a.label("K1_GFIN")
    a(f"s_cmp_ge_u32 s3, 4\ns_cbranch_scc1 {LB}")
    stu = opt.get("stu", [0, 9, 15, 24])
    for cls in range(2):
        if cls == 1: a(f"{LB}:")
        nst[0] = 1 if stamps else 0
        st.seq = list(seqB0) if cls == 1 else []
        if pf_at == -1 and cls == pf_cls: prefetch()
        def wait_tags(tags):
            idx = [i for i, t in enumerate(st.seq) if t in tags]
            if idx: a(f"s_waitcnt vmcnt({min(63, len(st.seq) - 1 - max(idx))})")
        for u in range(32):
            tags = [("U", u)]
            if u == 15: tags.append(("V", 0))
            if u == 23: tags.append(("V", 1))
            if u == 29: tags += [("U", 30), ("U", 31)]
            if u <= 29:
                wait_tags(tags)
                a("s_barrier")
            if u in stu: stamp()
            if u == 8:
                for n in range(4):
                    a(f"s_min_u32 s{sK1+n}, s{sK2+2*n}, s{sK2+2*n+1}")
            lds = False
            if owner(u) == cls: tr_read(u); lds = True
            if cls == 0 and u in (0, 9):
                af_read(range(0, 2)); a("s_waitcnt lgkmcnt(4)")
                af_read(range(2, 5)); a("s_waitcnt lgkmcnt(4)")
                af_read(range(5, 8))
                if u == 9: a("s_waitcnt lgkmcnt(9)")
            early = {8: 7, 16: 15, 24: 23}
            dm = [0, 1, 2, 3] if (loader(u) == cls and u + 3 < 32) else []
            if u >= 1 and owner(u - 1) == cls and early.get(u) != u - 1:
                mfmas(u - 1, u + 3 if dm else None); dm = []
            if u in (7, 15, 23) and owner(u) == cls:
                if u != 7: v_read(0); v_read(1)
                a(f"s_waitcnt lgkmcnt({0 if u == 7 else 6})")
                mfmas(u)
            if cls == 0 and u == opt.get("tok_at", 17):
                Lne = a.label("K1_NOTOK")
                a(f"s_cmp_lg_u32 s3, 0\ns_cbranch_scc1 {Lne}")
                srd(a, sT1, 22, None, 0, 256)
                a(f"""
                v_mov_b32 v{vHW}, 0
                s_mov_b64 exec, 1
                buffer_load_dwordx2 v[{VTOK}:{VTOK+1}], v{vHW}, {sr(sT1,4)}, 0 offen sc1
                s_mov_b64 exec, -1
{Lne}:
                """)
            if cls == 0 and u == 8: silu()
            if u in (15, 23) and owner(u) == cls: a("s_nop 4")
            pcs = list(pieces[cls].get(u, []))
            if pcs:
                if lds: a("s_waitcnt lgkmcnt(0)")
                for pc in pcs:
                    for _ in range(4 // (len(pcs) + 1)):
                        if dm: dma_unit(u + 3, (dm.pop(0),))
                    if pc + 2 < 12: v_read(pc + 2)
                    a(f"s_waitcnt lgkmcnt({min(6, 3 * (11 - pc))})")
                    t4_piece(pc)
            if dm: dma_unit(u + 3, dm)
            if cls == pf_cls and u == pf_at: prefetch()
            if cls == 1 and u == v0_at:
                for n in range(9): dma_v(0, n)
            if cls == 1 and u == v1_at:
                for n in range(9): dma_v(1, n)
            if cls == 1 and 10 <= u < 14: af_read(range(2 * (u - 10), 2 * (u - 10) + 2)); lds = True
            if cls == 0 and u == 28: t1_epi()
            if lds: a("s_waitcnt lgkmcnt(0)")
        if cls == 1:
            mfmas(31); t1_epi()
        stamp()
        if cls == 0: a(f"s_branch {Lfin}")
    a(f"{Lfin}:")
    dump_stamps(nst[0])
    a(f"{Lp2}:")
    phase2(a0, opt, Lend)
    a0.lines += side.lines
    return nvmax, 102
```

```python
from asmlib import *
from layout import *

CHUNK = 2048
SCAP = CHUNK // 4 + 2 * CAPN + 8 + 12
L_LUT = 0
L_STREAM = (NRS + 512) * 32
STREAM_BYTES = SCAP * 64
L_CNT = L_STREAM + STREAM_BYTES
L_HIST = L_CNT + 1280
L_ALLOC = L_HIST + 256
L_SORT = L_ALLOC + 64
L_NADDR = L_SORT + 1280 + 256
L_PARK = 81920
assert L_NADDR + 1280 <= L_PARK
K2_LDS = L_PARK + NKEY * 512
assert K2_LDS <= 163840
DIRS = [0, 1, 0, 1, 1] * 2

def dpp_scan(a, op, v):
    for m in ["row_shr:1", "row_shr:2", "row_shr:4", "row_shr:8"]:
        a("s_nop 1")
        a(f"{op}_dpp v{v}, v{v}, v{v} {m} row_mask:0xf bank_mask:0xf bound_ctrl:0")
    a("s_nop 1")
    a(f"{op}_dpp v{v}, v{v}, v{v} row_bcast:15 row_mask:0xa bank_mask:0xf")
    a("s_nop 1")
    a(f"{op}_dpp v{v}, v{v}, v{v} row_bcast:31 row_mask:0xc bank_mask:0xf")

def gen_k2(a, opt, Lend):
    stamps = opt.get("stamps", False)
    st_fl = opt.get("st_flags", "nt")
    NRG = opt.get("ring", 4); DP = NRG - 1
    V = Regs("v", 1, 256)
    vB = V.alloc("B", 24, 2)
    vC1 = V.alloc("c1"); vC2 = V.alloc("c2"); vML = V.alloc("ml"); vCL = V.alloc("cl")
    vS = V.alloc("vS"); vA = V.alloc("vA"); vPEND = V.alloc("pend"); vG4 = V.alloc("g4"); vCO = V.alloc("co"); vCP = V.alloc("cp")
    vEN = V.alloc("en"); vPA = V.alloc("pa"); vO = V.alloc("O"); vPD = V.alloc("pd")
    vACC = V.alloc("acc", 20, 2)
    vD = V.alloc("D", 24, 2)
    vRH = V.alloc("RH", 8, 2)
    vAOP = V.alloc("A", 4, 2)
    vE = V.alloc("E", 8, 2)
    vX = V.alloc("X", 16, 2)
    vT = V.alloc("T", 4, 2)
    vPK = V.alloc("PK", 2, 2)
    vLI = V.alloc("LI")
    vAD = V.alloc("ad", 4)
    vRING = V.alloc("ring", 24 * NRG, 2)
    P = Regs("v", vRING, 256)
    pT = P.alloc("t", 12, 2)
    pREC = P.alloc("rec", 16, 2)
    pRANK = P.alloc("rank", 4)
    pDL = P.alloc("dl", 4)
    pEK = P.alloc("ek", 10)
    pRS = P.alloc("rs", 4)
    pEND = P.alloc("end")
    pRARE = P.alloc("rare", 32, 2)
    nv = max(V.hi, P.hi)
    def ACC(hf): b = vACC + 10 * hf; return b, b + 2, b + 4, b + 6, b + 8

    sTB, sSV, sOUT, sLIST, sMISC, sDBG = 28, 32, 36, 40, 44, 48
    sM, sRG, sW, sCB, sTOT = 52, 53, 3, 54, 26
    sREM = 55; sPC = 56; sQ = 58; sDIR = 59; sMORE = 60; sPM = 61
    sCNT, sSLOT, sROWB, sMASK, sPS, sSPIN = 62, 63, 64, 65, 66, 67
    sN0 = 8
    sT = 68
    sVAL = 76; sRARE = 84
    STR = [92, 94, 96, 98, 100, 18]
    nst = [0]
    def stamp():
        if stamps:
            a(f"s_memrealtime {sr(STR[nst[0]], 2)}")
            nst[0] += 1
    def srd(d, lo, off_sreg, off_imm, size):
        hi = lo + 1
        if off_sreg is None and off_imm == 0:
            a(f"s_mov_b32 s{d}, s{lo}\ns_mov_b32 s{d+1}, s{hi}")
        else:
            if off_sreg is not None:
                if off_imm:
                    a(f"s_add_u32 s{off_sreg}, s{off_sreg}, {off_imm}")
                a(f"s_add_u32 s{d}, s{lo}, s{off_sreg}")
            else:
                a(f"s_add_u32 s{d}, s{lo}, {off_imm}")
            a(f"s_addc_u32 s{d+1}, s{hi}, 0")
        a(f"s_mov_b32 s{d+2}, {size}\ns_mov_b32 s{d+3}, 0x20000")
    def ring(bslot, st, hf): return vRING + ((bslot * 2 + st) * 2 + hf) * 6
    def issue(bslot, pk0):
        for st in range(2):
            a(f"v_mad_u32_u16 v{vAD+2*st}, v{pk0+st}, s{sROWB}, v{vC1}")
            a(f"v_mad_u32_u16 v{vAD+2*st+1}, v{pk0+st}, s{sROWB}, v{vC2}")
        for st in range(2):
            for hf in range(2):
                a(f"buffer_load_dwordx4 {vr(ring(bslot,st,hf),4)}, v{vAD+2*st}, {sr(sTB,4)}, 0 offen offset:{256*hf}")
            for hf in range(2):
                a(f"buffer_load_dword v{ring(bslot,st,hf)+5}, v{vAD+2*st+1}, {sr(sTB,4)}, 0 offen offset:{512+64*hf}")
    npark = [0]
    def park_dma(n):
        Ls = a.label("K2_NOPARK")
        a(f"s_cmp_eq_u32 s{sPS}, -1\ns_cbranch_scc1 {Ls}")
        for _ in range(n):
            i = npark[0]; npark[0] += 1
            a(f"""
            s_add_u32 m0, s{sPM}, {i*8192}
            s_add_u32 s{sT+7}, s{sPS}, {i*16*64*2048}
            buffer_load_dwordx4 v{vPD}, {sr(sSV,4)}, s{sT+7} offen lds
            """)
        a(f"{Ls}:")
    def slot_setup():
        a(f"""
        v_and_b32 v{vO}, 0xff, v{vEN}
        v_lshl_add_u32 v{vPA}, v{vO}, 9, v{vCP}
        v_lshl_add_u32 v{vO}, v{vO}, 17, v{vCO}
        """)
        for c in range(4):
            a(f"ds_read2_b32 {vr(vE+2*c,2)}, v{vPA} offset0:{32*c} offset1:{32*c+16}")
        a(f"""
        s_add_u32 s{sQ}, s{sQ}, 128
        s_lshr_b32 s{sDIR}, s{sDIR}, 1
        s_bitcmp1_b32 s{sDIR}, 0
        s_cselect_b32 s{sT}, 112, 0
        s_xor_b32 s{sT}, s{sT}, s{sQ}
        v_add_u32 v{vAD}, s{sT}, v{vG4}
        ds_read_b32 v{vEN}, v{vAD}
        s_waitcnt lgkmcnt(1)
        """)
        for hf in range(2):
            HXY, HZS, LXY, LZS, BZ = ACC(hf)
            R = lambda c: vE + 2 * c + hf
            a(f"""
            v_and_b32 v{HXY}, s{sMASK}, v{R(1)}
            v_and_b32 v{HXY+1}, s{sMASK}, v{R(2)}
            v_and_b32 v{HZS}, s{sMASK}, v{R(3)}
            v_and_b32 v{HZS+1}, s{sMASK}, v{R(0)}
            v_lshlrev_b32 v{LXY}, 16, v{R(1)}
            v_lshlrev_b32 v{LXY+1}, 16, v{R(2)}
            v_lshlrev_b32 v{LZS}, 16, v{R(3)}
            v_lshlrev_b32 v{LZS+1}, 16, v{R(0)}
            v_mov_b64 {vr(BZ,2)}, 0
            """)

    Lcommon = a.label("K2_COMMON"); Lnp = a.label("K2_NOPOLL"); Lpl = a.label("K2_POLL"); Lpo = a.label("K2_POLLOK")
    stamp()
    t16, l16 = pT + 5, pT + 6
    a(f"""
    s_bfe_u32 s{sM}, s2, 0x20001
    s_lshr_b32 s{sRG}, s2, 3
    s_lshl_b32 s{sRG}, s{sRG}, 1
    s_and_b32 s{sT}, s2, 1
    s_or_b32 s{sRG}, s{sRG}, s{sT}
    v_mov_b32 v{pT+7}, {L_PASS}
    """)
    srd(sDBG, 22, None, 0, 256)
    srd(sMISC, 24, None, WS_LUT, MISC_BYTES)
    sTOK = 27
    def spin(body, sleep):
        L0 = a.label("K2_SPIN"); L1 = a.label("K2_SPINOK")
        a(f"s_mov_b32 s{sSPIN}, {SPIN_MAX}\n{L0}:")
        body()
        a(f"""
        s_cbranch_scc1 {L1}
        s_sub_u32 s{sSPIN}, s{sSPIN}, 1
        s_cbranch_scc1 {L1}
        s_sleep {sleep}
        s_branch {L0}
{L1}:
        """)
    def arrive():
        a(f"""
        s_mul_i32 s{sT}, s2, {ARRS}
        s_add_u32 s{sT}, s{sT}, {M_ARR}
        v_mov_b32 v{pT+1}, 0
        v_mov_b32 v{pT+3}, s{sTOK}
        s_mov_b64 exec, 1
        buffer_store_dword v{pT+3}, v{pT+1}, {sr(sMISC,4)}, s{sT} offen sc1
        s_mov_b64 exec, -1
        """)
    def wait_arrivals(lo, hi, sleep):
        n = (hi - lo + 63) // 64
        a(f"v_and_b32 v{pT+1}, 63, v0")
        for i in range(n):
            a(f"v_add_u32 v{pEK+i}, {lo + 64*i}, v{pT+1}\nv_min_u32 v{pEK+i}, {hi-1}, v{pEK+i}\nv_mul_u32_u24 v{pEK+i}, {ARRS}, v{pEK+i}")
        a(f"s_mov_b32 s{sT}, {M_ARR}")
        def body():
            for i in range(n):
                a(f"buffer_load_dword v{pEK+4+i}, v{pEK+i}, {sr(sMISC,4)}, s{sT} offen sc1")
            a("s_waitcnt vmcnt(0)")
            for i in range(n):
                a(f"v_xor_b32 v{pEK+4+i}, s{sTOK}, v{pEK+4+i}")
                if i: a(f"v_or_b32 v{pEK+4}, v{pEK+4}, v{pEK+4+i}")
            a(f"v_cmp_ne_u32 vcc, 0, v{pEK+4}\ns_nop 0\ns_cmp_eq_u64 vcc, 0")
        spin(body, sleep)
    Lnag = a.label("K2_NOAGG"); Ltk = a.label("K2_TOK"); Lsd = a.label("K2_SIDE"); Lna = a.label("K2_NOARR")
    a(f"""
    s_cmp_ge_u32 s2, {WG_GEMM0}
    s_cbranch_scc1 {Lsd}
    s_waitcnt vmcnt(0)
    s_barrier
{Lsd}:
    s_cmp_lg_u32 s{sW}, 0
    s_cbranch_scc1 {Lnp}
    s_waitcnt vmcnt(0)
    """)
    token_decode(a, VTOK, sTOK, sT)
    a(f"s_cbranch_scc1 {Ltk}")
    def body():
        a(f"""
        v_mov_b32 v{pT+1}, 0
        s_mov_b64 exec, 1
        buffer_load_dwordx2 v[{VTOK}:{VTOK+1}], v{pT+1}, {sr(sDBG,4)}, 0 offen sc1
        s_mov_b64 exec, -1
        s_waitcnt vmcnt(0)
        """)
        token_decode(a, VTOK, sTOK, sT)
    spin(body, 8)
    a(f"""
{Ltk}:
    s_cmp_ge_u32 s2, {WG_GEMM0}
    s_cbranch_scc1 {Lnag}
    """)
    arrive()
    a(f"s_cmp_lg_u32 s2, {WG_AGG}\ns_cbranch_scc1 {Lnag}")
    wait_arrivals(0, WG_AGG, opt.get("sl0", 8))
    a(f"""
    v_lshlrev_b32 v{pT+1}, 2, v0
    buffer_load_dword v{pT+2}, v{pT+1}, {sr(sDBG,4)}, 0 offen sc1
    v_lshlrev_b32 v{pT+1}, 3, v0
    v_mov_b32 v{pT+3}, s{sTOK}
    s_mov_b32 s{sT}, {M_TOT}
    s_waitcnt vmcnt(0)
    buffer_store_dwordx2 {vr(pT+2,2)}, v{pT+1}, {sr(sMISC,4)}, s{sT} offen sc1
{Lnag}:
    s_lshl_b32 s{sT}, s{sRG}, 3
    s_add_u32 s{sT}, s{sT}, {M_TOT}
    v_mov_b32 v{pT+1}, 0
    s_mov_b64 exec, 1
    """)
    def body():
        a(f"""
        buffer_load_dwordx2 {vr(pT+2,2)}, v{pT+1}, {sr(sMISC,4)}, s{sT} offen sc1
        s_waitcnt vmcnt(0)
        v_readfirstlane_b32 s{sT+1}, v{pT+3}
        s_nop 1
        s_cmp_eq_u32 s{sT+1}, s{sTOK}
        """)
    spin(body, opt.get("sl1", 8))
    a(f"""
    ds_write_b64 v{pT+7}, {vr(pT+2,2)}
    s_mov_b64 exec, -1
{Lnp}:
    v_lshlrev_b32 v{t16}, 4, v0
    v_and_b32 v{pT+1}, 63, v0
    v_lshlrev_b32 v{l16}, 4, v{pT+1}
    s_mul_i32 s{sT}, s{sRG}, {LIST_STRIDE}
    s_movk_i32 s{sT+2}, 8192
    s_movk_i32 s{sT+3}, 16384
    s_movk_i32 s{sT+4}, 24576
    """)
    srd(sLIST, 24, sT, WS_LIST, LIST_STRIDE)
    a(f"""
    s_waitcnt vmcnt(0) lgkmcnt(0)
    s_barrier
    s_cmp_lg_u32 s{sW}, 0
    s_cbranch_scc1 {Lna}
    s_cmp_lt_u32 s2, {WG_GEMM0}
    s_cbranch_scc1 {Lna}
    """)
    arrive()
    a(f"""
{Lna}:
    ds_read_b64 {vr(pT+2,2)}, v{pT+7}
    s_waitcnt lgkmcnt(0)
    v_readfirstlane_b32 s{sTOT}, v{pT+2}
    v_readfirstlane_b32 s{sTOK}, v{pT+3}
    s_nop 1
    s_and_b32 s{sTOT}, s{sTOT}, 0x3ffff
    s_min_u32 s{sTOT}, s{sTOT}, {E}
    s_lshl_b32 s{sLIST+2}, s{sTOT}, 4
    buffer_load_dwordx4 {vr(pREC,4)}, v{t16}, {sr(sLIST,4)}, 0 offen sc1
    buffer_load_dwordx4 {vr(pREC+4,4)}, v{t16}, {sr(sLIST,4)}, s{sT+2} offen sc1
    buffer_load_dwordx4 {vr(pREC+8,4)}, v{t16}, {sr(sLIST,4)}, s{sT+3} offen sc1
    buffer_load_dwordx4 {vr(pREC+12,4)}, v{t16}, {sr(sLIST,4)}, s{sT+4} offen sc1
    """)
    srd(sSV, 4, None, 0, 0 if opt.get("nores") else N * 2048)
    a(f"""
    v_lshrrev_b32 v{pT+2}, 5, v0
    v_bfe_u32 v{pT+3}, v0, 3, 2
    v_and_b32 v{vPD}, 7, v0
    v_lshlrev_b32 v{vPD}, 4, v{vPD}
    v_lshl_add_u32 v{vPD}, v{pT+3}, 9, v{vPD}
    v_lshl_add_u32 v{vPD}, v{pT+2}, 17, v{vPD}
    s_lshl_b32 s{sPS}, s{sRG}, 11
    s_lshl_b32 s{sT+5}, s{sM}, 7
    s_add_u32 s{sPS}, s{sPS}, s{sT+5}
    s_lshl_b32 s{sPM}, s{sW}, 10
    s_add_u32 s{sPM}, s{sPM}, {L_PARK}
    s_movk_i32 s{sROWB}, {ROWB}
    s_mov_b32 s{sMASK}, 0xffff0000
    s_mov_b32 s{sCB}, 0
    v_mov_b32 v{vPEND}, 15
    v_and_b32 v{vC1}, 7, v0
    v_bfe_u32 v{vC2}, v0, 3, 1
    v_lshlrev_b32 v{vC1}, 5, v{vC1}
    v_lshl_add_u32 v{vC1}, v{vC2}, 4, v{vC1}
    v_and_b32 v{vC2}, 15, v0
    v_lshlrev_b32 v{vC2}, 2, v{vC2}
    v_add_u32 v{vCO}, s{sPS}, v{vC2}
    v_add_u32 v{vCP}, {L_PARK}, v{vC2}
    v_bfe_u32 v{vG4}, v0, 4, 2
    v_lshlrev_b32 v{vG4}, 2, v{vG4}
    v_bfe_u32 v{pT+1}, v0, 5, 1
    v_and_b32 v{pT+2}, 1, v0
    v_cmp_eq_u32 vcc, v{pT+1}, v{pT+2}
    v_and_b32 v{pT+3}, 16, v0
    v_mov_b32 v{pT+4}, 32
    v_cndmask_b32 v{vML}, 0, v{pT+4}, vcc
    s_mul_i32 s{sT+5}, s{sM}, {TAB_SL}
    v_cndmask_b32 v{vCL}, 0, v{pT+3}, vcc
    """)
    srd(sTB, 24, sT + 5, WS_TAB, 0 if opt.get("notab") else TAB_SL)
    srd(sOUT, 20, None, 0, 0 if opt.get("nost") else N * 2048)
    z = pT + 8
    def lds_init():
        a(f"""
        v_mov_b32 v{z}, 0
        v_mov_b32 v{z+1}, 0
        v_mov_b32 v{z+2}, 0
        v_mov_b32 v{z+3}, 0xffff
        v_lshlrev_b32 v{pT+4}, 4, v0
        v_add_u32 v{pT+4}, {L_STREAM}, v{pT+4}
        """)
        nfull = STREAM_BYTES // 8192
        rem = (STREAM_BYTES - nfull * 8192) // 16
        for i in range(nfull):
            a(f"ds_write_b128 v{pT+4}, {vr(z,4)} offset:{i*8192}")
        a(f"""
        v_cmp_gt_u32 vcc, {rem}, v0
        s_and_saveexec_b64 s[{sT}:{sT+1}], vcc
        ds_write_b128 v{pT+4}, {vr(z,4)} offset:{nfull*8192}
        s_mov_b64 exec, s[{sT}:{sT+1}]
        v_lshlrev_b32 v{pT+4}, 2, v0
        v_add_u32 v{pT+7}, {L_CNT}, v{pT+4}
        v_cmp_gt_u32 vcc, 400, v0
        s_and_saveexec_b64 s[{sT}:{sT+1}], vcc
        ds_write_b32 v{pT+7}, v{z}
        v_cmp_gt_u32 vcc, 8, v0
        s_and_b64 exec, exec, vcc
        ds_write_b32 v{pT+4}, v{z} offset:{L_LUT}
        s_mov_b64 exec, s[{sT}:{sT+1}]
        """)
    lds_init()
    pk = opt.get("pk", [3, 2, 1, 1, 1, 2])
    assert sum(pk) == 10
    park_dma(pk[0])
    vLT = vX
    a(f"""
    s_waitcnt lgkmcnt(0)
    s_barrier
    s_waitcnt vmcnt({pk[0]})
    s_lshl_b32 s{sT+5}, s{sW}, 11
    v_add_u32 v{vLI}, s{sT+5}, v{l16}
    s_add_u32 s{sT+5}, s{sT+5}, {LUT_THR*32}
    s_mul_i32 s{sT+6}, s{sM}, 6144
    s_add_u32 s{sT+6}, s{sT+6}, {M_BOP}
    s_add_u32 s{sT+7}, s{sT+6}, 3072
    buffer_load_dwordx4 {vr(vLT,4)}, v{l16}, {sr(sMISC,4)}, s{sT+5} offen sc1
    buffer_load_dwordx4 {vr(vLT+4,4)}, v{l16}, {sr(sMISC,4)}, s{sT+5} offen offset:1024 sc1
    """)
    for o in range(6):
        a(f"buffer_load_dwordx4 {vr(vB+4*o,4)}, v{l16}, {sr(sMISC,4)}, s{sT+6+o//3} offen offset:{1024*(o%3)} sc1")
    a(f"""
{Lcommon}:
    """)
    one = pT + 4; vAL = pT + 10
    a(f"v_mov_b32 v{one}, 1\nv_mov_b32 v{vAL}, {L_ALLOC}")
    a(f"s_sub_u32 s{sT+2}, s{sTOT}, s{sCB}")
    for k in range(4):
        r0 = pREC + 4 * k
        Lskip = a.label("K2_NORARE")
        a(f"""
        v_add_u32 v{pT+5}, {k*512}, v0
        v_and_b32 v{pT+6}, {1<<k}, v{vPEND}
        v_cmp_gt_u32 vcc, s{sT+2}, v{pT+5}
        v_cmp_ne_u32 s[{sT}:{sT+1}], 0, v{pT+6}
        v_and_b32 v{pDL+k}, 0xffff, v{r0}
        v_lshlrev_b32 v{pDL+k}, 2, v{pDL+k}
        v_add_u32 v{pDL+k}, {L_CNT}, v{pDL+k}
        v_mov_b32 v{pRANK+k}, 0x7fff
        s_and_b64 {sr(sVAL+2*k,2)}, vcc, s[{sT}:{sT+1}]
        v_cmp_gt_i32 vcc, 0, v{r0+3}
        s_mov_b64 s[{sT}:{sT+1}], {sr(sVAL+2*k,2)}
        s_and_b64 {sr(sRARE+2*k,2)}, vcc, {sr(sVAL+2*k,2)}
        s_cbranch_scc0 {Lskip}
        s_mov_b64 exec, {sr(sRARE+2*k,2)}
        ds_add_rtn_u32 v{pRS+k}, v{vAL}, v{one} offset:8
        v_bfe_u32 v{pT+7}, v{r0+3}, 16, 15
        v_lshlrev_b32 v{pT+7}, 5, v{pT+7}
        buffer_load_dwordx4 {vr(pRARE+8*k,4)}, v{pT+7}, {sr(sMISC,4)}, 0 offen sc1
        buffer_load_dwordx4 {vr(pRARE+8*k+4,4)}, v{pT+7}, {sr(sMISC,4)}, 0 offen offset:16 sc1
        v_and_b32 v{r0+3}, 0xffff, v{r0+3}
        s_waitcnt lgkmcnt(0)
        v_add_u32 v{pRS+k}, 1, v{pRS+k}
        v_cmp_le_u32 vcc, {NRS}, v{pRS+k}
        v_lshl_or_b32 v{r0+3}, v{pRS+k}, 16, v{r0+3}
        v_lshlrev_b32 v{pRS+k}, 5, v{pRS+k}
        s_andn2_b64 s[{sT}:{sT+1}], s[{sT}:{sT+1}], vcc
        s_andn2_b64 {sr(sRARE+2*k,2)}, {sr(sRARE+2*k,2)}, vcc
{Lskip}:
        s_mov_b64 exec, s[{sT}:{sT+1}]
        ds_add_rtn_u32 v{pRANK+k}, v{pDL+k}, v{one}
        s_mov_b64 exec, -1
        """)
    park_dma(pk[1])
    a("s_waitcnt lgkmcnt(0)\ns_barrier")
    L7 = a.label("K2_P7"); L8 = a.label("K2_P8")
    deg, rk, hh, bn = pT + 5, pT + 6, pT + 7, pT + 11
    a(f"""
    s_cmp_ge_u32 s{sW}, 5
    s_cbranch_scc1 {L7}
    v_lshlrev_b32 v{pT+8}, 2, v0
    v_add_u32 v{pT+8}, {L_CNT}, v{pT+8}
    ds_read_b32 v{deg}, v{pT+8}
    v_cmp_le_u32 vcc, {NKEY}, v0
    v_mov_b32 v{bn}, 31
    v_mov_b32 v{pT+9}, 63
    v_cndmask_b32 v{bn}, v{bn}, v{pT+9}, vcc
    s_waitcnt lgkmcnt(0)
    v_min_u32 v{deg}, {CAPN}, v{deg}
    v_sub_u32 v{bn}, v{bn}, v{deg}
    v_lshlrev_b32 v{bn}, 2, v{bn}
    v_add_u32 v{pT+8}, {L_HIST}, v{bn}
    ds_add_rtn_u32 v{rk}, v{pT+8}, v{one}
    s_waitcnt lgkmcnt(0)
{L7}:
    """)
    park_dma(pk[2])
    a(f"""
    s_barrier
    s_cmp_ge_u32 s{sW}, 5
    s_cbranch_scc1 {L8}
    v_and_b32 v{pT+8}, 63, v0
    v_lshlrev_b32 v{pT+8}, 2, v{pT+8}
    v_add_u32 v{pT+8}, {L_HIST}, v{pT+8}
    ds_read_b32 v{hh}, v{pT+8}
    v_subrev_u32 v{pT+8}, {NKEY}, v0
    v_min_u32 v{pT+8}, v{pT+8}, v0
    v_lshl_or_b32 v{deg}, v{deg}, 16, v{pT+8}
    s_waitcnt lgkmcnt(0)
    v_mov_b32 v{pT+9}, v{hh}
    """)
    dpp_scan(a, "v_add_u32", hh)
    a(f"""
    v_sub_u32 v{hh}, v{hh}, v{pT+9}
    ds_bpermute_b32 v{pT+9}, v{bn}, v{hh}
    s_waitcnt lgkmcnt(0)
    v_add_lshl_u32 v{pT+9}, v{pT+9}, v{rk}, 2
    v_add_u32 v{pT+9}, {L_SORT}, v{pT+9}
    ds_write_b32 v{pT+9}, v{deg}
    s_waitcnt lgkmcnt(0)
{L8}:
    """)
    park_dma(pk[3])
    assert L_SORT % 128 == 0 or True
    ek = pEK
    a(f"""
    s_barrier
    s_lshl_b32 s{sQ}, s{sW}, 4
    s_xor_b32 s{sT+1}, s{sQ}, 112
    v_add_u32 v{vG4}, {L_SORT}, v{vG4}
    v_add_u32 v{pT+6}, s{sQ}, v{vG4}
    v_add_u32 v{pT+7}, s{sT+1}, v{vG4}
    """)
    for k in range(10):
        a(f"ds_read_b32 v{ek+k}, v{pT+6+DIRS[k]} offset:{128*k}")
    a("s_waitcnt lgkmcnt(0)")
    for k in range(10):
        a(f"v_readfirstlane_b32 s{sN0+k}, v{ek+k}")
    a(f"v_mov_b32 v{vEN}, v{ek}\ns_mov_b32 s{sDIR}, {sum(d << k for k, d in enumerate(DIRS))}")
    a(f"s_mov_b64 {sr(sPC,2)}, 0\ns_mov_b32 s{sREM}, 0")
    for k in range(10):
        a(f"s_lshr_b32 s{sT}, s{sN0+k}, 16")
        a(f"s_mov_b32 s{sN0+k}, s{sREM}\ns_add_u32 s{sREM}, s{sREM}, s{sT}")
        a(f"s_lshl_b32 s{sT}, s{sT}, {5*(k%5)}\ns_or_b32 s{sPC+k//5}, s{sPC+k//5}, s{sT}")
    a(f"""
    s_add_u32 s{sREM}, s{sREM}, 1
    s_lshr_b32 s{sREM}, s{sREM}, 1
    v_mov_b32 v{pT+8}, s{sREM}
    s_mov_b64 exec, 1
    ds_add_rtn_u32 v{pT+9}, v{vAL}, v{pT+8}
    s_mov_b64 exec, -1
    """)
    for k in range(10):
        a(f"v_and_b32 v{ek+k}, 0xff, v{ek+k}")
        a(f"v_lshlrev_b32 v{ek+k}, 2, v{ek+k}")
        a(f"v_add_u32 v{ek+k}, {L_NADDR + (NKEY*4 if k >= 5 else 0)}, v{ek+k}")
    a(f"""
    v_bfe_u32 v{pT+5}, v0, 4, 2
    v_bfe_u32 v{pT+6}, v0, 1, 1
    v_bfe_u32 v{pT+7}, v0, 2, 2
    v_lshlrev_b32 v{pT+6}, 6, v{pT+6}
    v_lshl_add_u32 v{pT+6}, v{pT+7}, 4, v{pT+6}
    s_waitcnt lgkmcnt(0)
    v_readfirstlane_b32 s{sT}, v{pT+9}
    s_nop 1
    s_lshl_b32 s{sT}, s{sT}, 7
    s_add_u32 s{sT}, s{sT}, {L_STREAM}
    v_lshl_add_u32 v{vS}, v{pT+5}, 4, s{sT}
    v_add_u32 v{vA}, s{sT}, v{pT+6}
    """)
    for k in range(10):
        a(f"v_lshl_add_u32 v{pT+7+(k&1)}, s{sN0+k}, 6, v{vS}")
        a(f"ds_write_b32 v{ek+k}, v{pT+7+(k&1)}")
    park_dma(pk[4])
    a("s_waitcnt lgkmcnt(0)\ns_barrier")
    for k in range(4):
        a(f"ds_read_b32 v{pT+5+k}, v{pDL+k} offset:{L_NADDR - L_CNT}")
    a(f"v_mov_b32 v{vPEND}, 0")
    a("s_waitcnt lgkmcnt(0)")
    for k in range(4):
        r0 = pREC + 4 * k
        a(f"""
        v_cmp_gt_u32 vcc, {CAPN}, v{pRANK+k}
        v_lshl_add_u32 v{pT+5+k}, v{pRANK+k}, 6, v{pT+5+k}
        v_and_b32 v{r0}, s{sMASK}, v{r0}
        s_and_b64 exec, vcc, {sr(sVAL+2*k,2)}
        ds_write_b128 v{pT+5+k}, {vr(r0,4)}
        s_andn2_b64 exec, {sr(sVAL+2*k,2)}, vcc
        v_or_b32 v{vPEND}, {1<<k}, v{vPEND}
        ds_write_b32 v{vAL}, v{one} offset:4
        s_mov_b64 exec, -1
        """)
    for k in range(4):
        Lskip = a.label("K2_NORARE2")
        a(f"""
        s_cmp_eq_u64 {sr(sRARE+2*k,2)}, 0
        s_cbranch_scc1 {Lskip}
        s_waitcnt vmcnt(0)
        s_mov_b64 exec, {sr(sRARE+2*k,2)}
        ds_write_b128 v{pRS+k}, {vr(pRARE+8*k,4)} offset:{L_LUT}
        ds_write_b128 v{pRS+k}, {vr(pRARE+8*k+4,4)} offset:{L_LUT+16}
        s_mov_b64 exec, -1
        s_waitcnt lgkmcnt(0)
{Lskip}:
        """)
    Lnf = a.label("K2_NOTFIRST"); Lnt = a.label("K2_NOTP"); Ltp = a.label("K2_TPOLL"); Lto = a.label("K2_TOK")
    a(f"""
    s_cmp_eq_u32 s{sPS}, -1
    s_cbranch_scc1 {Lnf}
    s_waitcnt vmcnt({6 + sum(pk[1:5])})
    ds_write_b128 v{vLI}, {vr(vLT,4)} offset:{L_LUT + NRS*32}
    ds_write_b128 v{vLI}, {vr(vLT+4,4)} offset:{L_LUT + NRS*32 + 1024}
    s_cmp_lg_u32 s{sW}, 7
    s_cbranch_scc1 {Lnt}
    """)
    stamp()
    Lnag2 = a.label("K2_NOAGG2")
    a(f"s_cmp_lg_u32 s2, {WG_AGG}\ns_cbranch_scc1 {Lnag2}")
    wait_arrivals(WG_GEMM0, 256, opt.get("sl3", 2))
    a(f"""
    s_mov_b32 s{sT}, {M_GO}
    v_mov_b32 v{pT+1}, 0
    v_mov_b32 v{pT+3}, s{sTOK}
    s_mov_b64 exec, 1
    buffer_store_dword v{pT+3}, v{pT+1}, {sr(sMISC,4)}, s{sT} offen sc1
    s_mov_b64 exec, -1
{Lnag2}:
    s_mov_b32 s{sT}, {M_GO}
    v_mov_b32 v{pT+1}, 0
    s_mov_b64 exec, 1
    """)
    def body():
        a(f"""
        buffer_load_dword v{pT+2}, v{pT+1}, {sr(sMISC,4)}, s{sT} offen sc1
        s_waitcnt vmcnt(0)
        v_readfirstlane_b32 s{sT+1}, v{pT+2}
        s_nop 1
        s_cmp_eq_u32 s{sT+1}, s{sTOK}
        """)
    spin(body, opt.get("sl2", 2))
    a(f"""
    s_mov_b64 exec, -1
    {"buffer_inv sc1" if opt.get("inv", 1) else ""}
    s_waitcnt vmcnt(0)
{Lnt}:
{Lnf}:
    """)
    park_dma(pk[5])
    a("s_waitcnt lgkmcnt(0)\ns_barrier")
    stamp()
    a(f"ds_read_b32 v{vT}, v{vAL} offset:4")
    for b in range(DP):
        a(f"ds_read2_b32 {vr(vD+2*b,2)}, v{vS} offset0:{32*b+3} offset1:{32*b+19}")
    a(f"ds_read_u16 v{vLI}, v{vA} offset:14")
    a("s_waitcnt lgkmcnt(0)")
    a(f"v_readfirstlane_b32 s{sMORE}, v{vT}")
    for b in range(DP):
        issue(b, vD + 2 * b)
    a(f"""
    s_add_u32 s{sT}, s{sCB}, {CHUNK}
    s_cmp_lt_u32 s{sT}, s{sTOT}
    s_cselect_b32 s{sT}, 2, 0
    s_or_b32 s{sMORE}, s{sMORE}, s{sT}
    s_mov_b32 s{sSLOT}, 10
    v_mad_u32_u16 v{vAD}, v{vLI}, v{vML}, v{vCL}
    s_waitcnt vmcnt({8*DP})
    s_barrier
    ds_read_b128 {vr(vAOP,4)}, v{vAD} offset:{L_LUT}
    ds_read2_b32 {vr(vPK,2)}, v{vS} offset0:{32*DP+3} offset1:{32*DP+19}
    ds_read_u16 v{vLI}, v{vA} offset:{128+14}
    ds_read_b128 {vr(vRH,4)}, v{vS}
    ds_read_b128 {vr(vRH+4,4)}, v{vS} offset:64
    """)
    if stamps:
        stamp(); a("s_waitcnt lgkmcnt(0)")
    sRET = 6
    Lph = [a.label(f"K2_PH{p}") for p in range(NRG)]
    Lsk = [a.label(f"K2_SK{p}") for p in range(NRG)]
    Lbk = [a.label(f"K2_BK{p}") for p in range(NRG)]
    Ltr = [[a.label(f"K2_TR{p}{st}") for st in range(2)] for p in range(NRG)]
    Lrt = [[a.label(f"K2_RT{p}{st}") for st in range(2)] for p in range(NRG)]
    Ldone = a.label("K2_DONE"); Lepi = a.label("K2_EPI"); Lset = a.label("K2_SET")
    Lret = a.label("K2_RET")
    a(f"s_call_b64 {sr(sRET,2)}, {Lset}\ns_cbranch_scc1 {Ldone}")
    for p in range(NRG):
        a(f"{Lph[p]}:")
        a(f"s_waitcnt vmcnt({8*(DP-1)}) lgkmcnt(2)")
        sh = []
        for st in range(2):
            for hf in range(2):
                rg = ring(p, st, hf); e = vX + 4 * (2 * st + hf)
                sh += [f"v_lshlrev_b64 {vr(e,2)}, 16, {vr(rg,2)}", f"v_lshlrev_b64 {vr(e+2,2)}, 16, {vr(rg+2,2)}", f"v_lshlrev_b32 v{rg+4}, 16, v{rg+5}"]
        for o in range(6):
            if not opt.get("nomfma"):
                a(f"v_mfma_f32_16x16x32_bf16 {vr(vD+4*o,4)}, {vr(vAOP,4)}, {vr(vB+4*o,4)}, 0")
            if not opt.get("novalu"):
                a(sh[2 * o]); a(sh[2 * o + 1])
        a(f"s_sub_u32 s{sREM}, s{sREM}, 1\ns_cmp_lt_u32 s{sREM}, {DP}\ns_cbranch_scc1 {Lsk[p]}")
        issue((p + DP) % NRG, vPK)
        a(f"{Lbk[p]}:")
        assert (p + DP + 1) * 32 + 19 < 256
        a(f"""
        v_mad_u32_u16 v{vT}, v{vLI}, v{vML}, v{vCL}
        ds_read_b128 {vr(vAOP,4)}, v{vT} offset:{L_LUT}
        ds_read2_b32 {vr(vPK,2)}, v{vS} offset0:{(p+DP+1)*32+3} offset1:{(p+DP+1)*32+19}
        ds_read_u16 v{vLI}, v{vA} offset:{(p+2)*128+14}
        s_waitcnt lgkmcnt(3)
        """)
        for st in range(2):
            L = []
            for hf in range(2):
                HXY, HZS, LXY, LZS, BZ = ACC(hf)
                rg = ring(p, st, hf); rh = vRH + 4 * st; e = vX + 4 * (2 * st + hf); t = vT + 2 * hf
                d1, d2, d3 = vD + 12 * hf + 2 * st, vD + 12 * hf + 4 + 2 * st, vD + 12 * hf + 8 + 2 * st
                L.append(f"""v_pk_fma_f32 {vr(HXY,2)}, {vr(d1,2)}, {vr(rg,2)}, {vr(HXY,2)} op_sel_hi:[0,1,1]
                v_pk_mul_f32 {vr(t,2)}, {vr(d3,2)}, {vr(rg+4,2)}
                v_pk_fma_f32 {vr(HZS,2)}, {vr(d1,2)}, {vr(rg+2,2)}, {vr(HZS,2)}
                v_pk_fma_f32 {vr(LXY,2)}, {vr(d2,2)}, {vr(e,2)}, {vr(LXY,2)} op_sel_hi:[0,1,1]
                v_pk_fma_f32 {vr(LZS,2)}, {vr(d2,2)}, {vr(e+2,2)}, {vr(LZS,2)}
                v_pk_fma_f32 {vr(BZ,2)}, {vr(t,2)}, {vr(rh+2,2)}, {vr(BZ,2)} op_sel_hi:[1,0,1]
                v_pk_fma_f32 {vr(HXY,2)}, {vr(t,2)}, {vr(rh,2)}, {vr(HXY,2)} op_sel:[1,0,0]
                v_pk_fma_f32 {vr(LXY,2)}, {vr(t,2)}, {vr(rh,2)}, {vr(LXY,2)} op_sel_hi:[0,1,1]""".split("\n"))
            if not opt.get("novalu"):
                for l0, l1 in zip(*L):
                    a(l0); a(l1)
            a(f"ds_read_b128 {vr(vRH+4*st,4)}, v{vS} offset:{(p+1)*128+64*st}")
            if st == 1 and p == NRG - 1:
                a(f"v_add_u32 v{vS}, {128*NRG}, v{vS}\nv_add_u32 v{vA}, {128*NRG}, v{vA}")
            a(f"s_sub_u32 s{sCNT}, s{sCNT}, 1")
            if st == 1 and p == NRG - 1:
                a(f"s_cbranch_scc0 {Lph[0]}\ns_call_b64 {sr(sRET,2)}, {Lepi}\ns_cbranch_scc0 {Lph[0]}\ns_branch {Ldone}")
            else:
                a(f"s_cbranch_scc1 {Ltr[p][st]}\n{Lrt[p][st]}:")
    for p in range(NRG):
        for st in range(2):
            if st == 1 and p == NRG - 1: continue
            a(f"{Ltr[p][st]}:\ns_call_b64 {sr(sRET,2)}, {Lepi}\ns_cbranch_scc0 {Lrt[p][st]}\ns_branch {Ldone}")
    for p in range(NRG):
        a(f"{Lsk[p]}:\ns_waitcnt vmcnt(0)\ns_branch {Lbk[p]}")
    a(f"{Lepi}:")
    Lpw = a.label("K2_PW"); Lnx = a.label("K2_NX"); Lnb = a.label("K2_NB")
    for hf in range(2):
        HXY, HZS, LXY, LZS, BZ = ACC(hf)
        R = lambda c: vE + 2 * c + hf
        a(f"""
        v_add_f32 v{LZS}, v{LZS}, v{BZ}
        v_add_f32 v{HZS}, v{HZS}, v{BZ+1}
        v_cvt_pk_bf16_f32 v{R(0)}, v{LZS+1}, v{HZS+1}
        v_cvt_pk_bf16_f32 v{R(1)}, v{LXY}, v{HXY}
        v_cvt_pk_bf16_f32 v{R(2)}, v{LXY+1}, v{HXY+1}
        v_cvt_pk_bf16_f32 v{R(3)}, v{LZS}, v{HZS}
        """)
    a(f"""
    s_cmp_gt_u32 s{sSLOT}, 5
    s_cbranch_scc1 {Lpw}
    s_cmp_lg_u32 s{sMORE}, 0
    s_cbranch_scc1 {Lpw}
    """)
    for c in range(4):
        for hf in range(2):
            a(f"buffer_store_dword v{vE+2*c+hf}, v{vO}, {sr(sOUT,4)}, 0 offen offset:{512*c+64*hf} {st_fl}")
    a(f"s_branch {Lnx}\n{Lpw}:")
    for c in range(4):
        a(f"ds_write2_b32 v{vPA}, v{vE+2*c}, v{vE+2*c+1} offset0:{32*c} offset1:{32*c+16}")
    a(f"""
{Lnx}:
    s_sub_u32 s{sSLOT}, s{sSLOT}, 1
    s_cmp_eq_u32 s{sSLOT}, 0
    s_cbranch_scc1 {Lret}
    s_lshr_b32 s{sPC}, s{sPC}, 5
    s_waitcnt lgkmcnt(0)
    s_cmp_lg_u32 s{sSLOT}, 5
    s_cbranch_scc1 {Lset}
    s_mov_b32 s{sPC}, s{sPC+1}
    s_barrier
{Lset}:
    """)
    slot_setup()
    a(f"""
    s_and_b32 s{sCNT}, s{sPC}, 31
    s_cbranch_scc0 {Lepi}
    s_sub_u32 s{sCNT}, s{sCNT}, 1
{Lret}:
    s_setpc_b64 {sr(sRET,2)}
    """)
    Lfin = a.label("K2_FIN"); Lnext = a.label("K2_NEXT")
    a(f"""
{Ldone}:
    s_cmp_eq_u32 s{sMORE}, 0
    s_cbranch_scc1 {Lfin}
    s_bitcmp1_b32 s{sMORE}, 0
    s_cbranch_scc1 {Lnext}
    s_add_u32 s{sCB}, s{sCB}, {CHUNK}
    v_mov_b32 v{vPEND}, 15
{Lnext}:
    s_mov_b32 s{sPS}, -1
    s_waitcnt vmcnt(0) lgkmcnt(0)
    s_barrier
    v_subrev_u32 v{vG4}, {L_SORT}, v{vG4}
    v_add_u32 v{t16}, s{sCB}, v0
    v_lshlrev_b32 v{t16}, 4, v{t16}
    s_movk_i32 s{sT+2}, 8192
    s_movk_i32 s{sT+3}, 16384
    s_movk_i32 s{sT+4}, 24576
    buffer_load_dwordx4 {vr(pREC,4)}, v{t16}, {sr(sLIST,4)}, 0 offen sc1
    buffer_load_dwordx4 {vr(pREC+4,4)}, v{t16}, {sr(sLIST,4)}, s{sT+2} offen sc1
    buffer_load_dwordx4 {vr(pREC+8,4)}, v{t16}, {sr(sLIST,4)}, s{sT+3} offen sc1
    buffer_load_dwordx4 {vr(pREC+12,4)}, v{t16}, {sr(sLIST,4)}, s{sT+4} offen sc1
    """)
    lds_init()
    a(f"""
    s_waitcnt vmcnt(0) lgkmcnt(0)
    s_barrier
    s_branch {Lcommon}
{Lfin}:
    """)
    if stamps:
        stamp()
        a("s_waitcnt vmcnt(0)")
        stamp()
        a(f"""
        s_waitcnt lgkmcnt(0)
        s_add_u32 s{sLIST}, s24, {WS_DIAG + (1<<20)}
        s_addc_u32 s{sLIST+1}, s25, 0
        s_mov_b32 s{sLIST+2}, 0x100000
        s_lshl_b32 s{sT}, s2, 3
        s_add_u32 s{sT}, s{sT}, s{sW}
        s_lshl_b32 s{sT}, s{sT}, 7
        v_mov_b32 v1, s{sT}
        s_mov_b64 exec, 1
        """)
        for i in range(nst[0]):
            a(f"v_mov_b32 v2, s{STR[i]}\nv_mov_b32 v3, s{STR[i]+1}")
            a(f"buffer_store_dwordx2 v[2:3], v1, {sr(sLIST,4)}, 0 offen offset:{8*i}")
    a(f"{Lend}:\ns_endpgm")
    return nv, 102
```

```python
N = 10000
E = 160000
NSL = 4
NR = 64
NKEY = 160
HALF = 5000
NP = 40
EPW = E // NP
ROWB = 640
TAB_SL = N * ROWB
WS_TAB = 0
WS_LUT = WS_TAB + NSL * TAB_SL
LUT_ROWS = 2080
LUT_BYTES = LUT_ROWS * 32
M_LUT = 0
M_END = 67584
M_BOP = M_END + 16384
M_ARR = M_BOP + 24576
ARRS = 64
M_TOT = M_ARR + 256 * ARRS
M_GO = M_TOT + 512
M_EPO = M_GO + 128
MISC_BYTES = M_EPO + 128
WS_LIST = 26 * 1024 * 1024
LIST_STRIDE = E * 16
WS_DIAG = 200 * 1024 * 1024
assert WS_LIST + NR * LIST_STRIDE <= WS_DIAG
DBASE = 0x3880
DCUT = 0x409D
LUT_THR = 1568
NRS = 512
CAPN = 30
NPROD = NP + 5 + 1
NGEMM = 209
WG_GEMM0 = 47
L_PASS = 139264
SPIN_MAX = 1 << 17
WG_AGG = 46
VTOK = 10
```

```python
from asmlib import *
from layout import *

ROWS = 48
NG = (N + ROWS - 1) // ROWS
WG_EDGE0 = 0
WG_LUT0 = NP
NLUTWG = 5
assert WG_GEMM0 == NP + NLUTWG + 2 and NG == NGEMM
assert WG_GEMM0 + NG == 256
L_RING = 0
L_V = 65536
L_H = L_V + 3 * ROWS * 512
GEMM_LDS = L_H + ROWS * 512
L_POS = 0
L_EH = 81920
L_DLT = L_EH + 512
L_STG = 0
K1_LDS = GEMM_LDS
WG_BOP = WG_LUT0 + NLUTWG
from gen_k2 import dpp_scan, zero_counters, sync_loads

def rne_bf16(a, dst, src):
    a(f"v_cvt_pk_bf16_f32 v{dst}, v{src}, v{src}")
    a(f"v_and_b32 v{dst}, 0xffff0000, v{dst}")

def lut_row(a, vd, out, t, sF, sC):
    rcp, fc = t, t + 1
    a(f"v_rcp_f32 v{rcp}, v{vd}")
    a(f"v_mul_f32 v{fc}, s{sC}, v{vd}")
    rne_bf16(a, fc, fc)
    a(f"v_mul_f32 v{fc}, s{sC+1}, v{fc}")
    rne_bf16(a, fc, fc)
    a(f"v_mul_f32 v{fc}, s{sC+2}, v{fc}")
    a(f"v_cos_f32 v{fc}, v{fc}")
    a("s_nop 0")
    rne_bf16(a, fc, fc)
    a(f"v_add_f32 v{fc}, 1.0, v{fc}")
    rne_bf16(a, fc, fc)
    a(f"v_mul_f32 v{fc}, 0.5, v{fc}")
    for k in range(0, 16, 2):
        x, y, p = t + 2, t + 3, t + 4
        a(f"""
        v_mul_f32 v{x}, s{sF+k}, v{vd}
        v_mul_f32 v{y}, s{sF+k+1}, v{vd}
        v_cvt_pk_bf16_f32 v{p}, v{x}, v{y}
        v_lshlrev_b32 v{x}, 16, v{p}
        v_and_b32 v{y}, 0xffff0000, v{p}
        v_mul_f32 v{x}, s{sC+2}, v{x}
        v_mul_f32 v{y}, s{sC+2}, v{y}
        v_rndne_f32 v{t+5}, v{x}
        v_rndne_f32 v{t+6}, v{y}
        v_sub_f32 v{x}, v{x}, v{t+5}
        v_sub_f32 v{y}, v{y}, v{t+6}
        v_sin_f32 v{x}, v{x}
        v_sin_f32 v{y}, v{y}
        s_nop 0
        v_cvt_pk_bf16_f32 v{p}, v{x}, v{y}
        v_lshlrev_b32 v{x}, 16, v{p}
        v_and_b32 v{y}, 0xffff0000, v{p}
        v_mul_f32 v{x}, v{x}, v{rcp}
        v_mul_f32 v{y}, v{y}, v{rcp}
        v_cvt_pk_bf16_f32 v{p}, v{x}, v{y}
        v_lshlrev_b32 v{x}, 16, v{p}
        v_and_b32 v{y}, 0xffff0000, v{p}
        v_mul_f32 v{x}, v{x}, v{fc}
        v_mul_f32 v{y}, v{y}, v{fc}
        v_cvt_pk_bf16_f32 v{out+k//2}, v{x}, v{y}
        """)

def srd(a, d, lo, off_sreg, off_imm, size):
    hi = lo + 1
    if off_sreg is None and off_imm == 0:
        a(f"s_mov_b32 s{d}, s{lo}\ns_mov_b32 s{d+1}, s{hi}")
    else:
        if off_sreg is not None:
            if off_imm:
                a(f"s_add_u32 s{off_sreg}, s{off_sreg}, {off_imm}")
            a(f"s_add_u32 s{d}, s{lo}, s{off_sreg}")
        else:
            a(f"s_add_u32 s{d}, s{lo}, {off_imm}")
        a(f"s_addc_u32 s{d+1}, s{hi}, 0")
    a(f"s_mov_b32 s{d+2}, {size}\ns_mov_b32 s{d+3}, 0x20000")

def gen_k1(a0, name, opt, phase2):
    class Sw:
        cur = a0
        def __call__(self, x): return self.cur(x)
        def label(self, b): return self.cur.label(b)
    a = Sw()
    side = Asm()
    stamps = opt.get("stamps", False)
    tab_fl = opt.get("tab_flags", "sc1")
    sST = 82
    nst = [0]
    def stamp():
        if stamps:
            a(f"s_memrealtime {sr(sST + 2 * nst[0], 2)}")
            nst[0] += 1
            assert nst[0] <= 10
    def dump_stamps(n):
        if not stamps: return
        a(f"""
        s_memrealtime {sr(sST+18,2)}
        s_waitcnt lgkmcnt(0)
        s_add_u32 s40, s24, {WS_DIAG}
        s_addc_u32 s41, s25, 0
        s_mov_b32 s42, 0x100000
        s_mov_b32 s43, 0x20000
        s_lshl_b32 s44, s2, 3
        s_add_u32 s44, s44, s3
        s_lshl_b32 s44, s44, 7
        s_mov_b64 exec, 1
        v_mov_b32 v1, s44
        """)
        for i in list(range(n)) + [9]:
            a(f"v_mov_b32 v2, s{sST+2*i}\nv_mov_b32 v3, s{sST+2*i+1}")
            a(f"buffer_store_dwordx2 v[2:3], v1, s[40:43], 0 offen offset:{8*i}")
        a("s_mov_b64 exec, -1")
    Lp2 = a.label("P2"); Lside = a.label("K1_SIDE"); Larr = a.label("K1_ARRIVE"); Lcend = a.label("CODE_END"); Lpc = a.label("PC")
    kernel_header(a, name)
    Lend = a.label("K1_END"); Lgemm = a.label("K1_GEMM"); Llut = a.label("K1_LUT")
    a(f"""
    s_cmp_ge_u32 s2, 256
    s_cbranch_scc1 {Lend}
    s_load_dwordx16 s[4:19], s[0:1], 0
    s_load_dwordx4 s[20:23], s[0:1], 64
    s_load_dwordx2 s[24:25], s[0:1], 80
    """)
    stamp()
    a(f"""
    v_lshrrev_b32 v1, 6, v0
    s_nop 0
    v_readfirstlane_b32 s3, v1
    """)
    if opt.get("cpf", 1):
        Lnc = a.label("K1_NOCPF")
        a(f"""
        s_lshr_b32 s26, s2, 3
        s_cmp_lg_u32 s26, 5
        s_cbranch_scc1 {Lnc}
        s_getpc_b64 s[28:29]
{Lpc}:
        s_mov_b32 s30, {Lcend}-{Lpc}
        s_mov_b32 s31, 0x20000
        v_lshlrev_b32 v1, 7, v0
        buffer_load_dword v255, v1, s[28:31], 0 offen
{Lnc}:
        """)
    a(f"""
    s_cmp_lt_u32 s2, {WG_GEMM0}
    s_cbranch_scc1 {Lside}
    """)
    a.cur = side
    a(f"""
{Lside}:
    s_cmp_ge_u32 s2, {WG_LUT0}
    s_cbranch_scc1 {Llut}
    """)
    nvmax = 256
    V = Regs("v", 1, 256)
    vSRC = V.alloc("src", 8, 2); vDST = V.alloc("dst", 8, 2)
    vP = V.alloc("p", 48, 2)
    vREC = V.alloc("rec", 32, 2)
    vRK = V.alloc("rk", 8)
    vT = V.alloc("t", 12, 2)
    nvmax = max(nvmax, V.hi)
    sSRC, sDST, sPOS, sDBG, sLIST, sMISC = 28, 32, 36, 40, 44, 48
    sT = 52; sACT = 60
    a("s_waitcnt lgkmcnt(0)")
    srd(a, sSRC, 8, None, 0, E * 4)
    srd(a, sDST, 10, None, 0, E * 4)
    srd(a, sPOS, 6, None, 0, N * 6)
    a(f"""
    s_mul_i32 s{sT}, s2, {EPW*4}
    s_add_u32 s{sT+1}, s{sT}, {EPW*2}
    v_lshlrev_b32 v{vT}, 4, v0
    v_mov_b32 v{vT+1}, 0x7ffffff0
    v_cmp_gt_u32 vcc, {EPW//8}, v0
    s_mov_b64 s[{sT+2}:{sT+3}], vcc
    s_nop 0
    v_cndmask_b32 v{vT+1}, v{vT+1}, v{vT}, vcc
    buffer_load_dwordx4 {vr(vSRC,4)}, v{vT+1}, {sr(sSRC,4)}, s{sT} offen
    buffer_load_dwordx4 {vr(vDST,4)}, v{vT+1}, {sr(sDST,4)}, s{sT} offen
    buffer_load_dwordx4 {vr(vSRC+4,4)}, v{vT+1}, {sr(sSRC,4)}, s{sT+1} offen
    buffer_load_dwordx4 {vr(vDST+4,4)}, v{vT+1}, {sr(sDST,4)}, s{sT+1} offen
    v_mul_u32_u24 v{vT+4}, 12, v0
    """)
    vPL = V.alloc("pl", 40, 2)
    for i in range(10):
        a(f"s_mov_b32 s{sT+5}, {i*6144}")
        a(f"buffer_load_dwordx3 {vr(vPL+4*i,3)}, v{vT+4}, {sr(sPOS,4)}, s{sT+5} offen")
    srd(a, sDBG, 22, None, 0, 256)
    srd(a, sLIST, 24, None, WS_LIST, NR * LIST_STRIDE)
    srd(a, sMISC, 24, None, WS_LUT, MISC_BYTES)
    a(f"""
    v_mov_b32 v{vT+2}, 0
    v_lshlrev_b32 v{vT+3}, 2, v0
    v_add_u32 v{vT+3}, {L_EH}, v{vT+3}
    v_cmp_gt_u32 vcc, 64, v0
    s_and_saveexec_b64 s[{sT+6}:{sT+7}], vcc
    ds_write_b32 v{vT+3}, v{vT+2}
    s_mov_b64 exec, -1
    """)
    vAS_, vAD_ = vREC, vREC + 8
    vKEY = V.alloc("key", 8); vHA = V.alloc("ha", 8); vDD = V.alloc("dd", 8, 2); vQ = V.alloc("q", 8, 2)
    a(f"""
    s_mov_b32 s{sT+4}, 0x322bcc77
    s_mov_b32 s{sT+5}, 0x322bcc77
    s_mov_b32 s{sT+1}, 0xffff0000
    s_mov_b32 s{sT+6}, {(DBASE+LUT_THR)<<16}
    v_mov_b32 v{vT+8}, {((NRS - LUT_THR - DBASE) << 16) & 0xffffffff}
    v_mov_b32 v{vT+9}, {((0x8000 - DBASE) << 16) & 0xffffffff}
    v_mov_b32 v{vT+10}, {NKEY}
    v_mov_b32 v{vT+11}, 1
    s_waitcnt vmcnt(10)
    """)
    for e in range(8):
        a(f"""
        v_cmp_le_u32 vcc, {HALF}, v{vSRC+e}
        v_lshlrev_b32 v{vAS_+e}, 3, v{vSRC+e}
        v_lshlrev_b32 v{vAD_+e}, 3, v{vDST+e}
        v_cndmask_b32 v{vT+4}, 0, v{vT+10}, vcc
        v_lshrrev_b32 v{vKEY+e}, 6, v{vDST+e}
        v_and_b32 v{vDST+e}, {NR-1}, v{vDST+e}
        v_add_u32 v{vKEY+e}, v{vKEY+e}, v{vT+4}
        v_lshlrev_b32 v{vDST+e}, 2, v{vDST+e}
        v_add_u32 v{vHA+e}, {L_EH}, v{vDST+e}
        """)
    a(f"v_add_u32 v{vT+4}, 65536, v{vT}")
    for i in range(10):
        w = vPL + 4 * i
        a(f"""
        s_waitcnt vmcnt({9-i})
        v_and_b32 v{w+3}, s{sT+1}, v{w+2}
        v_alignbit_b32 v{w+2}, v{w+2}, v{w+1}, 16
        v_lshlrev_b32 v{w+1}, 16, v{w+1}
        ds_write_b128 v{vT if i < 8 else vT+4}, {vr(w,4)} offset:{L_POS + (i%8)*8192}
        """)
    a("s_waitcnt lgkmcnt(0)\ns_barrier")
    stamp()
    def pos_read(pr):
        for e in range(2):
            a(f"ds_read_b64 {vr(vPL+8*pr+4*e,2)}, v{vAS_+2*pr+e} offset:{L_POS}")
            a(f"ds_read_b64 {vr(vPL+8*pr+4*e+2,2)}, v{vAD_+2*pr+e} offset:{L_POS}")
    def rnd2(dst, src, t):
        a(f"v_cvt_pk_bf16_f32 v{t}, v{src}, v{src+1}")
        a(f"v_lshlrev_b32 v{dst}, 16, v{t}")
        a(f"v_and_b32 v{dst+1}, s{sT+1}, v{t}")
    for pr in range(3): pos_read(pr)
    for pr in range(4):
        p = vP + 12 * pr; q = p + 6; d = vDD + 2 * pr
        a(f"s_waitcnt lgkmcnt({[8, 8, 4, 0][pr]})")
        if pr == 0: pos_read(3)
        for e in range(2):
            w = vPL + 8 * pr + 4 * e
            a(f"""
            v_lshlrev_b32 v{p+e}, 16, v{w}
            v_lshlrev_b32 v{q+e}, 16, v{w+2}
            v_and_b32 v{p+2+e}, s{sT+1}, v{w}
            v_and_b32 v{q+2+e}, s{sT+1}, v{w+2}
            v_sub_f32 v{p+4+e}, v{w+1}, v{w+3}
            """)
        for c in range(2):
            a(f"v_pk_add_f32 {vr(p+2*c,2)}, {vr(p+2*c,2)}, {vr(q+2*c,2)} neg_lo:[0,1] neg_hi:[0,1]")
        for c in range(3): rnd2(p + 2 * c, p + 2 * c, vT + 4 + c)
        for c in range(3):
            a(f"v_pk_mul_f32 {vr(q+2*c,2)}, {vr(p+2*c,2)}, {vr(p+2*c,2)}")
        for c in range(3): rnd2(q + 2 * c, q + 2 * c, vT + 4 + c)
        a(f"v_pk_add_f32 {vr(q,2)}, {vr(q,2)}, {vr(q+2,2)}")
        a(f"v_pk_add_f32 {vr(q,2)}, {vr(q,2)}, {vr(q+4,2)}")
        rnd2(q, q, vT + 4)
        a(f"v_pk_add_f32 {vr(q,2)}, {vr(q,2)}, s[{sT+4}:{sT+5}]")
        rnd2(q, q, vT + 4)
        a(f"v_sqrt_f32 v{q}, v{q}\nv_sqrt_f32 v{q+1}, v{q+1}\ns_nop 0")
        rnd2(d, q, vT + 4)
        for e in range(2):
            ee = 2 * pr + e
            a(f"""
            v_cmp_gt_u32 vcc, {DCUT<<16}, v{d+e}
            s_and_b64 {sr(sACT+2*ee,2)}, vcc, s[{sT+2}:{sT+3}]
            s_mov_b64 exec, {sr(sACT+2*ee,2)}
            ds_add_rtn_u32 v{vRK+ee}, v{vHA+ee}, v{vT+11}
            s_mov_b64 exec, -1
            """)
    a("s_waitcnt lgkmcnt(0)\ns_barrier")
    stamp()
    Lna = a.label("K1_NOATOM"); Lnb = a.label("K1_NOATOM2")
    a(f"""
    s_cmp_lg_u32 s3, 0
    s_cbranch_scc1 {Lna}
    ds_read_b32 v{vQ+4}, v{vT+3}
    v_lshlrev_b32 v{vT+5}, 2, v0
    s_waitcnt lgkmcnt(0)
    v_mov_b32 v{vQ+6}, v{vQ+4}
    v_mov_b32 v{vQ+7}, v{vQ+4}
    buffer_atomic_add v{vQ+6}, v{vT+5}, {sr(sDBG,4)}, 0 offen sc0
    """)
    dpp_scan(a, "v_add_u32", vQ + 7)
    a(f"""
    ds_write_b32 v{vT+3}, v{vQ+7} offset:4
    v_sub_u32 v{vQ+7}, v{vQ+7}, v{vQ+4}
    ds_write_b32 v{vT+3}, v{vQ+7}
{Lna}:
    """)
    for pr in range(4):
        p = vP + 12 * pr; d = vDD + 2 * pr
        r0, r1 = vREC + 8 * pr, vREC + 8 * pr + 4
        a(f"""
        v_rcp_f32 v{vQ}, v{d}
        v_rcp_f32 v{vQ+1}, v{d+1}
        v_cmp_gt_u32 vcc, s{sT+6}, v{d}
        v_cmp_gt_u32 s[{sT+4}:{sT+5}], s{sT+6}, v{d+1}
        v_pk_mul_f32 {vr(p,2)}, {vr(p,2)}, {vr(vQ,2)}
        v_pk_mul_f32 {vr(p+2,2)}, {vr(p+2,2)}, {vr(vQ,2)}
        v_pk_mul_f32 {vr(p+4,2)}, {vr(p+4,2)}, {vr(vQ,2)}
        v_cndmask_b32 v{vQ+2}, v{vT+8}, v{vT+9}, vcc
        v_cndmask_b32 v{vQ+3}, v{vT+8}, v{vT+9}, s[{sT+4}:{sT+5}]
        v_cvt_pk_bf16_f32 v{vT+4}, v{p}, v{p+1}
        v_cvt_pk_bf16_f32 v{vT+5}, v{p+2}, v{p+3}
        v_cvt_pk_bf16_f32 v{vT+6}, v{p+4}, v{p+5}
        v_add3_u32 v{r0+3}, v{d}, v{vQ+2}, v{vSRC+2*pr}
        v_add3_u32 v{r1+3}, v{d+1}, v{vQ+3}, v{vSRC+2*pr+1}
        v_lshl_or_b32 v{r0}, v{vT+4}, 16, v{vKEY+2*pr}
        v_and_or_b32 v{r1}, v{vT+4}, s{sT+1}, v{vKEY+2*pr+1}
        v_lshl_or_b32 v{r0+1}, v{vT+5}, 16, v{vDST+2*pr}
        v_and_or_b32 v{r1+1}, v{vT+5}, s{sT+1}, v{vDST+2*pr+1}
        v_lshlrev_b32 v{r0+2}, 16, v{vT+6}
        v_and_b32 v{r1+2}, s{sT+1}, v{vT+6}
        """)
    a("s_waitcnt lgkmcnt(0)\ns_barrier")
    for e in range(8):
        a(f"ds_read_b32 v{vP+e}, v{vHA+e}")
    a(f"v_mov_b32 v{vT+8}, {L_EH}\nds_read_b32 v{vT+9}, v{vT+8} offset:256")
    a("s_waitcnt lgkmcnt(0)")
    for e in range(8):
        a(f"""
        v_add_lshl_u32 v{vP+e}, v{vP+e}, v{vRK+e}, 4
        v_add_u32 v{vP+e}, {L_STG}, v{vP+e}
        s_mov_b64 exec, {sr(sACT+2*e,2)}
        ds_write_b128 v{vP+e}, {vr(vREC+4*e,4)}
        s_mov_b64 exec, -1
        """)
    a(f"""
    v_readfirstlane_b32 s{sT+4}, v{vT+9}
    s_cmp_lg_u32 s3, 0
    s_cbranch_scc1 {Lnb}
    s_mov_b32 s{sT}, {E}
    s_waitcnt vmcnt(0)
    v_and_b32 v{vQ+6}, 0x3ffff, v{vQ+6}
    v_mad_u32_u24 v{vT+6}, v0, s{sT}, v{vQ+6}
    v_sub_u32 v{vT+6}, v{vT+6}, v{vQ+7}
    v_lshlrev_b32 v{vT+6}, 4, v{vT+6}
    ds_write_b32 v{vT+3}, v{vT+6} offset:{L_DLT - L_EH}
{Lnb}:
    v_lshlrev_b32 v{vT+5}, 4, v0
    v_add_u32 v{vT+2}, {L_STG}, v{vT+5}
    s_waitcnt lgkmcnt(0)
    s_barrier
    """)
    stamp()
    for e in range(8):
        a(f"ds_read_b128 {vr(vREC+4*e,4)}, v{vT+2} offset:{e*8192}")
    for e in range(8):
        a(f"""
        s_waitcnt lgkmcnt(7)
        v_and_b32 v{vP+e}, 0xfc, v{vREC+4*e+1}
        v_add_u32 v{vP+e}, {L_DLT}, v{vP+e}
        ds_read_b32 v{vP+e}, v{vP+e}
        v_and_b32 v{vREC+4*e+1}, s{sT+1}, v{vREC+4*e+1}
        v_add_u32 v{vT+6}, {e*512}, v0
        v_cmp_gt_u32 {sr(sACT+2*e,2)}, s{sT+4}, v{vT+6}
        """)
    for e in range(8):
        Ls = a.label("K1_ES")
        a(f"""
        s_waitcnt lgkmcnt({7-e})
        v_add_u32 v{vP+e}, v{vP+e}, v{vT+5}
        s_mov_b32 s{sT}, {e*8192}
        s_mov_b64 exec, {sr(sACT+2*e,2)}
        s_cbranch_execz {Ls}
        buffer_store_dwordx4 {vr(vREC+4*e,4)}, v{vP+e}, {sr(sLIST,4)}, s{sT} offen sc1
{Ls}:
        s_mov_b64 exec, -1
        """)
    dump_stamps(nst[0])
    a(f"""
{Larr}:
    s_cmp_lg_u32 s3, {WSY}
    s_cbranch_scc1 {Lp2}
    """)
    srd(a, 28, 22, None, 0, 256)
    a(f"""
    v_mov_b32 v1, 0
    s_mov_b64 exec, 1
    buffer_load_dwordx2 v[{VTOK}:{VTOK+1}], v1, s[28:31], 0 offen sc1
    s_mov_b64 exec, -1
    s_branch {Lp2}
    """)
    Lagg = a.label("K1_AGG")
    a(f"""
{Lagg}:
    s_cmp_lg_u32 s3, {WSY}
    s_cbranch_scc1 {Lp2}
    """)
    srd(a, 28, 22, None, 0, 256)
    srd(a, 32, 24, None, WS_LUT + M_EPO, 128)
    a(f"""
    v_mov_b32 v1, 0
    s_mov_b64 exec, 1
    buffer_load_dword v2, v1, s[32:35], 0 offen sc1
    s_waitcnt vmcnt(0)
    v_add_u32 v2, 0x09e3779b, v2
    buffer_store_dword v2, v1, s[32:35], 0 offen sc1
    v_and_b32 v3, 0x1fff, v2
    v_bfe_u32 v4, v2, 13, 13
    v_lshl_or_b32 v3, v3, 1, 1
    v_lshl_or_b32 v4, v4, 1, 1
    v_lshlrev_b32 v3, 18, v3
    v_lshlrev_b32 v4, 18, v4
    s_waitcnt vmcnt(0)
    buffer_atomic_add v3, v1, s[28:31], 0 offen
    buffer_atomic_add v4, v1, s[28:31], 0 offen offset:4
    v_mov_b32 v{VTOK}, v3
    v_mov_b32 v{VTOK+1}, v4
    s_mov_b64 exec, -1
    s_branch {Lp2}
    """)

    Lbop = a.label("K1_BOP")
    a(f"{Lbop}:")
    a(f"s_waitcnt lgkmcnt(0)\ns_cmp_lg_u32 s2, {WG_BOP}\ns_cbranch_scc1 {Lagg}")
    srd(a, 28, 18, None, 0, 16 * 768 * 2)
    srd(a, 32, 24, None, WS_LUT + M_BOP, 24576)
    a(f"""
    v_bfe_u32 v1, v0, 4, 1
    v_mul_u32_u24 v1, {8*1536}, v1
    v_and_b32 v2, 15, v0
    v_lshl_add_u32 v1, v2, 2, v1
    s_lshl_b32 s36, s3, 6
    v_add_u32 v1, s36, v1
    v_bfe_u32 v3, v0, 5, 1
    v_xor_b32 v2, 1, v3
    v_lshl_add_u32 v2, v2, 9, v1
    """)
    for m in range(8):
        a(f"s_movk_i32 s37, {m*1536}")
        a(f"buffer_load_dword v{8+m}, v2, s[28:31], s37 offen")
        a(f"buffer_load_dword v{16+m}, v1, s[28:31], s37 offen offset:1024")
    a(f"""
    s_mov_b32 s38, 0x05040100
    s_mov_b32 s39, 0x07060302
    v_mul_u32_u24 v3, 0x020202, v3
    v_lshl_or_b32 v3, v3, 8, v3
    v_add_u32 v3, s38, v3
    v_and_b32 v4, 63, v0
    v_lshlrev_b32 v4, 4, v4
    s_mul_i32 s36, s3, 3072
    s_waitcnt vmcnt(0)
    """)
    for m in range(4):
        a(f"v_perm_b32 v{24+m}, v{8+2*m+1}, v{8+2*m}, s39")
        a(f"v_perm_b32 v{28+m}, v{8+2*m+1}, v{8+2*m}, s38")
        a(f"v_perm_b32 v{32+m}, v{16+2*m+1}, v{16+2*m}, v3")
    a(f"""
    buffer_store_dwordx4 v[24:27], v4, s[32:35], s36 offen sc1
    buffer_store_dwordx4 v[28:31], v4, s[32:35], s36 offen offset:1024 sc1
    buffer_store_dwordx4 v[32:35], v4, s[32:35], s36 offen offset:2048 sc1
    s_branch {Larr}
    """)
    a(f"{Llut}:")
    a(f"""
    s_cmp_ge_u32 s2, {WG_LUT0+NLUTWG}
    s_cbranch_scc1 {Lbop}
    s_waitcnt lgkmcnt(0)
    s_load_dwordx8 s[28:35], s[12:13], 0
    """)
    srd(a, 60, 24, None, WS_LUT, LUT_BYTES)
    a(f"""
    s_sub_u32 s56, s2, {WG_LUT0}
    s_lshl_b32 s56, s56, 9
    v_add_u32 v1, s56, v0
    v_add_u32 v2, {DBASE}, v1
    v_lshlrev_b32 v2, 16, v2
    v_lshlrev_b32 v1, 5, v1
    s_mov_b32 s52, 0x40490fdb
    s_mov_b32 s53, 0x3e4ccccd
    s_mov_b32 s54, 0x3e22f983
    s_waitcnt lgkmcnt(0)
    """)
    for k in range(8):
        a(f"s_lshl_b32 s{36+2*k}, s{28+k}, 16\ns_and_b32 s{37+2*k}, s{28+k}, 0xffff0000")
    lut_row(a, 2, 4, 12, 36, 52)
    a(f"""
    buffer_store_dwordx4 v[4:7], v1, s[60:63], 0 offen sc1
    buffer_store_dwordx4 v[8:11], v1, s[60:63], 0 offen offset:16 sc1
    s_branch {Larr}
{Lcend}:
    """)
    a.cur = a0

    a(f"{Lgemm}:")
    V = Regs("v", 1, 256)
    vD1 = V.alloc("d1"); vD2 = V.alloc("d2"); vD3 = V.alloc("d3"); vDV = V.alloc("dv")
    vAS = V.alloc("as", 2); vTR = V.alloc("tr", 2); vVR = V.alloc("vr"); vO4 = V.alloc("o4"); vSEL = V.alloc("sel"); vHW = V.alloc("hw", 4)
    vRL = V.alloc("rl")
    vT = V.alloc("t", 12, 2)
    vACC = V.alloc("acc", 72, 4)
    vAF = V.alloc("af", 96, 4)
    vBF = V.alloc("bf", 32, 4)
    vV = V.alloc("v", 12)
    vOB = V.alloc("ob", 12, 4)
    nvmax = max(nvmax, V.hi)
    assert vHW == VTOK, (vHW, VTOK)
    sSV, sW1, sW2, sT4, sT1 = 28, 32, 36, 40, 44
    sT = 48; sHI = 56; sROW = 57; sM = 58; sRB = 59; sRND = 60; sL = 61; sROT = 62; sMV = 63
    sK1 = 64; sK2 = 72; sEV = 80
    q, j = vT + 1, vT + 2
    hi, ch = vT + 3, vT + 4
    a(f"""
    s_sub_u32 s{sROW}, s2, {WG_GEMM0}
    s_mul_i32 s{sROW}, s{sROW}, {ROWS}
    s_lshl_b32 s{sRB}, s{sROW}, 11
    s_and_b32 s{sL}, s3, 3
    s_lshr_b32 s{sROT}, s2, 3
    s_and_b32 s{sROT}, s{sROT}, {7 if opt.get("rot", 1) else 0}
    s_lshl_b32 s{sMV}, s{sL}, 10
    s_and_b32 s{sT}, s{sL}, 1
    s_lshr_b32 s{sT+1}, s{sL}, 1
    s_lshl_b32 s{sT+2}, s{sT+1}, 2
    s_add_u32 s{sT+2}, s{sT+2}, s{sT}
    s_lshl_b32 s{sM}, s{sT+2}, 10
    v_bfe_u32 v{hi}, v0, 5, 1
    v_and_b32 v{ch}, 31, v0
    """)
    a(f"""
    s_lshl_b32 s{sT+3}, s{sL}, 2
    v_lshl_add_u32 v{vT+5}, v{hi}, 1, s{sT+3}
    v_xor_b32 v{vT+5}, v{vT+5}, v{ch}
    v_lshlrev_b32 v{vT+5}, 4, v{vT+5}
    v_lshl_add_u32 v{vD1}, v{hi}, 9, v{vT+5}
    v_add_u32 v{vD1}, s{sM}, v{vD1}
    """)
    a(f"""
    s_lshl_b32 s{sT+4}, s{sL}, 12
    v_lshl_add_u32 v{vT+6}, v{hi}, 11, v{vT+5}
    v_add_u32 v{vT+6}, s{sT+4}, v{vT+6}
    """)
    a(f"""
    v_bfe_u32 v{q}, v0, 4, 4
    v_and_b32 v{j}, 15, v0
    v_lshlrev_b32 v{vDV}, 11, v{q}
    v_lshl_add_u32 v{vDV}, v{j}, 4, v{vDV}
    """)
    for n in range(3):
        a(f"s_xor_b32 s{sK1+n}, s{sROT}, {n}\ns_lshl_b32 s{sK1+n}, s{sK1+n}, 14")
    a("s_waitcnt lgkmcnt(0)")
    srd(a, sSV, 4, None, 0, N * 2048)
    srd(a, sW1, 14, None, 0, 256 * 512)
    units = [("w1", n, 0) for n in range(8)] + [("a", n, 0) for n in range(8)] + [("a", n, 1) for n in range(8)] \
          + [("b", n, 0) for n in range(4)] + [("b", n, 1) for n in range(4)]
    owner = lambda u: units[u][2] if units[u][0] == "a" else 0
    class C: pass
    st = C(); st.seq = []
    def dma_unit(u, which=(0, 1, 2, 3)):
        kind, n, hf = units[u]
        for i in which:
            rr = 4 * (i & 1) + 16 * (i >> 1)
            kr = 2 * (i & 1) + 8 * (i >> 1)
            a(f"s_add_u32 m0, s{sM}, {L_RING + (u%4)*16384 + rr*512}")
            if kind == "w1":
                a(f"s_add_u32 s{sT}, s{sK1+n}, {rr*512}")
                a(f"buffer_load_dwordx4 v{vD1}, {sr(sW1,4)}, s{sT} offen lds")
            elif kind == "a":
                a(f"s_add_u32 s{sT}, s{sK2+n}, {kr*1536 + hf*256}")
                a(f"buffer_load_dwordx4 v{vD2}, {sr(sW2,4)}, s{sT} offen lds")
            else:
                a(f"s_add_u32 s{sT}, s{sK1+n}, {kr*1536 + hf*256 + 1024}")
                a(f"buffer_load_dwordx4 v{vD3}, {sr(sW2,4)}, s{sT} offen lds")
            st.seq.append(("U", u))
    def dma_v(hf, n):
        c, i = n % 3, n // 3
        a(f"""
        s_add_u32 m0, s{sMV}, {L_V + ((1-hf)*3+c)*ROWS*256 + i*4096}
        s_add_u32 s{sT}, s{sRB}, {i*16*2048 + 512*(c+1) + hf*256}
        buffer_load_dwordx4 v{vDV}, {sr(sSV,4)}, s{sT} offen lds
        """)
        st.seq.append(("V", hf))
    LnoB0 = a.label("K1_G0")
    a(f"s_cmp_lt_u32 s3, 4\ns_cbranch_scc1 {LnoB0}")
    for i in range(6):
        a(f"""
        s_add_u32 m0, s{sMV}, {L_H + i*4096}
        s_add_u32 s{sT}, s{sRB}, {i*8*2048}
        buffer_load_dwordx4 v{vT+6}, {sr(sSV,4)}, s{sT} offen lds
        """)
        st.seq.append(("U", 0))
    nx0 = opt.get("nx0", 0); gbit = opt.get("gbit", 3)
    if nx0:
        Lnx = a.label("K1_NOX")
        a(f"s_bitcmp1_b32 s2, {gbit}\ns_cbranch_scc0 {Lnx}")
        keep = list(st.seq)
        for n in range(nx0): dma_v(0, n)
        st.seq = keep
        a(f"{Lnx}:")
    for u in range(3): dma_unit(u)
    seqB0 = list(st.seq)
    a(f"{LnoB0}:")
    for n in range(3, 8):
        a(f"s_xor_b32 s{sK1+n}, s{sROT}, {n}\ns_lshl_b32 s{sK1+n}, s{sK1+n}, 14")
    for n in range(8):
        a(f"s_mul_i32 s{sK2+n}, s{sK1+n}, 3")
    srd(a, sW2, 16, None, 0, 256 * 1536)
    a(f"s_lshr_b32 s{sT+6}, s3, 1\ns_mul_i32 s{sT+6}, s{sT+6}, {TAB_SL}")
    srd(a, sT4, 24, sT + 6, WS_TAB, TAB_SL)
    a(f"""
    v_lshl_add_u32 v{vT+7}, v{hi}, 4, s{sT+2}
    v_mul_u32_u24 v{vT+7}, 1536, v{vT+7}
    v_and_b32 v{vT+8}, 0xf0, v{vT+5}
    v_add_u32 v{vT+7}, v{vT+7}, v{vT+8}
    v_lshrrev_b32 v{vT+8}, 4, v{ch}
    v_xor_b32 v{vT+9}, 1, v{vT+8}
    v_lshl_add_u32 v{vD2}, v{vT+9}, 9, v{vT+7}
    v_xor_b32 v{vT+8}, s{sROT}, v{vT+8}
    v_and_b32 v{vT+8}, 1, v{vT+8}
    v_mul_u32_u24 v{vT+8}, 49152, v{vT+8}
    v_add_u32 v{vD3}, v{vT+7}, v{vT+8}
    s_mov_b32 s{sHI}, 0x07060302
    s_mov_b32 s{sRND}, 0x8000
    v_bfe_u32 v{q}, v0, 4, 2
    v_and_b32 v{j}, 15, v0
    v_and_b32 v{vT+3}, 7, v{j}
    v_lshlrev_b32 v{vT+3}, 1, v{vT+3}
    v_xor_b32 v{vT+3}, v{vT+3}, v{q}
    v_lshlrev_b32 v{vT+3}, 4, v{vT+3}
    v_lshl_add_u32 v{vAS}, v{j}, 9, v{vT+3}
    s_lshl_b32 s{sT+4}, s{sROT}, 6
    v_xor_b32 v{vAS}, s{sT+4}, v{vAS}
    v_add_u32 v{vAS}, {L_H}, v{vAS}
    """)
    a(f"""
    v_lshrrev_b32 v{vT+3}, 2, v{j}
    v_and_b32 v{vT+4}, 1, v{q}
    v_lshl_or_b32 v{vT+4}, v{vT+4}, 2, v{vT+3}
    v_lshlrev_b32 v{vT+4}, 1, v{vT+4}
    v_bfe_u32 v{vT+5}, v0, 1, 1
    v_or_b32 v{vT+5}, s{sT+3}, v{vT+5}
    v_xor_b32 v{vT+4}, v{vT+4}, v{vT+5}
    v_lshl_add_u32 v{vT+3}, v{q}, 3, v{vT+3}
    v_lshlrev_b32 v{vT+3}, 9, v{vT+3}
    v_lshl_add_u32 v{vT+3}, v{vT+4}, 4, v{vT+3}
    v_and_b32 v{vT+4}, 1, v0
    v_lshl_add_u32 v{vTR}, v{vT+4}, 3, v{vT+3}
    v_xor_b32 v{vTR+1}, 32, v{vTR}
    """)
    a(f"""
    v_lshrrev_b32 v{vT+3}, 2, v{j}
    v_or_b32 v{vT+3}, s{sT+3}, v{vT+3}
    v_and_b32 v{vT+4}, 1, v{q}
    v_lshlrev_b32 v{vT+4}, 3, v{vT+4}
    v_xor_b32 v{vT+3}, v{vT+3}, v{vT+4}
    v_lshlrev_b32 v{vT+3}, 4, v{vT+3}
    v_and_b32 v{vT+4}, 3, v{j}
    v_lshl_add_u32 v{vT+3}, v{vT+4}, 2, v{vT+3}
    v_lshl_add_u32 v{vT+3}, v{q}, 11, v{vT+3}
    v_add_u32 v{vHW}, {L_H}, v{vT+3}
    v_xor_b32 v{vHW+1}, 32, v{vHW}
    v_xor_b32 v{vHW+2}, 64, v{vHW}
    v_xor_b32 v{vHW+3}, 96, v{vHW}
    """)
    a(f"""
    v_and_b32 v{vT+3}, 1, v{j}
    v_lshlrev_b32 v{vT+3}, 5, v{vT+3}
    v_lshrrev_b32 v{vT+4}, 1, v{j}
    v_lshl_add_u32 v{vT+3}, v{vT+4}, 2, v{vT+3}
    s_lshr_b32 s{sT+1}, s3, 2
    s_xor_b32 s{sT+1}, s{sT+1}, 1
    s_mul_i32 s{sT+1}, s{sT+1}, {3*ROWS*256}
    s_lshl_b32 s{sT+4}, s{sL}, 6
    s_add_u32 s{sT+1}, s{sT+1}, s{sT+4}
    s_add_u32 s{sT+1}, s{sT+1}, {L_V}
    v_add_u32 v{vT+3}, s{sT+1}, v{vT+3}
    v_lshl_add_u32 v{vVR}, v{q}, 10, v{vT+3}
    v_lshl_add_u32 v{vT+3}, v{q}, 2, s{sROW}
    v_mul_u32_u24 v{vO4}, {ROWB}, v{vT+3}
    v_lshl_add_u32 v{vO4}, v{j}, 4, v{vO4}
    s_and_b32 s{sT+4}, s3, 1
    s_lshl_b32 s{sT+4}, s{sT+4}, 8
    v_add_u32 v{vO4}, s{sT+4}, v{vO4}
    s_mov_b32 s{sEV}, 0x55555555
    s_mov_b32 s{sEV+1}, 0x55555555
    v_mov_b32 v{vT+3}, 0x03020706
    v_mov_b32 v{vT+4}, 0x05040100
    v_mov_b32 v{vT+5}, 0x8000
    v_cndmask_b32 v{vSEL}, v{vT+3}, v{vT+4}, s[{sEV}:{sEV+1}]
    v_cndmask_b32 v{vRL}, 0, v{vT+5}, s[{sEV}:{sEV+1}]
    """)
    def af_read(ns):
        for n in ns:
            if n: a(f"v_xor_b32 v{vAS+1}, {n*64}, v{vAS}")
            for mt in range(3):
                a(f"ds_read_b128 {vr(vAF+(n*3+mt)*4,4)}, v{vAS+1 if n else vAS} offset:{mt*8192}")
    def tr_read(u):
        b = vBF + 16 * (u & 1)
        for side in range(2):
            for t in range(2):
                for h in range(2):
                    if units[u][0] == "b":
                        a(f"ds_read_b64_tr_b16 {vr(b+8*side+4*t+2*h,2)}, v{vTR} offset:{L_RING + (u%4)*16384 + h*2048 + side*256 + 8*t}")
                    else:
                        a(f"ds_read_b64_tr_b16 {vr(b+8*side+4*t+2*h,2)}, v{vTR+t} offset:{L_RING + (u%4)*16384 + h*2048 + side*256}")
    def mfmas(u, dmu=None, dl=()):
        kind, n, hf = units[u]
        b = vBF + 16 * (u & 1)
        for side in range(2):
            for t in range(2):
                for mt in range(3):
                    if dl and mt == 1 and (len(dl) == 4 or t == 0): dma_unit(dmu, (dl[side * 2 + t] if len(dl) == 4 else dl[side],))
                    if kind == "b":
                        nn = 2 * n + side; nt = (4 if hf == 0 else 0) + t
                    else:
                        nn = n; nt = 2 * side + t
                    acc = vACC + (mt * 6 + nt) * 4
                    c = "0" if nn == 0 else vr(acc, 4)
                    a(f"v_mfma_f32_16x16x32_bf16 {vr(acc,4)}, {vr(vAF+(nn*3+mt)*4,4)}, {vr(b+8*side+4*t,4)}, {c}")
    def silu():
        a(f"s_mov_b32 s{sT+6}, 0xbfb8aa3b\ns_mov_b32 s{sT+7}, 0xbfb8aa3b\ns_nop 7")
        for mt in range(3):
            for side in range(2):
                A0, A1 = vACC + (mt * 6 + 2 * side) * 4, vACC + (mt * 6 + 2 * side + 1) * 4
                X = [A0, A0 + 2, A1, A1 + 2]
                if opt.get("rndpre", 1):
                    for r in range(4): a(f"v_cvt_pk_bf16_f32 v{vT+r}, v{A0+r}, v{A1+r}")
                    for r in range(4): a(f"v_lshlrev_b32 v{A0+r}, 16, v{vT+r}\nv_and_b32 v{A1+r}, 0xffff0000, v{vT+r}")
                for k in range(4): a(f"v_pk_mul_f32 {vr(vT+2*k,2)}, {vr(X[k],2)}, s[{sT+6}:{sT+7}]")
                for k in range(8): a(f"v_exp_f32 v{vT+k}, v{vT+k}")
                for k in range(4): a(f"v_pk_add_f32 {vr(vT+2*k,2)}, {vr(vT+2*k,2)}, 1.0 op_sel_hi:[1,0]")
                for k in range(8): a(f"v_rcp_f32 v{vT+k}, v{vT+k}")
                for k in range(4): a(f"v_pk_mul_f32 {vr(X[k],2)}, {vr(X[k],2)}, {vr(vT+2*k,2)}")
                for r in range(4): a(f"v_cvt_pk_bf16_f32 v{A0+r}, v{A0+r}, v{A1+r}")
            b0, b1 = vACC + (mt * 6) * 4, vACC + (mt * 6 + 2) * 4
            for r in range(4): a(f"ds_write2st64_b32 v{vHW+r}, v{b0+r}, v{b1+r} offset0:{2*(mt*16+r)} offset1:{2*(mt*16+r)+1}")
    DPP = "quad_perm:[1,0,3,2] row_mask:0xf bank_mask:0xf"
    def v_read(pc):
        mt, r = pc // 4, pc % 4
        for c in range(3):
            a(f"ds_read_b32 v{vV + (pc % 4) * 3 + c}, v{vVR} offset:{c*ROWS*256 + (mt*16+r)*256}")
    def t4_piece(pc):
        mt, r = pc // 4, pc % 4
        A_ = lambda nt: vACC + (mt * 6 + nt) * 4 + r
        o = vOB + 4 * (pc % 3); vv = vV + (pc % 4) * 3
        lo, hi_, P, Q = vT, vT + 1, vT + 2, vT + 3
        x = vT + 4
        a(f"""
        v_perm_b32 v{P}, v{A_(3)}, v{A_(2)}, s{sHI}
        v_mov_b32_dpp v{lo}, v{A_(1)} {DPP}
        v_mov_b32_dpp v{hi_}, v{A_(0)} {DPP}
        v_mov_b32_dpp v{Q}, v{P} {DPP}
        v_cndmask_b32 v{lo}, v{lo}, v{A_(0)}, s[{sEV}:{sEV+1}]
        v_cndmask_b32 v{hi_}, v{A_(1)}, v{hi_}, s[{sEV}:{sEV+1}]
        v_perm_b32 v{o+3}, v{Q}, v{P}, v{vSEL}
        v_lshlrev_b32 v{x}, 16, v{vv}
        v_and_b32 v{x+1}, 0xffff0000, v{vv}
        v_lshlrev_b32 v{x+2}, 16, v{vv+1}
        v_and_b32 v{x+3}, 0xffff0000, v{vv+1}
        v_lshlrev_b32 v{x+4}, 16, v{vv+2}
        v_and_b32 v{x+5}, 0xffff0000, v{vv+2}
        v_mul_f32 v{x}, v{x}, v{lo}
        v_mul_f32 v{x+1}, v{x+1}, v{hi_}
        v_mul_f32 v{x+2}, v{x+2}, v{lo}
        v_mul_f32 v{x+3}, v{x+3}, v{hi_}
        v_mul_f32 v{x+4}, v{x+4}, v{lo}
        v_mul_f32 v{x+5}, v{x+5}, v{hi_}
        v_add_u32 v{x}, s{sRND}, v{x}
        v_add_u32 v{x+4}, s{sRND}, v{x+4}
        v_perm_b32 v{o+1}, v{x+3}, v{x+2}, s{sHI}
        v_perm_b32 v{o}, v{x+1}, v{x}, s{sHI}
        v_perm_b32 v{o+2}, v{x+5}, v{x+4}, s{sHI}
        s_movk_i32 s{sT+4}, {mt*16*ROWB}
        buffer_store_dwordx4 {vr(o,4)}, v{vO4}, {sr(sT4,4)}, s{sT+4} offen offset:{r*ROWB} {tab_fl}
        """)
        st.seq.append("ST")
    def b_setup():
        a(f"""
        v_mbcnt_lo_u32_b32 v{vT}, -1, 0
        v_mbcnt_hi_u32_b32 v{vT}, -1, v{vT}
        v_lshrrev_b32 v{vT+1}, 4, v{vT}
        v_bfe_u32 v{vT+2}, v{vT}, 2, 2
        v_and_b32 v{vT+3}, 1, v{vT+1}
        v_lshl_or_b32 v{vT+3}, v{vT+3}, 2, v{vT+2}
        v_lshlrev_b32 v{vT+3}, 1, v{vT+3}
        v_and_b32 v{vT+4}, 3, v{vT}
        s_lshl_b32 s{sT+4}, s{sL}, 2
        v_or_b32 v{vT+5}, s{sT+4}, v{vT+4}
        v_xor_b32 v{vT+3}, v{vT+3}, v{vT+5}
        v_lshl_add_u32 v{vT+5}, v{vT+1}, 3, v{vT+2}
        v_lshlrev_b32 v{vT+5}, 9, v{vT+5}
        v_lshl_add_u32 v{vTR}, v{vT+3}, 4, v{vT+5}
        v_lshl_add_u32 v{vT+1}, v{vT+1}, 2, s{sROW}
        v_mul_u32_u24 v{vT+1}, {ROWB}, v{vT+1}
        v_lshl_add_u32 v{vT+1}, v{vT+2}, 4, v{vT+1}
        v_and_b32 v{vT+3}, 1, v{vT}
        v_lshl_add_u32 v{vT+1}, v{vT+3}, 3, v{vT+1}
        v_bfe_u32 v{vT+3}, v{vT}, 1, 1
        v_lshl_add_u32 v{vT+1}, v{vT+3}, 2, v{vT+1}
        s_and_b32 s{sT+4}, s3, 1
        s_lshl_b32 s{sT+4}, s{sT+4}, 6
        s_add_u32 s{sT+4}, s{sT+4}, 512
        v_add_u32 v{vTR+1}, s{sT+4}, v{vT+1}
        s_add_u32 s{sW1}, s{sT4}, {2*TAB_SL}
        s_addc_u32 s{sW1+1}, s{sT4+1}, 0
        s_mov_b32 s{sW1+2}, {TAB_SL}
        """)
    def t1_epi(hf, mts=(0, 1, 2)):
        nt0 = 4 if hf == 0 else 0
        sd = sT4 if hf == 0 else sW1
        for mt in mts:
            A_ = lambda t, r: vACC + (mt * 6 + nt0 + t) * 4 + r
            for r in range(4):
                a(f"v_add_u32 v{A_(0,r)}, v{A_(0,r)}, v{vRL}")
                a(f"v_add_u32 v{A_(1,r)}, v{A_(1,r)}, v{vRL}")
            for r in range(4):
                a(f"v_perm_b32 v{vT+r}, v{A_(1,r)}, v{A_(0,r)}, s{sHI}")
            a(f"s_movk_i32 s{sT+4}, {mt*16*ROWB}")
            for r in range(4):
                a(f"v_mov_b32_dpp v{vT+4+r}, v{vT+r} {DPP}")
            for r in range(4):
                a(f"v_perm_b32 v{vOB+mt*4+r}, v{vT+4+r}, v{vT+r}, v{vSEL}")
                a(f"buffer_store_dword v{vOB+mt*4+r}, v{vTR+1}, {sr(sd,4)}, s{sT+4} offen offset:{r*ROWB} {tab_fl}")
                st.seq.append("ST")
    pf_cls = 1
    ldm = opt.get("ldm", 0)
    VL = [(0, n) for n in range(9)] + [(1, n) for n in range(9)]
    def front(g):
        todo = VL[nx0:] if g else list(VL)
        per = opt.get("vper", 4); ukeep = opt.get("ukeep", 8)
        sch = {}
        for u in range(9):
            L = []
            if u + 3 <= ukeep: L.append(("U", u + 3))
            elif u < 8:
                L += [("V",) + todo.pop(0) for _ in range(min(per, len(todo)))]
            if u == opt.get("pf_at", 5): L.append(("PF",))
            if u == 8:
                L += [("V",) + x for x in todo]
                L += [("U", k) for k in range(ukeep + 1, 12)]
            sch[u] = L
        return sch
    def dmas(u, cls):
        if u + 3 >= 32 or u < 9: return []
        if u < 16: return [0, 1, 2, 3] if cls == 1 else []
        if ldm == 0: return [0, 1, 2, 3] if cls == owner(u) else []
        if ldm == 1: return [0, 1, 2, 3] if cls != owner(u) else []
        return [0, 1] if cls == 0 else [2, 3]
    def prefetch():
        a(f"""
        s_lshr_b32 s{sT+1}, s2, 3
        s_add_u32 s{sT+1}, s{sT+1}, {24-6}
        s_cmp_ge_u32 s{sT+1}, 24
        s_cselect_b32 s{sT+2}, 24, 0
        s_sub_u32 s{sT+1}, s{sT+1}, s{sT+2}
        s_lshl_b32 s{sT+2}, s{sT+1}, 2
        s_add_u32 s{sT+2}, s{sT+2}, s{sL}
        s_lshl_b32 s{sT+3}, s{sT+2}, 12
        v_mbcnt_lo_u32_b32 v{vV}, -1, 0
        v_lshlrev_b32 v{vV}, 7, v{vV}
        s_mov_b32 exec_hi, 0
        buffer_load_dword v{vV+1}, v{vV}, {sr(sW2,4)}, s{sT+3} offen
        s_mov_b64 exec, -1
        """)
        st.seq.append("PF")
    pB = opt.get("pB", [2, 2, 2, 1, 2, 2, 1, 0, 0])
    pA = opt.get("pA", [2, 2, 1, 2, 1, 2, 1, 1, 0])
    if len(pB) == 8: pB = [0] + pB
    pieces = [{}, {}]
    for cls, base, pl in ((0, 15, pA), (1, 23, pB)):
        k = 0
        for i_, c_ in enumerate(pl):
            pieces[cls][base + i_] = list(range(k, k + c_)); k += c_
        assert k == 12
    LB = a.label("K1_GB"); Lfin = a.label("K1_GFIN")
    a(f"s_cmp_ge_u32 s3, 4\ns_cbranch_scc1 {LB}")
    stu = opt.get("stu", [0, 9, 15, 24])
    for cls in range(2):
        if cls == 1: a(f"{LB}:")
        nst[0] = 1 if stamps else 0
        st.seq = list(seqB0) if cls == 1 else []
        def wait_tags(tags):
            idx = [i for i, t in enumerate(st.seq) if t in tags]
            if idx: a(f"s_waitcnt vmcnt({min(63, len(st.seq) - 1 - max(idx))})")
        ulist = [(u, 0) for u in range(32)]
        if cls == 1 and nx0:
            ulist = [(u, 1) for u in range(9)] + ulist
            LY = a.label("K1_GY"); L9 = a.label("K1_G9")
            a(f"s_bitcmp1_b32 s2, {gbit}\ns_cbranch_scc0 {LY}")
        for (u, grp) in ulist:
            if cls == 1 and nx0 and grp == 0 and u == 0:
                a(f"s_branch {L9}\n{LY}:")
                st.seq = list(seqB0); nst[0] = 1 if stamps else 0
            if cls == 1 and nx0 and u == 9: a(f"{L9}:")
            tags = [("U", u)]
            if u == 15: tags.append(("V", 0))
            if u == 23: tags.append(("V", 1))
            lastb = opt.get("lastb", 30)
            if u == lastb: tags += [("U", x) for x in range(u + 1, 32)]
            tr_ = opt.get("trace"); vtr = vD1 if cls == 0 else vRL
            if tr_: a("s_memtime s[98:99]")
            if u <= lastb:
                wait_tags(tags)
                a("s_barrier")
            if tr_:
                a(f"s_waitcnt lgkmcnt(0)\nv_writelane_b32 v{vtr}, s98, {2*u}\ns_memtime s[98:99]\ns_waitcnt lgkmcnt(0)\nv_writelane_b32 v{vtr}, s98, {2*u+1}")
            if u in stu: stamp()
            if u == 8:
                for n in range(4):
                    a(f"s_min_u32 s{sK1+n}, s{sK2+2*n}, s{sK2+2*n+1}")
            lds = False
            if cls == 0 and u == 9:
                af_read([0]); tr_read(u); af_read([1]); a("s_waitcnt lgkmcnt(11)"); lds = True
            elif owner(u) == cls:
                tr_read(u); lds = True
                if cls == 0 and u < 8: af_read([u])
                if cls == 0 and 10 <= u < 16: af_read([u - 8])
            early = {8: 7, 16: 15, 24: 23}
            dm = dmas(u, cls)
            if u >= 1 and owner(u - 1) == cls and early.get(u) != u - 1:
                mfmas(u - 1, u + 3, dm); dm = []
            if u in (7, 15, 23) and owner(u) == cls:
                a("s_waitcnt lgkmcnt(0)")
                if u != 7: v_read(0); v_read(1)
                mfmas(u)
            if cls == 1 and u == 25: zero_counters(a, vD1, vD2); lds = True
            if cls == 1 and u == opt.get("tok_at", 29):
                srd(a, sT1, 22, None, 0, 256)
                srd(a, sW1, 24, None, WS_LUT, MISC_BYTES)
                sync_loads(a, sT1, sW1, sT + 1, vD1)
                st.seq += ["TOK", "TOK"]
            if cls == 0 and u == 8: silu()
            if u in (15, 23) and owner(u) == cls: a("s_nop 4")
            pcs = list(pieces[cls].get(u, []))
            if pcs:
                if lds: a("s_waitcnt lgkmcnt(0)")
                for pc in pcs:
                    for _ in range(max(1, len(dm) // len(pcs))):
                        if dm: dma_unit(u + 3, (dm.pop(0),))
                    if pc + 2 < 12: v_read(pc + 2)
                    a(f"s_waitcnt lgkmcnt({min(6, 3 * (11 - pc))})")
                    t4_piece(pc)
            if dm: dma_unit(u + 3, dm)
            if cls == 1 and u < 9:
                for act in front(grp)[u]:
                    if act[0] == "U": dma_unit(act[1])
                    elif act[0] == "V": dma_v(act[1], act[2])
                    else: prefetch()
            if cls == 1 and 10 <= u < 14: af_read(range(2 * (u - 10), 2 * (u - 10) + 2)); lds = True
            if cls == 0 and u == 23: b_setup()
            if cls == 0 and u in (29, 30, 31): t1_epi(0, (u - 29,))
            if lds: a("s_waitcnt lgkmcnt(0)")
        if cls == 0:
            mfmas(31); a("s_nop 7"); t1_epi(1)
        else:
            opt["tokw"] = len(st.seq) - 1 - max(i for i, t in enumerate(st.seq) if t == "TOK")
            assert not pieces[1].get(lastb) and not pieces[1].get(31)
        stamp()
        if opt.get("trace"):
            a(f"""
            s_add_u32 s40, s24, {WS_DIAG + (2<<20)}
            s_addc_u32 s41, s25, 0
            s_mov_b32 s42, 0x100000
            s_mov_b32 s43, 0x20000
            s_lshl_b32 s44, s2, 3
            s_add_u32 s44, s44, s3
            s_lshl_b32 s44, s44, 8
            v_mbcnt_lo_u32_b32 v{vT}, -1, 0
            v_mbcnt_hi_u32_b32 v{vT}, -1, v{vT}
            v_lshlrev_b32 v{vT}, 2, v{vT}
            buffer_store_dword v{vtr}, v{vT}, s[40:43], s44 offen
            """)
        if cls == 0: a(f"s_branch {Lfin}")
    a(f"{Lfin}:")
    dump_stamps(nst[0])
    a(f"{Lp2}:")
    phase2(a0, opt, Lend)
    a0.lines += side.lines
    return nvmax, 102
```

```python
from asmlib import *
from layout import *

CHUNK = 2048
SCAP = CHUNK // 4 + 2 * CAPN + 8 + 12
L_PARK = 0
L_STREAM = NKEY * 512
STREAM_BYTES = SCAP * 64
L_LUT = L_STREAM + STREAM_BYTES
L_CNT = L_LUT + (NRS + 512) * 32
L_HIST = L_CNT + 1280
L_ALLOC = L_HIST + 256
L_SORT = L_ALLOC + 64
L_NADDR = L_SORT + 1280 + 256
L_PASS = L_NADDR + 1280
K2_LDS = L_PASS + 64
assert K2_LDS <= 163840 and L_CNT >= 139264
DIRS = [0, 1, 0, 1, 1] * 2

def dpp_scan(a, op, v):
    for m in ["row_shr:1", "row_shr:2", "row_shr:4", "row_shr:8"]:
        a("s_nop 1")
        a(f"{op}_dpp v{v}, v{v}, v{v} {m} row_mask:0xf bank_mask:0xf bound_ctrl:0")
    a("s_nop 1")
    a(f"{op}_dpp v{v}, v{v}, v{v} row_bcast:15 row_mask:0xa bank_mask:0xf")
    a("s_nop 1")
    a(f"{op}_dpp v{v}, v{v}, v{v} row_bcast:31 row_mask:0xc bank_mask:0xf")

def zero_counters(a, t0, t1):
    a(f"""
    v_lshlrev_b32 v{t0}, 3, v0
    v_add_u32 v{t0}, {L_CNT - 2048}, v{t0}
    v_mov_b32 v{t1}, 0
    v_cmp_gt_u32 vcc, 456, v0
    s_and_b64 exec, exec, vcc
    ds_write2_b32 v{t0}, v{t1}, v{t1} offset0:0 offset1:1
    s_mov_b64 exec, -1
    """)

def sync_loads(a, sdbg, smisc, st, vz, tok=True, gran=True):
    a(f"""
    s_lshr_b32 s{st}, s2, 3
    s_lshl_b32 s{st}, s{st}, 4
    s_and_b32 s{st+1}, s2, 1
    s_lshl_b32 s{st+1}, s{st+1}, 3
    s_add_u32 s{st}, s{st}, s{st+1}
    s_add_u32 s{st}, s{st}, {M_TOT}
    v_mov_b32 v{vz}, 0
    s_mov_b64 exec, 1
    {f"buffer_load_dwordx2 v[{VTOK}:{VTOK+1}], v{vz}, {sr(sdbg,4)}, 0 offen sc1" if tok else ""}
    {f"buffer_load_dwordx2 v[{VTOK+2}:{VTOK+3}], v{vz}, {sr(smisc,4)}, s{st} offen sc1" if gran else ""}
    s_mov_b64 exec, -1
    """)

def gen_k2(a, opt, Lend):
    stamps = opt.get("stamps", False)
    st_fl = opt.get("st_flags", "nt")
    NRG = opt.get("ring", 4); DP = NRG - 1
    V = Regs("v", 1, 256)
    vB = V.alloc("B", 24, 2)
    vC1 = V.alloc("c1"); vC2 = V.alloc("c2"); vML = V.alloc("ml"); vCL = V.alloc("cl")
    vS = V.alloc("vS"); vA = V.alloc("vA"); vPEND = V.alloc("pend"); vG4 = V.alloc("g4"); vCO = V.alloc("co")
    vEN = V.alloc("en"); vPA = V.alloc("pa"); vO = V.alloc("O"); vPD = V.alloc("pd")
    vACC = V.alloc("acc", 20, 2)
    vD = V.alloc("D", 24, 2)
    vRH = V.alloc("RH", 8, 2)
    vAOP = V.alloc("A", 4, 2)
    vE = V.alloc("E", 8, 2)
    vX = V.alloc("X", 16, 2)
    vT = V.alloc("T", 4, 2)
    vPK = V.alloc("PK", 2, 2)
    vLI = V.alloc("LI")
    vAD = V.alloc("ad", 4)
    vRING = V.alloc("ring", 24 * NRG, 2)
    P = Regs("v", vACC, 256)
    pT = P.alloc("t", 12, 2)
    pREC = P.alloc("rec", 32, 2)
    pRANK = P.alloc("rank", 8)
    pDL = P.alloc("dl", 8)
    pEK = P.alloc("ek", 10)
    pRS = P.alloc("rs", 8)
    pNA = P.alloc("na", 8)
    pLT = P.alloc("lt", 16, 2)
    pRARE = P.alloc("rare", 64, 2)
    assert pRARE >= vRING
    nv = max(V.hi, P.hi)
    def ACC(hf): b = vACC + 10 * hf; return b, b + 2, b + 4, b + 6, b + 8

    sTB, sSV, sOUT, sLIST, sMISC, sDBG = 28, 32, 36, 40, 44, 48
    sM, sRG, sW, sCB, sTOT = 52, 53, 3, 54, 26
    sREM = 55; sPC = 56; sQ = 58; sDIR = 59; sMORE = 60; sPM = 61
    sCNT, sSLOT, sROWB, sMASK, sPS, sSPIN = 62, 63, 64, 65, 66, 67
    sN0 = 8
    sT = 68
    sFIRST = 76; sL = 77
    STR = [92, 94, 96, 98, 100, 18]
    nst = [0]
    def stamp():
        if stamps:
            a(f"s_memrealtime {sr(STR[nst[0]], 2)}")
            nst[0] += 1
    def srd(d, lo, off_sreg, off_imm, size):
        hi = lo + 1
        if off_sreg is None and off_imm == 0:
            a(f"s_mov_b32 s{d}, s{lo}\ns_mov_b32 s{d+1}, s{hi}")
        else:
            if off_sreg is not None:
                if off_imm:
                    a(f"s_add_u32 s{off_sreg}, s{off_sreg}, {off_imm}")
                a(f"s_add_u32 s{d}, s{lo}, s{off_sreg}")
            else:
                a(f"s_add_u32 s{d}, s{lo}, {off_imm}")
            a(f"s_addc_u32 s{d+1}, s{hi}, 0")
        a(f"s_mov_b32 s{d+2}, {size}\ns_mov_b32 s{d+3}, 0x20000")
    def ring(bslot, st, hf): return vRING + ((bslot * 2 + st) * 2 + hf) * 6
    def issue(bslot, pk0):
        for st in range(2):
            a(f"v_mad_u32_u16 v{vAD+2*st}, v{pk0+st}, s{sROWB}, v{vC1}")
            a(f"v_mad_u32_u16 v{vAD+2*st+1}, v{pk0+st}, s{sROWB}, v{vC2}")
        for st in range(2):
            for hf in range(2):
                a(f"buffer_load_dwordx4 {vr(ring(bslot,st,hf),4)}, v{vAD+2*st}, {sr(sTB,4)}, 0 offen offset:{256*hf}")
            for hf in range(2):
                a(f"buffer_load_dword v{ring(bslot,st,hf)+5}, v{vAD+2*st+1}, {sr(sTB,4)}, 0 offen offset:{512+64*hf}")
    plist = {0: [(i, h) for i in (4, 5, 6, 7) for h in (0, 1)], 1: [(i, h) for i in (0, 1, 2, 3, 8, 9) for h in (0, 1)]}
    def park_issue(cls, n):
        for _ in range(n):
            i, h = plist[cls].pop(0)
            a(f"""
            s_add_u32 m0, s{sPM}, {i*8192 + h*4096}
            s_add_u32 s{sT+7}, s{sPS}, {(i*16 + h*8)*64*2048}
            buffer_load_dwordx4 v{vPD}, {sr(sSV,4)}, s{sT+7} offen lds
            """)
    def park_dma(na, nb):
        if not (na or nb): return
        Ls = a.label("K2_NOPARK"); Lb = a.label("K2_PARKB")
        a(f"s_cmp_eq_u32 s{sFIRST}, 0\ns_cbranch_scc1 {Ls}\ns_cmp_ge_u32 s{sW}, 4\ns_cbranch_scc1 {Lb}")
        park_issue(0, na)
        a(f"s_branch {Ls}\n{Lb}:")
        park_issue(1, nb)
        a(f"{Ls}:")
    def slot_setup():
        a(f"""
        v_and_b32 v{vO}, 0xff, v{vEN}
        v_lshl_add_u32 v{vPA}, v{vO}, 9, v{vC2}
        v_lshl_add_u32 v{vO}, v{vO}, 17, v{vCO}
        """)
        for c in range(4):
            a(f"ds_read2_b32 {vr(vE+2*c,2)}, v{vPA} offset0:{32*c} offset1:{32*c+16}")
        a(f"""
        s_add_u32 s{sQ}, s{sQ}, 128
        s_lshr_b32 s{sDIR}, s{sDIR}, 1
        s_bitcmp1_b32 s{sDIR}, 0
        s_cselect_b32 s{sT}, 112, 0
        s_xor_b32 s{sT}, s{sT}, s{sQ}
        v_add_u32 v{vAD}, s{sT}, v{vG4}
        ds_read_b32 v{vEN}, v{vAD}
        s_waitcnt lgkmcnt(1)
        """)
        for hf in range(2):
            HXY, HZS, LXY, LZS, BZ = ACC(hf)
            R = lambda c: vE + 2 * c + hf
            a(f"""
            v_and_b32 v{HXY}, s{sMASK}, v{R(1)}
            v_and_b32 v{HXY+1}, s{sMASK}, v{R(2)}
            v_and_b32 v{HZS}, s{sMASK}, v{R(3)}
            v_and_b32 v{HZS+1}, s{sMASK}, v{R(0)}
            v_lshlrev_b32 v{LXY}, 16, v{R(1)}
            v_lshlrev_b32 v{LXY+1}, 16, v{R(2)}
            v_lshlrev_b32 v{LZS}, 16, v{R(3)}
            v_lshlrev_b32 v{LZS+1}, 16, v{R(0)}
            v_mov_b64 {vr(BZ,2)}, 0
            """)

    Lrank = a.label("K2_RANK"); Lx = a.label("K2_X")
    stamp()
    t16, l16 = pT + 5, pT + 6
    sTOK = 27
    INV = 0x10000
    a(f"""
    s_bfe_u32 s{sM}, s2, 0x20001
    s_lshr_b32 s{sRG}, s2, 3
    s_lshl_b32 s{sRG}, s{sRG}, 1
    s_and_b32 s{sT}, s2, 1
    s_or_b32 s{sRG}, s{sRG}, s{sT}
    s_and_b32 s{sL}, s{sW}, 3
    s_mov_b32 s{sFIRST}, 1
    """)
    srd(sDBG, 22, None, 0, 256)
    srd(sMISC, 24, None, WS_LUT, MISC_BYTES)
    a(f"s_mul_i32 s{sT}, s{sRG}, {LIST_STRIDE}")
    srd(sLIST, 24, sT, WS_LIST, LIST_STRIDE)
    srd(sSV, 4, None, 0, 0 if opt.get("nores") else N * 2048)
    def spin(body, sleep):
        L0 = a.label("K2_SPIN"); L1 = a.label("K2_SPINOK")
        a(f"s_mov_b32 s{sSPIN}, {SPIN_MAX}\n{L0}:")
        body()
        a(f"""
        s_cbranch_scc1 {L1}
        s_sub_u32 s{sSPIN}, s{sSPIN}, 1
        s_cbranch_scc1 {L1}
        s_sleep {sleep}
        s_branch {L0}
{L1}:
        """)
    def arrive():
        a(f"""
        s_mul_i32 s{sT}, s2, {ARRS}
        s_add_u32 s{sT}, s{sT}, {M_ARR}
        v_mov_b32 v{pT+1}, 0
        v_mov_b32 v{pT+3}, s{sTOK}
        s_mov_b64 exec, 1
        buffer_store_dword v{pT+3}, v{pT+1}, {sr(sMISC,4)}, s{sT} offen sc1
        s_mov_b64 exec, -1
        """)
    def wait_arrivals(lo, hi, sleep):
        n = (hi - lo + 63) // 64
        a(f"v_and_b32 v{pT+1}, 63, v0")
        for i in range(n):
            a(f"v_add_u32 v{pEK+i}, {lo + 64*i}, v{pT+1}\nv_min_u32 v{pEK+i}, {hi-1}, v{pEK+i}\nv_mul_u32_u24 v{pEK+i}, {ARRS}, v{pEK+i}")
        a(f"s_mov_b32 s{sT}, {M_ARR}")
        def body():
            for i in range(n):
                a(f"buffer_load_dword v{pEK+4+i}, v{pEK+i}, {sr(sMISC,4)}, s{sT} offen sc1")
            a("s_waitcnt vmcnt(0)")
            for i in range(n):
                a(f"v_xor_b32 v{pEK+4+i}, s{sTOK}, v{pEK+4+i}")
                if i: a(f"v_or_b32 v{pEK+4}, v{pEK+4}, v{pEK+4+i}")
            a(f"v_cmp_ne_u32 vcc, 0, v{pEK+4}\ns_nop 0\ns_cmp_eq_u64 vcc, 0")
        spin(body, sleep)
    def consts():
        a(f"""
        v_and_b32 v{pT+1}, 63, v0
        v_lshlrev_b32 v{l16}, 4, v{pT+1}
        v_bfe_u32 v{pT+2}, v0, 5, 3
        v_bfe_u32 v{pT+3}, v0, 3, 2
        v_and_b32 v{vPD}, 7, v0
        v_lshlrev_b32 v{vPD}, 4, v{vPD}
        v_lshl_add_u32 v{vPD}, v{pT+3}, 9, v{vPD}
        v_lshl_add_u32 v{vPD}, v{pT+2}, 17, v{vPD}
        s_lshl_b32 s{sPS}, s{sRG}, 11
        s_lshl_b32 s{sT+5}, s{sM}, 7
        s_add_u32 s{sPS}, s{sPS}, s{sT+5}
        s_lshl_b32 s{sPM}, s{sL}, 10
        s_movk_i32 s{sROWB}, {ROWB}
        s_mov_b32 s{sMASK}, 0xffff0000
        s_mov_b32 s{sCB}, 0
        v_mov_b32 v{vPEND}, 0xff
        v_and_b32 v{vC1}, 7, v0
        v_bfe_u32 v{vC2}, v0, 3, 1
        v_lshlrev_b32 v{vC1}, 5, v{vC1}
        v_lshl_add_u32 v{vC1}, v{vC2}, 4, v{vC1}
        v_and_b32 v{vC2}, 15, v0
        v_lshlrev_b32 v{vC2}, 2, v{vC2}
        v_add_u32 v{vCO}, s{sPS}, v{vC2}
        v_bfe_u32 v{vG4}, v0, 4, 2
        v_lshlrev_b32 v{vG4}, 2, v{vG4}
        v_add_u32 v{vG4}, {L_SORT}, v{vG4}
        v_bfe_u32 v{pT+1}, v0, 5, 1
        v_and_b32 v{pT+2}, 1, v0
        v_cmp_eq_u32 vcc, v{pT+1}, v{pT+2}
        v_and_b32 v{pT+3}, 16, v0
        v_mov_b32 v{pT+4}, 32
        v_cndmask_b32 v{vML}, 0, v{pT+4}, vcc
        s_mul_i32 s{sT+5}, s{sM}, {TAB_SL}
        v_cndmask_b32 v{vCL}, 0, v{pT+3}, vcc
        v_add_u32 v{vCL}, {L_LUT}, v{vCL}
        """)
        srd(sTB, 24, sT + 5, WS_TAB, 0 if opt.get("notab") else TAB_SL)
        srd(sOUT, 20, None, 0, 0 if opt.get("nost") else N * 2048)
    def bop_loads():
        a(f"s_mul_i32 s{sT+6}, s{sM}, 6144\ns_add_u32 s{sT+6}, s{sT+6}, {M_BOP}\ns_add_u32 s{sT+7}, s{sT+6}, 3072")
        for o in range(6):
            a(f"buffer_load_dwordx4 {vr(vB+4*o,4)}, v{l16}, {sr(sMISC,4)}, s{sT+6+o//3} offen offset:{1024*(o%3)} sc1")
    def rec_loads():
        a(f"v_add_u32 v{t16}, s{sCB}, v0\nv_subrev_u32 v{t16}, 256, v{t16}\nv_lshlrev_b32 v{t16}, 4, v{t16}")
        for k in range(8):
            a(f"s_movk_i32 s{sT+2}, {k*4096}")
            a(f"buffer_load_dwordx4 {vr(pREC+4*k,4)}, v{t16}, {sr(sLIST,4)}, s{sT+2} offen sc1")
    z = pT + 8
    def null_fill():
        a(f"""
        v_mov_b32 v{z}, 0
        v_mov_b32 v{z+1}, 0
        v_mov_b32 v{z+2}, 0
        v_mov_b32 v{z+3}, 0xffff
        v_lshlrev_b32 v{pT+4}, 4, v0
        v_add_u32 v{pT+4}, {L_STREAM - 4096}, v{pT+4}
        """)
        nfull = STREAM_BYTES // 4096
        rem = (STREAM_BYTES - nfull * 4096) // 16
        for i in range(nfull):
            a(f"ds_write_b128 v{pT+4}, {vr(z,4)} offset:{i*4096}")
        a(f"""
        v_cmp_gt_u32 vcc, {256 + rem}, v0
        s_and_b64 exec, exec, vcc
        ds_write_b128 v{pT+4}, {vr(z,4)} offset:{nfull*4096}
        s_mov_b64 exec, -1
        v_lshlrev_b32 v{pT+4}, 3, v0
        v_add_u32 v{pT+4}, {L_LUT - 2048}, v{pT+4}
        v_cmp_gt_u32 vcc, 260, v0
        s_and_b64 exec, exec, vcc
        ds_write_b64 v{pT+4}, {vr(z,2)}
        s_mov_b64 exec, -1
        """)
    Lsd = a.label("K2_SIDE"); Lsz = a.label("K2_SZ"); LA = a.label("K2_A"); Lok = a.label("K2_GOK"); Lnag = a.label("K2_NOAGG"); Ls2 = a.label("K2_S2")
    def get_token():
        Ltk = a.label("K2_TOK")
        token_decode(a, VTOK, sTOK, sT)
        a(f"s_cbranch_scc1 {Ltk}")
        def body():
            sync_loads(a, sDBG, sMISC, sT, pT + 1, gran=False)
            a("s_waitcnt vmcnt(0)")
            token_decode(a, VTOK, sTOK, sT)
        spin(body, 8)
        a(f"{Ltk}:")
    def check():
        a(f"""
        v_readfirstlane_b32 s{sT}, v{VTOK+3}
        v_readfirstlane_b32 s{sTOT}, v{VTOK+2}
        s_nop 1
        s_cmp_eq_u32 s{sT}, s{sTOK}
        """)
    def wait_granule(sleep):
        def body():
            sync_loads(a, sDBG, sMISC, sT, pT + 1, tok=False)
            a("s_waitcnt vmcnt(0)")
            check()
        spin(body, sleep)
    a(f"""
    s_cmp_ge_u32 s2, {WG_GEMM0}
    s_cbranch_scc1 {Lsd}
    s_cmp_lt_u32 s{sW}, 4
    s_cbranch_scc1 {Lsz}
    """)
    zero_counters(a, pT + 1, pT + 2)
    a(f"""
{Lsz}:
    v_mov_b32 v{pT+7}, {L_PASS}
    s_waitcnt vmcnt(0) lgkmcnt(0)
    s_barrier
    s_cmp_lg_u32 s{sW}, {WSY}
    s_cbranch_scc1 {Ls2}
    """)
    get_token()
    arrive()
    a(f"s_cmp_lg_u32 s2, {WG_AGG}\ns_cbranch_scc1 {Lnag}")
    wait_arrivals(0, WG_AGG, opt.get("sl0", 4))
    a(f"""
    v_lshlrev_b32 v{pT+1}, 2, v{pT+1}
    buffer_load_dword v{pT+2}, v{pT+1}, {sr(sDBG,4)}, 0 offen sc1
    v_lshlrev_b32 v{pT+1}, 1, v{pT+1}
    v_mov_b32 v{pT+3}, s{sTOK}
    s_mov_b32 s{sT}, {M_TOT}
    s_waitcnt vmcnt(0)
    buffer_store_dwordx2 {vr(pT+2,2)}, v{pT+1}, {sr(sMISC,4)}, s{sT} offen sc1
{Lnag}:
    """)
    wait_granule(opt.get("sl1", 16))
    a(f"""
    s_mov_b64 exec, 1
    ds_write_b128 v{pT+7}, {vr(VTOK,4)} offset:16
    s_mov_b64 exec, -1
    s_waitcnt lgkmcnt(0)
{Ls2}:
    s_barrier
    ds_read_b128 {vr(VTOK,4)}, v{pT+7} offset:16
    s_waitcnt lgkmcnt(0)
{Lsd}:
    s_cmp_lt_u32 s{sW}, 4
    s_cbranch_scc1 {LA}
    s_waitcnt vmcnt({opt.get("tokw", 5)})
    """)
    get_token()
    check()
    a(f"s_cbranch_scc1 {Lok}")
    wait_granule(8)
    pkb = opt.get("pkb", [2, 2, 3, 3, 2, 0])
    pka = opt.get("pka", [1, 1, 0, 0, 6])
    assert sum(pkb) == 12 and sum(pka) == 8
    a(f"""
{Lok}:
    s_and_b32 s{sTOT}, s{sTOT}, 0x3ffff
    s_min_u32 s{sTOT}, s{sTOT}, {E}
    s_lshl_b32 s{sLIST+2}, s{sTOT}, 4
    s_mov_b32 s{sCB}, 0
    """)
    rec_loads()
    consts()
    a(f"""
    v_mov_b32 v{pT+1}, {L_PASS}
    v_mov_b32 v{pT+2}, s{sTOT}
    v_mov_b32 v{pT+3}, s{sTOK}
    ds_write_b64 v{pT+1}, {vr(pT+2,2)}
    s_lshl_b32 s{sT+5}, s{sL}, 12
    v_add_u32 v{pT+7}, s{sT+5}, v{l16}
    v_add_u32 v{pT+7}, {L_LUT + NRS*32}, v{pT+7}
    s_add_u32 s{sT+5}, s{sT+5}, {LUT_THR*32}
    """)
    for i in range(4):
        a(f"buffer_load_dwordx4 {vr(pLT+4*i,4)}, v{l16}, {sr(sMISC,4)}, s{sT+5} offen offset:{1024*i} sc1")
    null_fill()
    a(f"s_waitcnt vmcnt(12) lgkmcnt(0)\ns_barrier")
    park_issue(1, pkb[0])
    a(f"s_waitcnt vmcnt({pkb[0]})")
    for i in range(4):
        a(f"ds_write_b128 v{pT+7}, {vr(pLT+4*i,4)} offset:{1024*i}")
    bop_loads()
    one = pT + 4; vAL = pT + 10
    a(f"""
{Lrank}:
    s_waitcnt lgkmcnt(0)
    v_mov_b32 v{one}, 1
    v_mov_b32 v{vAL}, {L_ALLOC}
    s_sub_u32 s{sT+2}, s{sTOT}, s{sCB}
    s_add_u32 s{sT+2}, s{sT+2}, 256
    """)
    for k in range(8):
        r0 = pREC + 4 * k
        Lskip = a.label("K2_NORARE")
        a(f"""
        v_add_u32 v{pT+5}, {k*256}, v0
        v_and_b32 v{pT+6}, {1<<k}, v{vPEND}
        v_cmp_gt_u32 vcc, s{sT+2}, v{pT+5}
        v_cmp_ne_u32 s[{sT}:{sT+1}], 0, v{pT+6}
        v_and_b32 v{pDL+k}, 0xffff, v{r0}
        v_lshlrev_b32 v{pDL+k}, 2, v{pDL+k}
        v_add_u32 v{pDL+k}, {L_CNT}, v{pDL+k}
        v_mov_b32 v{pRANK+k}, {INV}
        v_mov_b32 v{pRS+k}, 0
        s_and_b64 s[{sT}:{sT+1}], vcc, s[{sT}:{sT+1}]
        v_cmp_gt_i32 vcc, 0, v{r0+3}
        v_and_b32 v{r0}, s{sMASK}, v{r0}
        s_and_b64 exec, vcc, s[{sT}:{sT+1}]
        s_cbranch_execz {Lskip}
        ds_add_rtn_u32 v{pT+8}, v{vAL}, v{one} offset:8
        v_bfe_u32 v{pT+7}, v{r0+3}, 16, 15
        v_lshlrev_b32 v{pT+7}, 5, v{pT+7}
        buffer_load_dwordx4 {vr(pRARE+8*k,4)}, v{pT+7}, {sr(sMISC,4)}, 0 offen sc1
        buffer_load_dwordx4 {vr(pRARE+8*k+4,4)}, v{pT+7}, {sr(sMISC,4)}, 0 offen offset:16 sc1
        v_and_b32 v{r0+3}, 0xffff, v{r0+3}
        v_mov_b32 v{pRANK+k}, {INV-1}
        s_waitcnt lgkmcnt(0)
        v_add_u32 v{pT+8}, 1, v{pT+8}
        v_cmp_le_u32 vcc, {NRS}, v{pT+8}
        v_lshl_or_b32 v{r0+3}, v{pT+8}, 16, v{r0+3}
        v_lshlrev_b32 v{pT+8}, 5, v{pT+8}
        s_andn2_b64 s[{sT}:{sT+1}], s[{sT}:{sT+1}], vcc
        s_andn2_b64 exec, exec, vcc
        v_add_u32 v{pRS+k}, {L_LUT}, v{pT+8}
{Lskip}:
        s_mov_b64 exec, s[{sT}:{sT+1}]
        ds_add_rtn_u32 v{pRANK+k}, v{pDL+k}, v{one}
        s_mov_b64 exec, -1
        """)
    Lnp1 = a.label("K2_NP1")
    a(f"s_cmp_eq_u32 s{sFIRST}, 0\ns_cbranch_scc1 {Lnp1}")
    park_issue(1, pkb[1])
    a(f"""
{Lnp1}:
    s_waitcnt lgkmcnt(0)
    s_barrier
    s_branch {Lx}
    """)
    Lna = a.label("K2_NOARR")
    a(f"{LA}:")
    consts()
    a(f"""
    v_mov_b32 v{pT+7}, {L_PASS}
    s_waitcnt vmcnt(0)
    s_barrier
    ds_read_b64 {vr(pT+2,2)}, v{pT+7}
    s_waitcnt lgkmcnt(0)
    v_readfirstlane_b32 s{sTOT}, v{pT+2}
    v_readfirstlane_b32 s{sTOK}, v{pT+3}
    s_cmp_lg_u32 s{sW}, 0
    s_cbranch_scc1 {Lna}
    s_cmp_lt_u32 s2, {WG_GEMM0}
    s_cbranch_scc1 {Lna}
    """)
    arrive()
    a(f"{Lna}:")
    bop_loads()
    park_issue(0, pka[4])
    a(f"""
    s_barrier
{Lx}:
    v_mov_b32 v{one}, 1
    v_mov_b32 v{vAL}, {L_ALLOC}
    """)
    stamp()
    L7 = a.label("K2_P7"); L8 = a.label("K2_P8")
    deg, rk, hh, bn = pT + 5, pT + 6, pT + 7, pT + 11
    a(f"""
    s_cmp_ge_u32 s{sW}, 5
    s_cbranch_scc1 {L7}
    v_lshlrev_b32 v{pT+8}, 2, v0
    v_add_u32 v{pT+8}, {L_CNT}, v{pT+8}
    ds_read_b32 v{deg}, v{pT+8}
    v_cmp_le_u32 vcc, {NKEY}, v0
    v_mov_b32 v{bn}, 31
    v_mov_b32 v{pT+9}, 63
    v_cndmask_b32 v{bn}, v{bn}, v{pT+9}, vcc
    s_waitcnt lgkmcnt(0)
    v_min_u32 v{deg}, {CAPN}, v{deg}
    v_sub_u32 v{bn}, v{bn}, v{deg}
    v_lshlrev_b32 v{bn}, 2, v{bn}
    v_add_u32 v{pT+8}, {L_HIST}, v{bn}
    ds_add_rtn_u32 v{rk}, v{pT+8}, v{one}
    s_waitcnt lgkmcnt(0)
{L7}:
    """)
    park_dma(pka[0], pkb[2])
    a(f"""
    s_barrier
    s_cmp_ge_u32 s{sW}, 5
    s_cbranch_scc1 {L8}
    v_and_b32 v{pT+8}, 63, v0
    v_lshlrev_b32 v{pT+8}, 2, v{pT+8}
    v_add_u32 v{pT+8}, {L_HIST}, v{pT+8}
    ds_read_b32 v{hh}, v{pT+8}
    v_subrev_u32 v{pT+8}, {NKEY}, v0
    v_min_u32 v{pT+8}, v{pT+8}, v0
    v_lshl_or_b32 v{deg}, v{deg}, 16, v{pT+8}
    s_waitcnt lgkmcnt(0)
    v_mov_b32 v{pT+9}, v{hh}
    """)
    dpp_scan(a, "v_add_u32", hh)
    a(f"""
    v_sub_u32 v{hh}, v{hh}, v{pT+9}
    ds_bpermute_b32 v{pT+9}, v{bn}, v{hh}
    s_waitcnt lgkmcnt(0)
    v_add_lshl_u32 v{pT+9}, v{pT+9}, v{rk}, 2
    v_add_u32 v{pT+9}, {L_SORT}, v{pT+9}
    ds_write_b32 v{pT+9}, v{deg}
    s_waitcnt lgkmcnt(0)
{L8}:
    """)
    park_dma(pka[1], pkb[3])
    assert L_SORT % 128 == 0 or True
    ek = pEK
    a(f"""
    s_barrier
    s_lshl_b32 s{sQ}, s{sW}, 4
    s_xor_b32 s{sT+1}, s{sQ}, 112
    v_add_u32 v{pT+6}, s{sQ}, v{vG4}
    v_add_u32 v{pT+7}, s{sT+1}, v{vG4}
    """)
    for k in range(10):
        a(f"ds_read_b32 v{ek+k}, v{pT+6+DIRS[k]} offset:{128*k}")
    a("s_waitcnt lgkmcnt(0)")
    for k in range(10):
        a(f"v_readfirstlane_b32 s{sN0+k}, v{ek+k}")
    a(f"v_mov_b32 v{vEN}, v{ek}\ns_mov_b32 s{sDIR}, {sum(d << k for k, d in enumerate(DIRS))}")
    a(f"s_mov_b64 {sr(sPC,2)}, 0\ns_mov_b32 s{sREM}, 0")
    for k in range(10):
        a(f"s_lshr_b32 s{sT}, s{sN0+k}, 16")
        a(f"s_mov_b32 s{sN0+k}, s{sREM}\ns_add_u32 s{sREM}, s{sREM}, s{sT}")
        a(f"s_lshl_b32 s{sT}, s{sT}, {5*(k%5)}\ns_or_b32 s{sPC+k//5}, s{sPC+k//5}, s{sT}")
    a(f"""
    s_add_u32 s{sREM}, s{sREM}, 1
    s_lshr_b32 s{sREM}, s{sREM}, 1
    v_mov_b32 v{pT+8}, s{sREM}
    s_mov_b64 exec, 1
    ds_add_rtn_u32 v{pT+9}, v{vAL}, v{pT+8}
    s_mov_b64 exec, -1
    """)
    for k in range(10):
        a(f"v_and_b32 v{ek+k}, 0xff, v{ek+k}")
        a(f"v_lshlrev_b32 v{ek+k}, 2, v{ek+k}")
        a(f"v_add_u32 v{ek+k}, {L_NADDR + (NKEY*4 if k >= 5 else 0)}, v{ek+k}")
    a(f"""
    v_bfe_u32 v{pT+5}, v0, 4, 2
    v_bfe_u32 v{pT+6}, v0, 1, 1
    v_bfe_u32 v{pT+7}, v0, 2, 2
    v_lshlrev_b32 v{pT+6}, 6, v{pT+6}
    v_lshl_add_u32 v{pT+6}, v{pT+7}, 4, v{pT+6}
    s_waitcnt lgkmcnt(0)
    v_readfirstlane_b32 s{sT}, v{pT+9}
    s_nop 1
    s_lshl_b32 s{sT}, s{sT}, 7
    s_add_u32 s{sT}, s{sT}, {L_STREAM}
    v_lshl_add_u32 v{vS}, v{pT+5}, 4, s{sT}
    v_add_u32 v{vA}, s{sT}, v{pT+6}
    """)
    for k in range(10):
        a(f"v_lshl_add_u32 v{pT+7+(k&1)}, s{sN0+k}, 6, v{vS}")
        a(f"ds_write_b32 v{ek+k}, v{pT+7+(k&1)}")
    park_dma(pka[2], pkb[4])
    a("s_waitcnt lgkmcnt(0)\ns_barrier")
    LsA = a.label("K2_SCA"); Lse = a.label("K2_SCE")
    a(f"s_cmp_lt_u32 s{sW}, 4\ns_cbranch_scc1 {LsA}")
    for k in range(8):
        a(f"ds_read_b32 v{pNA+k}, v{pDL+k} offset:{L_NADDR - L_CNT}")
    a(f"v_mov_b32 v{vPEND}, 0\ns_mov_b32 s{sT+2}, {INV}")
    for k in range(8):
        r0 = pREC + 4 * k
        Lnpd = a.label("K2_NOPEND")
        a(f"""
        v_cmp_gt_u32 vcc, {CAPN}, v{pRANK+k}
        v_cmp_gt_u32 s[{sT}:{sT+1}], s{sT+2}, v{pRANK+k}
        {"s_waitcnt lgkmcnt(0)" if k == 0 else ""}
        v_lshl_add_u32 v{pNA+k}, v{pRANK+k}, 6, v{pNA+k}
        s_mov_b64 exec, vcc
        ds_write_b128 v{pNA+k}, {vr(r0,4)}
        s_andn2_b64 exec, s[{sT}:{sT+1}], vcc
        s_cbranch_execz {Lnpd}
        v_or_b32 v{vPEND}, {1<<k}, v{vPEND}
        ds_write_b32 v{vAL}, v{one} offset:4
{Lnpd}:
        s_mov_b64 exec, -1
        """)
    for k in range(8):
        Lskip = a.label("K2_NORARE2")
        a(f"""
        v_cmp_ne_u32 vcc, 0, v{pRS+k}
        s_and_b64 exec, exec, vcc
        s_cbranch_execz {Lskip}
        s_waitcnt vmcnt(0) lgkmcnt(0)
        ds_write_b128 v{pRS+k}, {vr(pRARE+8*k,4)}
        ds_write_b128 v{pRS+k}, {vr(pRARE+8*k+4,4)} offset:16
{Lskip}:
        s_mov_b64 exec, -1
        """)
    Lnag2 = a.label("K2_NOAGG2")
    a(f"""
    s_branch {Lse}
{LsA}:
    s_cmp_eq_u32 s{sFIRST}, 0
    s_cbranch_scc1 {Lse}
    s_cmp_lg_u32 s{sW}, 3
    s_cbranch_scc1 {Lse}
    s_cmp_lg_u32 s2, {WG_AGG}
    s_cbranch_scc1 {Lnag2}
    """)
    wait_arrivals(WG_GEMM0, 256, opt.get("sl3", 1))
    a(f"""
    s_mov_b32 s{sT}, {M_GO}
    v_mov_b32 v{pT+1}, 0
    v_mov_b32 v{pT+3}, s{sTOK}
    s_mov_b64 exec, 1
    buffer_store_dword v{pT+3}, v{pT+1}, {sr(sMISC,4)}, s{sT} offen sc1
    s_mov_b64 exec, -1
{Lnag2}:
    """)
    pre = opt.get("prepoll", 1)
    if pre: park_issue(0, pka[3]); plist[0] = [(7, 0), (7, 1)][-pka[3]:] if pka[3] else []
    a(f"""
    s_mov_b32 s{sT}, {M_GO}
    v_mov_b32 v{pT+1}, 0
    s_mov_b64 exec, 1
    """)
    def body():
        a(f"""
        buffer_load_dword v{pT+2}, v{pT+1}, {sr(sMISC,4)}, s{sT} offen sc1
        s_waitcnt vmcnt(0)
        v_readfirstlane_b32 s{sT+1}, v{pT+2}
        s_nop 1
        s_cmp_eq_u32 s{sT+1}, s{sTOK}
        """)
    spin(body, opt.get("sl2", 2))
    Lsf = a.label("K2_SCF")
    a(f"""
    s_mov_b64 exec, -1
    {"buffer_inv sc1" if opt.get("inv", 1) else ""}
    s_waitcnt vmcnt(0)
    {f"s_branch {Lsf}" if pre else ""}
{Lse}:
    """)
    park_dma(pka[3], pkb[5])
    a(f"{Lsf}:\ns_waitcnt lgkmcnt(0)\ns_barrier")
    stamp()
    a(f"ds_read_b32 v{vT}, v{vAL} offset:4")
    for b in range(DP):
        a(f"ds_read2_b32 {vr(vD+2*b,2)}, v{vS} offset0:{32*b+3} offset1:{32*b+19}")
    a(f"ds_read_u16 v{vLI}, v{vA} offset:14")
    a("s_waitcnt lgkmcnt(0)")
    a(f"v_readfirstlane_b32 s{sMORE}, v{vT}")
    for b in range(DP):
        issue(b, vD + 2 * b)
    a(f"""
    s_add_u32 s{sT}, s{sCB}, {CHUNK}
    s_cmp_lt_u32 s{sT}, s{sTOT}
    s_cselect_b32 s{sT}, 2, 0
    s_or_b32 s{sMORE}, s{sMORE}, s{sT}
    s_mov_b32 s{sSLOT}, 10
    v_mad_u32_u16 v{vAD}, v{vLI}, v{vML}, v{vCL}
    s_waitcnt vmcnt({8*DP})
    s_barrier
    ds_read_b128 {vr(vAOP,4)}, v{vAD}
    ds_read2_b32 {vr(vPK,2)}, v{vS} offset0:{32*DP+3} offset1:{32*DP+19}
    ds_read_u16 v{vLI}, v{vA} offset:{128+14}
    ds_read_b128 {vr(vRH,4)}, v{vS}
    ds_read_b128 {vr(vRH+4,4)}, v{vS} offset:64
    """)
    if stamps:
        stamp(); a("s_waitcnt lgkmcnt(0)")
    sRET = 6
    Lph = [a.label(f"K2_PH{p}") for p in range(NRG)]
    Lsk = [a.label(f"K2_SK{p}") for p in range(NRG)]
    Lbk = [a.label(f"K2_BK{p}") for p in range(NRG)]
    Ltr = [[a.label(f"K2_TR{p}{st}") for st in range(2)] for p in range(NRG)]
    Lrt = [[a.label(f"K2_RT{p}{st}") for st in range(2)] for p in range(NRG)]
    Ldone = a.label("K2_DONE"); Lepi = a.label("K2_EPI"); Lset = a.label("K2_SET")
    Lret = a.label("K2_RET")
    a(f"s_call_b64 {sr(sRET,2)}, {Lset}\ns_cbranch_scc1 {Ldone}")
    for p in range(NRG):
        a(f"{Lph[p]}:")
        a(f"s_waitcnt vmcnt({8*(DP-1)}) lgkmcnt(2)")
        sh = []
        for st in range(2):
            for hf in range(2):
                rg = ring(p, st, hf); e = vX + 4 * (2 * st + hf)
                sh += [f"v_lshlrev_b64 {vr(e,2)}, 16, {vr(rg,2)}", f"v_lshlrev_b64 {vr(e+2,2)}, 16, {vr(rg+2,2)}", f"v_lshlrev_b32 v{rg+4}, 16, v{rg+5}"]
        for o in range(6):
            if not opt.get("nomfma"):
                a(f"v_mfma_f32_16x16x32_bf16 {vr(vD+4*o,4)}, {vr(vAOP,4)}, {vr(vB+4*o,4)}, 0")
            if not opt.get("novalu"):
                a(sh[2 * o]); a(sh[2 * o + 1])
        a(f"s_sub_u32 s{sREM}, s{sREM}, 1\ns_cmp_lt_u32 s{sREM}, {DP}\ns_cbranch_scc1 {Lsk[p]}")
        issue((p + DP) % NRG, vPK)
        a(f"{Lbk[p]}:")
        assert (p + DP + 1) * 32 + 19 < 256
        a(f"""
        v_mad_u32_u16 v{vT}, v{vLI}, v{vML}, v{vCL}
        ds_read_b128 {vr(vAOP,4)}, v{vT}
        ds_read2_b32 {vr(vPK,2)}, v{vS} offset0:{(p+DP+1)*32+3} offset1:{(p+DP+1)*32+19}
        ds_read_u16 v{vLI}, v{vA} offset:{(p+2)*128+14}
        s_waitcnt lgkmcnt(3)
        """)
        for st in range(2):
            L = []
            for hf in range(2):
                HXY, HZS, LXY, LZS, BZ = ACC(hf)
                rg = ring(p, st, hf); rh = vRH + 4 * st; e = vX + 4 * (2 * st + hf); t = vT + 2 * hf
                d1, d2, d3 = vD + 12 * hf + 2 * st, vD + 12 * hf + 4 + 2 * st, vD + 12 * hf + 8 + 2 * st
                L.append(f"""v_pk_fma_f32 {vr(HXY,2)}, {vr(d1,2)}, {vr(rg,2)}, {vr(HXY,2)} op_sel_hi:[0,1,1]
                v_pk_mul_f32 {vr(t,2)}, {vr(d3,2)}, {vr(rg+4,2)}
                v_pk_fma_f32 {vr(HZS,2)}, {vr(d1,2)}, {vr(rg+2,2)}, {vr(HZS,2)}
                v_pk_fma_f32 {vr(LXY,2)}, {vr(d2,2)}, {vr(e,2)}, {vr(LXY,2)} op_sel_hi:[0,1,1]
                v_pk_fma_f32 {vr(LZS,2)}, {vr(d2,2)}, {vr(e+2,2)}, {vr(LZS,2)}
                v_pk_fma_f32 {vr(BZ,2)}, {vr(t,2)}, {vr(rh+2,2)}, {vr(BZ,2)} op_sel_hi:[1,0,1]
                v_pk_fma_f32 {vr(HXY,2)}, {vr(t,2)}, {vr(rh,2)}, {vr(HXY,2)} op_sel:[1,0,0]
                v_pk_fma_f32 {vr(LXY,2)}, {vr(t,2)}, {vr(rh,2)}, {vr(LXY,2)} op_sel_hi:[0,1,1]""".split("\n"))
            if not opt.get("novalu"):
                for l0, l1 in zip(*L):
                    a(l0); a(l1)
            a(f"ds_read_b128 {vr(vRH+4*st,4)}, v{vS} offset:{(p+1)*128+64*st}")
            if st == 1 and p == NRG - 1:
                a(f"v_add_u32 v{vS}, {128*NRG}, v{vS}\nv_add_u32 v{vA}, {128*NRG}, v{vA}")
            a(f"s_sub_u32 s{sCNT}, s{sCNT}, 1")
            if st == 1 and p == NRG - 1:
                a(f"s_cbranch_scc0 {Lph[0]}\ns_call_b64 {sr(sRET,2)}, {Lepi}\ns_cbranch_scc0 {Lph[0]}\ns_branch {Ldone}")
            else:
                a(f"s_cbranch_scc1 {Ltr[p][st]}\n{Lrt[p][st]}:")
    for p in range(NRG):
        for st in range(2):
            if st == 1 and p == NRG - 1: continue
            a(f"{Ltr[p][st]}:\ns_call_b64 {sr(sRET,2)}, {Lepi}\ns_cbranch_scc0 {Lrt[p][st]}\ns_branch {Ldone}")
    for p in range(NRG):
        a(f"{Lsk[p]}:\ns_waitcnt vmcnt(0)\ns_branch {Lbk[p]}")
    a(f"{Lepi}:")
    Lpw = a.label("K2_PW"); Lnx = a.label("K2_NX"); Lnb = a.label("K2_NB")
    for hf in range(2):
        HXY, HZS, LXY, LZS, BZ = ACC(hf)
        R = lambda c: vE + 2 * c + hf
        a(f"""
        v_add_f32 v{LZS}, v{LZS}, v{BZ}
        v_add_f32 v{HZS}, v{HZS}, v{BZ+1}
        v_cvt_pk_bf16_f32 v{R(0)}, v{LZS+1}, v{HZS+1}
        v_cvt_pk_bf16_f32 v{R(1)}, v{LXY}, v{HXY}
        v_cvt_pk_bf16_f32 v{R(2)}, v{LXY+1}, v{HXY+1}
        v_cvt_pk_bf16_f32 v{R(3)}, v{LZS}, v{HZS}
        """)
    a(f"""
    s_cmp_gt_u32 s{sSLOT}, 5
    s_cbranch_scc1 {Lpw}
    s_cmp_lg_u32 s{sMORE}, 0
    s_cbranch_scc1 {Lpw}
    """)
    for c in range(4):
        for hf in range(2):
            a(f"buffer_store_dword v{vE+2*c+hf}, v{vO}, {sr(sOUT,4)}, 0 offen offset:{512*c+64*hf} {st_fl}")
    a(f"s_branch {Lnx}\n{Lpw}:")
    for c in range(4):
        a(f"ds_write2_b32 v{vPA}, v{vE+2*c}, v{vE+2*c+1} offset0:{32*c} offset1:{32*c+16}")
    a(f"""
{Lnx}:
    s_sub_u32 s{sSLOT}, s{sSLOT}, 1
    s_cmp_eq_u32 s{sSLOT}, 0
    s_cbranch_scc1 {Lret}
    s_lshr_b32 s{sPC}, s{sPC}, 5
    s_waitcnt lgkmcnt(0)
    s_cmp_lg_u32 s{sSLOT}, 5
    s_cbranch_scc1 {Lset}
    s_mov_b32 s{sPC}, s{sPC+1}
    s_barrier
{Lset}:
    """)
    if opt.get("prio") == 1:
        Lp0 = a.label("K2_P0")
        a(f"s_lshr_b32 s{sT}, s{sW}, 2\ns_xor_b32 s{sT}, s{sT}, s{sSLOT}\ns_setprio 0\ns_bitcmp1_b32 s{sT}, 0\ns_cbranch_scc0 {Lp0}\ns_setprio 1\n{Lp0}:")
    if opt.get("prio") == 2:
        Lp0 = a.label("K2_P0")
        a(f"s_mul_i32 s{sT}, s{sSLOT}, 2\ns_lshr_b32 s{sT}, {sum(v << (2*k) for k, v in enumerate([0,0,1,2,3,3,0,1,2,3,3]))}, s{sT}\ns_and_b32 s{sT}, s{sT}, 3")
        a(f"s_setprio 0\ns_cmp_lt_u32 s{sT}, 1\ns_cbranch_scc1 {Lp0}\ns_setprio 1\ns_cmp_lt_u32 s{sT}, 2\ns_cbranch_scc1 {Lp0}\ns_setprio 2\ns_cmp_lt_u32 s{sT}, 3\ns_cbranch_scc1 {Lp0}\ns_setprio 3\n{Lp0}:")
    slot_setup()
    a(f"""
    s_and_b32 s{sCNT}, s{sPC}, 31
    s_cbranch_scc0 {Lepi}
    s_sub_u32 s{sCNT}, s{sCNT}, 1
{Lret}:
    s_setpc_b64 {sr(sRET,2)}
    """)
    Lfin = a.label("K2_FIN"); Lnext = a.label("K2_NEXT"); LrB = a.label("K2_RB")
    a(f"""
{Ldone}:
    s_cmp_eq_u32 s{sMORE}, 0
    s_cbranch_scc1 {Lfin}
    s_bitcmp1_b32 s{sMORE}, 0
    s_cbranch_scc1 {Lnext}
    s_add_u32 s{sCB}, s{sCB}, {CHUNK}
    v_mov_b32 v{vPEND}, 0xff
{Lnext}:
    s_mov_b32 s{sFIRST}, 0
    s_waitcnt vmcnt(0) lgkmcnt(0)
    s_barrier
    s_cmp_ge_u32 s{sW}, 4
    s_cbranch_scc1 {LrB}
    s_barrier
    s_barrier
    s_branch {Lx}
{LrB}:
    """)
    rec_loads()
    null_fill()
    zero_counters(a, pT + 1, pT + 2)
    a(f"""
    s_waitcnt vmcnt(0) lgkmcnt(0)
    s_barrier
    s_branch {Lrank}
{Lfin}:
    """)
    if stamps:
        stamp()
        a("s_waitcnt vmcnt(0)")
        stamp()
        a(f"""
        s_waitcnt lgkmcnt(0)
        s_add_u32 s{sLIST}, s24, {WS_DIAG + (1<<20)}
        s_addc_u32 s{sLIST+1}, s25, 0
        s_mov_b32 s{sLIST+2}, 0x100000
        s_lshl_b32 s{sT}, s2, 3
        s_add_u32 s{sT}, s{sT}, s{sW}
        s_lshl_b32 s{sT}, s{sT}, 7
        v_mov_b32 v1, s{sT}
        s_mov_b64 exec, 1
        """)
        for i in range(nst[0]):
            a(f"v_mov_b32 v2, s{STR[i]}\nv_mov_b32 v3, s{STR[i]+1}")
            a(f"buffer_store_dwordx2 v[2:3], v1, {sr(sLIST,4)}, 0 offen offset:{8*i}")
    a(f"{Lend}:\ns_endpgm")
    return nv, 102
```

```python
N = 10000
E = 160000
NSL = 4
NR = 64
NKEY = 160
HALF = 5000
NP = 40
EPW = E // NP
ROWB = 640
TAB_SL = N * ROWB
WS_TAB = 0
WS_LUT = WS_TAB + NSL * TAB_SL
LUT_ROWS = 2080
LUT_BYTES = LUT_ROWS * 32
M_LUT = 0
M_END = 67584
M_BOP = M_END + 16384
M_ARR = M_BOP + 24576
import os
ARRS = int(os.environ.get('ARRS', 64))
M_TOT = M_ARR + 256 * 64
M_GO = M_TOT + 512
M_EPO = M_GO + 128
MISC_BYTES = M_EPO + 128
WS_LIST = 26 * 1024 * 1024
LIST_STRIDE = E * 16
WS_DIAG = 200 * 1024 * 1024
assert WS_LIST + NR * LIST_STRIDE <= WS_DIAG
DBASE = 0x3880
DCUT = 0x409D
LUT_THR = 1568
NRS = 512
CAPN = 30
NPROD = NP + 5 + 1
NGEMM = 209
WG_GEMM0 = 47
SPIN_MAX = 1 << 17
WG_AGG = 46
VTOK = 12
WSY = 4
```

```python
from asmlib import *
from layout import *

CHUNK = 2048
SCAP = CHUNK // 4 + 2 * CAPN + 8 + 12
L_PARK = 0
L_STREAM = NKEY * 512
STREAM_BYTES = SCAP * 64
L_LUT = L_STREAM + STREAM_BYTES
L_CNT = L_LUT + (NRS + 512) * 32
L_HIST = L_CNT + 1280
L_ALLOC = L_HIST + 256
L_SORT = L_ALLOC + 64
L_NADDR = L_SORT + 1280 + 256
L_PASS = L_NADDR + 1280
K2_LDS = L_PASS + 64
assert K2_LDS <= 163840 and L_CNT >= 139264
DIRS = [0, 1, 0, 1, 1] * 2

def dpp_scan(a, op, v):
    for m in ["row_shr:1", "row_shr:2", "row_shr:4", "row_shr:8"]:
        a("s_nop 1")
        a(f"{op}_dpp v{v}, v{v}, v{v} {m} row_mask:0xf bank_mask:0xf bound_ctrl:0")
    a("s_nop 1")
    a(f"{op}_dpp v{v}, v{v}, v{v} row_bcast:15 row_mask:0xa bank_mask:0xf")
    a("s_nop 1")
    a(f"{op}_dpp v{v}, v{v}, v{v} row_bcast:31 row_mask:0xc bank_mask:0xf")

def zero_counters(a, t0, t1):
    a(f"""
    v_lshlrev_b32 v{t0}, 3, v0
    v_add_u32 v{t0}, {L_CNT - 2048}, v{t0}
    v_mov_b32 v{t1}, 0
    v_cmp_gt_u32 vcc, 456, v0
    s_and_b64 exec, exec, vcc
    ds_write2_b32 v{t0}, v{t1}, v{t1} offset0:0 offset1:1
    s_mov_b64 exec, -1
    """)

def sync_loads(a, sdbg, smisc, st, vz, tok=True, gran=True):
    a(f"""
    s_lshr_b32 s{st}, s2, 3
    s_lshl_b32 s{st}, s{st}, 4
    s_and_b32 s{st+1}, s2, 1
    s_lshl_b32 s{st+1}, s{st+1}, 3
    s_add_u32 s{st}, s{st}, s{st+1}
    s_add_u32 s{st}, s{st}, {M_TOT}
    v_mov_b32 v{vz}, 0
    s_mov_b64 exec, 1
    {f"buffer_load_dwordx2 v[{VTOK}:{VTOK+1}], v{vz}, {sr(sdbg,4)}, 0 offen sc1" if tok else ""}
    {f"buffer_load_dwordx2 v[{VTOK+2}:{VTOK+3}], v{vz}, {sr(smisc,4)}, s{st} offen sc1" if gran else ""}
    s_mov_b64 exec, -1
    """)

def gen_k2(a, opt, Lend):
    stamps = opt.get("stamps", False)
    st_fl = opt.get("st_flags", "nt")
    NRG = opt.get("ring", 3); DP = NRG - 1
    V = Regs("v", 1, 256)
    vB = V.alloc("B", 24, 2)
    vC1 = V.alloc("c1"); vC2 = V.alloc("c2"); vML = V.alloc("ml"); vCL = V.alloc("cl")
    vS = V.alloc("vS"); vA = V.alloc("vA"); vPEND = V.alloc("pend"); vG4 = V.alloc("g4"); vCO = V.alloc("co")
    vEN = V.alloc("en"); vPA = V.alloc("pa"); vO = V.alloc("O"); vPN = V.alloc("pn"); vPD = V.alloc("pd")
    vACC = V.alloc("acc", 20, 2)
    vD = V.alloc("D", 24, 2)
    vRH = V.alloc("RH", 8, 2)
    vAOP = V.alloc("A", 4, 2)
    vE = V.alloc("E", 8, 2)
    vX = V.alloc("X", 16, 2)
    vR = V.alloc("R", 8, 2)
    vT = V.alloc("T", 4, 2)
    vPK = V.alloc("PK", 2, 2)
    vLI = V.alloc("LI")
    vAD = V.alloc("ad", 4)
    vRING = V.alloc("ring", 24 * NRG, 2)
    P = Regs("v", vACC, 256)
    pT = P.alloc("t", 12, 2)
    pREC = P.alloc("rec", 32, 2)
    pRANK = P.alloc("rank", 8)
    pDL = P.alloc("dl", 8)
    pEK = P.alloc("ek", 10)
    pRS = P.alloc("rs", 8)
    pNA = P.alloc("na", 8)
    pLT = P.alloc("lt", 16, 2)
    pRARE = P.alloc("rare", 64, 2)
    assert pRARE >= vRING
    nv = max(V.hi, P.hi)
    def ACC(hf): b = vACC + 10 * hf; return b, b + 2, b + 4, b + 6, b + 8

    sTB, sSV, sOUT, sLIST, sMISC, sDBG = 28, 32, 36, 40, 44, 48
    sM, sRG, sW, sCB, sTOT = 52, 53, 3, 54, 26
    sREM = 55; sPC = 56; sQ = 58; sDIR = 59; sMORE = 60; sPM = 61
    sCNT, sSLOT, sROWB, sMASK, sPS, sSPIN = 62, 63, 64, 65, 66, 67
    sN0 = 8
    sT = 68
    sFIRST = 76; sL = 77
    STR = [92, 94, 96, 98, 100, 18]
    nst = [0]
    def stamp():
        if stamps:
            a(f"s_memrealtime {sr(STR[nst[0]], 2)}")
            nst[0] += 1
    def srd(d, lo, off_sreg, off_imm, size):
        hi = lo + 1
        if off_sreg is None and off_imm == 0:
            a(f"s_mov_b32 s{d}, s{lo}\ns_mov_b32 s{d+1}, s{hi}")
        else:
            if off_sreg is not None:
                if off_imm:
                    a(f"s_add_u32 s{off_sreg}, s{off_sreg}, {off_imm}")
                a(f"s_add_u32 s{d}, s{lo}, s{off_sreg}")
            else:
                a(f"s_add_u32 s{d}, s{lo}, {off_imm}")
            a(f"s_addc_u32 s{d+1}, s{hi}, 0")
        a(f"s_mov_b32 s{d+2}, {size}\ns_mov_b32 s{d+3}, 0x20000")
    def ring(bslot, st, hf): return vRING + ((bslot * 2 + st) * 2 + hf) * 6
    def issue(bslot, pk0):
        for st in range(2):
            a(f"v_mad_u32_u16 v{vAD+2*st}, v{pk0+st}, s{sROWB}, v{vC1}")
            a(f"v_mad_u32_u16 v{vAD+2*st+1}, v{pk0+st}, s{sROWB}, v{vC2}")
        for st in range(2):
            for hf in range(2):
                a(f"buffer_load_dwordx4 {vr(ring(bslot,st,hf),4)}, v{vAD+2*st}, {sr(sTB,4)}, 0 offen offset:{256*hf}")
            for hf in range(2):
                a(f"buffer_load_dword v{ring(bslot,st,hf)+5}, v{vAD+2*st+1}, {sr(sTB,4)}, 0 offen offset:{512+64*hf}")
    plist = {0: [(i, h) for i in (4, 5, 6, 7) for h in (0, 1)], 1: [(i, h) for i in (0, 1, 2, 3, 8, 9) for h in (0, 1)]}
    def park_issue(cls, n):
        for _ in range(n):
            i, h = plist[cls].pop(0)
            a(f"""
            s_add_u32 m0, s{sPM}, {i*8192 + h*4096}
            s_add_u32 s{sT+7}, s{sPS}, {(i*16 + h*8)*64*2048}
            buffer_load_dwordx4 v{vPD}, {sr(sSV,4)}, s{sT+7} offen lds
            """)
    def park_dma(na, nb):
        if not (na or nb): return
        Ls = a.label("K2_NOPARK"); Lb = a.label("K2_PARKB")
        a(f"s_cmp_eq_u32 s{sFIRST}, 0\ns_cbranch_scc1 {Ls}\ns_cmp_ge_u32 s{sW}, 4\ns_cbranch_scc1 {Lb}")
        park_issue(0, na)
        a(f"s_branch {Ls}\n{Lb}:")
        park_issue(1, nb)
        a(f"{Ls}:")
    def r_reads():
        for c in range(4):
            a(f"ds_read2_b32 {vr(vR+2*c,2)}, v{vPN} offset0:{32*c} offset1:{32*c+16}")
    def fetch_next():
        a(f"""
        v_and_b32 v{vEN}, 0xff, v{vEN}
        s_add_u32 s{sQ}, s{sQ}, 128
        s_lshr_b32 s{sDIR}, s{sDIR}, 1
        v_lshl_add_u32 v{vPN}, v{vEN}, 9, v{vC2}
        s_bitcmp1_b32 s{sDIR}, 0
        s_cselect_b32 s{sT}, 112, 0
        s_xor_b32 s{sT}, s{sT}, s{sQ}
        v_add_u32 v{vEN}, s{sT}, v{vG4}
        """)
        r_reads()
        a(f"ds_read_b32 v{vEN}, v{vEN}")
    def acc_init():
        for hf in range(2):
            HXY, HZS, LXY, LZS, BZ = ACC(hf)
            R = lambda c: vR + 2 * c + hf
            a(f"""
            v_and_b32 v{HXY}, s{sMASK}, v{R(1)}
            v_and_b32 v{HXY+1}, s{sMASK}, v{R(2)}
            v_and_b32 v{HZS}, s{sMASK}, v{R(3)}
            v_and_b32 v{HZS+1}, s{sMASK}, v{R(0)}
            v_lshlrev_b32 v{LXY}, 16, v{R(1)}
            v_lshlrev_b32 v{LXY+1}, 16, v{R(2)}
            v_lshlrev_b32 v{LZS}, 16, v{R(3)}
            v_lshlrev_b32 v{LZS+1}, 16, v{R(0)}
            v_mov_b64 {vr(BZ,2)}, 0
            """)
        a(f"v_mov_b32 v{vPA}, v{vPN}")

    Lrank = a.label("K2_RANK"); Lx = a.label("K2_X")
    stamp()
    t16, l16 = pT + 5, pT + 6
    sTOK = 27
    INV = 0x10000
    a(f"""
    s_bfe_u32 s{sM}, s2, 0x20001
    s_lshr_b32 s{sRG}, s2, 3
    s_lshl_b32 s{sRG}, s{sRG}, 1
    s_and_b32 s{sT}, s2, 1
    s_or_b32 s{sRG}, s{sRG}, s{sT}
    s_and_b32 s{sL}, s{sW}, 3
    s_mov_b32 s{sFIRST}, 1
    """)
    srd(sDBG, 22, None, 0, 256)
    srd(sMISC, 24, None, WS_LUT, MISC_BYTES)
    a(f"s_mul_i32 s{sT}, s{sRG}, {LIST_STRIDE}")
    srd(sLIST, 24, sT, WS_LIST, LIST_STRIDE)
    srd(sSV, 4, None, 0, 0 if opt.get("nores") else N * 2048)
    def spin(body, sleep):
        L0 = a.label("K2_SPIN"); L1 = a.label("K2_SPINOK")
        a(f"s_mov_b32 s{sSPIN}, {SPIN_MAX}\n{L0}:")
        body()
        a(f"""
        s_cbranch_scc1 {L1}
        s_sub_u32 s{sSPIN}, s{sSPIN}, 1
        s_cbranch_scc1 {L1}
        s_sleep {sleep}
        s_branch {L0}
{L1}:
        """)
    def arrive():
        a(f"""
        s_mul_i32 s{sT}, s2, {ARRS}
        s_add_u32 s{sT}, s{sT}, {M_ARR}
        v_mov_b32 v{pT+1}, 0
        v_mov_b32 v{pT+3}, s{sTOK}
        s_mov_b64 exec, 1
        buffer_store_dword v{pT+3}, v{pT+1}, {sr(sMISC,4)}, s{sT} offen sc1
        s_mov_b64 exec, -1
        """)
    def wait_arrivals(lo, hi, sleep):
        n = (hi - lo + 63) // 64
        a(f"v_and_b32 v{pT+1}, 63, v0")
        for i in range(n):
            a(f"v_add_u32 v{pEK+i}, {lo + 64*i}, v{pT+1}\nv_min_u32 v{pEK+i}, {hi-1}, v{pEK+i}\nv_mul_u32_u24 v{pEK+i}, {ARRS}, v{pEK+i}")
        a(f"s_mov_b32 s{sT}, {M_ARR}")
        def body():
            for i in range(n):
                a(f"buffer_load_dword v{pEK+4+i}, v{pEK+i}, {sr(sMISC,4)}, s{sT} offen sc1")
            a("s_waitcnt vmcnt(0)")
            for i in range(n):
                a(f"v_xor_b32 v{pEK+4+i}, s{sTOK}, v{pEK+4+i}")
                if i: a(f"v_or_b32 v{pEK+4}, v{pEK+4}, v{pEK+4+i}")
            a(f"v_cmp_ne_u32 vcc, 0, v{pEK+4}\ns_nop 0\ns_cmp_eq_u64 vcc, 0")
        spin(body, sleep)
    def consts():
        a(f"""
        v_and_b32 v{pT+1}, 63, v0
        v_lshlrev_b32 v{l16}, 4, v{pT+1}
        v_bfe_u32 v{pT+2}, v0, 5, 3
        v_bfe_u32 v{pT+3}, v0, 3, 2
        v_and_b32 v{vPD}, 7, v0
        v_lshlrev_b32 v{vPD}, 4, v{vPD}
        v_lshl_add_u32 v{vPD}, v{pT+3}, 9, v{vPD}
        v_lshl_add_u32 v{vPD}, v{pT+2}, 17, v{vPD}
        s_lshl_b32 s{sPS}, s{sRG}, 11
        s_lshl_b32 s{sT+5}, s{sM}, 7
        s_add_u32 s{sPS}, s{sPS}, s{sT+5}
        s_lshl_b32 s{sPM}, s{sL}, 10
        s_movk_i32 s{sROWB}, {ROWB}
        s_mov_b32 s{sMASK}, 0xffff0000
        s_mov_b32 s{sCB}, 0
        v_mov_b32 v{vPEND}, 0xff
        v_and_b32 v{vC1}, 7, v0
        v_bfe_u32 v{vC2}, v0, 3, 1
        v_lshlrev_b32 v{vC1}, 5, v{vC1}
        v_lshl_add_u32 v{vC1}, v{vC2}, 4, v{vC1}
        v_and_b32 v{vC2}, 15, v0
        v_lshlrev_b32 v{vC2}, 2, v{vC2}
        v_mul_u32_u24 v{vCO}, 255, v{vC2}
        v_sub_u32 v{vCO}, s{sPS}, v{vCO}
        v_bfe_u32 v{vG4}, v0, 4, 2
        v_lshlrev_b32 v{vG4}, 2, v{vG4}
        v_add_u32 v{vG4}, {L_SORT}, v{vG4}
        v_bfe_u32 v{pT+1}, v0, 5, 1
        v_and_b32 v{pT+2}, 1, v0
        v_cmp_eq_u32 vcc, v{pT+1}, v{pT+2}
        v_and_b32 v{pT+3}, 16, v0
        v_mov_b32 v{pT+4}, 32
        v_cndmask_b32 v{vML}, 0, v{pT+4}, vcc
        s_mul_i32 s{sT+5}, s{sM}, {TAB_SL}
        v_cndmask_b32 v{vCL}, 0, v{pT+3}, vcc
        v_add_u32 v{vCL}, {L_LUT}, v{vCL}
        """)
        srd(sTB, 24, sT + 5, WS_TAB, 0 if opt.get("notab") else TAB_SL)
        srd(sOUT, 20, None, 0, 0 if opt.get("nost") else N * 2048)
    def bop_loads():
        a(f"s_mul_i32 s{sT+6}, s{sM}, 6144\ns_add_u32 s{sT+6}, s{sT+6}, {M_BOP}\ns_add_u32 s{sT+7}, s{sT+6}, 3072")
        for o in range(6):
            a(f"buffer_load_dwordx4 {vr(vB+4*o,4)}, v{l16}, {sr(sMISC,4)}, s{sT+6+o//3} offen offset:{1024*(o%3)} {opt.get('bopfl', 'sc1')}")
    def rec_loads():
        a(f"v_add_u32 v{t16}, s{sCB}, v0\nv_subrev_u32 v{t16}, 256, v{t16}\nv_lshlrev_b32 v{t16}, 4, v{t16}")
        for k in range(8):
            a(f"s_movk_i32 s{sT+2}, {k*4096}")
            a(f"buffer_load_dwordx4 {vr(pREC+4*k,4)}, v{t16}, {sr(sLIST,4)}, s{sT+2} offen sc1")
    z = pT + 8
    def null_fill():
        a(f"""
        v_mov_b32 v{z}, 0
        v_mov_b32 v{z+1}, 0
        v_mov_b32 v{z+2}, 0
        v_mov_b32 v{z+3}, 0xffff
        v_lshlrev_b32 v{pT+4}, 4, v0
        v_add_u32 v{pT+4}, {L_STREAM - 4096}, v{pT+4}
        """)
        nfull = STREAM_BYTES // 4096
        rem = (STREAM_BYTES - nfull * 4096) // 16
        for i in range(nfull):
            a(f"ds_write_b128 v{pT+4}, {vr(z,4)} offset:{i*4096}")
        a(f"""
        v_cmp_gt_u32 vcc, {256 + rem}, v0
        s_and_b64 exec, exec, vcc
        ds_write_b128 v{pT+4}, {vr(z,4)} offset:{nfull*4096}
        s_mov_b64 exec, -1
        v_lshlrev_b32 v{pT+4}, 3, v0
        v_add_u32 v{pT+4}, {L_LUT - 2048}, v{pT+4}
        v_cmp_gt_u32 vcc, 260, v0
        s_and_b64 exec, exec, vcc
        ds_write_b64 v{pT+4}, {vr(z,2)}
        s_mov_b64 exec, -1
        """)
    Lsd = a.label("K2_SIDE"); Lsz = a.label("K2_SZ"); LA = a.label("K2_A"); Lok = a.label("K2_GOK"); Lnag = a.label("K2_NOAGG"); Ls2 = a.label("K2_S2")
    def get_token():
        Ltk = a.label("K2_TOK")
        token_decode(a, VTOK, sTOK, sT)
        a(f"s_cbranch_scc1 {Ltk}")
        def body():
            sync_loads(a, sDBG, sMISC, sT, pT + 1, gran=False)
            a("s_waitcnt vmcnt(0)")
            token_decode(a, VTOK, sTOK, sT)
        spin(body, 8)
        a(f"{Ltk}:")
    def check():
        a(f"""
        v_readfirstlane_b32 s{sT}, v{VTOK+3}
        v_readfirstlane_b32 s{sTOT}, v{VTOK+2}
        s_nop 1
        s_cmp_eq_u32 s{sT}, s{sTOK}
        """)
    def wait_granule(sleep):
        def body():
            sync_loads(a, sDBG, sMISC, sT, pT + 1, tok=False)
            a("s_waitcnt vmcnt(0)")
            check()
        spin(body, sleep)
    a(f"""
    s_cmp_ge_u32 s2, {WG_GEMM0}
    s_cbranch_scc1 {Lsd}
    s_cmp_lt_u32 s{sW}, 4
    s_cbranch_scc1 {Lsz}
    """)
    zero_counters(a, pT + 1, pT + 2)
    a(f"""
{Lsz}:
    v_mov_b32 v{pT+7}, {L_PASS}
    s_waitcnt vmcnt(0) lgkmcnt(0)
    s_barrier
    s_cmp_lg_u32 s{sW}, {WSY}
    s_cbranch_scc1 {Ls2}
    """)
    get_token()
    arrive()
    a(f"s_cmp_lg_u32 s2, {WG_AGG}\ns_cbranch_scc1 {Lnag}")
    wait_arrivals(0, WG_AGG, opt.get("sl0", 4))
    a(f"""
    v_lshlrev_b32 v{pT+1}, 2, v{pT+1}
    buffer_load_dword v{pT+2}, v{pT+1}, {sr(sDBG,4)}, 0 offen sc1
    v_lshlrev_b32 v{pT+1}, 1, v{pT+1}
    v_mov_b32 v{pT+3}, s{sTOK}
    s_mov_b32 s{sT}, {M_TOT}
    s_waitcnt vmcnt(0)
    buffer_store_dwordx2 {vr(pT+2,2)}, v{pT+1}, {sr(sMISC,4)}, s{sT} offen sc1
{Lnag}:
    """)
    wait_granule(opt.get("sl1", 16))
    a(f"""
    s_mov_b64 exec, 1
    ds_write_b128 v{pT+7}, {vr(VTOK,4)} offset:16
    s_mov_b64 exec, -1
    s_waitcnt lgkmcnt(0)
{Ls2}:
    s_barrier
    ds_read_b128 {vr(VTOK,4)}, v{pT+7} offset:16
    s_waitcnt lgkmcnt(0)
{Lsd}:
    s_cmp_lt_u32 s{sW}, 4
    s_cbranch_scc1 {LA}
    s_waitcnt vmcnt({opt.get("tokw", 5)})
    """)
    get_token()
    check()
    a(f"s_cbranch_scc1 {Lok}")
    wait_granule(8)
    pkb = opt.get("pkb", [2, 2, 3, 3, 2, 0])
    pka = opt.get("pka", [1, 1, 0, 0, 6])
    assert sum(pkb) == 12 and sum(pka) == 8
    a(f"""
{Lok}:
    s_and_b32 s{sTOT}, s{sTOT}, 0x3ffff
    s_min_u32 s{sTOT}, s{sTOT}, {E}
    s_lshl_b32 s{sLIST+2}, s{sTOT}, 4
    s_mov_b32 s{sCB}, 0
    """)
    rec_loads()
    consts()
    a(f"""
    v_mov_b32 v{pT+1}, {L_PASS}
    v_mov_b32 v{pT+2}, s{sTOT}
    v_mov_b32 v{pT+3}, s{sTOK}
    ds_write_b64 v{pT+1}, {vr(pT+2,2)}
    s_lshl_b32 s{sT+5}, s{sL}, 12
    v_add_u32 v{pT+7}, s{sT+5}, v{l16}
    v_add_u32 v{pT+7}, {L_LUT + NRS*32}, v{pT+7}
    s_add_u32 s{sT+5}, s{sT+5}, {LUT_THR*32}
    """)
    for i in range(4):
        a(f"buffer_load_dwordx4 {vr(pLT+4*i,4)}, v{l16}, {sr(sMISC,4)}, s{sT+5} offen offset:{1024*i} sc1")
    null_fill()
    a(f"s_waitcnt vmcnt(12) lgkmcnt(0)\ns_barrier")
    park_issue(1, pkb[0])
    a(f"s_waitcnt vmcnt({pkb[0]})")
    for i in range(4):
        a(f"ds_write_b128 v{pT+7}, {vr(pLT+4*i,4)} offset:{1024*i}")
    bop_loads()
    one = pT + 4; vAL = pT + 10
    a(f"""
{Lrank}:
    s_waitcnt lgkmcnt(0)
    v_mov_b32 v{one}, 1
    v_mov_b32 v{vAL}, {L_ALLOC}
    s_sub_u32 s{sT+2}, s{sTOT}, s{sCB}
    s_add_u32 s{sT+2}, s{sT+2}, 256
    """)
    for k in range(8):
        r0 = pREC + 4 * k
        Lskip = a.label("K2_NORARE")
        a(f"""
        v_add_u32 v{pT+5}, {k*256}, v0
        v_and_b32 v{pT+6}, {1<<k}, v{vPEND}
        v_cmp_gt_u32 vcc, s{sT+2}, v{pT+5}
        v_cmp_ne_u32 s[{sT}:{sT+1}], 0, v{pT+6}
        v_and_b32 v{pDL+k}, 0xffff, v{r0}
        v_lshlrev_b32 v{pDL+k}, 2, v{pDL+k}
        v_add_u32 v{pDL+k}, {L_CNT}, v{pDL+k}
        v_mov_b32 v{pRANK+k}, {INV}
        v_mov_b32 v{pRS+k}, 0
        s_and_b64 s[{sT}:{sT+1}], vcc, s[{sT}:{sT+1}]
        v_cmp_gt_i32 vcc, 0, v{r0+3}
        v_and_b32 v{r0}, s{sMASK}, v{r0}
        {f"v_and_b32 v{r0+3}, {0xffff0000 | opt['srcmask']}, v{r0+3}" if opt.get("srcmask") else ""}
        s_and_b64 exec, vcc, s[{sT}:{sT+1}]
        s_cbranch_execz {Lskip}
        ds_add_rtn_u32 v{pT+8}, v{vAL}, v{one} offset:8
        v_bfe_u32 v{pT+7}, v{r0+3}, 16, 15
        v_lshlrev_b32 v{pT+7}, 5, v{pT+7}
        buffer_load_dwordx4 {vr(pRARE+8*k,4)}, v{pT+7}, {sr(sMISC,4)}, 0 offen sc1
        buffer_load_dwordx4 {vr(pRARE+8*k+4,4)}, v{pT+7}, {sr(sMISC,4)}, 0 offen offset:16 sc1
        v_and_b32 v{r0+3}, 0xffff, v{r0+3}
        v_mov_b32 v{pRANK+k}, {INV-1}
        s_waitcnt lgkmcnt(0)
        v_add_u32 v{pT+8}, 1, v{pT+8}
        v_cmp_le_u32 vcc, {NRS}, v{pT+8}
        v_lshl_or_b32 v{r0+3}, v{pT+8}, 16, v{r0+3}
        v_lshlrev_b32 v{pT+8}, 5, v{pT+8}
        s_andn2_b64 s[{sT}:{sT+1}], s[{sT}:{sT+1}], vcc
        s_andn2_b64 exec, exec, vcc
        v_add_u32 v{pRS+k}, {L_LUT}, v{pT+8}
{Lskip}:
        s_mov_b64 exec, s[{sT}:{sT+1}]
        ds_add_rtn_u32 v{pRANK+k}, v{pDL+k}, v{one}
        s_mov_b64 exec, -1
        """)
    Lnp1 = a.label("K2_NP1")
    a(f"s_cmp_eq_u32 s{sFIRST}, 0\ns_cbranch_scc1 {Lnp1}")
    park_issue(1, pkb[1])
    a(f"""
{Lnp1}:
    s_waitcnt lgkmcnt(0)
    s_barrier
    s_branch {Lx}
    """)
    Lna = a.label("K2_NOARR")
    a(f"{LA}:")
    consts()
    a(f"""
    v_mov_b32 v{pT+7}, {L_PASS}
    s_waitcnt vmcnt(0)
    s_barrier
    ds_read_b64 {vr(pT+2,2)}, v{pT+7}
    s_waitcnt lgkmcnt(0)
    v_readfirstlane_b32 s{sTOT}, v{pT+2}
    v_readfirstlane_b32 s{sTOK}, v{pT+3}
    s_cmp_lg_u32 s{sW}, 0
    s_cbranch_scc1 {Lna}
    s_cmp_lt_u32 s2, {WG_GEMM0}
    s_cbranch_scc1 {Lna}
    """)
    arrive()
    a(f"{Lna}:")
    bop_loads()
    park_issue(0, pka[4])
    a(f"""
    s_barrier
{Lx}:
    v_mov_b32 v{one}, 1
    v_mov_b32 v{vAL}, {L_ALLOC}
    """)
    stamp()
    L7 = a.label("K2_P7"); L8 = a.label("K2_P8")
    deg, rk, hh, bn = pT + 5, pT + 6, pT + 7, pT + 11
    a(f"""
    s_cmp_ge_u32 s{sW}, 5
    s_cbranch_scc1 {L7}
    v_lshlrev_b32 v{pT+8}, 2, v0
    v_add_u32 v{pT+8}, {L_CNT}, v{pT+8}
    ds_read_b32 v{deg}, v{pT+8}
    v_cmp_le_u32 vcc, {NKEY}, v0
    v_mov_b32 v{bn}, 31
    v_mov_b32 v{pT+9}, 63
    v_cndmask_b32 v{bn}, v{bn}, v{pT+9}, vcc
    s_waitcnt lgkmcnt(0)
    v_min_u32 v{deg}, {CAPN}, v{deg}
    v_sub_u32 v{bn}, v{bn}, v{deg}
    v_lshlrev_b32 v{bn}, 2, v{bn}
    v_add_u32 v{pT+8}, {L_HIST}, v{bn}
    ds_add_rtn_u32 v{rk}, v{pT+8}, v{one}
    s_waitcnt lgkmcnt(0)
{L7}:
    """)
    park_dma(pka[0], pkb[2])
    a(f"""
    s_barrier
    s_cmp_ge_u32 s{sW}, 5
    s_cbranch_scc1 {L8}
    v_and_b32 v{pT+8}, 63, v0
    v_lshlrev_b32 v{pT+8}, 2, v{pT+8}
    v_add_u32 v{pT+8}, {L_HIST}, v{pT+8}
    ds_read_b32 v{hh}, v{pT+8}
    v_subrev_u32 v{pT+8}, {NKEY}, v0
    v_min_u32 v{pT+8}, v{pT+8}, v0
    v_lshl_or_b32 v{deg}, v{deg}, 16, v{pT+8}
    s_waitcnt lgkmcnt(0)
    v_mov_b32 v{pT+9}, v{hh}
    """)
    dpp_scan(a, "v_add_u32", hh)
    a(f"""
    v_sub_u32 v{hh}, v{hh}, v{pT+9}
    ds_bpermute_b32 v{pT+9}, v{bn}, v{hh}
    s_waitcnt lgkmcnt(0)
    v_add_lshl_u32 v{pT+9}, v{pT+9}, v{rk}, 2
    v_add_u32 v{pT+9}, {L_SORT}, v{pT+9}
    ds_write_b32 v{pT+9}, v{deg}
    s_waitcnt lgkmcnt(0)
{L8}:
    """)
    park_dma(pka[1], pkb[3])
    assert L_SORT % 128 == 0 or True
    ek = pEK
    a(f"""
    s_barrier
    s_lshl_b32 s{sQ}, s{sW}, 4
    s_xor_b32 s{sT+1}, s{sQ}, 112
    v_add_u32 v{pT+6}, s{sQ}, v{vG4}
    v_add_u32 v{pT+7}, s{sT+1}, v{vG4}
    """)
    for k in range(10):
        a(f"ds_read_b32 v{ek+k}, v{pT+6+DIRS[k]} offset:{128*k}")
    a("s_waitcnt lgkmcnt(0)")
    for k in range(10):
        a(f"v_readfirstlane_b32 s{sN0+k}, v{ek+k}")
    a(f"v_mov_b32 v{vEN}, v{ek}\ns_mov_b32 s{sDIR}, {sum(d << k for k, d in enumerate(DIRS))}")
    a(f"s_mov_b64 {sr(sPC,2)}, 0\ns_mov_b32 s{sREM}, 0")
    for k in range(10):
        a(f"s_lshr_b32 s{sT}, s{sN0+k}, 16")
        a(f"s_mov_b32 s{sN0+k}, s{sREM}\ns_add_u32 s{sREM}, s{sREM}, s{sT}")
        a(f"s_lshl_b32 s{sT}, s{sT}, {5*(k%5)}\ns_or_b32 s{sPC+k//5}, s{sPC+k//5}, s{sT}")
    a(f"""
    s_add_u32 s{sREM}, s{sREM}, 1
    s_lshr_b32 s{sREM}, s{sREM}, 1
    v_mov_b32 v{pT+8}, s{sREM}
    s_mov_b64 exec, 1
    ds_add_rtn_u32 v{pT+9}, v{vAL}, v{pT+8}
    s_mov_b64 exec, -1
    """)
    for k in range(10):
        a(f"v_and_b32 v{ek+k}, 0xff, v{ek+k}")
        a(f"v_lshlrev_b32 v{ek+k}, 2, v{ek+k}")
        a(f"v_add_u32 v{ek+k}, {L_NADDR + (NKEY*4 if k >= 5 else 0)}, v{ek+k}")
    a(f"""
    v_bfe_u32 v{pT+5}, v0, 4, 2
    v_bfe_u32 v{pT+6}, v0, 1, 1
    v_bfe_u32 v{pT+7}, v0, 2, 2
    v_lshlrev_b32 v{pT+6}, 6, v{pT+6}
    v_lshl_add_u32 v{pT+6}, v{pT+7}, 4, v{pT+6}
    s_waitcnt lgkmcnt(0)
    v_readfirstlane_b32 s{sT}, v{pT+9}
    s_nop 1
    s_lshl_b32 s{sT}, s{sT}, 7
    s_add_u32 s{sT}, s{sT}, {L_STREAM}
    v_lshl_add_u32 v{vS}, v{pT+5}, 4, s{sT}
    v_add_u32 v{vA}, s{sT}, v{pT+6}
    """)
    for k in range(10):
        a(f"v_lshl_add_u32 v{pT+7+(k&1)}, s{sN0+k}, 6, v{vS}")
        a(f"ds_write_b32 v{ek+k}, v{pT+7+(k&1)}")
    park_dma(pka[2], pkb[4])
    a("s_waitcnt lgkmcnt(0)\ns_barrier")
    LsA = a.label("K2_SCA"); Lse = a.label("K2_SCE")
    a(f"s_cmp_lt_u32 s{sW}, 4\ns_cbranch_scc1 {LsA}")
    for k in range(8):
        a(f"ds_read_b32 v{pNA+k}, v{pDL+k} offset:{L_NADDR - L_CNT}")
    a(f"v_mov_b32 v{vPEND}, 0\ns_mov_b32 s{sT+2}, {INV}")
    for k in range(8):
        r0 = pREC + 4 * k
        Lnpd = a.label("K2_NOPEND")
        a(f"""
        v_cmp_gt_u32 vcc, {CAPN}, v{pRANK+k}
        v_cmp_gt_u32 s[{sT}:{sT+1}], s{sT+2}, v{pRANK+k}
        {"s_waitcnt lgkmcnt(0)" if k == 0 else ""}
        v_lshl_add_u32 v{pNA+k}, v{pRANK+k}, 6, v{pNA+k}
        s_mov_b64 exec, vcc
        ds_write_b128 v{pNA+k}, {vr(r0,4)}
        s_andn2_b64 exec, s[{sT}:{sT+1}], vcc
        s_cbranch_execz {Lnpd}
        v_or_b32 v{vPEND}, {1<<k}, v{vPEND}
        ds_write_b32 v{vAL}, v{one} offset:4
{Lnpd}:
        s_mov_b64 exec, -1
        """)
    for k in range(8):
        Lskip = a.label("K2_NORARE2")
        a(f"""
        v_cmp_ne_u32 vcc, 0, v{pRS+k}
        s_and_b64 exec, exec, vcc
        s_cbranch_execz {Lskip}
        s_waitcnt vmcnt(0) lgkmcnt(0)
        ds_write_b128 v{pRS+k}, {vr(pRARE+8*k,4)}
        ds_write_b128 v{pRS+k}, {vr(pRARE+8*k+4,4)} offset:16
{Lskip}:
        s_mov_b64 exec, -1
        """)
    Lnag2 = a.label("K2_NOAGG2")
    a(f"""
    s_branch {Lse}
{LsA}:
    s_cmp_eq_u32 s{sFIRST}, 0
    s_cbranch_scc1 {Lse}
    s_cmp_lg_u32 s{sW}, 3
    s_cbranch_scc1 {Lse}
    s_cmp_lg_u32 s2, {WG_AGG}
    s_cbranch_scc1 {Lnag2}
    """)
    wait_arrivals(WG_GEMM0, 256, opt.get("sl3", 1))
    a(f"""
    s_mov_b32 s{sT}, {M_GO}
    v_mov_b32 v{pT+1}, 0
    v_mov_b32 v{pT+3}, s{sTOK}
    s_mov_b64 exec, 1
    buffer_store_dword v{pT+3}, v{pT+1}, {sr(sMISC,4)}, s{sT} offen sc1
    s_mov_b64 exec, -1
{Lnag2}:
    """)
    pre = opt.get("prepoll", 1)
    if pre: park_issue(0, pka[3]); plist[0] = [(7, 0), (7, 1)][-pka[3]:] if pka[3] else []
    a(f"""
    s_mov_b32 s{sT}, {M_GO}
    v_mov_b32 v{pT+1}, 0
    s_mov_b64 exec, 1
    """)
    def body():
        a(f"""
        buffer_load_dword v{pT+2}, v{pT+1}, {sr(sMISC,4)}, s{sT} offen sc1
        s_waitcnt vmcnt(0)
        v_readfirstlane_b32 s{sT+1}, v{pT+2}
        s_nop 1
        s_cmp_eq_u32 s{sT+1}, s{sTOK}
        """)
    spin(body, opt.get("sl2", 2))
    Lsf = a.label("K2_SCF")
    a(f"""
    s_mov_b64 exec, -1
    {"buffer_inv sc1" if opt.get("inv", 0) else ""}
    s_waitcnt vmcnt(0)
    {f"s_branch {Lsf}" if pre else ""}
{Lse}:
    """)
    park_dma(pka[3], pkb[5])
    nob7 = opt.get("nob7", 1)
    a(f"{Lsf}:\ns_waitcnt {'vmcnt(0) ' if nob7 else ''}lgkmcnt(0)\ns_barrier")
    stamp()
    a(f"ds_read_b32 v{vT}, v{vAL} offset:4")
    for b in range(DP):
        a(f"ds_read2_b32 {vr(vD+2*b,2)}, v{vS} offset0:{32*b+3} offset1:{32*b+19}")
    a(f"ds_read_u16 v{vLI}, v{vA} offset:14")
    a("s_waitcnt lgkmcnt(0)")
    a(f"v_readfirstlane_b32 s{sMORE}, v{vT}")
    for b in range(DP):
        issue(b, vD + 2 * b)
    a(f"""
    s_add_u32 s{sT}, s{sCB}, {CHUNK}
    s_cmp_lt_u32 s{sT}, s{sTOT}
    s_cselect_b32 s{sT}, 2, 0
    s_or_b32 s{sMORE}, s{sMORE}, s{sT}
    s_mov_b32 s{sSLOT}, 10
    s_mov_b64 vcc, {-1 if opt.get("novmem") else 0}
    v_mad_u32_u16 v{vAD}, v{vLI}, v{vML}, v{vCL}
    {"" if nob7 else f"s_waitcnt vmcnt({8*DP})"}
    {"" if nob7 else "s_barrier"}
    ds_read_b128 {vr(vAOP,4)}, v{vAD}
    ds_read2_b32 {vr(vPK,2)}, v{vS} offset0:{32*DP+3} offset1:{32*DP+19}
    ds_read_u16 v{vLI}, v{vA} offset:{128+14}
    ds_read_b128 {vr(vRH,4)}, v{vS}
    ds_read_b128 {vr(vRH+4,4)}, v{vS} offset:64
    """)
    if stamps:
        stamp(); a("s_memtime s[80:81]\ns_waitcnt lgkmcnt(0)")
    Lph = [a.label(f"K2_PH{p}") for p in range(NRG)]
    Lsk = [a.label(f"K2_SK{p}") for p in range(NRG)]
    Lbk = [a.label(f"K2_BK{p}") for p in range(NRG)]
    Ltr = [[a.label(f"K2_EP{p}{st}") for st in range(2)] for p in range(NRG)]
    Lz = [[a.label(f"K2_EZ{p}{st}") for st in range(2)] for p in range(NRG)]
    Lrt = [[a.label(f"K2_RT{p}{st}") for st in range(2)] for p in range(NRG)]
    Lrt[NRG - 1][1] = Lph[0]
    Ldone = a.label("K2_DONE")
    sOM = 78; sPR = 79
    a(f"""
    s_cmp_eq_u32 s{sMORE}, 0
    s_cselect_b32 s{sOM}, 0x3e, 0
    s_lshr_b32 s{sPR}, s{sW}, 2
    """)
    fetch_next()
    a("s_waitcnt lgkmcnt(0)")
    acc_init()
    fetch_next()
    a(f"""
    s_and_b32 s{sCNT}, s{sPC}, 31
    s_cbranch_scc0 {Lz[NRG-1][1]}
    s_sub_u32 s{sCNT}, s{sCNT}, 1
    """)
    for p in range(NRG):
        a(f"{Lph[p]}:")
        a(f"s_waitcnt vmcnt({8*(DP-1)}) lgkmcnt(2)\n{Lph[p]}_W:")
        sh = []
        for st in range(2):
            for hf in range(2):
                rg = ring(p, st, hf); e = vX + 4 * (2 * st + hf)
                sh += [f"v_lshlrev_b64 {vr(e,2)}, 16, {vr(rg,2)}", f"v_lshlrev_b64 {vr(e+2,2)}, 16, {vr(rg+2,2)}", f"v_lshlrev_b32 v{rg+4}, 16, v{rg+5}"]
        for o in range(6):
            if not opt.get("nomfma"):
                a(f"v_mfma_f32_16x16x32_bf16 {vr(vD+4*o,4)}, {vr(vAOP,4)}, {vr(vB+4*o,4)}, 0")
            if not opt.get("novalu"):
                a(sh[2 * o]); a(sh[2 * o + 1])
        il = opt.get("il", 0)
        a(f"s_sub_u32 s{sREM}, s{sREM}, 1\ns_cmp_lt_u32 s{sREM}, {DP}\ns_cbranch_scc1 {Lsk[p]}")
        if il:
            for st in range(2):
                a(f"v_mad_u32_u16 v{vAD+2*st}, v{vPK+st}, s{sROWB}, v{vC1}")
                a(f"v_mad_u32_u16 v{vAD+2*st+1}, v{vPK+st}, s{sROWB}, v{vC2}")
        else:
            issue((p + DP) % NRG, vPK)
        a(f"{Lbk[p]}:")
        assert (p + DP + 1) * 32 + 19 < 256
        a(f"""
        v_mad_u32_u16 v{vT}, v{vLI}, v{vML}, v{vCL}
        ds_read_b128 {vr(vAOP,4)}, v{vT}
        ds_read2_b32 {vr(vPK,2)}, v{vS} offset0:{(p+DP+1)*32+3} offset1:{(p+DP+1)*32+19}
        ds_read_u16 v{vLI}, v{vA} offset:{(p+2)*128+14}
        s_waitcnt lgkmcnt(3)
        """)
        for st in range(2):
            L = []
            for hf in range(2):
                HXY, HZS, LXY, LZS, BZ = ACC(hf)
                rg = ring(p, st, hf); rh = vRH + 4 * st; e = vX + 4 * (2 * st + hf); t = vT + 2 * hf
                d1, d2, d3 = vD + 12 * hf + 2 * st, vD + 12 * hf + 4 + 2 * st, vD + 12 * hf + 8 + 2 * st
                L.append(f"""v_pk_fma_f32 {vr(HXY,2)}, {vr(d1,2)}, {vr(rg,2)}, {vr(HXY,2)} op_sel_hi:[0,1,1]
                v_pk_mul_f32 {vr(t,2)}, {vr(d3,2)}, {vr(rg+4,2)}
                v_pk_fma_f32 {vr(HZS,2)}, {vr(d1,2)}, {vr(rg+2,2)}, {vr(HZS,2)}
                v_pk_fma_f32 {vr(LXY,2)}, {vr(d2,2)}, {vr(e,2)}, {vr(LXY,2)} op_sel_hi:[0,1,1]
                v_pk_fma_f32 {vr(LZS,2)}, {vr(d2,2)}, {vr(e+2,2)}, {vr(LZS,2)}
                v_pk_fma_f32 {vr(BZ,2)}, {vr(t,2)}, {vr(rh+2,2)}, {vr(BZ,2)} op_sel_hi:[1,0,1]
                v_pk_fma_f32 {vr(HXY,2)}, {vr(t,2)}, {vr(rh,2)}, {vr(HXY,2)} op_sel:[1,0,0]
                v_pk_fma_f32 {vr(LXY,2)}, {vr(t,2)}, {vr(rh,2)}, {vr(LXY,2)} op_sel_hi:[0,1,1]""".split("\n"))
            bs = (p + DP) % NRG
            X4 = lambda hf: f"buffer_load_dwordx4 {vr(ring(bs,st,hf),4)}, v{vAD+2*st}, {sr(sTB,4)}, 0 offen offset:{256*hf}"
            X1 = lambda hf: f"buffer_load_dword v{ring(bs,st,hf)+5}, v{vAD+2*st+1}, {sr(sTB,4)}, 0 offen offset:{512+64*hf}"
            groups = {1: {0: [X4(0)], 3: [X4(1)], 6: [X1(0), X1(1)]}, 2: {0: [X4(0), X1(0)], 4: [X4(1), X1(1)]}, 3: {0: [X4(0), X4(1), X1(0), X1(1)]},
                      4: {0: [X4(0)], 2: [X4(1)], 4: [X1(0)], 6: [X1(1)]}}.get(il, {})
            for k, (l0, l1) in enumerate(zip(*L)):
                if k in groups:
                    Lg = a.label("K2_G")
                    a(f"s_cbranch_vccnz {Lg}")
                    for x in groups[k]: a(x)
                    a(f"{Lg}:")
                if not opt.get("novalu"):
                    a(l0); a(l1)
            a(f"ds_read_b128 {vr(vRH+4*st,4)}, v{vS} offset:{(p+1)*128+64*st}")
            if st == 1 and p == NRG - 1:
                a(f"v_add_u32 v{vS}, {128*NRG}, v{vS}\nv_add_u32 v{vA}, {128*NRG}, v{vA}")
            a(f"s_sub_u32 s{sCNT}, s{sCNT}, 1")
            if st == 1 and p == NRG - 1:
                a(f"s_cbranch_scc0 {Lph[0]}")
            else:
                a(f"s_cbranch_scc1 {Ltr[p][st]}\n{Lrt[p][st]}:")
    order = [(NRG - 1, 1)] + [(p, st) for p in range(NRG) for st in range(2) if (p, st) != (NRG - 1, 1)]
    for (p, st) in order:
        Lpw = a.label("K2_PW"); Lnx = a.label("K2_NX"); Ltb = a.label("K2_TB"); Lin = a.label("K2_IN"); Lp0 = a.label("K2_P0")
        a(f"{Ltr[p][st]}:")
        for hf in range(2):
            HXY, HZS, LXY, LZS, BZ = ACC(hf)
            R = lambda c: vE + 2 * c + hf
            a(f"""
            v_add_f32 v{LZS}, v{LZS}, v{BZ}
            v_add_f32 v{HZS}, v{HZS}, v{BZ+1}
            v_cvt_pk_bf16_f32 v{R(0)}, v{LZS+1}, v{HZS+1}
            v_cvt_pk_bf16_f32 v{R(1)}, v{LXY}, v{HXY}
            v_cvt_pk_bf16_f32 v{R(2)}, v{LXY+1}, v{HXY+1}
            v_cvt_pk_bf16_f32 v{R(3)}, v{LZS}, v{HZS}
            """)
        a(f"""
        s_waitcnt lgkmcnt(1)
        s_bitcmp1_b32 s{sOM}, s{sSLOT}
        s_cbranch_scc0 {Lpw}
        v_lshl_add_u32 v{vO}, v{vPA}, 8, v{vCO}
        """)
        for c in range(4):
            for hf in range(2):
                a(f"buffer_store_dword v{vE+2*c+hf}, v{vO}, {sr(sOUT,4)}, 0 offen offset:{512*c+64*hf} {st_fl}")
        a(f"""
{Lnx}:
        s_lshr_b32 s{sPC}, s{sPC}, 5
        s_sub_u32 s{sSLOT}, s{sSLOT}, 1
        s_cmp_eq_u32 s{sSLOT}, 0
        s_cbranch_scc1 {Ldone}
{Lin}:
        """)
        if opt.get("prio", 2):
            a(f"s_xor_b32 s{sPR}, s{sPR}, 1\ns_setprio 0\ns_cbranch_scc0 {Lp0}\ns_setprio 1\n{Lp0}:")
        acc_init()
        fetch_next()
        a(f"""
        s_and_b32 s{sCNT}, s{sPC}, 31
        s_cbranch_scc0 {Lz[p][st]}
        s_sub_u32 s{sCNT}, s{sCNT}, 1
        {f"s_waitcnt vmcnt({8*(DP-1)})" if st == 1 else ""}
        s_branch {Lrt[p][st] if st == 0 else Lph[(p+1)%NRG] + "_W"}
{Lz[p][st]}:
        s_waitcnt lgkmcnt(0)
        s_branch {Ltr[p][st]}
{Lpw}:
        """)
        for c in range(4):
            a(f"ds_write2_b32 v{vPA}, v{vE+2*c}, v{vE+2*c+1} offset0:{32*c} offset1:{32*c+16}")
        a(f"""
        s_cmp_lg_u32 s{sSLOT}, 6
        s_cbranch_scc1 {Lnx}
        s_mov_b32 s{sSLOT}, 5
        s_mov_b32 s{sPC}, s{sPC+1}
        s_waitcnt lgkmcnt(0)
        s_barrier
        """)
        r_reads()
        a(f"s_waitcnt lgkmcnt(0)\ns_branch {Lin}")
    for p in range(NRG):
        a(f"{Lsk[p]}:\ns_mov_b64 vcc, -1\ns_waitcnt vmcnt(0)\ns_branch {Lbk[p]}")
    Lfin = a.label("K2_FIN"); Lnext = a.label("K2_NEXT"); LrB = a.label("K2_RB")
    a(f"""
{Ldone}:
    s_cmp_eq_u32 s{sMORE}, 0
    s_cbranch_scc1 {Lfin}
    s_bitcmp1_b32 s{sMORE}, 0
    s_cbranch_scc1 {Lnext}
    s_add_u32 s{sCB}, s{sCB}, {CHUNK}
    v_mov_b32 v{vPEND}, 0xff
{Lnext}:
    s_mov_b32 s{sFIRST}, 0
    s_waitcnt vmcnt(0) lgkmcnt(0)
    s_barrier
    s_cmp_ge_u32 s{sW}, 4
    s_cbranch_scc1 {LrB}
    s_barrier
    s_barrier
    s_branch {Lx}
{LrB}:
    """)
    rec_loads()
    null_fill()
    zero_counters(a, pT + 1, pT + 2)
    a(f"""
    s_waitcnt vmcnt(0) lgkmcnt(0)
    s_barrier
    s_branch {Lrank}
{Lfin}:
    """)
    if stamps:
        stamp()
        a("s_memtime s[82:83]")
        a("s_waitcnt vmcnt(0)")
        stamp()
        a("s_waitcnt lgkmcnt(0)\ns_sub_u32 s80, s82, s80\ns_mov_b32 s81, 0")
        STR.append(80); nst[0] += 1
        a(f"""
        s_waitcnt lgkmcnt(0)
        s_add_u32 s{sLIST}, s24, {WS_DIAG + (1<<20)}
        s_addc_u32 s{sLIST+1}, s25, 0
        s_mov_b32 s{sLIST+2}, 0x100000
        s_lshl_b32 s{sT}, s2, 3
        s_add_u32 s{sT}, s{sT}, s{sW}
        s_lshl_b32 s{sT}, s{sT}, 7
        v_mov_b32 v1, s{sT}
        s_mov_b64 exec, 1
        """)
        for i in range(nst[0]):
            a(f"v_mov_b32 v2, s{STR[i]}\nv_mov_b32 v3, s{STR[i]+1}")
            a(f"buffer_store_dwordx2 v[2:3], v1, {sr(sLIST,4)}, 0 offen offset:{8*i}")
    a(f"{Lend}:\ns_endpgm")
    return nv, 102
```

```python
from asmlib import *
from layout import *

CHUNK = 2048
SCAP = CHUNK // 4 + 2 * CAPN + 8 + 12
L_PARK = 0
L_STREAM = NKEY * 512
STREAM_BYTES = SCAP * 64
L_LUT = L_STREAM + STREAM_BYTES
L_CNT = L_LUT + (NRS + 512) * 32
L_HIST = L_CNT + 1280
L_ALLOC = L_HIST + 256
L_SORT = L_ALLOC + 64
L_NADDR = L_SORT + 1280 + 256
L_PASS = L_NADDR + 1280
K2_LDS = L_PASS + 64
assert K2_LDS <= 163840 and L_CNT >= 139264
DIRS = [0, 1, 0, 1, 1] * 2

def dpp_scan(a, op, v):
    for m in ["row_shr:1", "row_shr:2", "row_shr:4", "row_shr:8"]:
        a("s_nop 1")
        a(f"{op}_dpp v{v}, v{v}, v{v} {m} row_mask:0xf bank_mask:0xf bound_ctrl:0")
    a("s_nop 1")
    a(f"{op}_dpp v{v}, v{v}, v{v} row_bcast:15 row_mask:0xa bank_mask:0xf")
    a("s_nop 1")
    a(f"{op}_dpp v{v}, v{v}, v{v} row_bcast:31 row_mask:0xc bank_mask:0xf")

def zero_counters(a, t0, t1):
    a(f"""
    v_lshlrev_b32 v{t0}, 3, v0
    v_add_u32 v{t0}, {L_CNT - 2048}, v{t0}
    v_mov_b32 v{t1}, 0
    v_cmp_gt_u32 vcc, 456, v0
    s_and_b64 exec, exec, vcc
    ds_write2_b32 v{t0}, v{t1}, v{t1} offset0:0 offset1:1
    s_mov_b64 exec, -1
    """)

def sync_loads(a, sdbg, smisc, st, vz, tok=True, gran=True):
    a(f"""
    s_lshr_b32 s{st}, s2, 3
    s_lshl_b32 s{st}, s{st}, 4
    s_and_b32 s{st+1}, s2, 1
    s_lshl_b32 s{st+1}, s{st+1}, 3
    s_add_u32 s{st}, s{st}, s{st+1}
    s_add_u32 s{st}, s{st}, {M_TOT}
    v_mov_b32 v{vz}, 0
    s_mov_b64 exec, 1
    {f"buffer_load_dwordx2 v[{VTOK}:{VTOK+1}], v{vz}, {sr(sdbg,4)}, 0 offen sc1" if tok else ""}
    {f"buffer_load_dwordx2 v[{VTOK+2}:{VTOK+3}], v{vz}, {sr(smisc,4)}, s{st} offen sc1" if gran else ""}
    s_mov_b64 exec, -1
    """)

def gen_k2(a, opt, Lend):
    stamps = opt.get("stamps", False)
    st_fl = opt.get("st_flags", "nt")
    NRG = opt.get("ring", 3); DP = NRG - 1
    V = Regs("v", 1, 256)
    vB = V.alloc("B", 24, 2)
    vC1 = V.alloc("c1"); vC2 = V.alloc("c2"); vML = V.alloc("ml"); vCL = V.alloc("cl")
    vS = V.alloc("vS"); vA = V.alloc("vA"); vPEND = V.alloc("pend"); vG4 = V.alloc("g4"); vCO = V.alloc("co")
    vEN = V.alloc("en"); vPA = V.alloc("pa"); vO = V.alloc("O"); vPD = V.alloc("pd")
    vACC = V.alloc("acc", 20, 2)
    vD = V.alloc("D", 24, 2)
    vRH = V.alloc("RH", 8, 2)
    vAOP = V.alloc("A", 4, 2)
    vE = V.alloc("E", 8, 2)
    vX = V.alloc("X", 16, 2)
    vT = V.alloc("T", 4, 2)
    vPK = V.alloc("PK", 2, 2)
    vLI = V.alloc("LI")
    vAD = V.alloc("ad", 4)
    vRING = V.alloc("ring", 24 * NRG, 2)
    P = Regs("v", vACC, 256)
    pT = P.alloc("t", 12, 2)
    pREC = P.alloc("rec", 32, 2)
    pRANK = P.alloc("rank", 8)
    pDL = P.alloc("dl", 8)
    pEK = P.alloc("ek", 10)
    pRS = P.alloc("rs", 8)
    pNA = P.alloc("na", 8)
    pLT = P.alloc("lt", 16, 2)
    pRARE = P.alloc("rare", 64, 2)
    assert pRARE >= vRING
    nv = max(V.hi, P.hi)
    def ACC(hf): b = vACC + 10 * hf; return b, b + 2, b + 4, b + 6, b + 8

    sTB, sSV, sOUT, sLIST, sMISC, sDBG = 28, 32, 36, 40, 44, 48
    sM, sRG, sW, sCB, sTOT = 52, 53, 3, 54, 26
    sREM = 55; sPC = 56; sQ = 58; sDIR = 59; sMORE = 60; sPM = 61
    sCNT, sSLOT, sROWB, sMASK, sPS, sSPIN = 62, 63, 64, 65, 66, 67
    sN0 = 8
    sT = 68
    sFIRST = 76; sL = 77
    STR = [92, 94, 96, 98, 100, 18]
    nst = [0]
    def stamp():
        if stamps:
            a(f"s_memrealtime {sr(STR[nst[0]], 2)}")
            nst[0] += 1
    def srd(d, lo, off_sreg, off_imm, size):
        hi = lo + 1
        if off_sreg is None and off_imm == 0:
            a(f"s_mov_b32 s{d}, s{lo}\ns_mov_b32 s{d+1}, s{hi}")
        else:
            if off_sreg is not None:
                if off_imm:
                    a(f"s_add_u32 s{off_sreg}, s{off_sreg}, {off_imm}")
                a(f"s_add_u32 s{d}, s{lo}, s{off_sreg}")
            else:
                a(f"s_add_u32 s{d}, s{lo}, {off_imm}")
            a(f"s_addc_u32 s{d+1}, s{hi}, 0")
        a(f"s_mov_b32 s{d+2}, {size}\ns_mov_b32 s{d+3}, 0x20000")
    def ring(bslot, st, hf): return vRING + ((bslot * 2 + st) * 2 + hf) * 6
    def issue(bslot, pk0):
        for st in range(2):
            a(f"v_mad_u32_u16 v{vAD+2*st}, v{pk0+st}, s{sROWB}, v{vC1}")
            a(f"v_mad_u32_u16 v{vAD+2*st+1}, v{pk0+st}, s{sROWB}, v{vC2}")
        for st in range(2):
            for hf in range(2):
                a(f"buffer_load_dwordx4 {vr(ring(bslot,st,hf),4)}, v{vAD+2*st}, {sr(sTB,4)}, 0 offen offset:{256*hf}")
            for hf in range(2):
                a(f"buffer_load_dword v{ring(bslot,st,hf)+5}, v{vAD+2*st+1}, {sr(sTB,4)}, 0 offen offset:{512+64*hf}")
    plist = {0: [(i, h) for i in (4, 5, 6, 7) for h in (0, 1)], 1: [(i, h) for i in (0, 1, 2, 3, 8, 9) for h in (0, 1)]}
    def park_issue(cls, n):
        for _ in range(n):
            i, h = plist[cls].pop(0)
            a(f"""
            s_add_u32 m0, s{sPM}, {i*8192 + h*4096}
            s_add_u32 s{sT+7}, s{sPS}, {(i*16 + h*8)*64*2048}
            buffer_load_dwordx4 v{vPD}, {sr(sSV,4)}, s{sT+7} offen lds
            """)
    def park_dma(na, nb):
        if not (na or nb): return
        Ls = a.label("K2_NOPARK"); Lb = a.label("K2_PARKB")
        a(f"s_cmp_eq_u32 s{sFIRST}, 0\ns_cbranch_scc1 {Ls}\ns_cmp_ge_u32 s{sW}, 4\ns_cbranch_scc1 {Lb}")
        park_issue(0, na)
        a(f"s_branch {Ls}\n{Lb}:")
        park_issue(1, nb)
        a(f"{Ls}:")
    def slot_setup():
        a(f"""
        v_and_b32 v{vO}, 0xff, v{vEN}
        v_lshl_add_u32 v{vPA}, v{vO}, 9, v{vC2}
        v_lshl_add_u32 v{vO}, v{vO}, 17, v{vCO}
        """)
        for c in range(4):
            a(f"ds_read2_b32 {vr(vE+2*c,2)}, v{vPA} offset0:{32*c} offset1:{32*c+16}")
        a(f"""
        s_add_u32 s{sQ}, s{sQ}, 128
        s_lshr_b32 s{sDIR}, s{sDIR}, 1
        s_bitcmp1_b32 s{sDIR}, 0
        s_cselect_b32 s{sT}, 112, 0
        s_xor_b32 s{sT}, s{sT}, s{sQ}
        v_add_u32 v{vAD}, s{sT}, v{vG4}
        ds_read_b32 v{vEN}, v{vAD}
        s_waitcnt lgkmcnt(1)
        """)
        for hf in range(2):
            HXY, HZS, LXY, LZS, BZ = ACC(hf)
            R = lambda c: vE + 2 * c + hf
            a(f"""
            v_and_b32 v{HXY}, s{sMASK}, v{R(1)}
            v_and_b32 v{HXY+1}, s{sMASK}, v{R(2)}
            v_and_b32 v{HZS}, s{sMASK}, v{R(3)}
            v_and_b32 v{HZS+1}, s{sMASK}, v{R(0)}
            v_lshlrev_b32 v{LXY}, 16, v{R(1)}
            v_lshlrev_b32 v{LXY+1}, 16, v{R(2)}
            v_lshlrev_b32 v{LZS}, 16, v{R(3)}
            v_lshlrev_b32 v{LZS+1}, 16, v{R(0)}
            v_mov_b64 {vr(BZ,2)}, 0
            """)

    Lrank = a.label("K2_RANK"); Lx = a.label("K2_X")
    stamp()
    t16, l16 = pT + 5, pT + 6
    sTOK = 27
    INV = 0x10000
    a(f"""
    s_bfe_u32 s{sM}, s2, 0x20001
    s_lshr_b32 s{sRG}, s2, 3
    s_lshl_b32 s{sRG}, s{sRG}, 1
    s_and_b32 s{sT}, s2, 1
    s_or_b32 s{sRG}, s{sRG}, s{sT}
    s_and_b32 s{sL}, s{sW}, 3
    s_mov_b32 s{sFIRST}, 1
    """)
    srd(sDBG, 22, None, 0, 256)
    srd(sMISC, 24, None, WS_LUT, MISC_BYTES)
    a(f"s_mul_i32 s{sT}, s{sRG}, {LIST_STRIDE}")
    srd(sLIST, 24, sT, WS_LIST, LIST_STRIDE)
    srd(sSV, 4, None, 0, 0 if opt.get("nores") else N * 2048)
    def spin(body, sleep):
        L0 = a.label("K2_SPIN"); L1 = a.label("K2_SPINOK")
        a(f"s_mov_b32 s{sSPIN}, {SPIN_MAX}\n{L0}:")
        body()
        a(f"""
        s_cbranch_scc1 {L1}
        s_sub_u32 s{sSPIN}, s{sSPIN}, 1
        s_cbranch_scc1 {L1}
        s_sleep {sleep}
        s_branch {L0}
{L1}:
        """)
    def arrive():
        a(f"""
        s_mul_i32 s{sT}, s2, {ARRS}
        s_add_u32 s{sT}, s{sT}, {M_ARR}
        v_mov_b32 v{pT+1}, 0
        v_mov_b32 v{pT+3}, s{sTOK}
        s_mov_b64 exec, 1
        buffer_store_dword v{pT+3}, v{pT+1}, {sr(sMISC,4)}, s{sT} offen sc1
        s_mov_b64 exec, -1
        """)
    def wait_arrivals(lo, hi, sleep):
        n = (hi - lo + 63) // 64
        a(f"v_and_b32 v{pT+1}, 63, v0")
        for i in range(n):
            a(f"v_add_u32 v{pEK+i}, {lo + 64*i}, v{pT+1}\nv_min_u32 v{pEK+i}, {hi-1}, v{pEK+i}\nv_mul_u32_u24 v{pEK+i}, {ARRS}, v{pEK+i}")
        a(f"s_mov_b32 s{sT}, {M_ARR}")
        def body():
            for i in range(n):
                a(f"buffer_load_dword v{pEK+4+i}, v{pEK+i}, {sr(sMISC,4)}, s{sT} offen sc1")
            a("s_waitcnt vmcnt(0)")
            for i in range(n):
                a(f"v_xor_b32 v{pEK+4+i}, s{sTOK}, v{pEK+4+i}")
                if i: a(f"v_or_b32 v{pEK+4}, v{pEK+4}, v{pEK+4+i}")
            a(f"v_cmp_ne_u32 vcc, 0, v{pEK+4}\ns_nop 0\ns_cmp_eq_u64 vcc, 0")
        spin(body, sleep)
    def consts():
        a(f"""
        v_and_b32 v{pT+1}, 63, v0
        v_lshlrev_b32 v{l16}, 4, v{pT+1}
        v_bfe_u32 v{pT+2}, v0, 5, 3
        v_bfe_u32 v{pT+3}, v0, 3, 2
        v_and_b32 v{vPD}, 7, v0
        v_lshlrev_b32 v{vPD}, 4, v{vPD}
        v_lshl_add_u32 v{vPD}, v{pT+3}, 9, v{vPD}
        v_lshl_add_u32 v{vPD}, v{pT+2}, 17, v{vPD}
        s_lshl_b32 s{sPS}, s{sRG}, 11
        s_lshl_b32 s{sT+5}, s{sM}, 7
        s_add_u32 s{sPS}, s{sPS}, s{sT+5}
        s_lshl_b32 s{sPM}, s{sL}, 10
        s_movk_i32 s{sROWB}, {ROWB}
        s_mov_b32 s{sMASK}, 0xffff0000
        s_mov_b32 s{sCB}, 0
        v_mov_b32 v{vPEND}, 0xff
        v_and_b32 v{vC1}, 7, v0
        v_bfe_u32 v{vC2}, v0, 3, 1
        v_lshlrev_b32 v{vC1}, 5, v{vC1}
        v_lshl_add_u32 v{vC1}, v{vC2}, 4, v{vC1}
        v_and_b32 v{vC2}, 15, v0
        v_lshlrev_b32 v{vC2}, 2, v{vC2}
        v_add_u32 v{vCO}, s{sPS}, v{vC2}
        v_bfe_u32 v{vG4}, v0, 4, 2
        v_lshlrev_b32 v{vG4}, 2, v{vG4}
        v_add_u32 v{vG4}, {L_SORT}, v{vG4}
        v_bfe_u32 v{pT+1}, v0, 5, 1
        v_and_b32 v{pT+2}, 1, v0
        v_cmp_eq_u32 vcc, v{pT+1}, v{pT+2}
        v_and_b32 v{pT+3}, 16, v0
        v_mov_b32 v{pT+4}, 32
        v_cndmask_b32 v{vML}, 0, v{pT+4}, vcc
        s_mul_i32 s{sT+5}, s{sM}, {TAB_SL}
        v_cndmask_b32 v{vCL}, 0, v{pT+3}, vcc
        v_add_u32 v{vCL}, {L_LUT}, v{vCL}
        """)
        srd(sTB, 24, sT + 5, WS_TAB, 0 if opt.get("notab") else TAB_SL)
        srd(sOUT, 20, None, 0, 0 if opt.get("nost") else N * 2048)
    def bop_loads():
        a(f"s_mul_i32 s{sT+6}, s{sM}, 6144\ns_add_u32 s{sT+6}, s{sT+6}, {M_BOP}\ns_add_u32 s{sT+7}, s{sT+6}, 3072")
        for o in range(6):
            a(f"buffer_load_dwordx4 {vr(vB+4*o,4)}, v{l16}, {sr(sMISC,4)}, s{sT+6+o//3} offen offset:{1024*(o%3)} {opt.get('bopfl', 'sc1')}")
    def rec_loads():
        a(f"v_add_u32 v{t16}, s{sCB}, v0\nv_subrev_u32 v{t16}, 256, v{t16}\nv_lshlrev_b32 v{t16}, 4, v{t16}")
        for k in range(8):
            a(f"s_movk_i32 s{sT+2}, {k*4096}")
            a(f"buffer_load_dwordx4 {vr(pREC+4*k,4)}, v{t16}, {sr(sLIST,4)}, s{sT+2} offen sc1")
    z = pT + 8
    def null_fill():
        a(f"""
        v_mov_b32 v{z}, 0
        v_mov_b32 v{z+1}, 0
        v_mov_b32 v{z+2}, 0
        v_mov_b32 v{z+3}, 0xffff
        v_lshlrev_b32 v{pT+4}, 4, v0
        v_add_u32 v{pT+4}, {L_STREAM - 4096}, v{pT+4}
        """)
        nfull = STREAM_BYTES // 4096
        rem = (STREAM_BYTES - nfull * 4096) // 16
        for i in range(nfull):
            a(f"ds_write_b128 v{pT+4}, {vr(z,4)} offset:{i*4096}")
        a(f"""
        v_cmp_gt_u32 vcc, {256 + rem}, v0
        s_and_b64 exec, exec, vcc
        ds_write_b128 v{pT+4}, {vr(z,4)} offset:{nfull*4096}
        s_mov_b64 exec, -1
        v_lshlrev_b32 v{pT+4}, 3, v0
        v_add_u32 v{pT+4}, {L_LUT - 2048}, v{pT+4}
        v_cmp_gt_u32 vcc, 260, v0
        s_and_b64 exec, exec, vcc
        ds_write_b64 v{pT+4}, {vr(z,2)}
        s_mov_b64 exec, -1
        """)
    Lsd = a.label("K2_SIDE"); Lsz = a.label("K2_SZ"); LA = a.label("K2_A"); Lok = a.label("K2_GOK"); Lnag = a.label("K2_NOAGG"); Ls2 = a.label("K2_S2")
    def get_token():
        Ltk = a.label("K2_TOK")
        token_decode(a, VTOK, sTOK, sT)
        a(f"s_cbranch_scc1 {Ltk}")
        def body():
            sync_loads(a, sDBG, sMISC, sT, pT + 1, gran=False)
            a("s_waitcnt vmcnt(0)")
            token_decode(a, VTOK, sTOK, sT)
        spin(body, 8)
        a(f"{Ltk}:")
    def check():
        a(f"""
        v_readfirstlane_b32 s{sT}, v{VTOK+3}
        v_readfirstlane_b32 s{sTOT}, v{VTOK+2}
        s_nop 1
        s_cmp_eq_u32 s{sT}, s{sTOK}
        """)
    def wait_granule(sleep):
        def body():
            sync_loads(a, sDBG, sMISC, sT, pT + 1, tok=False)
            a("s_waitcnt vmcnt(0)")
            check()
        spin(body, sleep)
    a(f"""
    s_cmp_ge_u32 s2, {WG_GEMM0}
    s_cbranch_scc1 {Lsd}
    s_cmp_lt_u32 s{sW}, 4
    s_cbranch_scc1 {Lsz}
    """)
    zero_counters(a, pT + 1, pT + 2)
    a(f"""
{Lsz}:
    v_mov_b32 v{pT+7}, {L_PASS}
    s_waitcnt vmcnt(0) lgkmcnt(0)
    s_barrier
    s_cmp_lg_u32 s{sW}, {WSY}
    s_cbranch_scc1 {Ls2}
    """)
    get_token()
    arrive()
    a(f"s_cmp_lg_u32 s2, {WG_AGG}\ns_cbranch_scc1 {Lnag}")
    wait_arrivals(0, WG_AGG, opt.get("sl0", 4))
    a(f"""
    v_lshlrev_b32 v{pT+1}, 2, v{pT+1}
    buffer_load_dword v{pT+2}, v{pT+1}, {sr(sDBG,4)}, 0 offen sc1
    v_lshlrev_b32 v{pT+1}, 1, v{pT+1}
    v_mov_b32 v{pT+3}, s{sTOK}
    s_mov_b32 s{sT}, {M_TOT}
    s_waitcnt vmcnt(0)
    buffer_store_dwordx2 {vr(pT+2,2)}, v{pT+1}, {sr(sMISC,4)}, s{sT} offen sc1
{Lnag}:
    """)
    wait_granule(opt.get("sl1", 16))
    a(f"""
    s_mov_b64 exec, 1
    ds_write_b128 v{pT+7}, {vr(VTOK,4)} offset:16
    s_mov_b64 exec, -1
    s_waitcnt lgkmcnt(0)
{Ls2}:
    s_barrier
    ds_read_b128 {vr(VTOK,4)}, v{pT+7} offset:16
    s_waitcnt lgkmcnt(0)
{Lsd}:
    s_cmp_lt_u32 s{sW}, 4
    s_cbranch_scc1 {LA}
    s_waitcnt vmcnt({opt.get("tokw", 5)})
    """)
    get_token()
    check()
    a(f"s_cbranch_scc1 {Lok}")
    wait_granule(8)
    pkb = opt.get("pkb", [2, 2, 3, 3, 2, 0])
    pka = opt.get("pka", [1, 1, 0, 0, 6])
    assert sum(pkb) == 12 and sum(pka) == 8
    a(f"""
{Lok}:
    s_and_b32 s{sTOT}, s{sTOT}, 0x3ffff
    s_min_u32 s{sTOT}, s{sTOT}, {E}
    s_lshl_b32 s{sLIST+2}, s{sTOT}, 4
    s_mov_b32 s{sCB}, 0
    """)
    rec_loads()
    consts()
    a(f"""
    v_mov_b32 v{pT+1}, {L_PASS}
    v_mov_b32 v{pT+2}, s{sTOT}
    v_mov_b32 v{pT+3}, s{sTOK}
    ds_write_b64 v{pT+1}, {vr(pT+2,2)}
    s_lshl_b32 s{sT+5}, s{sL}, 12
    v_add_u32 v{pT+7}, s{sT+5}, v{l16}
    v_add_u32 v{pT+7}, {L_LUT + NRS*32}, v{pT+7}
    s_add_u32 s{sT+5}, s{sT+5}, {LUT_THR*32}
    """)
    for i in range(4):
        a(f"buffer_load_dwordx4 {vr(pLT+4*i,4)}, v{l16}, {sr(sMISC,4)}, s{sT+5} offen offset:{1024*i} sc1")
    null_fill()
    a(f"s_waitcnt vmcnt(12) lgkmcnt(0)\ns_barrier")
    park_issue(1, pkb[0])
    a(f"s_waitcnt vmcnt({pkb[0]})")
    for i in range(4):
        a(f"ds_write_b128 v{pT+7}, {vr(pLT+4*i,4)} offset:{1024*i}")
    bop_loads()
    one = pT + 4; vAL = pT + 10
    a(f"""
{Lrank}:
    s_waitcnt lgkmcnt(0)
    v_mov_b32 v{one}, 1
    v_mov_b32 v{vAL}, {L_ALLOC}
    s_sub_u32 s{sT+2}, s{sTOT}, s{sCB}
    s_add_u32 s{sT+2}, s{sT+2}, 256
    """)
    for k in range(8):
        r0 = pREC + 4 * k
        Lskip = a.label("K2_NORARE")
        a(f"""
        v_add_u32 v{pT+5}, {k*256}, v0
        v_and_b32 v{pT+6}, {1<<k}, v{vPEND}
        v_cmp_gt_u32 vcc, s{sT+2}, v{pT+5}
        v_cmp_ne_u32 s[{sT}:{sT+1}], 0, v{pT+6}
        v_and_b32 v{pDL+k}, 0xffff, v{r0}
        v_lshlrev_b32 v{pDL+k}, 2, v{pDL+k}
        v_add_u32 v{pDL+k}, {L_CNT}, v{pDL+k}
        v_mov_b32 v{pRANK+k}, {INV}
        v_mov_b32 v{pRS+k}, 0
        s_and_b64 s[{sT}:{sT+1}], vcc, s[{sT}:{sT+1}]
        v_cmp_gt_i32 vcc, 0, v{r0+3}
        v_and_b32 v{r0}, s{sMASK}, v{r0}
        {f"v_and_b32 v{r0+3}, {0xffff0000 | opt['srcmask']}, v{r0+3}" if opt.get("srcmask") else ""}
        s_and_b64 exec, vcc, s[{sT}:{sT+1}]
        s_cbranch_execz {Lskip}
        ds_add_rtn_u32 v{pT+8}, v{vAL}, v{one} offset:8
        v_bfe_u32 v{pT+7}, v{r0+3}, 16, 15
        v_lshlrev_b32 v{pT+7}, 5, v{pT+7}
        buffer_load_dwordx4 {vr(pRARE+8*k,4)}, v{pT+7}, {sr(sMISC,4)}, 0 offen sc1
        buffer_load_dwordx4 {vr(pRARE+8*k+4,4)}, v{pT+7}, {sr(sMISC,4)}, 0 offen offset:16 sc1
        v_and_b32 v{r0+3}, 0xffff, v{r0+3}
        v_mov_b32 v{pRANK+k}, {INV-1}
        s_waitcnt lgkmcnt(0)
        v_add_u32 v{pT+8}, 1, v{pT+8}
        v_cmp_le_u32 vcc, {NRS}, v{pT+8}
        v_lshl_or_b32 v{r0+3}, v{pT+8}, 16, v{r0+3}
        v_lshlrev_b32 v{pT+8}, 5, v{pT+8}
        s_andn2_b64 s[{sT}:{sT+1}], s[{sT}:{sT+1}], vcc
        s_andn2_b64 exec, exec, vcc
        v_add_u32 v{pRS+k}, {L_LUT}, v{pT+8}
{Lskip}:
        s_mov_b64 exec, s[{sT}:{sT+1}]
        ds_add_rtn_u32 v{pRANK+k}, v{pDL+k}, v{one}
        s_mov_b64 exec, -1
        """)
    Lnp1 = a.label("K2_NP1")
    a(f"s_cmp_eq_u32 s{sFIRST}, 0\ns_cbranch_scc1 {Lnp1}")
    park_issue(1, pkb[1])
    a(f"""
{Lnp1}:
    s_waitcnt lgkmcnt(0)
    s_barrier
    s_branch {Lx}
    """)
    Lna = a.label("K2_NOARR")
    a(f"{LA}:")
    consts()
    a(f"""
    v_mov_b32 v{pT+7}, {L_PASS}
    s_waitcnt vmcnt(0)
    s_barrier
    ds_read_b64 {vr(pT+2,2)}, v{pT+7}
    s_waitcnt lgkmcnt(0)
    v_readfirstlane_b32 s{sTOT}, v{pT+2}
    v_readfirstlane_b32 s{sTOK}, v{pT+3}
    s_cmp_lg_u32 s{sW}, 0
    s_cbranch_scc1 {Lna}
    s_cmp_lt_u32 s2, {WG_GEMM0}
    s_cbranch_scc1 {Lna}
    """)
    arrive()
    a(f"{Lna}:")
    bop_loads()
    park_issue(0, pka[4])
    a(f"""
    s_barrier
{Lx}:
    v_mov_b32 v{one}, 1
    v_mov_b32 v{vAL}, {L_ALLOC}
    """)
    stamp()
    L7 = a.label("K2_P7"); L8 = a.label("K2_P8")
    deg, rk, hh, bn = pT + 5, pT + 6, pT + 7, pT + 11
    a(f"""
    s_cmp_ge_u32 s{sW}, 5
    s_cbranch_scc1 {L7}
    v_lshlrev_b32 v{pT+8}, 2, v0
    v_add_u32 v{pT+8}, {L_CNT}, v{pT+8}
    ds_read_b32 v{deg}, v{pT+8}
    v_cmp_le_u32 vcc, {NKEY}, v0
    v_mov_b32 v{bn}, 31
    v_mov_b32 v{pT+9}, 63
    v_cndmask_b32 v{bn}, v{bn}, v{pT+9}, vcc
    s_waitcnt lgkmcnt(0)
    v_min_u32 v{deg}, {CAPN}, v{deg}
    v_sub_u32 v{bn}, v{bn}, v{deg}
    v_lshlrev_b32 v{bn}, 2, v{bn}
    v_add_u32 v{pT+8}, {L_HIST}, v{bn}
    ds_add_rtn_u32 v{rk}, v{pT+8}, v{one}
    s_waitcnt lgkmcnt(0)
{L7}:
    """)
    park_dma(pka[0], pkb[2])
    a(f"""
    s_barrier
    s_cmp_ge_u32 s{sW}, 5
    s_cbranch_scc1 {L8}
    v_and_b32 v{pT+8}, 63, v0
    v_lshlrev_b32 v{pT+8}, 2, v{pT+8}
    v_add_u32 v{pT+8}, {L_HIST}, v{pT+8}
    ds_read_b32 v{hh}, v{pT+8}
    v_subrev_u32 v{pT+8}, {NKEY}, v0
    v_min_u32 v{pT+8}, v{pT+8}, v0
    v_lshl_or_b32 v{deg}, v{deg}, 16, v{pT+8}
    s_waitcnt lgkmcnt(0)
    v_mov_b32 v{pT+9}, v{hh}
    """)
    dpp_scan(a, "v_add_u32", hh)
    a(f"""
    v_sub_u32 v{hh}, v{hh}, v{pT+9}
    ds_bpermute_b32 v{pT+9}, v{bn}, v{hh}
    s_waitcnt lgkmcnt(0)
    v_add_lshl_u32 v{pT+9}, v{pT+9}, v{rk}, 2
    v_add_u32 v{pT+9}, {L_SORT}, v{pT+9}
    ds_write_b32 v{pT+9}, v{deg}
    s_waitcnt lgkmcnt(0)
{L8}:
    """)
    park_dma(pka[1], pkb[3])
    assert L_SORT % 128 == 0 or True
    ek = pEK
    a(f"""
    s_barrier
    s_lshl_b32 s{sQ}, s{sW}, 4
    s_xor_b32 s{sT+1}, s{sQ}, 112
    v_add_u32 v{pT+6}, s{sQ}, v{vG4}
    v_add_u32 v{pT+7}, s{sT+1}, v{vG4}
    """)
    for k in range(10):
        a(f"ds_read_b32 v{ek+k}, v{pT+6+DIRS[k]} offset:{128*k}")
    a("s_waitcnt lgkmcnt(0)")
    for k in range(10):
        a(f"v_readfirstlane_b32 s{sN0+k}, v{ek+k}")
    a(f"v_mov_b32 v{vEN}, v{ek}\ns_mov_b32 s{sDIR}, {sum(d << k for k, d in enumerate(DIRS))}")
    a(f"s_mov_b64 {sr(sPC,2)}, 0\ns_mov_b32 s{sREM}, 0")
    for k in range(10):
        a(f"s_lshr_b32 s{sT}, s{sN0+k}, 16")
        a(f"s_mov_b32 s{sN0+k}, s{sREM}\ns_add_u32 s{sREM}, s{sREM}, s{sT}")
        a(f"s_lshl_b32 s{sT}, s{sT}, {5*(k%5)}\ns_or_b32 s{sPC+k//5}, s{sPC+k//5}, s{sT}")
    a(f"""
    s_add_u32 s{sREM}, s{sREM}, 1
    s_lshr_b32 s{sREM}, s{sREM}, 1
    v_mov_b32 v{pT+8}, s{sREM}
    s_mov_b64 exec, 1
    ds_add_rtn_u32 v{pT+9}, v{vAL}, v{pT+8}
    s_mov_b64 exec, -1
    """)
    for k in range(10):
        a(f"v_and_b32 v{ek+k}, 0xff, v{ek+k}")
        a(f"v_lshlrev_b32 v{ek+k}, 2, v{ek+k}")
        a(f"v_add_u32 v{ek+k}, {L_NADDR + (NKEY*4 if k >= 5 else 0)}, v{ek+k}")
    a(f"""
    v_bfe_u32 v{pT+5}, v0, 4, 2
    v_bfe_u32 v{pT+6}, v0, 1, 1
    v_bfe_u32 v{pT+7}, v0, 2, 2
    v_lshlrev_b32 v{pT+6}, 6, v{pT+6}
    v_lshl_add_u32 v{pT+6}, v{pT+7}, 4, v{pT+6}
    s_waitcnt lgkmcnt(0)
    v_readfirstlane_b32 s{sT}, v{pT+9}
    s_nop 1
    s_lshl_b32 s{sT}, s{sT}, 7
    s_add_u32 s{sT}, s{sT}, {L_STREAM}
    v_lshl_add_u32 v{vS}, v{pT+5}, 4, s{sT}
    v_add_u32 v{vA}, s{sT}, v{pT+6}
    """)
    for k in range(10):
        a(f"v_lshl_add_u32 v{pT+7+(k&1)}, s{sN0+k}, 6, v{vS}")
        a(f"ds_write_b32 v{ek+k}, v{pT+7+(k&1)}")
    park_dma(pka[2], pkb[4])
    a("s_waitcnt lgkmcnt(0)\ns_barrier")
    LsA = a.label("K2_SCA"); Lse = a.label("K2_SCE")
    a(f"s_cmp_lt_u32 s{sW}, 4\ns_cbranch_scc1 {LsA}")
    for k in range(8):
        a(f"ds_read_b32 v{pNA+k}, v{pDL+k} offset:{L_NADDR - L_CNT}")
    a(f"v_mov_b32 v{vPEND}, 0\ns_mov_b32 s{sT+2}, {INV}")
    for k in range(8):
        r0 = pREC + 4 * k
        Lnpd = a.label("K2_NOPEND")
        a(f"""
        v_cmp_gt_u32 vcc, {CAPN}, v{pRANK+k}
        v_cmp_gt_u32 s[{sT}:{sT+1}], s{sT+2}, v{pRANK+k}
        {"s_waitcnt lgkmcnt(0)" if k == 0 else ""}
        v_lshl_add_u32 v{pNA+k}, v{pRANK+k}, 6, v{pNA+k}
        s_mov_b64 exec, vcc
        ds_write_b128 v{pNA+k}, {vr(r0,4)}
        s_andn2_b64 exec, s[{sT}:{sT+1}], vcc
        s_cbranch_execz {Lnpd}
        v_or_b32 v{vPEND}, {1<<k}, v{vPEND}
        ds_write_b32 v{vAL}, v{one} offset:4
{Lnpd}:
        s_mov_b64 exec, -1
        """)
    for k in range(8):
        Lskip = a.label("K2_NORARE2")
        a(f"""
        v_cmp_ne_u32 vcc, 0, v{pRS+k}
        s_and_b64 exec, exec, vcc
        s_cbranch_execz {Lskip}
        s_waitcnt vmcnt(0) lgkmcnt(0)
        ds_write_b128 v{pRS+k}, {vr(pRARE+8*k,4)}
        ds_write_b128 v{pRS+k}, {vr(pRARE+8*k+4,4)} offset:16
{Lskip}:
        s_mov_b64 exec, -1
        """)
    Lnag2 = a.label("K2_NOAGG2")
    a(f"""
    s_branch {Lse}
{LsA}:
    s_cmp_eq_u32 s{sFIRST}, 0
    s_cbranch_scc1 {Lse}
    s_cmp_lg_u32 s{sW}, 3
    s_cbranch_scc1 {Lse}
    s_cmp_lg_u32 s2, {WG_AGG}
    s_cbranch_scc1 {Lnag2}
    """)
    wait_arrivals(WG_GEMM0, 256, opt.get("sl3", 1))
    a(f"""
    s_mov_b32 s{sT}, {M_GO}
    v_mov_b32 v{pT+1}, 0
    v_mov_b32 v{pT+3}, s{sTOK}
    s_mov_b64 exec, 1
    buffer_store_dword v{pT+3}, v{pT+1}, {sr(sMISC,4)}, s{sT} offen sc1
    s_mov_b64 exec, -1
{Lnag2}:
    """)
    pre = opt.get("prepoll", 1)
    if pre: park_issue(0, pka[3]); plist[0] = [(7, 0), (7, 1)][-pka[3]:] if pka[3] else []
    a(f"""
    s_mov_b32 s{sT}, {M_GO}
    v_mov_b32 v{pT+1}, 0
    s_mov_b64 exec, 1
    """)
    def body():
        a(f"""
        buffer_load_dword v{pT+2}, v{pT+1}, {sr(sMISC,4)}, s{sT} offen sc1
        s_waitcnt vmcnt(0)
        v_readfirstlane_b32 s{sT+1}, v{pT+2}
        s_nop 1
        s_cmp_eq_u32 s{sT+1}, s{sTOK}
        """)
    spin(body, opt.get("sl2", 2))
    Lsf = a.label("K2_SCF")
    a(f"""
    s_mov_b64 exec, -1
    {"buffer_inv sc1" if opt.get("inv", 0) else ""}
    s_waitcnt vmcnt(0)
    {f"s_branch {Lsf}" if pre else ""}
{Lse}:
    """)
    park_dma(pka[3], pkb[5])
    a(f"{Lsf}:\ns_waitcnt lgkmcnt(0)\ns_barrier")
    stamp()
    a(f"ds_read_b32 v{vT}, v{vAL} offset:4")
    for b in range(DP):
        a(f"ds_read2_b32 {vr(vD+2*b,2)}, v{vS} offset0:{32*b+3} offset1:{32*b+19}")
    a(f"ds_read_u16 v{vLI}, v{vA} offset:14")
    a("s_waitcnt lgkmcnt(0)")
    a(f"v_readfirstlane_b32 s{sMORE}, v{vT}")
    for b in range(DP):
        issue(b, vD + 2 * b)
    a(f"""
    s_add_u32 s{sT}, s{sCB}, {CHUNK}
    s_cmp_lt_u32 s{sT}, s{sTOT}
    s_cselect_b32 s{sT}, 2, 0
    s_or_b32 s{sMORE}, s{sMORE}, s{sT}
    s_mov_b32 s{sSLOT}, 10
    v_mad_u32_u16 v{vAD}, v{vLI}, v{vML}, v{vCL}
    s_waitcnt vmcnt({8*DP})
    s_barrier
    ds_read_b128 {vr(vAOP,4)}, v{vAD}
    ds_read2_b32 {vr(vPK,2)}, v{vS} offset0:{32*DP+3} offset1:{32*DP+19}
    ds_read_u16 v{vLI}, v{vA} offset:{128+14}
    ds_read_b128 {vr(vRH,4)}, v{vS}
    ds_read_b128 {vr(vRH+4,4)}, v{vS} offset:64
    """)
    if stamps:
        stamp(); a("s_waitcnt lgkmcnt(0)")
    sRET = 6
    Lph = [a.label(f"K2_PH{p}") for p in range(NRG)]
    Lsk = [a.label(f"K2_SK{p}") for p in range(NRG)]
    Lbk = [a.label(f"K2_BK{p}") for p in range(NRG)]
    Ltr = [[a.label(f"K2_TR{p}{st}") for st in range(2)] for p in range(NRG)]
    Lrt = [[a.label(f"K2_RT{p}{st}") for st in range(2)] for p in range(NRG)]
    Ldone = a.label("K2_DONE"); Lepi = a.label("K2_EPI"); Lset = a.label("K2_SET")
    Lret = a.label("K2_RET")
    a(f"s_call_b64 {sr(sRET,2)}, {Lset}\ns_cbranch_scc1 {Ldone}")
    for p in range(NRG):
        a(f"{Lph[p]}:")
        a(f"s_waitcnt vmcnt({8*(DP-1)}) lgkmcnt(2)")
        sh = []
        for st in range(2):
            for hf in range(2):
                rg = ring(p, st, hf); e = vX + 4 * (2 * st + hf)
                sh += [f"v_lshlrev_b64 {vr(e,2)}, 16, {vr(rg,2)}", f"v_lshlrev_b64 {vr(e+2,2)}, 16, {vr(rg+2,2)}", f"v_lshlrev_b32 v{rg+4}, 16, v{rg+5}"]
        for o in range(6):
            if not opt.get("nomfma"):
                a(f"v_mfma_f32_16x16x32_bf16 {vr(vD+4*o,4)}, {vr(vAOP,4)}, {vr(vB+4*o,4)}, 0")
            if not opt.get("novalu"):
                a(sh[2 * o]); a(sh[2 * o + 1])
        a(f"s_sub_u32 s{sREM}, s{sREM}, 1\ns_cmp_lt_u32 s{sREM}, {DP}\ns_cbranch_scc1 {Lsk[p]}")
        issue((p + DP) % NRG, vPK)
        a(f"{Lbk[p]}:")
        assert (p + DP + 1) * 32 + 19 < 256
        a(f"""
        v_mad_u32_u16 v{vT}, v{vLI}, v{vML}, v{vCL}
        ds_read_b128 {vr(vAOP,4)}, v{vT}
        ds_read2_b32 {vr(vPK,2)}, v{vS} offset0:{(p+DP+1)*32+3} offset1:{(p+DP+1)*32+19}
        ds_read_u16 v{vLI}, v{vA} offset:{(p+2)*128+14}
        s_waitcnt lgkmcnt(3)
        """)
        for st in range(2):
            L = []
            for hf in range(2):
                HXY, HZS, LXY, LZS, BZ = ACC(hf)
                rg = ring(p, st, hf); rh = vRH + 4 * st; e = vX + 4 * (2 * st + hf); t = vT + 2 * hf
                d1, d2, d3 = vD + 12 * hf + 2 * st, vD + 12 * hf + 4 + 2 * st, vD + 12 * hf + 8 + 2 * st
                L.append(f"""v_pk_fma_f32 {vr(HXY,2)}, {vr(d1,2)}, {vr(rg,2)}, {vr(HXY,2)} op_sel_hi:[0,1,1]
                v_pk_mul_f32 {vr(t,2)}, {vr(d3,2)}, {vr(rg+4,2)}
                v_pk_fma_f32 {vr(HZS,2)}, {vr(d1,2)}, {vr(rg+2,2)}, {vr(HZS,2)}
                v_pk_fma_f32 {vr(LXY,2)}, {vr(d2,2)}, {vr(e,2)}, {vr(LXY,2)} op_sel_hi:[0,1,1]
                v_pk_fma_f32 {vr(LZS,2)}, {vr(d2,2)}, {vr(e+2,2)}, {vr(LZS,2)}
                v_pk_fma_f32 {vr(BZ,2)}, {vr(t,2)}, {vr(rh+2,2)}, {vr(BZ,2)} op_sel_hi:[1,0,1]
                v_pk_fma_f32 {vr(HXY,2)}, {vr(t,2)}, {vr(rh,2)}, {vr(HXY,2)} op_sel:[1,0,0]
                v_pk_fma_f32 {vr(LXY,2)}, {vr(t,2)}, {vr(rh,2)}, {vr(LXY,2)} op_sel_hi:[0,1,1]""".split("\n"))
            if not opt.get("novalu"):
                for l0, l1 in zip(*L):
                    a(l0); a(l1)
            a(f"ds_read_b128 {vr(vRH+4*st,4)}, v{vS} offset:{(p+1)*128+64*st}")
            if st == 1 and p == NRG - 1:
                a(f"v_add_u32 v{vS}, {128*NRG}, v{vS}\nv_add_u32 v{vA}, {128*NRG}, v{vA}")
            a(f"s_sub_u32 s{sCNT}, s{sCNT}, 1")
            if st == 1 and p == NRG - 1:
                a(f"s_cbranch_scc0 {Lph[0]}\ns_call_b64 {sr(sRET,2)}, {Lepi}\ns_cbranch_scc0 {Lph[0]}\ns_branch {Ldone}")
            else:
                a(f"s_cbranch_scc1 {Ltr[p][st]}\n{Lrt[p][st]}:")
    for p in range(NRG):
        for st in range(2):
            if st == 1 and p == NRG - 1: continue
            a(f"{Ltr[p][st]}:\ns_call_b64 {sr(sRET,2)}, {Lepi}\ns_cbranch_scc0 {Lrt[p][st]}\ns_branch {Ldone}")
    for p in range(NRG):
        a(f"{Lsk[p]}:\ns_waitcnt vmcnt(0)\ns_branch {Lbk[p]}")
    a(f"{Lepi}:")
    Lpw = a.label("K2_PW"); Lnx = a.label("K2_NX"); Lnb = a.label("K2_NB")
    for hf in range(2):
        HXY, HZS, LXY, LZS, BZ = ACC(hf)
        R = lambda c: vE + 2 * c + hf
        a(f"""
        v_add_f32 v{LZS}, v{LZS}, v{BZ}
        v_add_f32 v{HZS}, v{HZS}, v{BZ+1}
        v_cvt_pk_bf16_f32 v{R(0)}, v{LZS+1}, v{HZS+1}
        v_cvt_pk_bf16_f32 v{R(1)}, v{LXY}, v{HXY}
        v_cvt_pk_bf16_f32 v{R(2)}, v{LXY+1}, v{HXY+1}
        v_cvt_pk_bf16_f32 v{R(3)}, v{LZS}, v{HZS}
        """)
    a(f"""
    s_cmp_gt_u32 s{sSLOT}, 5
    s_cbranch_scc1 {Lpw}
    s_cmp_lg_u32 s{sMORE}, 0
    s_cbranch_scc1 {Lpw}
    """)
    for c in range(4):
        for hf in range(2):
            a(f"buffer_store_dword v{vE+2*c+hf}, v{vO}, {sr(sOUT,4)}, 0 offen offset:{512*c+64*hf} {st_fl}")
    a(f"s_branch {Lnx}\n{Lpw}:")
    for c in range(4):
        a(f"ds_write2_b32 v{vPA}, v{vE+2*c}, v{vE+2*c+1} offset0:{32*c} offset1:{32*c+16}")
    a(f"""
{Lnx}:
    s_sub_u32 s{sSLOT}, s{sSLOT}, 1
    s_cmp_eq_u32 s{sSLOT}, 0
    s_cbranch_scc1 {Lret}
    s_lshr_b32 s{sPC}, s{sPC}, 5
    s_waitcnt lgkmcnt(0)
    s_cmp_lg_u32 s{sSLOT}, 5
    s_cbranch_scc1 {Lset}
    s_mov_b32 s{sPC}, s{sPC+1}
    {"" if opt.get("nophb") else "s_barrier"}
{Lset}:
    """)
    if opt.get("prio", 2) == 1:
        Lp0 = a.label("K2_P0")
        a(f"s_lshr_b32 s{sT}, s{sW}, 2\ns_xor_b32 s{sT}, s{sT}, s{sSLOT}\ns_setprio 0\ns_bitcmp1_b32 s{sT}, 0\ns_cbranch_scc0 {Lp0}\ns_setprio 1\n{Lp0}:")
    if opt.get("prio", 2) == 2:
        Lp0 = a.label("K2_P0")
        a(f"s_mul_i32 s{sT}, s{sSLOT}, 2\ns_lshr_b32 s{sT}, {sum(v << (2*k) for k, v in enumerate([0,0,1,2,3,3,0,1,2,3,3]))}, s{sT}\ns_and_b32 s{sT}, s{sT}, 3")
        a(f"s_setprio 0\ns_cmp_lt_u32 s{sT}, 1\ns_cbranch_scc1 {Lp0}\ns_setprio 1\ns_cmp_lt_u32 s{sT}, 2\ns_cbranch_scc1 {Lp0}\ns_setprio 2\ns_cmp_lt_u32 s{sT}, 3\ns_cbranch_scc1 {Lp0}\ns_setprio 3\n{Lp0}:")
    slot_setup()
    a(f"""
    s_and_b32 s{sCNT}, s{sPC}, 31
    s_cbranch_scc0 {Lepi}
    s_sub_u32 s{sCNT}, s{sCNT}, 1
{Lret}:
    s_setpc_b64 {sr(sRET,2)}
    """)
    Lfin = a.label("K2_FIN"); Lnext = a.label("K2_NEXT"); LrB = a.label("K2_RB")
    a(f"""
{Ldone}:
    s_cmp_eq_u32 s{sMORE}, 0
    s_cbranch_scc1 {Lfin}
    s_bitcmp1_b32 s{sMORE}, 0
    s_cbranch_scc1 {Lnext}
    s_add_u32 s{sCB}, s{sCB}, {CHUNK}
    v_mov_b32 v{vPEND}, 0xff
{Lnext}:
    s_mov_b32 s{sFIRST}, 0
    s_waitcnt vmcnt(0) lgkmcnt(0)
    s_barrier
    s_cmp_ge_u32 s{sW}, 4
    s_cbranch_scc1 {LrB}
    s_barrier
    s_barrier
    s_branch {Lx}
{LrB}:
    """)
    rec_loads()
    null_fill()
    zero_counters(a, pT + 1, pT + 2)
    a(f"""
    s_waitcnt vmcnt(0) lgkmcnt(0)
    s_barrier
    s_branch {Lrank}
{Lfin}:
    """)
    if stamps:
        stamp()
        a("s_waitcnt vmcnt(0)")
        stamp()
        a(f"""
        s_waitcnt lgkmcnt(0)
        s_add_u32 s{sLIST}, s24, {WS_DIAG + (1<<20)}
        s_addc_u32 s{sLIST+1}, s25, 0
        s_mov_b32 s{sLIST+2}, 0x100000
        s_lshl_b32 s{sT}, s2, 3
        s_add_u32 s{sT}, s{sT}, s{sW}
        s_lshl_b32 s{sT}, s{sT}, 7
        v_mov_b32 v1, s{sT}
        s_mov_b64 exec, 1
        """)
        for i in range(nst[0]):
            a(f"v_mov_b32 v2, s{STR[i]}\nv_mov_b32 v3, s{STR[i]+1}")
            a(f"buffer_store_dwordx2 v[2:3], v1, {sr(sLIST,4)}, 0 offen offset:{8*i}")
    a(f"{Lend}:\ns_endpgm")
    return nv, 102
```

```python
from asmlib import *
from layout import *

ROWS = 48
NG = (N + ROWS - 1) // ROWS
WG_EDGE0 = 0
WG_LUT0 = NP
NLUTWG = 5
assert WG_GEMM0 == NP + NLUTWG + 2 and NG == NGEMM
assert WG_GEMM0 + NG == 256
L_RING = 0
L_V = 65536
L_H = L_V + 3 * ROWS * 512
GEMM_LDS = L_H + ROWS * 512
L_POS = 0
L_EH = 81920
L_DLT = L_EH + 512
L_STG = 0
K1_LDS = GEMM_LDS
WG_BOP = WG_LUT0 + NLUTWG
from gen_k2 import dpp_scan, zero_counters, sync_loads, early_try

def rne_bf16(a, dst, src):
    a(f"v_cvt_pk_bf16_f32 v{dst}, v{src}, v{src}")
    a(f"v_and_b32 v{dst}, 0xffff0000, v{dst}")

def lut_row(a, vd, out, t, sF, sC):
    rcp, fc = t, t + 1
    a(f"v_rcp_f32 v{rcp}, v{vd}")
    a(f"v_mul_f32 v{fc}, s{sC}, v{vd}")
    rne_bf16(a, fc, fc)
    a(f"v_mul_f32 v{fc}, s{sC+1}, v{fc}")
    rne_bf16(a, fc, fc)
    a(f"v_mul_f32 v{fc}, s{sC+2}, v{fc}")
    a(f"v_cos_f32 v{fc}, v{fc}")
    a("s_nop 0")
    rne_bf16(a, fc, fc)
    a(f"v_add_f32 v{fc}, 1.0, v{fc}")
    rne_bf16(a, fc, fc)
    a(f"v_mul_f32 v{fc}, 0.5, v{fc}")
    for k in range(0, 16, 2):
        x, y, p = t + 2, t + 3, t + 4
        a(f"""
        v_mul_f32 v{x}, s{sF+k}, v{vd}
        v_mul_f32 v{y}, s{sF+k+1}, v{vd}
        v_cvt_pk_bf16_f32 v{p}, v{x}, v{y}
        v_lshlrev_b32 v{x}, 16, v{p}
        v_and_b32 v{y}, 0xffff0000, v{p}
        v_mul_f32 v{x}, s{sC+2}, v{x}
        v_mul_f32 v{y}, s{sC+2}, v{y}
        v_rndne_f32 v{t+5}, v{x}
        v_rndne_f32 v{t+6}, v{y}
        v_sub_f32 v{x}, v{x}, v{t+5}
        v_sub_f32 v{y}, v{y}, v{t+6}
        v_sin_f32 v{x}, v{x}
        v_sin_f32 v{y}, v{y}
        s_nop 0
        v_cvt_pk_bf16_f32 v{p}, v{x}, v{y}
        v_lshlrev_b32 v{x}, 16, v{p}
        v_and_b32 v{y}, 0xffff0000, v{p}
        v_mul_f32 v{x}, v{x}, v{rcp}
        v_mul_f32 v{y}, v{y}, v{rcp}
        v_cvt_pk_bf16_f32 v{p}, v{x}, v{y}
        v_lshlrev_b32 v{x}, 16, v{p}
        v_and_b32 v{y}, 0xffff0000, v{p}
        v_mul_f32 v{x}, v{x}, v{fc}
        v_mul_f32 v{y}, v{y}, v{fc}
        v_cvt_pk_bf16_f32 v{out+k//2}, v{x}, v{y}
        """)

def srd(a, d, lo, off_sreg, off_imm, size):
    hi = lo + 1
    if off_sreg is None and off_imm == 0:
        a(f"s_mov_b32 s{d}, s{lo}\ns_mov_b32 s{d+1}, s{hi}")
    else:
        if off_sreg is not None:
            if off_imm:
                a(f"s_add_u32 s{off_sreg}, s{off_sreg}, {off_imm}")
            a(f"s_add_u32 s{d}, s{lo}, s{off_sreg}")
        else:
            a(f"s_add_u32 s{d}, s{lo}, {off_imm}")
        a(f"s_addc_u32 s{d+1}, s{hi}, 0")
    a(f"s_mov_b32 s{d+2}, {size}\ns_mov_b32 s{d+3}, 0x20000")

def gen_k1(a0, name, opt, phase2):
    class Sw:
        cur = a0
        def __call__(self, x): return self.cur(x)
        def label(self, b): return self.cur.label(b)
    a = Sw()
    side = Asm()
    stamps = opt.get("stamps", False)
    tab_fl = opt.get("tab_flags", "sc1")
    sST = 82
    nst = [0]
    def stamp():
        if stamps:
            a(f"s_memrealtime {sr(sST + 2 * nst[0], 2)}")
            nst[0] += 1
            assert nst[0] <= 10
    def dump_stamps(n):
        if not stamps: return
        a(f"""
        s_memrealtime {sr(sST+18,2)}
        s_waitcnt lgkmcnt(0)
        s_add_u32 s40, s24, {WS_DIAG}
        s_addc_u32 s41, s25, 0
        s_mov_b32 s42, 0x100000
        s_mov_b32 s43, 0x20000
        s_lshl_b32 s44, s2, 3
        s_add_u32 s44, s44, s3
        s_lshl_b32 s44, s44, 7
        s_mov_b64 exec, 1
        v_mov_b32 v1, s44
        """)
        for i in list(range(n)) + [9]:
            a(f"v_mov_b32 v2, s{sST+2*i}\nv_mov_b32 v3, s{sST+2*i+1}")
            a(f"buffer_store_dwordx2 v[2:3], v1, s[40:43], 0 offen offset:{8*i}")
        a("s_mov_b64 exec, -1")
    Lp2 = a.label("P2"); Lside = a.label("K1_SIDE"); Larr = a.label("K1_ARRIVE"); Lcend = a.label("CODE_END"); Lpc = a.label("PC")
    kernel_header(a, name)
    Lend = a.label("K1_END"); Lgemm = a.label("K1_GEMM"); Llut = a.label("K1_LUT")
    a(f"""
    s_cmp_ge_u32 s2, 256
    s_cbranch_scc1 {Lend}
    s_load_dwordx16 s[4:19], s[0:1], 0
    s_load_dwordx4 s[20:23], s[0:1], 64
    s_load_dwordx2 s[24:25], s[0:1], 80
    """)
    stamp()
    a(f"""
    v_lshrrev_b32 v1, 6, v0
    s_nop 0
    v_readfirstlane_b32 s3, v1
    """)
    if opt.get("cpf", 1):
        Lnc = a.label("K1_NOCPF")
        a(f"""
        s_lshr_b32 s26, s2, 3
        s_cmp_lg_u32 s26, 5
        s_cbranch_scc1 {Lnc}
        s_getpc_b64 s[28:29]
{Lpc}:
        s_mov_b32 s30, {Lcend}-{Lpc}
        s_mov_b32 s31, 0x20000
        v_lshlrev_b32 v1, 7, v0
        buffer_load_dword v255, v1, s[28:31], 0 offen
{Lnc}:
        """)
    a(f"""
    s_cmp_lt_u32 s2, {WG_GEMM0}
    s_cbranch_scc1 {Lside}
    """)
    a.cur = side
    a(f"""
{Lside}:
    s_cmp_ge_u32 s2, {WG_LUT0}
    s_cbranch_scc1 {Llut}
    """)
    nvmax = 256
    V = Regs("v", 1, 256)
    vSRC = V.alloc("src", 8, 2); vDST = V.alloc("dst", 8, 2)
    vP = V.alloc("p", 48, 2)
    vREC = V.alloc("rec", 32, 2)
    vRK = V.alloc("rk", 8)
    vT = V.alloc("t", 12, 2)
    nvmax = max(nvmax, V.hi)
    sSRC, sDST, sPOS, sDBG, sLIST, sMISC = 28, 32, 36, 40, 44, 48
    sT = 52; sACT = 60
    a("s_waitcnt lgkmcnt(0)")
    srd(a, sSRC, 8, None, 0, E * 4)
    srd(a, sDST, 10, None, 0, E * 4)
    srd(a, sPOS, 6, None, 0, N * 6)
    a(f"""
    s_mul_i32 s{sT}, s2, {EPW*4}
    s_add_u32 s{sT+1}, s{sT}, {EPW*2}
    v_lshlrev_b32 v{vT}, 4, v0
    v_mov_b32 v{vT+1}, 0x7ffffff0
    v_cmp_gt_u32 vcc, {EPW//8}, v0
    s_mov_b64 s[{sT+2}:{sT+3}], vcc
    s_nop 0
    v_cndmask_b32 v{vT+1}, v{vT+1}, v{vT}, vcc
    buffer_load_dwordx4 {vr(vSRC,4)}, v{vT+1}, {sr(sSRC,4)}, s{sT} offen
    buffer_load_dwordx4 {vr(vDST,4)}, v{vT+1}, {sr(sDST,4)}, s{sT} offen
    buffer_load_dwordx4 {vr(vSRC+4,4)}, v{vT+1}, {sr(sSRC,4)}, s{sT+1} offen
    buffer_load_dwordx4 {vr(vDST+4,4)}, v{vT+1}, {sr(sDST,4)}, s{sT+1} offen
    v_mul_u32_u24 v{vT+4}, 12, v0
    """)
    vPL = V.alloc("pl", 40, 2)
    for i in range(10):
        a(f"s_mov_b32 s{sT+5}, {i*6144}")
        a(f"buffer_load_dwordx3 {vr(vPL+4*i,3)}, v{vT+4}, {sr(sPOS,4)}, s{sT+5} offen")
    srd(a, sDBG, 22, None, 0, 256)
    srd(a, sLIST, 24, None, WS_LIST, NR * LIST_STRIDE)
    srd(a, sMISC, 24, None, WS_LUT, MISC_BYTES)
    a(f"""
    v_mov_b32 v{vT+2}, 0
    v_lshlrev_b32 v{vT+3}, 2, v0
    v_add_u32 v{vT+3}, {L_EH}, v{vT+3}
    v_cmp_gt_u32 vcc, 64, v0
    s_and_saveexec_b64 s[{sT+6}:{sT+7}], vcc
    ds_write_b32 v{vT+3}, v{vT+2}
    s_mov_b64 exec, -1
    """)
    vAS_, vAD_ = vREC, vREC + 8
    vKEY = V.alloc("key", 8); vHA = V.alloc("ha", 8); vDD = V.alloc("dd", 8, 2); vQ = V.alloc("q", 8, 2)
    a(f"""
    s_mov_b32 s{sT+4}, 0x322bcc77
    s_mov_b32 s{sT+5}, 0x322bcc77
    s_mov_b32 s{sT+1}, 0xffff0000
    s_mov_b32 s{sT+6}, {(DBASE+LUT_THR)<<16}
    v_mov_b32 v{vT+8}, {((NRS - LUT_THR - DBASE) << 16) & 0xffffffff}
    v_mov_b32 v{vT+9}, {((0x8000 - DBASE) << 16) & 0xffffffff}
    v_mov_b32 v{vT+10}, {NKEY}
    v_mov_b32 v{vT+11}, 1
    s_waitcnt vmcnt(10)
    """)
    for e in range(8):
        a(f"""
        v_cmp_le_u32 vcc, {HALF}, v{vSRC+e}
        v_lshlrev_b32 v{vAS_+e}, 3, v{vSRC+e}
        v_lshlrev_b32 v{vAD_+e}, 3, v{vDST+e}
        v_cndmask_b32 v{vT+4}, 0, v{vT+10}, vcc
        v_lshrrev_b32 v{vKEY+e}, 6, v{vDST+e}
        v_and_b32 v{vDST+e}, {NR-1}, v{vDST+e}
        v_add_u32 v{vKEY+e}, v{vKEY+e}, v{vT+4}
        v_lshlrev_b32 v{vDST+e}, 2, v{vDST+e}
        v_add_u32 v{vHA+e}, {L_EH}, v{vDST+e}
        """)
    a(f"v_add_u32 v{vT+4}, 65536, v{vT}")
    for i in range(10):
        w = vPL + 4 * i
        a(f"""
        s_waitcnt vmcnt({9-i})
        v_and_b32 v{w+3}, s{sT+1}, v{w+2}
        v_alignbit_b32 v{w+2}, v{w+2}, v{w+1}, 16
        v_lshlrev_b32 v{w+1}, 16, v{w+1}
        ds_write_b128 v{vT if i < 8 else vT+4}, {vr(w,4)} offset:{L_POS + (i%8)*8192}
        """)
    a("s_waitcnt lgkmcnt(0)\ns_barrier")
    stamp()
    def pos_read(pr):
        for e in range(2):
            a(f"ds_read_b64 {vr(vPL+8*pr+4*e,2)}, v{vAS_+2*pr+e} offset:{L_POS}")
            a(f"ds_read_b64 {vr(vPL+8*pr+4*e+2,2)}, v{vAD_+2*pr+e} offset:{L_POS}")
    def rnd2(dst, src, t):
        a(f"v_cvt_pk_bf16_f32 v{t}, v{src}, v{src+1}")
        a(f"v_lshlrev_b32 v{dst}, 16, v{t}")
        a(f"v_and_b32 v{dst+1}, s{sT+1}, v{t}")
    for pr in range(3): pos_read(pr)
    for pr in range(4):
        p = vP + 12 * pr; q = p + 6; d = vDD + 2 * pr
        a(f"s_waitcnt lgkmcnt({[8, 8, 4, 0][pr]})")
        if pr == 0: pos_read(3)
        for e in range(2):
            w = vPL + 8 * pr + 4 * e
            a(f"""
            v_lshlrev_b32 v{p+e}, 16, v{w}
            v_lshlrev_b32 v{q+e}, 16, v{w+2}
            v_and_b32 v{p+2+e}, s{sT+1}, v{w}
            v_and_b32 v{q+2+e}, s{sT+1}, v{w+2}
            v_sub_f32 v{p+4+e}, v{w+1}, v{w+3}
            """)
        for c in range(2):
            a(f"v_pk_add_f32 {vr(p+2*c,2)}, {vr(p+2*c,2)}, {vr(q+2*c,2)} neg_lo:[0,1] neg_hi:[0,1]")
        for c in range(3): rnd2(p + 2 * c, p + 2 * c, vT + 4 + c)
        for c in range(3):
            a(f"v_pk_mul_f32 {vr(q+2*c,2)}, {vr(p+2*c,2)}, {vr(p+2*c,2)}")
        for c in range(3): rnd2(q + 2 * c, q + 2 * c, vT + 4 + c)
        a(f"v_pk_add_f32 {vr(q,2)}, {vr(q,2)}, {vr(q+2,2)}")
        a(f"v_pk_add_f32 {vr(q,2)}, {vr(q,2)}, {vr(q+4,2)}")
        rnd2(q, q, vT + 4)
        a(f"v_pk_add_f32 {vr(q,2)}, {vr(q,2)}, s[{sT+4}:{sT+5}]")
        rnd2(q, q, vT + 4)
        a(f"v_sqrt_f32 v{q}, v{q}\nv_sqrt_f32 v{q+1}, v{q+1}\ns_nop 0")
        rnd2(d, q, vT + 4)
        for e in range(2):
            ee = 2 * pr + e
            a(f"""
            v_cmp_gt_u32 vcc, {DCUT<<16}, v{d+e}
            s_and_b64 {sr(sACT+2*ee,2)}, vcc, s[{sT+2}:{sT+3}]
            s_mov_b64 exec, {sr(sACT+2*ee,2)}
            ds_add_rtn_u32 v{vRK+ee}, v{vHA+ee}, v{vT+11}
            s_mov_b64 exec, -1
            """)
    a("s_waitcnt lgkmcnt(0)\ns_barrier")
    stamp()
    Lna = a.label("K1_NOATOM"); Lnb = a.label("K1_NOATOM2")
    a(f"""
    s_cmp_lg_u32 s3, 0
    s_cbranch_scc1 {Lna}
    ds_read_b32 v{vQ+4}, v{vT+3}
    v_lshlrev_b32 v{vT+5}, 2, v0
    s_waitcnt lgkmcnt(0)
    v_mov_b32 v{vQ+5}, v{vQ+4}
    v_add_u32 v{vQ+4}, {PADG-1}, v{vQ+4}
    v_and_b32 v{vQ+4}, {-PADG}, v{vQ+4}
    v_mov_b32 v{vQ+6}, v{vQ+4}
    v_mov_b32 v{vQ+7}, v{vQ+4}
    buffer_atomic_add v{vQ+6}, v{vT+5}, {sr(sDBG,4)}, 0 offen sc0
    """)
    dpp_scan(a, "v_add_u32", vQ + 7)
    a(f"""
    ds_write_b32 v{vT+3}, v{vQ+7} offset:4
    v_sub_u32 v{vQ+7}, v{vQ+7}, v{vQ+4}
    ds_write_b32 v{vT+3}, v{vQ+7}
    v_mov_b32 v{vPL}, 0xffff
    v_mov_b32 v{vPL+1}, v{vT+5}
    v_mov_b32 v{vPL+2}, 0
    v_mov_b32 v{vPL+3}, 0
    v_add_lshl_u32 v{vPL+4}, v{vQ+7}, v{vQ+5}, 4
    v_sub_u32 v{vQ+5}, v{vQ+4}, v{vQ+5}
    """)
    for k in range(PADG - 1):
        a(f"""
        v_cmp_lt_u32 vcc, {k}, v{vQ+5}
        s_and_b64 exec, exec, vcc
        ds_write_b128 v{vPL+4}, {vr(vPL,4)} offset:{L_STG + 16*k}
        """)
    a(f"""
    s_mov_b64 exec, -1
{Lna}:
    """)
    for pr in range(4):
        p = vP + 12 * pr; d = vDD + 2 * pr
        r0, r1 = vREC + 8 * pr, vREC + 8 * pr + 4
        a(f"""
        v_rcp_f32 v{vQ}, v{d}
        v_rcp_f32 v{vQ+1}, v{d+1}
        v_cmp_gt_u32 vcc, s{sT+6}, v{d}
        v_cmp_gt_u32 s[{sT+4}:{sT+5}], s{sT+6}, v{d+1}
        v_pk_mul_f32 {vr(p,2)}, {vr(p,2)}, {vr(vQ,2)}
        v_pk_mul_f32 {vr(p+2,2)}, {vr(p+2,2)}, {vr(vQ,2)}
        v_pk_mul_f32 {vr(p+4,2)}, {vr(p+4,2)}, {vr(vQ,2)}
        v_cndmask_b32 v{vQ+2}, v{vT+8}, v{vT+9}, vcc
        v_cndmask_b32 v{vQ+3}, v{vT+8}, v{vT+9}, s[{sT+4}:{sT+5}]
        v_cvt_pk_bf16_f32 v{vT+4}, v{p}, v{p+1}
        v_cvt_pk_bf16_f32 v{vT+5}, v{p+2}, v{p+3}
        v_cvt_pk_bf16_f32 v{vT+6}, v{p+4}, v{p+5}
        v_add3_u32 v{r0+3}, v{d}, v{vQ+2}, v{vSRC+2*pr}
        v_add3_u32 v{r1+3}, v{d+1}, v{vQ+3}, v{vSRC+2*pr+1}
        v_lshl_or_b32 v{r0}, v{vT+4}, 16, v{vKEY+2*pr}
        v_and_or_b32 v{r1}, v{vT+4}, s{sT+1}, v{vKEY+2*pr+1}
        v_lshl_or_b32 v{r0+1}, v{vT+5}, 16, v{vDST+2*pr}
        v_and_or_b32 v{r1+1}, v{vT+5}, s{sT+1}, v{vDST+2*pr+1}
        v_lshlrev_b32 v{r0+2}, 16, v{vT+6}
        v_and_b32 v{r1+2}, s{sT+1}, v{vT+6}
        """)
    a("s_waitcnt lgkmcnt(0)\ns_barrier")
    for e in range(8):
        a(f"ds_read_b32 v{vP+e}, v{vHA+e}")
    a(f"v_mov_b32 v{vT+8}, {L_EH}\nds_read_b32 v{vT+9}, v{vT+8} offset:256")
    a("s_waitcnt lgkmcnt(0)")
    for e in range(8):
        a(f"""
        v_add_lshl_u32 v{vP+e}, v{vP+e}, v{vRK+e}, 4
        v_add_u32 v{vP+e}, {L_STG}, v{vP+e}
        s_mov_b64 exec, {sr(sACT+2*e,2)}
        ds_write_b128 v{vP+e}, {vr(vREC+4*e,4)}
        s_mov_b64 exec, -1
        """)
    a(f"""
    v_readfirstlane_b32 s{sT+4}, v{vT+9}
    s_cmp_lg_u32 s3, 0
    s_cbranch_scc1 {Lnb}
    s_mov_b32 s{sT}, {LIST_STRIDE//16}
    s_waitcnt vmcnt(0)
    v_and_b32 v{vQ+6}, 0x3ffff, v{vQ+6}
    v_mad_u32_u24 v{vT+6}, v0, s{sT}, v{vQ+6}
    v_sub_u32 v{vT+6}, v{vT+6}, v{vQ+7}
    v_lshlrev_b32 v{vT+6}, 4, v{vT+6}
    ds_write_b32 v{vT+3}, v{vT+6} offset:{L_DLT - L_EH}
{Lnb}:
    v_lshlrev_b32 v{vT+5}, 4, v0
    v_add_u32 v{vT+2}, {L_STG}, v{vT+5}
    s_waitcnt lgkmcnt(0)
    s_barrier
    """)
    stamp()
    def copy_out(e0, n):
        for e in range(n):
            a(f"ds_read_b128 {vr(vREC+4*e,4)}, v{vT+2} offset:{e*8192}")
        for e in range(n):
            a(f"""
            s_waitcnt lgkmcnt({n-1})
            v_and_b32 v{vP+e}, 0xfc, v{vREC+4*e+1}
            v_add_u32 v{vP+e}, {L_DLT}, v{vP+e}
            ds_read_b32 v{vP+e}, v{vP+e}
            v_and_b32 v{vREC+4*e+1}, s{sT+1}, v{vREC+4*e+1}
            v_add_u32 v{vT+6}, {(e0+e)*512}, v0
            v_cmp_gt_u32 {sr(sACT+2*e,2)}, s{sT+4}, v{vT+6}
            """)
        for e in range(n):
            Ls = a.label("K1_ES")
            a(f"""
            s_waitcnt lgkmcnt({n-1-e})
            v_add_u32 v{vP+e}, v{vP+e}, v{vT+5}
            s_mov_b32 s{sT}, {(e0+e)*8192}
            s_mov_b64 exec, {sr(sACT+2*e,2)}
            s_cbranch_execz {Ls}
            buffer_store_dwordx4 {vr(vREC+4*e,4)}, v{vP+e}, {sr(sLIST,4)}, s{sT} offen sc1
{Ls}:
            s_mov_b64 exec, -1
            """)
    copy_out(0, 6)
    Lco = a.label("K1_CO")
    a(f"s_cmp_le_u32 s{sT+4}, 3072\ns_cbranch_scc1 {Lco}\nv_add_u32 v{vT+2}, {6*8192}, v{vT+2}\ns_nop 1")
    copy_out(6, 3)
    a(f"{Lco}:")
    dump_stamps(nst[0])
    a(f"""
{Larr}:
    s_cmp_lg_u32 s3, {WSY}
    s_cbranch_scc1 {Lp2}
    """)
    srd(a, 28, 22, None, 0, 256)
    a(f"""
    v_mov_b32 v1, 0
    s_mov_b64 exec, 1
    buffer_load_dwordx2 v[{VTOK}:{VTOK+1}], v1, s[28:31], 0 offen sc1
    s_mov_b64 exec, -1
    s_branch {Lp2}
    """)
    Lagg = a.label("K1_AGG")
    a(f"""
{Lagg}:
    s_cmp_lg_u32 s3, {WSY}
    s_cbranch_scc1 {Lp2}
    """)
    srd(a, 28, 22, None, 0, 256)
    srd(a, 32, 24, None, WS_LUT + M_EPO, 128)
    a(f"""
    v_mov_b32 v1, 0
    s_mov_b64 exec, 1
    buffer_load_dword v2, v1, s[32:35], 0 offen sc1
    s_waitcnt vmcnt(0)
    v_add_u32 v2, 0x09e3779b, v2
    buffer_store_dword v2, v1, s[32:35], 0 offen sc1
    v_and_b32 v3, 0x1fff, v2
    v_bfe_u32 v4, v2, 13, 13
    v_lshl_or_b32 v3, v3, 1, 1
    v_lshl_or_b32 v4, v4, 1, 1
    v_lshlrev_b32 v3, 18, v3
    v_lshlrev_b32 v4, 18, v4
    s_waitcnt vmcnt(0)
    buffer_atomic_add v3, v1, s[28:31], 0 offen
    buffer_atomic_add v4, v1, s[28:31], 0 offen offset:4
    v_mov_b32 v{VTOK}, v3
    v_mov_b32 v{VTOK+1}, v4
    s_mov_b64 exec, -1
    s_branch {Lp2}
    """)

    Lbop = a.label("K1_BOP")
    a(f"{Lbop}:")
    a(f"s_waitcnt lgkmcnt(0)\ns_cmp_lg_u32 s2, {WG_BOP}\ns_cbranch_scc1 {Lagg}")
    srd(a, 28, 18, None, 0, 16 * 768 * 2)
    srd(a, 32, 24, None, WS_LUT + M_BOP, 24576)
    a(f"""
    v_bfe_u32 v1, v0, 4, 1
    v_mul_u32_u24 v1, {8*1536}, v1
    v_and_b32 v2, 15, v0
    v_lshl_add_u32 v1, v2, 2, v1
    s_lshl_b32 s36, s3, 6
    v_add_u32 v1, s36, v1
    v_bfe_u32 v3, v0, 5, 1
    v_xor_b32 v2, 1, v3
    v_lshl_add_u32 v2, v2, 9, v1
    """)
    for m in range(8):
        a(f"s_movk_i32 s37, {m*1536}")
        a(f"buffer_load_dword v{8+m}, v2, s[28:31], s37 offen")
        a(f"buffer_load_dword v{16+m}, v1, s[28:31], s37 offen offset:1024")
    a(f"""
    s_mov_b32 s38, 0x05040100
    s_mov_b32 s39, 0x07060302
    v_mul_u32_u24 v3, 0x020202, v3
    v_lshl_or_b32 v3, v3, 8, v3
    v_add_u32 v3, s38, v3
    v_and_b32 v4, 63, v0
    v_lshlrev_b32 v4, 4, v4
    s_mul_i32 s36, s3, 3072
    s_waitcnt vmcnt(0)
    """)
    for m in range(4):
        a(f"v_perm_b32 v{24+m}, v{8+2*m+1}, v{8+2*m}, s39")
        a(f"v_perm_b32 v{28+m}, v{8+2*m+1}, v{8+2*m}, s38")
        a(f"v_perm_b32 v{32+m}, v{16+2*m+1}, v{16+2*m}, v3")
    a(f"""
    buffer_store_dwordx4 v[24:27], v4, s[32:35], s36 offen sc1
    buffer_store_dwordx4 v[28:31], v4, s[32:35], s36 offen offset:1024 sc1
    buffer_store_dwordx4 v[32:35], v4, s[32:35], s36 offen offset:2048 sc1
    s_branch {Larr}
    """)
    a(f"{Llut}:")
    a(f"""
    s_cmp_ge_u32 s2, {WG_LUT0+NLUTWG}
    s_cbranch_scc1 {Lbop}
    s_waitcnt lgkmcnt(0)
    s_load_dwordx8 s[28:35], s[12:13], 0
    """)
    srd(a, 60, 24, None, WS_LUT, LUT_BYTES)
    a(f"""
    s_sub_u32 s56, s2, {WG_LUT0}
    s_lshl_b32 s56, s56, 9
    v_add_u32 v1, s56, v0
    v_add_u32 v2, {DBASE}, v1
    v_lshlrev_b32 v2, 16, v2
    v_lshlrev_b32 v1, 5, v1
    s_mov_b32 s52, 0x40490fdb
    s_mov_b32 s53, 0x3e4ccccd
    s_mov_b32 s54, 0x3e22f983
    s_waitcnt lgkmcnt(0)
    """)
    for k in range(8):
        a(f"s_lshl_b32 s{36+2*k}, s{28+k}, 16\ns_and_b32 s{37+2*k}, s{28+k}, 0xffff0000")
    lut_row(a, 2, 4, 12, 36, 52)
    a(f"""
    buffer_store_dwordx4 v[4:7], v1, s[60:63], 0 offen sc1
    buffer_store_dwordx4 v[8:11], v1, s[60:63], 0 offen offset:16 sc1
    s_branch {Larr}
{Lcend}:
    """)
    a.cur = a0

    a(f"{Lgemm}:")
    V = Regs("v", 1, 256)
    vD1 = V.alloc("d1"); vD2 = V.alloc("d2"); vD3 = V.alloc("d3"); vDV = V.alloc("dv")
    vAS = V.alloc("as", 2); vTR = V.alloc("tr", 2); vVR = V.alloc("vr"); vO4 = V.alloc("o4"); vSEL = V.alloc("sel"); vHW = V.alloc("hw", 4)
    vRL = V.alloc("rl")
    vT = V.alloc("t", 12, 2)
    vACC = V.alloc("acc", 72, 4)
    vAF = V.alloc("af", 96, 4)
    vBF = V.alloc("bf", 32, 4)
    vV = V.alloc("v", 12)
    vOB = V.alloc("ob", 12, 4)
    nvmax = max(nvmax, V.hi)
    assert vHW == VTOK, (vHW, VTOK)
    sSV, sW1, sW2, sT4, sT1 = 28, 32, 36, 40, 44
    sT = 48; sHI = 56; sROW = 57; sM = 58; sRB = 59; sRND = 60; sL = 61; sROT = 62; sMV = 63
    sK1 = 64; sK2 = 72; sEV = 80
    q, j = vT + 1, vT + 2
    hi, ch = vT + 3, vT + 4
    a(f"""
    s_sub_u32 s{sROW}, s2, {WG_GEMM0}
    s_mul_i32 s{sROW}, s{sROW}, {ROWS}
    s_lshl_b32 s{sRB}, s{sROW}, 11
    s_and_b32 s{sL}, s3, 3
    s_lshr_b32 s{sROT}, s2, 3
    s_and_b32 s{sROT}, s{sROT}, {7 if opt.get("rot", 1) else 0}
    s_lshl_b32 s{sMV}, s{sL}, 10
    s_and_b32 s{sT}, s{sL}, 1
    s_lshr_b32 s{sT+1}, s{sL}, 1
    s_lshl_b32 s{sT+2}, s{sT+1}, 2
    s_add_u32 s{sT+2}, s{sT+2}, s{sT}
    s_lshl_b32 s{sM}, s{sT+2}, 10
    v_bfe_u32 v{hi}, v0, 5, 1
    v_and_b32 v{ch}, 31, v0
    """)
    a(f"""
    s_lshl_b32 s{sT+3}, s{sL}, 2
    v_lshl_add_u32 v{vT+5}, v{hi}, 1, s{sT+3}
    v_xor_b32 v{vT+5}, v{vT+5}, v{ch}
    v_lshlrev_b32 v{vT+5}, 4, v{vT+5}
    v_lshl_add_u32 v{vD1}, v{hi}, 9, v{vT+5}
    v_add_u32 v{vD1}, s{sM}, v{vD1}
    """)
    a(f"""
    s_lshl_b32 s{sT+4}, s{sL}, 12
    v_lshl_add_u32 v{vT+6}, v{hi}, 11, v{vT+5}
    v_add_u32 v{vT+6}, s{sT+4}, v{vT+6}
    """)
    a(f"""
    v_bfe_u32 v{q}, v0, 4, 4
    v_and_b32 v{j}, 15, v0
    v_lshlrev_b32 v{vDV}, 11, v{q}
    v_lshl_add_u32 v{vDV}, v{j}, 4, v{vDV}
    """)
    for n in range(3):
        a(f"s_xor_b32 s{sK1+n}, s{sROT}, {n}\ns_lshl_b32 s{sK1+n}, s{sK1+n}, 14")
    a("s_waitcnt lgkmcnt(0)")
    srd(a, sSV, 4, None, 0, N * 2048)
    srd(a, sW1, 14, None, 0, 256 * 512)
    units = [("w1", n, 0) for n in range(8)] + [("a", n, 0) for n in range(8)] + [("a", n, 1) for n in range(8)] \
          + [("b", n, 0) for n in range(4)] + [("b", n, 1) for n in range(4)]
    owner = lambda u: units[u][2] if units[u][0] == "a" else 0
    class C: pass
    st = C(); st.seq = []
    def dma_unit(u, which=(0, 1, 2, 3)):
        kind, n, hf = units[u]
        for i in which:
            rr = 4 * (i & 1) + 16 * (i >> 1)
            kr = 2 * (i & 1) + 8 * (i >> 1)
            a(f"s_add_u32 m0, s{sM}, {L_RING + (u%4)*16384 + rr*512}")
            if kind == "w1":
                a(f"s_add_u32 s{sT}, s{sK1+n}, {rr*512}")
                a(f"buffer_load_dwordx4 v{vD1}, {sr(sW1,4)}, s{sT} offen lds")
            elif kind == "a":
                a(f"s_add_u32 s{sT}, s{sK2+n}, {kr*1536 + hf*256}")
                a(f"buffer_load_dwordx4 v{vD2}, {sr(sW2,4)}, s{sT} offen lds")
            else:
                a(f"s_add_u32 s{sT}, s{sK1+n}, {kr*1536 + hf*256 + 1024}")
                a(f"buffer_load_dwordx4 v{vD3}, {sr(sW2,4)}, s{sT} offen lds")
            st.seq.append(("U", u))
    def dma_v(hf, n):
        c, i = n % 3, n // 3
        a(f"""
        s_add_u32 m0, s{sMV}, {L_V + ((1-hf)*3+c)*ROWS*256 + i*4096}
        s_add_u32 s{sT}, s{sRB}, {0x40000000 if opt.get('nov') else i*16*2048 + 512*(c+1) + hf*256}
        buffer_load_dwordx4 v{vDV}, {sr(sSV,4)}, s{sT} offen lds
        """)
        st.seq.append(("V", hf))
    LnoB0 = a.label("K1_G0")
    a(f"s_cmp_lt_u32 s3, 4\ns_cbranch_scc1 {LnoB0}")
    for i in range(6):
        a(f"""
        s_add_u32 m0, s{sMV}, {L_H + i*4096}
        s_add_u32 s{sT}, s{sRB}, {i*8*2048}
        buffer_load_dwordx4 v{vT+6}, {sr(sSV,4)}, s{sT} offen lds
        """)
        st.seq.append(("U", 0))
    nx0 = opt.get("nx0", 0); gbit = opt.get("gbit", 3)
    if nx0:
        Lnx = a.label("K1_NOX")
        a(f"s_bitcmp1_b32 s2, {gbit}\ns_cbranch_scc0 {Lnx}")
        keep = list(st.seq)
        for n in range(nx0): dma_v(0, n)
        st.seq = keep
        a(f"{Lnx}:")
    for u in range(3): dma_unit(u)
    seqB0 = list(st.seq)
    a(f"{LnoB0}:")
    for n in range(3, 8):
        a(f"s_xor_b32 s{sK1+n}, s{sROT}, {n}\ns_lshl_b32 s{sK1+n}, s{sK1+n}, 14")
    for n in range(8):
        a(f"s_mul_i32 s{sK2+n}, s{sK1+n}, 3")
    srd(a, sW2, 16, None, 0, 0 if opt.get('now2') else 256 * 1536)
    a(f"s_lshr_b32 s{sT+6}, s3, 1\ns_mul_i32 s{sT+6}, s{sT+6}, {TAB_SL}")
    srd(a, sT4, 24, sT + 6, WS_TAB, 0 if opt.get('nowr') else TAB_SL)
    a(f"""
    v_lshl_add_u32 v{vT+7}, v{hi}, 4, s{sT+2}
    v_mul_u32_u24 v{vT+7}, 1536, v{vT+7}
    v_and_b32 v{vT+8}, 0xf0, v{vT+5}
    v_add_u32 v{vT+7}, v{vT+7}, v{vT+8}
    v_lshrrev_b32 v{vT+8}, 4, v{ch}
    v_xor_b32 v{vT+9}, 1, v{vT+8}
    v_lshl_add_u32 v{vD2}, v{vT+9}, 9, v{vT+7}
    v_xor_b32 v{vT+8}, s{sROT}, v{vT+8}
    v_and_b32 v{vT+8}, 1, v{vT+8}
    v_mul_u32_u24 v{vT+8}, 49152, v{vT+8}
    v_add_u32 v{vD3}, v{vT+7}, v{vT+8}
    s_mov_b32 s{sHI}, 0x07060302
    s_mov_b32 s{sRND}, 0x8000
    v_bfe_u32 v{q}, v0, 4, 2
    v_and_b32 v{j}, 15, v0
    v_and_b32 v{vT+3}, 7, v{j}
    v_lshlrev_b32 v{vT+3}, 1, v{vT+3}
    v_xor_b32 v{vT+3}, v{vT+3}, v{q}
    v_lshlrev_b32 v{vT+3}, 4, v{vT+3}
    v_lshl_add_u32 v{vAS}, v{j}, 9, v{vT+3}
    s_lshl_b32 s{sT+4}, s{sROT}, 6
    v_xor_b32 v{vAS}, s{sT+4}, v{vAS}
    v_add_u32 v{vAS}, {L_H}, v{vAS}
    """)
    a(f"""
    v_lshrrev_b32 v{vT+3}, 2, v{j}
    v_and_b32 v{vT+4}, 1, v{q}
    v_lshl_or_b32 v{vT+4}, v{vT+4}, 2, v{vT+3}
    v_lshlrev_b32 v{vT+4}, 1, v{vT+4}
    v_bfe_u32 v{vT+5}, v0, 1, 1
    v_or_b32 v{vT+5}, s{sT+3}, v{vT+5}
    v_xor_b32 v{vT+4}, v{vT+4}, v{vT+5}
    v_lshl_add_u32 v{vT+3}, v{q}, 3, v{vT+3}
    v_lshlrev_b32 v{vT+3}, 9, v{vT+3}
    v_lshl_add_u32 v{vT+3}, v{vT+4}, 4, v{vT+3}
    v_and_b32 v{vT+4}, 1, v0
    v_lshl_add_u32 v{vTR}, v{vT+4}, 3, v{vT+3}
    v_xor_b32 v{vTR+1}, 32, v{vTR}
    """)
    a(f"""
    v_lshrrev_b32 v{vT+3}, 2, v{j}
    v_or_b32 v{vT+3}, s{sT+3}, v{vT+3}
    v_and_b32 v{vT+4}, 1, v{q}
    v_lshlrev_b32 v{vT+4}, 3, v{vT+4}
    v_xor_b32 v{vT+3}, v{vT+3}, v{vT+4}
    v_lshlrev_b32 v{vT+3}, 4, v{vT+3}
    v_and_b32 v{vT+4}, 3, v{j}
    v_lshl_add_u32 v{vT+3}, v{vT+4}, 2, v{vT+3}
    v_lshl_add_u32 v{vT+3}, v{q}, 11, v{vT+3}
    v_add_u32 v{vHW}, {L_H}, v{vT+3}
    v_xor_b32 v{vHW+1}, 32, v{vHW}
    v_xor_b32 v{vHW+2}, 64, v{vHW}
    v_xor_b32 v{vHW+3}, 96, v{vHW}
    """)
    a(f"""
    v_and_b32 v{vT+3}, 1, v{j}
    v_lshlrev_b32 v{vT+3}, 5, v{vT+3}
    v_lshrrev_b32 v{vT+4}, 1, v{j}
    v_lshl_add_u32 v{vT+3}, v{vT+4}, 2, v{vT+3}
    s_lshr_b32 s{sT+1}, s3, 2
    s_xor_b32 s{sT+1}, s{sT+1}, 1
    s_mul_i32 s{sT+1}, s{sT+1}, {3*ROWS*256}
    s_lshl_b32 s{sT+4}, s{sL}, 6
    s_add_u32 s{sT+1}, s{sT+1}, s{sT+4}
    s_add_u32 s{sT+1}, s{sT+1}, {L_V}
    v_add_u32 v{vT+3}, s{sT+1}, v{vT+3}
    v_lshl_add_u32 v{vVR}, v{q}, 10, v{vT+3}
    v_lshl_add_u32 v{vT+3}, v{q}, 2, s{sROW}
    v_mul_u32_u24 v{vO4}, {ROWB}, v{vT+3}
    v_lshl_add_u32 v{vO4}, v{j}, 4, v{vO4}
    s_and_b32 s{sT+4}, s3, 1
    s_lshl_b32 s{sT+4}, s{sT+4}, 8
    v_add_u32 v{vO4}, s{sT+4}, v{vO4}
    s_mov_b32 s{sEV}, 0x55555555
    s_mov_b32 s{sEV+1}, 0x55555555
    v_mov_b32 v{vT+3}, 0x03020706
    v_mov_b32 v{vT+4}, 0x05040100
    v_mov_b32 v{vT+5}, 0x8000
    v_cndmask_b32 v{vSEL}, v{vT+3}, v{vT+4}, s[{sEV}:{sEV+1}]
    v_cndmask_b32 v{vRL}, 0, v{vT+5}, s[{sEV}:{sEV+1}]
    """)
    def af_read(ns):
        for n in ns:
            if n: a(f"v_xor_b32 v{vAS+1}, {n*64}, v{vAS}")
            for mt in range(3):
                a(f"ds_read_b128 {vr(vAF+(n*3+mt)*4,4)}, v{vAS+1 if n else vAS} offset:{mt*8192}")
    def tr_read(u):
        b = vBF + 16 * (u & 1)
        for side in range(2):
            for t in range(2):
                for h in range(2):
                    if units[u][0] == "b":
                        a(f"ds_read_b64_tr_b16 {vr(b+8*side+4*t+2*h,2)}, v{vTR} offset:{L_RING + (u%4)*16384 + h*2048 + side*256 + 8*t}")
                    else:
                        a(f"ds_read_b64_tr_b16 {vr(b+8*side+4*t+2*h,2)}, v{vTR+t} offset:{L_RING + (u%4)*16384 + h*2048 + side*256}")
    def mfmas(u, dmu=None, dl=()):
        kind, n, hf = units[u]
        b = vBF + 16 * (u & 1)
        for side in range(2):
            for t in range(2):
                for mt in range(3):
                    if dl and mt == 1 and (len(dl) == 4 or t == 0): dma_unit(dmu, (dl[side * 2 + t] if len(dl) == 4 else dl[side],))
                    if kind == "b":
                        nn = 2 * n + side; nt = (4 if hf == 0 else 0) + t
                    else:
                        nn = n; nt = 2 * side + t
                    acc = vACC + (mt * 6 + nt) * 4
                    c = "0" if nn == 0 else vr(acc, 4)
                    a(f"v_mfma_f32_16x16x32_bf16 {vr(acc,4)}, {vr(vAF+(nn*3+mt)*4,4)}, {vr(b+8*side+4*t,4)}, {c}")
    def silu():
        a(f"s_mov_b32 s{sT+6}, 0xbfb8aa3b\ns_mov_b32 s{sT+7}, 0xbfb8aa3b\ns_nop 7")
        for mt in range(3):
            for side in range(2):
                A0, A1 = vACC + (mt * 6 + 2 * side) * 4, vACC + (mt * 6 + 2 * side + 1) * 4
                X = [A0, A0 + 2, A1, A1 + 2]
                if opt.get("rndpre", 1):
                    for r in range(4): a(f"v_cvt_pk_bf16_f32 v{vT+r}, v{A0+r}, v{A1+r}")
                    for r in range(4): a(f"v_lshlrev_b32 v{A0+r}, 16, v{vT+r}\nv_and_b32 v{A1+r}, 0xffff0000, v{vT+r}")
                for k in range(4): a(f"v_pk_mul_f32 {vr(vT+2*k,2)}, {vr(X[k],2)}, s[{sT+6}:{sT+7}]")
                for k in range(8): a(f"v_exp_f32 v{vT+k}, v{vT+k}")
                for k in range(4): a(f"v_pk_add_f32 {vr(vT+2*k,2)}, {vr(vT+2*k,2)}, 1.0 op_sel_hi:[1,0]")
                for k in range(8): a(f"v_rcp_f32 v{vT+k}, v{vT+k}")
                for k in range(4): a(f"v_pk_mul_f32 {vr(X[k],2)}, {vr(X[k],2)}, {vr(vT+2*k,2)}")
                for r in range(4): a(f"v_cvt_pk_bf16_f32 v{A0+r}, v{A0+r}, v{A1+r}")
            b0, b1 = vACC + (mt * 6) * 4, vACC + (mt * 6 + 2) * 4
            for r in range(4): a(f"ds_write2st64_b32 v{vHW+r}, v{b0+r}, v{b1+r} offset0:{2*(mt*16+r)} offset1:{2*(mt*16+r)+1}")
    DPP = "quad_perm:[1,0,3,2] row_mask:0xf bank_mask:0xf"
    def v_read(pc):
        mt, r = pc // 4, pc % 4
        for c in range(3):
            a(f"ds_read_b32 v{vV + (pc % 4) * 3 + c}, v{vVR} offset:{c*ROWS*256 + (mt*16+r)*256}")
    def t4_piece(pc):
        mt, r = pc // 4, pc % 4
        A_ = lambda nt: vACC + (mt * 6 + nt) * 4 + r
        o = vOB + 4 * (pc % 3); vv = vV + (pc % 4) * 3
        lo, hi_, P, Q = vT, vT + 1, vT + 2, vT + 3
        x = vT + 4
        a(f"""
        v_perm_b32 v{P}, v{A_(3)}, v{A_(2)}, s{sHI}
        v_mov_b32_dpp v{lo}, v{A_(1)} {DPP}
        v_mov_b32_dpp v{hi_}, v{A_(0)} {DPP}
        v_mov_b32_dpp v{Q}, v{P} {DPP}
        v_cndmask_b32 v{lo}, v{lo}, v{A_(0)}, s[{sEV}:{sEV+1}]
        v_cndmask_b32 v{hi_}, v{A_(1)}, v{hi_}, s[{sEV}:{sEV+1}]
        v_perm_b32 v{o+3}, v{Q}, v{P}, v{vSEL}
        v_lshlrev_b32 v{x}, 16, v{vv}
        v_and_b32 v{x+1}, 0xffff0000, v{vv}
        v_lshlrev_b32 v{x+2}, 16, v{vv+1}
        v_and_b32 v{x+3}, 0xffff0000, v{vv+1}
        v_lshlrev_b32 v{x+4}, 16, v{vv+2}
        v_and_b32 v{x+5}, 0xffff0000, v{vv+2}
        v_mul_f32 v{x}, v{x}, v{lo}
        v_mul_f32 v{x+1}, v{x+1}, v{hi_}
        v_mul_f32 v{x+2}, v{x+2}, v{lo}
        v_mul_f32 v{x+3}, v{x+3}, v{hi_}
        v_mul_f32 v{x+4}, v{x+4}, v{lo}
        v_mul_f32 v{x+5}, v{x+5}, v{hi_}
        v_add_u32 v{x}, s{sRND}, v{x}
        v_add_u32 v{x+4}, s{sRND}, v{x+4}
        v_perm_b32 v{o+1}, v{x+3}, v{x+2}, s{sHI}
        v_perm_b32 v{o}, v{x+1}, v{x}, s{sHI}
        v_perm_b32 v{o+2}, v{x+5}, v{x+4}, s{sHI}
        s_movk_i32 s{sT+4}, {mt*16*ROWB}
        buffer_store_dwordx4 {vr(o,4)}, v{vO4}, {sr(sT4,4)}, s{sT+4} offen offset:{r*ROWB} {tab_fl}
        """)
        st.seq.append("ST")
    def b_setup():
        a(f"""
        v_mbcnt_lo_u32_b32 v{vT}, -1, 0
        v_mbcnt_hi_u32_b32 v{vT}, -1, v{vT}
        v_lshrrev_b32 v{vT+1}, 4, v{vT}
        v_bfe_u32 v{vT+2}, v{vT}, 2, 2
        v_and_b32 v{vT+3}, 1, v{vT+1}
        v_lshl_or_b32 v{vT+3}, v{vT+3}, 2, v{vT+2}
        v_lshlrev_b32 v{vT+3}, 1, v{vT+3}
        v_and_b32 v{vT+4}, 3, v{vT}
        s_lshl_b32 s{sT+4}, s{sL}, 2
        v_or_b32 v{vT+5}, s{sT+4}, v{vT+4}
        v_xor_b32 v{vT+3}, v{vT+3}, v{vT+5}
        v_lshl_add_u32 v{vT+5}, v{vT+1}, 3, v{vT+2}
        v_lshlrev_b32 v{vT+5}, 9, v{vT+5}
        v_lshl_add_u32 v{vTR}, v{vT+3}, 4, v{vT+5}
        v_lshl_add_u32 v{vT+1}, v{vT+1}, 2, s{sROW}
        v_mul_u32_u24 v{vT+1}, {ROWB}, v{vT+1}
        v_lshl_add_u32 v{vT+1}, v{vT+2}, 4, v{vT+1}
        v_and_b32 v{vT+3}, 1, v{vT}
        v_lshl_add_u32 v{vT+1}, v{vT+3}, 3, v{vT+1}
        v_bfe_u32 v{vT+3}, v{vT}, 1, 1
        v_lshl_add_u32 v{vT+1}, v{vT+3}, 2, v{vT+1}
        s_and_b32 s{sT+4}, s3, 1
        s_lshl_b32 s{sT+4}, s{sT+4}, 6
        s_add_u32 s{sT+4}, s{sT+4}, 512
        v_add_u32 v{vTR+1}, s{sT+4}, v{vT+1}
        s_add_u32 s{sW1}, s{sT4}, {2*TAB_SL}
        s_addc_u32 s{sW1+1}, s{sT4+1}, 0
        s_mov_b32 s{sW1+2}, {0 if opt.get('nowr') else TAB_SL}
        """)
    def t1_epi(hf, mts=(0, 1, 2)):
        nt0 = 4 if hf == 0 else 0
        sd = sT4 if hf == 0 else sW1
        for mt in mts:
            A_ = lambda t, r: vACC + (mt * 6 + nt0 + t) * 4 + r
            for r in range(4):
                a(f"v_add_u32 v{A_(0,r)}, v{A_(0,r)}, v{vRL}")
                a(f"v_add_u32 v{A_(1,r)}, v{A_(1,r)}, v{vRL}")
            for r in range(4):
                a(f"v_perm_b32 v{vT+r}, v{A_(1,r)}, v{A_(0,r)}, s{sHI}")
            a(f"s_movk_i32 s{sT+4}, {mt*16*ROWB}")
            for r in range(4):
                a(f"v_mov_b32_dpp v{vT+4+r}, v{vT+r} {DPP}")
            for r in range(4):
                a(f"v_perm_b32 v{vOB+mt*4+r}, v{vT+4+r}, v{vT+r}, v{vSEL}")
                a(f"buffer_store_dword v{vOB+mt*4+r}, v{vTR+1}, {sr(sd,4)}, s{sT+4} offen offset:{r*ROWB} {tab_fl}")
                st.seq.append("ST")
    pf_cls = 1
    ldm = opt.get("ldm", 0)
    VL = [(0, n) for n in range(9)] + [(1, n) for n in range(9)]
    def front(g):
        todo = VL[nx0:] if g else list(VL)
        per = opt.get("vper", 4); ukeep = opt.get("ukeep", 8)
        sch = {}
        for u in range(9):
            L = []
            if u + 3 <= ukeep: L.append(("U", u + 3))
            elif u < 8:
                L += [("V",) + todo.pop(0) for _ in range(min(per, len(todo)))]
            if u == opt.get("pf_at", 5): L.append(("PF",))
            if u == 8:
                L += [("V",) + x for x in todo]
                L += [("U", k) for k in range(ukeep + 1, 12)]
            sch[u] = L
        return sch
    def dmas(u, cls):
        if u + 3 >= 32 or u < 9: return []
        if u < 16: return [0, 1, 2, 3] if cls == 1 else []
        if ldm == 0: return [0, 1, 2, 3] if cls == owner(u) else []
        if ldm == 1: return [0, 1, 2, 3] if cls != owner(u) else []
        return [0, 1] if cls == 0 else [2, 3]
    def prefetch():
        a(f"""
        s_lshr_b32 s{sT+1}, s2, 3
        s_add_u32 s{sT+1}, s{sT+1}, {24-6}
        s_cmp_ge_u32 s{sT+1}, 24
        s_cselect_b32 s{sT+2}, 24, 0
        s_sub_u32 s{sT+1}, s{sT+1}, s{sT+2}
        s_lshl_b32 s{sT+2}, s{sT+1}, 2
        s_add_u32 s{sT+2}, s{sT+2}, s{sL}
        s_lshl_b32 s{sT+3}, s{sT+2}, 12
        v_mbcnt_lo_u32_b32 v{vV}, -1, 0
        v_lshlrev_b32 v{vV}, 7, v{vV}
        s_mov_b32 exec_hi, 0
        buffer_load_dword v{vV+1}, v{vV}, {sr(sW2,4)}, s{sT+3} offen
        s_mov_b64 exec, -1
        """)
        st.seq.append("PF")
    pB = opt.get("pB", [2, 2, 2, 1, 2, 2, 1, 0, 0])
    pA = opt.get("pA", [2, 2, 1, 2, 1, 2, 1, 1, 0])
    if len(pB) == 8: pB = [0] + pB
    pieces = [{}, {}]
    for cls, base, pl in ((0, 15, pA), (1, 23, pB)):
        k = 0
        for i_, c_ in enumerate(pl):
            pieces[cls][base + i_] = list(range(k, k + c_)); k += c_
        assert k == 12
    LB = a.label("K1_GB"); Lfin = a.label("K1_GFIN")
    a(f"s_cmp_ge_u32 s3, 4\ns_cbranch_scc1 {LB}")
    stu = opt.get("stu", [0, 9, 15, 24])
    for cls in range(2):
        if cls == 1: a(f"{LB}:")
        nst[0] = 1 if stamps else 0
        st.seq = list(seqB0) if cls == 1 else []
        def wait_tags(tags):
            idx = [i for i, t in enumerate(st.seq) if t in tags]
            if idx: a(f"s_waitcnt vmcnt({min(63, len(st.seq) - 1 - max(idx))})")
        ulist = [(u, 0) for u in range(32)]
        if cls == 1 and nx0:
            ulist = [(u, 1) for u in range(9)] + ulist
            LY = a.label("K1_GY"); L9 = a.label("K1_G9")
            a(f"s_bitcmp1_b32 s2, {gbit}\ns_cbranch_scc0 {LY}")
        for (u, grp) in ulist:
            if cls == 1 and nx0 and grp == 0 and u == 0:
                a(f"s_branch {L9}\n{LY}:")
                st.seq = list(seqB0); nst[0] = 1 if stamps else 0
            if cls == 1 and nx0 and u == 9: a(f"{L9}:")
            tags = [("U", u)]
            if u == 15: tags.append(("V", 0))
            if u == 23: tags.append(("V", 1))
            lastb = opt.get("lastb", 30)
            if u == lastb: tags += [("U", x) for x in range(u + 1, 32)]
            tr_ = opt.get("trace"); vtr = vD1 if cls == 0 else vRL
            if tr_: a("s_memtime s[98:99]")
            if u <= lastb:
                wait_tags(tags)
                a("s_barrier")
            if tr_:
                a(f"s_waitcnt lgkmcnt(0)\nv_writelane_b32 v{vtr}, s98, {2*u}\ns_memtime s[98:99]\ns_waitcnt lgkmcnt(0)\nv_writelane_b32 v{vtr}, s98, {2*u+1}")
            if u in stu: stamp()
            if u == 8:
                for n in range(4):
                    a(f"s_min_u32 s{sK1+n}, s{sK2+2*n}, s{sK2+2*n+1}")
            lds = False
            if cls == 0 and u == 9:
                af_read([0]); tr_read(u); af_read([1]); a("s_waitcnt lgkmcnt(11)"); lds = True
            elif owner(u) == cls:
                tr_read(u); lds = True
                if cls == 0 and u < 8: af_read([u])
                if cls == 0 and 10 <= u < 16: af_read([u - 8])
            early = {8: 7, 16: 15, 24: 23}
            dm = dmas(u, cls)
            if u >= 1 and owner(u - 1) == cls and early.get(u) != u - 1:
                mfmas(u - 1, u + 3, dm); dm = []
            if u in (7, 15, 23) and owner(u) == cls:
                a("s_waitcnt lgkmcnt(0)")
                if u != 7: v_read(0); v_read(1)
                mfmas(u)
            if cls == 1 and u == 25: zero_counters(a, vD1, vD2); lds = True
            if cls == 1 and u == opt.get("tok_at", 24):
                srd(a, sT1, 22, None, 0, 256)
                srd(a, sW1, 24, None, WS_LUT, MISC_BYTES)
                sync_loads(a, sT1, sW1, sT + 1, vD1)
                st.seq += ["TOK", "TOK"]
            if cls == 1 and u == opt.get("early_at", 26):
                assert u >= 26 and EREC >= vAF and ELT + 16 <= vAF + 96 and SEARLY not in (sEV, sEV + 1)
                wait_tags(["TOK"])
                early_try(a, sSV, sW1, sT + 1, vD1)
            if cls == 0 and u == 8: silu()
            if u in (15, 23) and owner(u) == cls: a("s_nop 4")
            pcs = list(pieces[cls].get(u, []))
            if pcs:
                if lds: a("s_waitcnt lgkmcnt(0)")
                for pc in pcs:
                    for _ in range(max(1, len(dm) // len(pcs))):
                        if dm: dma_unit(u + 3, (dm.pop(0),))
                    if pc + 2 < 12: v_read(pc + 2)
                    a(f"s_waitcnt lgkmcnt({min(6, 3 * (11 - pc))})")
                    t4_piece(pc)
            if dm: dma_unit(u + 3, dm)
            if cls == 1 and u < 9:
                for act in front(grp)[u]:
                    if act[0] == "U": dma_unit(act[1])
                    elif act[0] == "V": dma_v(act[1], act[2])
                    else: prefetch()
            if cls == 1 and 10 <= u < 14: af_read(range(2 * (u - 10), 2 * (u - 10) + 2)); lds = True
            if cls == 0 and u == 23: b_setup()
            if cls == 0 and u in (29, 30, 31): t1_epi(0, (u - 29,))
            if lds: a("s_waitcnt lgkmcnt(0)")
        if cls == 0:
            mfmas(31); a("s_nop 7"); t1_epi(1)
        else:
            assert not pieces[1].get(lastb) and not pieces[1].get(31)
        stamp()
        if opt.get("trace"):
            a(f"""
            s_add_u32 s40, s24, {WS_DIAG + (2<<20)}
            s_addc_u32 s41, s25, 0
            s_mov_b32 s42, 0x100000
            s_mov_b32 s43, 0x20000
            s_lshl_b32 s44, s2, 3
            s_add_u32 s44, s44, s3
            s_lshl_b32 s44, s44, 8
            v_mbcnt_lo_u32_b32 v{vT}, -1, 0
            v_mbcnt_hi_u32_b32 v{vT}, -1, v{vT}
            v_lshlrev_b32 v{vT}, 2, v{vT}
            buffer_store_dword v{vtr}, v{vT}, s[40:43], s44 offen
            """)
        if cls == 0: a(f"s_branch {Lfin}")
    a(f"{Lfin}:")
    dump_stamps(nst[0])
    a(f"{Lp2}:")
    phase2(a0, opt, Lend)
    a0.lines += side.lines
    return nvmax, 102
```

```python
from asmlib import *
from layout import *

CHUNK = 2048
SCAP = CHUNK // 4 + 2 * CAPN + 8 + 12
L_PARK = 0
L_STREAM = NKEY * 512
STREAM_BYTES = SCAP * 64
L_LUT = L_STREAM + STREAM_BYTES
L_CNT = L_LUT + (NRS + 512) * 32
L_HIST = L_CNT + 1280
L_ALLOC = L_HIST + 256
L_SORT = L_ALLOC + 64
L_NADDR = L_SORT + 1280 + 256
L_PASS = L_NADDR + 1280
K2_LDS = L_PASS + 64
assert K2_LDS <= 163840 and L_CNT >= 139264
DIRS = [0, 1, 0, 1, 1] * 2

def dpp_scan(a, op, v):
    for m in ["row_shr:1", "row_shr:2", "row_shr:4", "row_shr:8"]:
        a("s_nop 1")
        a(f"{op}_dpp v{v}, v{v}, v{v} {m} row_mask:0xf bank_mask:0xf bound_ctrl:0")
    a("s_nop 1")
    a(f"{op}_dpp v{v}, v{v}, v{v} row_bcast:15 row_mask:0xa bank_mask:0xf")
    a("s_nop 1")
    a(f"{op}_dpp v{v}, v{v}, v{v} row_bcast:31 row_mask:0xc bank_mask:0xf")

def zero_counters(a, t0, t1):
    a(f"""
    v_lshlrev_b32 v{t0}, 3, v0
    v_add_u32 v{t0}, {L_CNT - 2048}, v{t0}
    v_mov_b32 v{t1}, 0
    v_cmp_gt_u32 vcc, 456, v0
    s_and_b64 exec, exec, vcc
    ds_write2_b32 v{t0}, v{t1}, v{t1} offset0:0 offset1:1
    s_mov_b64 exec, -1
    """)

def sync_loads(a, sdbg, smisc, st, vz, tok=True, gran=True):
    a(f"""
    s_lshr_b32 s{st}, s2, 3
    s_lshl_b32 s{st}, s{st}, 4
    s_and_b32 s{st+1}, s2, 1
    s_lshl_b32 s{st+1}, s{st+1}, 3
    s_add_u32 s{st}, s{st}, s{st+1}
    s_add_u32 s{st}, s{st}, {M_TOT}
    v_mov_b32 v{vz}, 0
    s_mov_b64 exec, 1
    {f"buffer_load_dwordx2 v[{VTOK}:{VTOK+1}], v{vz}, {sr(sdbg,4)}, 0 offen sc1" if tok else ""}
    {f"buffer_load_dwordx2 v[{VTOK+2}:{VTOK+3}], v{vz}, {sr(smisc,4)}, s{st} offen sc1" if gran else ""}
    s_mov_b64 exec, -1
    """)

def first_loads(a, slist, smisc, st, vt):
    a(f"""
    v_subrev_u32 v{vt}, 256, v0
    v_lshlrev_b32 v{vt}, 4, v{vt}
    """)
    for k in range(8):
        a(f"s_movk_i32 s{st}, {k*4096}")
        a(f"buffer_load_dwordx4 {vr(EREC+4*k,4)}, v{vt}, {sr(slist,4)}, s{st} offen sc1")
    for i in range(4):
        a(f"s_mov_b32 s{st}, {LUT_THR*32 + 4096*i}")
        a(f"buffer_load_dwordx4 {vr(ELT+4*i,4)}, v{vt}, {sr(smisc,4)}, s{st} offen sc1")

def early_try(a, slist, smisc, st, vt):
    Lno = a.label("K1_NOEARLY")
    token_decode(a, VTOK, 27, st)
    a(f"""
    s_mov_b32 s{SEARLY}, 0
    s_cbranch_scc0 {Lno}
    v_readfirstlane_b32 s{st}, v{VTOK+3}
    v_readfirstlane_b32 s26, v{VTOK+2}
    s_nop 1
    s_cmp_lg_u32 s{st}, s27
    s_cbranch_scc1 {Lno}
    s_mov_b32 s{SEARLY}, 1
    s_and_b32 s26, s26, 0x3ffff
    s_min_u32 s26, s26, {LCAP}
    s_lshr_b32 s{st}, s2, 3
    s_lshl_b32 s{st}, s{st}, 1
    s_and_b32 s{st+1}, s2, 1
    s_or_b32 s{st}, s{st}, s{st+1}
    s_mul_i32 s{st}, s{st}, {LIST_STRIDE}
    s_add_u32 s{st}, s{st}, {WS_LIST}
    s_add_u32 s{slist}, s24, s{st}
    s_addc_u32 s{slist+1}, s25, 0
    s_lshl_b32 s{slist+2}, s26, 4
    s_mov_b32 s{slist+3}, 0x20000
    """)
    first_loads(a, slist, smisc, st, vt)
    a(f"{Lno}:")

def gen_k2(a, opt, Lend):
    stamps = opt.get("stamps", False)
    st_fl = opt.get("st_flags", "nt")
    NRG = opt.get("ring", 3); DP = NRG - 1
    V = Regs("v", 1, 256)
    vB = V.alloc("B", 24, 2)
    vC1 = V.alloc("c1"); vC2 = V.alloc("c2"); vML = V.alloc("ml"); vCL = V.alloc("cl")
    vS = V.alloc("vS"); vA = V.alloc("vA"); vPEND = V.alloc("pend"); vG4 = V.alloc("g4"); vCO = V.alloc("co")
    vEN = V.alloc("en"); vPA = V.alloc("pa"); vO = V.alloc("O"); vPN = V.alloc("pn"); vPD = V.alloc("pd")
    vACC = V.alloc("acc", 20, 2)
    vD = V.alloc("D", 24, 2)
    vRH = V.alloc("RH", 8, 2)
    vAOP = V.alloc("A", 4, 2)
    vE = V.alloc("E", 8, 2)
    vX = V.alloc("X", 16, 2)
    vR = V.alloc("R", 8, 2)
    vT = V.alloc("T", 4, 2)
    vPK = V.alloc("PK", 2, 2)
    vLI = V.alloc("LI")
    vAD = V.alloc("ad", 4)
    vRING = V.alloc("ring", 24 * NRG, 2)
    P = Regs("v", vACC, 256)
    pT = P.alloc("t", 12, 2)
    pRANK = P.alloc("rank", 8)
    pDL = P.alloc("dl", 8)
    pEK = P.alloc("ek", 10)
    pRS = P.alloc("rs", 8)
    pNA = P.alloc("na", 8)
    assert P.hi <= EREC
    pREC = EREC; pLT = ELT; P.reset(ELT + 16)
    pRARE = P.alloc("rare", 64, 2)
    assert pRARE >= vRING
    nv = max(V.hi, P.hi)
    def ACC(hf): b = vACC + 10 * hf; return b, b + 2, b + 4, b + 6, b + 8

    sTB, sSV, sOUT, sLIST, sMISC, sDBG = 28, 32, 36, 40, 44, 48
    sM, sRG, sW, sCB, sTOT = 52, 53, 3, 54, 26
    sREM = 55; sPC = 56; sQ = 58; sDIR = 59; sMORE = 60; sPM = 61
    sCNT, sSLOT, sROWB, sMASK, sPS, sSPIN = 62, 63, 64, 65, 66, 67
    sN0 = 8
    sT = 68
    sFIRST = 76; sL = 77
    STR = [92, 94, 96, 98, 100, 18]
    nst = [0]
    def stamp():
        if stamps:
            a(f"s_memrealtime {sr(STR[nst[0]], 2)}")
            nst[0] += 1
    def srd(d, lo, off_sreg, off_imm, size):
        hi = lo + 1
        if off_sreg is None and off_imm == 0:
            a(f"s_mov_b32 s{d}, s{lo}\ns_mov_b32 s{d+1}, s{hi}")
        else:
            if off_sreg is not None:
                if off_imm:
                    a(f"s_add_u32 s{off_sreg}, s{off_sreg}, {off_imm}")
                a(f"s_add_u32 s{d}, s{lo}, s{off_sreg}")
            else:
                a(f"s_add_u32 s{d}, s{lo}, {off_imm}")
            a(f"s_addc_u32 s{d+1}, s{hi}, 0")
        a(f"s_mov_b32 s{d+2}, {size}\ns_mov_b32 s{d+3}, 0x20000")
    def ring(bslot, st, hf): return vRING + ((bslot * 2 + st) * 2 + hf) * 6
    def issue(bslot, pk0):
        for st in range(2):
            a(f"v_mad_u32_u16 v{vAD+2*st}, v{pk0+st}, s{sROWB}, v{vC1}")
            a(f"v_mad_u32_u16 v{vAD+2*st+1}, v{pk0+st}, s{sROWB}, v{vC2}")
        for st in range(2):
            for hf in range(2):
                a(f"buffer_load_dwordx4 {vr(ring(bslot,st,hf),4)}, v{vAD+2*st}, {sr(sTB,4)}, 0 offen offset:{256*hf}")
            for hf in range(2):
                a(f"buffer_load_dword v{ring(bslot,st,hf)+5}, v{vAD+2*st+1}, {sr(sTB,4)}, 0 offen offset:{512+64*hf}")
    plist = {0: [(i, h) for i in (4, 5, 6, 7) for h in (0, 1)], 1: [(i, h) for i in (0, 1, 2, 3, 8, 9) for h in (0, 1)]}
    def park_issue(cls, n):
        for _ in range(n):
            i, h = plist[cls].pop(0)
            a(f"""
            s_add_u32 m0, s{sPM}, {i*8192 + h*4096}
            s_add_u32 s{sT+7}, s{sPS}, {(i*16 + h*8)*64*2048}
            buffer_load_dwordx4 v{vPD}, {sr(sSV,4)}, s{sT+7} offen lds
            """)
    def park_dma(na, nb, bopa=False, bopb=False):
        if not (na or nb or bopa or bopb): return
        Ls = a.label("K2_NOPARK"); Lb = a.label("K2_PARKB")
        a(f"s_cmp_eq_u32 s{sFIRST}, 0\ns_cbranch_scc1 {Ls}\ns_cmp_ge_u32 s{sW}, 4\ns_cbranch_scc1 {Lb}")
        if bopa: bop_loads()
        park_issue(0, na)
        a(f"s_branch {Ls}\n{Lb}:")
        if bopb: bop_loads()
        park_issue(1, nb)
        a(f"{Ls}:")
    def r_reads():
        for c in range(4):
            a(f"ds_read2_b32 {vr(vR+2*c,2)}, v{vPN} offset0:{32*c} offset1:{32*c+16}")
    def fetch_next():
        a(f"""
        v_and_b32 v{vEN}, 0xff, v{vEN}
        s_add_u32 s{sQ}, s{sQ}, 128
        s_lshr_b32 s{sDIR}, s{sDIR}, 1
        v_lshl_add_u32 v{vPN}, v{vEN}, 9, v{vC2}
        s_bitcmp1_b32 s{sDIR}, 0
        s_cselect_b32 s{sT}, 112, 0
        s_xor_b32 s{sT}, s{sT}, s{sQ}
        v_add_u32 v{vEN}, s{sT}, v{vG4}
        """)
        r_reads()
        a(f"ds_read_b32 v{vEN}, v{vEN}")
    def acc_init():
        for hf in range(2):
            HXY, HZS, LXY, LZS, BZ = ACC(hf)
            R = lambda c: vR + 2 * c + hf
            a(f"""
            v_and_b32 v{HXY}, s{sMASK}, v{R(1)}
            v_and_b32 v{HXY+1}, s{sMASK}, v{R(2)}
            v_and_b32 v{HZS}, s{sMASK}, v{R(3)}
            v_and_b32 v{HZS+1}, s{sMASK}, v{R(0)}
            v_lshlrev_b32 v{LXY}, 16, v{R(1)}
            v_lshlrev_b32 v{LXY+1}, 16, v{R(2)}
            v_lshlrev_b32 v{LZS}, 16, v{R(3)}
            v_lshlrev_b32 v{LZS+1}, 16, v{R(0)}
            v_mov_b64 {vr(BZ,2)}, 0
            """)
        a(f"v_mov_b32 v{vPA}, v{vPN}")

    Lrank = a.label("K2_RANK"); Lx = a.label("K2_X")
    stamp()
    t16, l16 = pT + 5, pT + 6
    sTOK = 27; WARR = 7
    INV = 0x10000
    a(f"""
    s_bfe_u32 s{sM}, s2, 0x20001
    s_lshr_b32 s{sRG}, s2, 3
    s_lshl_b32 s{sRG}, s{sRG}, 1
    s_and_b32 s{sT}, s2, 1
    s_or_b32 s{sRG}, s{sRG}, s{sT}
    s_and_b32 s{sL}, s{sW}, 3
    s_mov_b32 s{sFIRST}, 1
    """)
    srd(sDBG, 22, None, 0, 256)
    srd(sMISC, 24, None, WS_LUT, MISC_BYTES)
    a(f"s_mul_i32 s{sT}, s{sRG}, {LIST_STRIDE}")
    srd(sLIST, 24, sT, WS_LIST, LIST_STRIDE)
    srd(sSV, 4, None, 0, 0 if opt.get("nores") else N * 2048)
    def spin(body, sleep):
        L0 = a.label("K2_SPIN"); L1 = a.label("K2_SPINOK")
        a(f"s_mov_b32 s{sSPIN}, {SPIN_MAX}\n{L0}:")
        body()
        a(f"""
        s_cbranch_scc1 {L1}
        s_sub_u32 s{sSPIN}, s{sSPIN}, 1
        s_cbranch_scc1 {L1}
        s_sleep {sleep}
        s_branch {L0}
{L1}:
        """)
    def arrive():
        a(f"""
        s_mul_i32 s{sT}, s2, {ARRS}
        s_add_u32 s{sT}, s{sT}, {M_ARR}
        v_mbcnt_lo_u32_b32 v{pT+1}, -1, 0
        v_mov_b32 v{pT+3}, s{sTOK}
        v_lshlrev_b32 v{pT+1}, 2, v{pT+1}
        s_mov_b64 exec, {"0xffff" if ARRS == 64 else "0x7fffffff" if False else "0xffff"}
        {"s_mov_b32 exec_lo, -1" if ARRS == 128 else ""}
        buffer_store_dword v{pT+3}, v{pT+1}, {sr(sMISC,4)}, s{sT} offen sc1
        s_mov_b64 exec, -1
        """)
    def wait_arrivals(lo, hi, sleep):
        n = (hi - lo + 63) // 64
        a(f"v_and_b32 v{pT+1}, 63, v0")
        for i in range(n):
            a(f"v_add_u32 v{pEK+i}, {lo + 64*i}, v{pT+1}\nv_min_u32 v{pEK+i}, {hi-1}, v{pEK+i}\nv_mul_u32_u24 v{pEK+i}, {ARRS}, v{pEK+i}")
        a(f"s_mov_b32 s{sT}, {M_ARR}")
        sP = 84
        for i in range(n): a(f"s_mov_b64 {sr(sP+2*i,2)}, -1")
        def body():
            for i in range(n):
                Lq = a.label("K2_PQ")
                a(f"s_mov_b64 exec, {sr(sP+2*i,2)}\ns_cbranch_execz {Lq}")
                a(f"buffer_load_dword v{pEK+4+i}, v{pEK+i}, {sr(sMISC,4)}, s{sT} offen sc1\n{Lq}:")
            a("s_mov_b64 exec, -1\ns_waitcnt vmcnt(0)")
            for i in range(n):
                a(f"v_cmp_ne_u32 {sr(sP+2*i,2)}, s{sTOK}, v{pEK+4+i}")
            a(f"s_mov_b64 vcc, {sr(sP,2)}")
            for i in range(1, n):
                a(f"s_or_b64 vcc, vcc, {sr(sP+2*i,2)}")
            a("s_cmp_eq_u64 vcc, 0")
        spin(body, sleep)
    def consts():
        a(f"""
        v_and_b32 v{pT+1}, 63, v0
        v_lshlrev_b32 v{l16}, 4, v{pT+1}
        v_bfe_u32 v{pT+2}, v0, 5, 3
        v_bfe_u32 v{pT+3}, v0, 3, 2
        v_and_b32 v{vPD}, 7, v0
        v_lshlrev_b32 v{vPD}, 4, v{vPD}
        v_lshl_add_u32 v{vPD}, v{pT+3}, 9, v{vPD}
        v_lshl_add_u32 v{vPD}, v{pT+2}, 17, v{vPD}
        s_lshl_b32 s{sPS}, s{sRG}, 11
        s_lshl_b32 s{sT+5}, s{sM}, 7
        s_add_u32 s{sPS}, s{sPS}, s{sT+5}
        s_lshl_b32 s{sPM}, s{sL}, 10
        s_movk_i32 s{sROWB}, {ROWB}
        s_mov_b32 s{sMASK}, 0xffff0000
        s_mov_b32 s{sCB}, 0
        v_mov_b32 v{vPEND}, 0xff
        v_and_b32 v{vC1}, 7, v0
        v_bfe_u32 v{vC2}, v0, 3, 1
        v_lshlrev_b32 v{vC1}, 5, v{vC1}
        v_lshl_add_u32 v{vC1}, v{vC2}, 4, v{vC1}
        v_and_b32 v{vC2}, 15, v0
        v_lshlrev_b32 v{vC2}, 2, v{vC2}
        v_mul_u32_u24 v{vCO}, 255, v{vC2}
        v_sub_u32 v{vCO}, s{sPS}, v{vCO}
        v_bfe_u32 v{vG4}, v0, 4, 2
        v_lshlrev_b32 v{vG4}, 2, v{vG4}
        v_add_u32 v{vG4}, {L_SORT}, v{vG4}
        v_bfe_u32 v{pT+1}, v0, 5, 1
        v_and_b32 v{pT+2}, 1, v0
        v_cmp_eq_u32 vcc, v{pT+1}, v{pT+2}
        v_and_b32 v{pT+3}, 16, v0
        v_mov_b32 v{pT+4}, 32
        v_cndmask_b32 v{vML}, 0, v{pT+4}, vcc
        s_mul_i32 s{sT+5}, s{sM}, {TAB_SL}
        v_cndmask_b32 v{vCL}, 0, v{pT+3}, vcc
        v_add_u32 v{vCL}, {L_LUT}, v{vCL}
        """)
        srd(sTB, 24, sT + 5, WS_TAB, 0 if opt.get("notab") else TAB_SL)
        srd(sOUT, 20, None, 0, 0 if opt.get("nost") else N * 2048)
    def bop_loads():
        l16 = pNA
        a(f"v_and_b32 v{l16}, 63, v0\nv_lshlrev_b32 v{l16}, 4, v{l16}")
        a(f"s_mul_i32 s{sT+6}, s{sM}, 6144\ns_add_u32 s{sT+6}, s{sT+6}, {M_BOP}\ns_add_u32 s{sT+7}, s{sT+6}, 3072")
        for o in range(6):
            a(f"buffer_load_dwordx4 {vr(vB+4*o,4)}, v{l16}, {sr(sMISC,4)}, s{sT+6+o//3} offen offset:{1024*(o%3)} {opt.get('bopfl', 'sc1')}")
    def rec_loads():
        a(f"v_add_u32 v{t16}, s{sCB}, v0\nv_subrev_u32 v{t16}, 256, v{t16}\nv_lshlrev_b32 v{t16}, 4, v{t16}")
        for k in range(8):
            a(f"s_movk_i32 s{sT+2}, {k*4096}")
            a(f"buffer_load_dwordx4 {vr(pREC+4*k,4)}, v{t16}, {sr(sLIST,4)}, s{sT+2} offen sc1")
    z = pT + 8
    def null_fill():
        a(f"""
        v_mov_b32 v{z}, 0
        v_mov_b32 v{z+1}, 0
        v_mov_b32 v{z+2}, 0
        v_mov_b32 v{z+3}, 0xffff
        v_lshlrev_b32 v{pT+4}, 4, v0
        v_add_u32 v{pT+4}, {L_STREAM - 4096}, v{pT+4}
        """)
        nfull = STREAM_BYTES // 4096
        rem = (STREAM_BYTES - nfull * 4096) // 16
        for i in range(nfull):
            a(f"ds_write_b128 v{pT+4}, {vr(z,4)} offset:{i*4096}")
        a(f"""
        v_cmp_gt_u32 vcc, {256 + rem}, v0
        s_and_b64 exec, exec, vcc
        ds_write_b128 v{pT+4}, {vr(z,4)} offset:{nfull*4096}
        s_mov_b64 exec, -1
        v_lshlrev_b32 v{pT+4}, 3, v0
        v_add_u32 v{pT+4}, {L_LUT - 2048}, v{pT+4}
        v_cmp_gt_u32 vcc, 260, v0
        s_and_b64 exec, exec, vcc
        ds_write_b64 v{pT+4}, {vr(z,2)}
        s_mov_b64 exec, -1
        """)
    Lsd = a.label("K2_SIDE"); Lsz = a.label("K2_SZ"); LA = a.label("K2_A"); Lok = a.label("K2_GOK"); Lnag = a.label("K2_NOAGG"); Ls2 = a.label("K2_S2"); Lagd = a.label("K2_AGD"); Lea = a.label("K2_EARLY")
    def get_token():
        Ltk = a.label("K2_TOK")
        token_decode(a, VTOK, sTOK, sT)
        a(f"s_cbranch_scc1 {Ltk}")
        def body():
            sync_loads(a, sDBG, sMISC, sT, pT + 1, gran=False)
            a("s_waitcnt vmcnt(0)")
            token_decode(a, VTOK, sTOK, sT)
        spin(body, 8)
        a(f"{Ltk}:")
    def check():
        a(f"""
        v_readfirstlane_b32 s{sT}, v{VTOK+3}
        v_readfirstlane_b32 s{sTOT}, v{VTOK+2}
        s_nop 1
        s_cmp_eq_u32 s{sT}, s{sTOK}
        """)
    def wait_granule(sleep):
        def body():
            sync_loads(a, sDBG, sMISC, sT, pT + 1, tok=False)
            a("s_waitcnt vmcnt(0)")
            check()
        spin(body, sleep)
    a(f"""
    s_cmp_ge_u32 s2, {WG_GEMM0}
    s_cbranch_scc1 {Lsd}
    s_cmp_lt_u32 s{sW}, 4
    s_cbranch_scc1 {Lsz}
    """)
    zero_counters(a, pT + 1, pT + 2)
    a(f"""
{Lsz}:
    v_mov_b32 v{pT+7}, {L_PASS}
    s_waitcnt vmcnt(0) lgkmcnt(0)
    s_barrier
    s_cmp_lg_u32 s{sW}, {WSY}
    s_cbranch_scc1 {Ls2}
    """)
    get_token()
    arrive()
    if opt.get("aggst") == 1: a("s_waitcnt vmcnt(0)\ns_memrealtime s[92:93]")
    if opt.get("aggst") == 5: a("s_memrealtime s[92:93]")
    a(f"s_cmp_lg_u32 s2, {WG_AGG}\ns_cbranch_scc1 {Lnag}")
    wait_arrivals(0, WG_AGG, opt.get("sl0", 4))
    a(f"""
    {"s_memrealtime s[92:93]" if opt.get("aggst") == 2 else ""}
    v_lshlrev_b32 v{pT+1}, 2, v{pT+1}
    buffer_load_dword v{pT+2}, v{pT+1}, {sr(sDBG,4)}, 0 offen sc1
    v_lshlrev_b32 v{pT+1}, 1, v{pT+1}
    v_mov_b32 v{pT+3}, s{sTOK}
    s_mov_b32 s{sT}, {M_TOT}
    s_waitcnt vmcnt(0)
    buffer_store_dwordx2 {vr(pT+2,2)}, v{pT+1}, {sr(sMISC,4)}, s{sT} offen sc1
    v_readlane_b32 s{sT}, v{pT+2}, {2*(WG_AGG>>3) + (WG_AGG&1)}
    v_mov_b32 v{VTOK+3}, s{sTOK}
    s_nop 0
    v_mov_b32 v{VTOK+2}, s{sT}
    s_branch {Lagd}
{Lnag}:
    """)
    wait_granule(opt.get("sl1", 16))
    a(f"""
{Lagd}:
    {"s_memrealtime s[92:93]" if opt.get("aggst") == 3 else ""}
    s_mov_b64 exec, 1
    ds_write_b128 v{pT+7}, {vr(VTOK,4)} offset:16
    s_mov_b64 exec, -1
    s_waitcnt lgkmcnt(0)
{Ls2}:
    s_barrier
    ds_read_b128 {vr(VTOK,4)}, v{pT+7} offset:16
    s_waitcnt lgkmcnt(0)
{Lsd}:
    s_cmp_lt_u32 s{sW}, 4
    s_cbranch_scc1 {LA}
    s_cmp_lt_u32 s2, {WG_GEMM0}
    s_cselect_b32 s{SEARLY}, 0, s{SEARLY}
    s_cmp_eq_u32 s{SEARLY}, 1
    s_cbranch_scc1 {Lea}
    """)
    get_token()
    check()
    a(f"s_cbranch_scc1 {Lok}")
    wait_granule(8)
    pkb = opt.get("pkb", [2, 0, 2, 4, 2, 2])
    pka = opt.get("pka", [2, 2, 2, 2, 0])
    assert sum(pkb) == 12 and sum(pka) == 8
    a(f"""
{Lok}:
    s_and_b32 s{sTOT}, s{sTOT}, 0x3ffff
    s_min_u32 s{sTOT}, s{sTOT}, {LCAP}
    s_lshl_b32 s{sLIST+2}, s{sTOT}, 4
    """)
    first_loads(a, sLIST, sMISC, sT, pT + 5)
    a(f"{Lea}:\ns_lshl_b32 s{sLIST+2}, s{sTOT}, 4")
    consts()
    a(f"""
    v_mov_b32 v{pT+1}, {L_PASS}
    v_mov_b32 v{pT+2}, s{sTOT}
    v_mov_b32 v{pT+3}, s{sTOK}
    ds_write_b64 v{pT+1}, {vr(pT+2,2)}
    v_lshlrev_b32 v{pT+7}, 4, v0
    v_add_u32 v{pT+7}, {L_LUT + NRS*32 - 4096}, v{pT+7}
    """)
    null_fill()
    park_issue(1, pkb[0])
    a(f"s_waitcnt vmcnt({pkb[0]}) lgkmcnt(0)")
    for i in range(4):
        a(f"ds_write_b128 v{pT+7}, {vr(pLT+4*i,4)} offset:{4096*i}")
    one = pT + 4; vAL = pT + 10
    a(f"""
{Lrank}:
    s_waitcnt lgkmcnt(0)
    {"s_memrealtime s[92:93]" if opt.get("aggst") == 4 else ""}
    v_mov_b32 v{one}, 1
    v_mov_b32 v{vAL}, {L_ALLOC}
    s_sub_u32 s{sT+2}, s{sTOT}, s{sCB}
    s_add_u32 s{sT+2}, s{sT+2}, 256
    """)
    for k in range(8):
        r0 = pREC + 4 * k
        Lskip = a.label("K2_NORARE")
        a(f"""
        v_add_u32 v{pT+5}, {k*256}, v0
        v_and_b32 v{pT+6}, {1<<k}, v{vPEND}
        v_cmp_gt_u32 vcc, s{sT+2}, v{pT+5}
        v_cmp_ne_u32 s[{sT}:{sT+1}], 0, v{pT+6}
        v_and_b32 v{pDL+k}, 0x1ff, v{r0}
        v_mov_b32 v{pRANK+k}, {INV}
        s_and_b64 s[{sT}:{sT+1}], vcc, s[{sT}:{sT+1}]
        v_cmp_gt_u32 vcc, {2*NKEY}, v{pDL+k}
        v_lshlrev_b32 v{pDL+k}, 2, v{pDL+k}
        v_add_u32 v{pDL+k}, {L_CNT}, v{pDL+k}
        v_mov_b32 v{pRS+k}, 0
        s_and_b64 s[{sT}:{sT+1}], vcc, s[{sT}:{sT+1}]
        v_cmp_gt_i32 vcc, 0, v{r0+3}
        v_and_b32 v{r0}, s{sMASK}, v{r0}
        {f"v_and_b32 v{r0+3}, {0xffff0000 | opt['srcmask']}, v{r0+3}" if opt.get("srcmask") else ""}
        s_and_b64 exec, vcc, s[{sT}:{sT+1}]
        s_cbranch_execz {Lskip}
        ds_add_rtn_u32 v{pT+8}, v{vAL}, v{one} offset:8
        v_bfe_u32 v{pT+7}, v{r0+3}, 16, 15
        v_lshlrev_b32 v{pT+7}, 5, v{pT+7}
        buffer_load_dwordx4 {vr(pRARE+8*k,4)}, v{pT+7}, {sr(sMISC,4)}, 0 offen sc1
        buffer_load_dwordx4 {vr(pRARE+8*k+4,4)}, v{pT+7}, {sr(sMISC,4)}, 0 offen offset:16 sc1
        v_and_b32 v{r0+3}, 0xffff, v{r0+3}
        v_mov_b32 v{pRANK+k}, {INV-1}
        s_waitcnt lgkmcnt(0)
        v_add_u32 v{pT+8}, 1, v{pT+8}
        v_cmp_le_u32 vcc, {NRS}, v{pT+8}
        v_lshl_or_b32 v{r0+3}, v{pT+8}, 16, v{r0+3}
        v_lshlrev_b32 v{pT+8}, 5, v{pT+8}
        s_andn2_b64 s[{sT}:{sT+1}], s[{sT}:{sT+1}], vcc
        s_andn2_b64 exec, exec, vcc
        v_add_u32 v{pRS+k}, {L_LUT}, v{pT+8}
{Lskip}:
        s_mov_b64 exec, s[{sT}:{sT+1}]
        ds_add_rtn_u32 v{pRANK+k}, v{pDL+k}, v{one}
        s_mov_b64 exec, -1
        """)
    Lnp1 = a.label("K2_NP1")
    a(f"s_cmp_eq_u32 s{sFIRST}, 0\ns_cbranch_scc1 {Lnp1}")
    park_issue(1, pkb[1])
    a(f"""
{Lnp1}:
    s_waitcnt lgkmcnt(0)
    s_barrier
    s_cmp_lg_u32 s{sW}, {WARR}
    s_cbranch_scc1 {Lx}
    s_cmp_lt_u32 s2, {WG_GEMM0}
    s_cbranch_scc1 {Lx}
    s_cmp_eq_u32 s{sFIRST}, 0
    s_cbranch_scc1 {Lx}
    """)
    arrive()
    a(f"s_branch {Lx}")
    a(f"{LA}:")
    consts()
    a(f"""
    v_mov_b32 v{pT+7}, {L_PASS}
    s_waitcnt vmcnt(0)
    s_barrier
    ds_read_b64 {vr(pT+2,2)}, v{pT+7}
    s_waitcnt lgkmcnt(0)
    v_readfirstlane_b32 s{sTOT}, v{pT+2}
    v_readfirstlane_b32 s{sTOK}, v{pT+3}
    """)
    park_issue(0, pka[4])
    a(f"""
{Lx}:
    v_mov_b32 v{one}, 1
    v_mov_b32 v{vAL}, {L_ALLOC}
    """)
    stamp()
    L7 = a.label("K2_P7"); L8 = a.label("K2_P8")
    deg, rk, hh, bn = pT + 5, pT + 6, pT + 7, pT + 11
    a(f"""
    s_cmp_ge_u32 s{sW}, 5
    s_cbranch_scc1 {L7}
    v_lshlrev_b32 v{pT+8}, 2, v0
    v_add_u32 v{pT+8}, {L_CNT}, v{pT+8}
    ds_read_b32 v{deg}, v{pT+8}
    v_cmp_le_u32 vcc, {NKEY}, v0
    v_mov_b32 v{bn}, 31
    v_mov_b32 v{pT+9}, 63
    v_cndmask_b32 v{bn}, v{bn}, v{pT+9}, vcc
    s_waitcnt lgkmcnt(0)
    v_min_u32 v{deg}, {CAPN}, v{deg}
    v_sub_u32 v{bn}, v{bn}, v{deg}
    v_lshlrev_b32 v{bn}, 2, v{bn}
    v_add_u32 v{pT+8}, {L_HIST}, v{bn}
    ds_add_rtn_u32 v{rk}, v{pT+8}, v{one}
    s_waitcnt lgkmcnt(0)
{L7}:
    """)
    park_dma(pka[0], pkb[2], bopb=True)
    a(f"""
    s_barrier
    s_cmp_ge_u32 s{sW}, 5
    s_cbranch_scc1 {L8}
    v_and_b32 v{pT+8}, 63, v0
    v_lshlrev_b32 v{pT+8}, 2, v{pT+8}
    v_add_u32 v{pT+8}, {L_HIST}, v{pT+8}
    ds_read_b32 v{hh}, v{pT+8}
    v_subrev_u32 v{pT+8}, {NKEY}, v0
    v_min_u32 v{pT+8}, v{pT+8}, v0
    v_lshl_or_b32 v{deg}, v{deg}, 16, v{pT+8}
    s_waitcnt lgkmcnt(0)
    v_mov_b32 v{pT+9}, v{hh}
    """)
    dpp_scan(a, "v_add_u32", hh)
    a(f"""
    v_sub_u32 v{hh}, v{hh}, v{pT+9}
    ds_bpermute_b32 v{pT+9}, v{bn}, v{hh}
    s_waitcnt lgkmcnt(0)
    v_add_lshl_u32 v{pT+9}, v{pT+9}, v{rk}, 2
    v_add_u32 v{pT+9}, {L_SORT}, v{pT+9}
    ds_write_b32 v{pT+9}, v{deg}
    s_waitcnt lgkmcnt(0)
{L8}:
    """)
    park_dma(pka[1], pkb[3])
    assert L_SORT % 128 == 0 or True
    ek = pEK
    a(f"""
    s_barrier
    s_lshl_b32 s{sQ}, s{sW}, 4
    s_xor_b32 s{sT+1}, s{sQ}, 112
    v_add_u32 v{pT+6}, s{sQ}, v{vG4}
    v_add_u32 v{pT+7}, s{sT+1}, v{vG4}
    """)
    for k in range(10):
        a(f"ds_read_b32 v{ek+k}, v{pT+6+DIRS[k]} offset:{128*k}")
    a("s_waitcnt lgkmcnt(0)")
    for k in range(10):
        a(f"v_readfirstlane_b32 s{sN0+k}, v{ek+k}")
    a(f"v_mov_b32 v{vEN}, v{ek}\ns_mov_b32 s{sDIR}, {sum(d << k for k, d in enumerate(DIRS))}")
    a(f"s_mov_b64 {sr(sPC,2)}, 0\ns_mov_b32 s{sREM}, 0")
    for k in range(10):
        a(f"s_lshr_b32 s{sT}, s{sN0+k}, 16")
        a(f"s_mov_b32 s{sN0+k}, s{sREM}\ns_add_u32 s{sREM}, s{sREM}, s{sT}")
        a(f"s_lshl_b32 s{sT}, s{sT}, {5*(k%5)}\ns_or_b32 s{sPC+k//5}, s{sPC+k//5}, s{sT}")
    a(f"""
    s_add_u32 s{sREM}, s{sREM}, 1
    s_lshr_b32 s{sREM}, s{sREM}, 1
    v_mov_b32 v{pT+8}, s{sREM}
    s_mov_b64 exec, 1
    ds_add_rtn_u32 v{pT+9}, v{vAL}, v{pT+8}
    s_mov_b64 exec, -1
    """)
    for k in range(10):
        a(f"v_and_b32 v{ek+k}, 0xff, v{ek+k}")
        a(f"v_lshlrev_b32 v{ek+k}, 2, v{ek+k}")
        a(f"v_add_u32 v{ek+k}, {L_NADDR + (NKEY*4 if k >= 5 else 0)}, v{ek+k}")
    a(f"""
    v_bfe_u32 v{pT+5}, v0, 4, 2
    v_bfe_u32 v{pT+6}, v0, 1, 1
    v_bfe_u32 v{pT+7}, v0, 2, 2
    v_lshlrev_b32 v{pT+6}, 6, v{pT+6}
    v_lshl_add_u32 v{pT+6}, v{pT+7}, 4, v{pT+6}
    s_waitcnt lgkmcnt(0)
    v_readfirstlane_b32 s{sT}, v{pT+9}
    s_nop 1
    s_lshl_b32 s{sT}, s{sT}, 7
    s_add_u32 s{sT}, s{sT}, {L_STREAM}
    v_lshl_add_u32 v{vS}, v{pT+5}, 4, s{sT}
    v_add_u32 v{vA}, s{sT}, v{pT+6}
    """)
    for k in range(10):
        a(f"v_lshl_add_u32 v{pT+7+(k&1)}, s{sN0+k}, 6, v{vS}")
        a(f"ds_write_b32 v{ek+k}, v{pT+7+(k&1)}")
    park_dma(pka[2], pkb[4], bopa=True)
    a("s_waitcnt lgkmcnt(0)\ns_barrier")
    LsA = a.label("K2_SCA"); Lse = a.label("K2_SCE")
    a(f"s_cmp_lt_u32 s{sW}, 4\ns_cbranch_scc1 {LsA}")
    for k in range(8):
        a(f"ds_read_b32 v{pNA+k}, v{pDL+k} offset:{L_NADDR - L_CNT}")
    a(f"v_mov_b32 v{vPEND}, 0\ns_mov_b32 s{sT+2}, {INV}")
    for k in range(8):
        r0 = pREC + 4 * k
        Lnpd = a.label("K2_NOPEND")
        a(f"""
        v_cmp_gt_u32 vcc, {CAPN}, v{pRANK+k}
        v_cmp_gt_u32 s[{sT}:{sT+1}], s{sT+2}, v{pRANK+k}
        {"s_waitcnt lgkmcnt(0)" if k == 0 else ""}
        v_lshl_add_u32 v{pNA+k}, v{pRANK+k}, 6, v{pNA+k}
        s_mov_b64 exec, vcc
        ds_write_b128 v{pNA+k}, {vr(r0,4)}
        s_andn2_b64 exec, s[{sT}:{sT+1}], vcc
        s_cbranch_execz {Lnpd}
        v_or_b32 v{vPEND}, {1<<k}, v{vPEND}
        ds_write_b32 v{vAL}, v{one} offset:4
{Lnpd}:
        s_mov_b64 exec, -1
        """)
    for k in range(8):
        Lskip = a.label("K2_NORARE2")
        a(f"""
        v_cmp_ne_u32 vcc, 0, v{pRS+k}
        s_and_b64 exec, exec, vcc
        s_cbranch_execz {Lskip}
        s_waitcnt vmcnt(0) lgkmcnt(0)
        ds_write_b128 v{pRS+k}, {vr(pRARE+8*k,4)}
        ds_write_b128 v{pRS+k}, {vr(pRARE+8*k+4,4)} offset:16
{Lskip}:
        s_mov_b64 exec, -1
        """)
    Lnag2 = a.label("K2_NOAGG2")
    a(f"""
    s_branch {Lse}
{LsA}:
    s_cmp_eq_u32 s{sFIRST}, 0
    s_cbranch_scc1 {Lse}
    s_cmp_lg_u32 s{sW}, 3
    s_cbranch_scc1 {Lse}
    s_cmp_lg_u32 s2, {WG_AGG}
    s_cbranch_scc1 {Lnag2}
    """)
    wait_arrivals(WG_GEMM0, 256, opt.get("sl3", 1))
    if opt.get("aggst") in (6, 8): a("s_memrealtime s[92:93]")
    a(f"""
    s_mov_b32 s{sT}, {M_GO}
    v_lshlrev_b32 v{pT+1}, 2, v{pT+1}
    v_mov_b32 v{pT+3}, s{sTOK}
    s_mov_b32 exec_hi, 0
    buffer_store_dword v{pT+3}, v{pT+1}, {sr(sMISC,4)}, s{sT} offen sc1
    s_mov_b64 exec, -1
{Lnag2}:
    """)
    pre = opt.get("prepoll", 1)
    if pre: park_issue(0, pka[3]); plist[0] = [(7, 0), (7, 1)][-pka[3]:] if pka[3] else []
    a(f"""
    s_mov_b32 s{sT}, {M_GO}
    v_mov_b32 v{pT+1}, 0
    s_mov_b64 exec, 1
    """)
    def body():
        a(f"""
        buffer_load_dword v{pT+2}, v{pT+1}, {sr(sMISC,4)}, s{sT} offen sc1
        s_waitcnt vmcnt(0)
        v_readfirstlane_b32 s{sT+1}, v{pT+2}
        s_nop 1
        s_cmp_eq_u32 s{sT+1}, s{sTOK}
        """)
    spin(body, opt.get("sl2", 2))
    Lsf = a.label("K2_SCF")
    a(f"""
    s_mov_b64 exec, -1
    {"buffer_inv sc1" if opt.get("inv", 0) else ""}
    s_waitcnt vmcnt(0)
    {f"s_branch {Lsf}" if pre else ""}
{Lse}:
    """)
    park_dma(pka[3], pkb[5])
    nob7 = opt.get("nob7", 1)
    a(f"{Lsf}:\ns_waitcnt {'vmcnt(0) ' if nob7 else ''}lgkmcnt(0)\ns_barrier")
    stamp()
    a(f"ds_read_b32 v{vT}, v{vAL} offset:4")
    for b in range(DP):
        a(f"ds_read2_b32 {vr(vD+2*b,2)}, v{vS} offset0:{32*b+3} offset1:{32*b+19}")
    a(f"ds_read_u16 v{vLI}, v{vA} offset:14")
    a("s_waitcnt lgkmcnt(0)")
    a(f"v_readfirstlane_b32 s{sMORE}, v{vT}")
    for b in range(DP):
        issue(b, vD + 2 * b)
    a(f"""
    s_add_u32 s{sT}, s{sCB}, {CHUNK}
    s_cmp_lt_u32 s{sT}, s{sTOT}
    s_cselect_b32 s{sT}, 2, 0
    s_or_b32 s{sMORE}, s{sMORE}, s{sT}
    s_mov_b32 s{sSLOT}, 10
    s_mov_b64 vcc, {-1 if opt.get("novmem") else 0}
    v_mad_u32_u16 v{vAD}, v{vLI}, v{vML}, v{vCL}
    {"" if nob7 else f"s_waitcnt vmcnt({8*DP})"}
    {"" if nob7 else "s_barrier"}
    ds_read_b128 {vr(vAOP,4)}, v{vAD}
    ds_read2_b32 {vr(vPK,2)}, v{vS} offset0:{32*DP+3} offset1:{32*DP+19}
    ds_read_u16 v{vLI}, v{vA} offset:{128+14}
    ds_read_b128 {vr(vRH,4)}, v{vS}
    ds_read_b128 {vr(vRH+4,4)}, v{vS} offset:64
    """)
    if stamps:
        stamp(); a("s_memtime s[80:81]\ns_waitcnt lgkmcnt(0)")
    Lph = [a.label(f"K2_PH{p}") for p in range(NRG)]
    Lsk = [a.label(f"K2_SK{p}") for p in range(NRG)]
    Lbk = [a.label(f"K2_BK{p}") for p in range(NRG)]
    Ltr = [[a.label(f"K2_EP{p}{st}") for st in range(2)] for p in range(NRG)]
    Lz = [[a.label(f"K2_EZ{p}{st}") for st in range(2)] for p in range(NRG)]
    Lrt = [[a.label(f"K2_RT{p}{st}") for st in range(2)] for p in range(NRG)]
    Lrt[NRG - 1][1] = Lph[0]
    Ldone = a.label("K2_DONE")
    sOM = 78; sPR = 79
    a(f"""
    s_cmp_eq_u32 s{sMORE}, 0
    s_cselect_b32 s{sOM}, 0x3e, 0
    s_lshr_b32 s{sPR}, s{sW}, 2
    """)
    fetch_next()
    a("s_waitcnt lgkmcnt(0)")
    acc_init()
    fetch_next()
    a(f"""
    s_and_b32 s{sCNT}, s{sPC}, 31
    s_cbranch_scc0 {Lz[NRG-1][1]}
    s_sub_u32 s{sCNT}, s{sCNT}, 1
    """)
    for p in range(NRG):
        a(f"{Lph[p]}:")
        a(f"s_waitcnt vmcnt({8*(DP-1)}) lgkmcnt(2)\n{Lph[p]}_W:")
        sh = []
        for st in range(2):
            for hf in range(2):
                rg = ring(p, st, hf); e = vX + 4 * (2 * st + hf)
                sh += [f"v_lshlrev_b64 {vr(e,2)}, 16, {vr(rg,2)}", f"v_lshlrev_b64 {vr(e+2,2)}, 16, {vr(rg+2,2)}", f"v_lshlrev_b32 v{rg+4}, 16, v{rg+5}"]
        for o in range(6):
            if not opt.get("nomfma"):
                a(f"v_mfma_f32_16x16x32_bf16 {vr(vD+4*o,4)}, {vr(vAOP,4)}, {vr(vB+4*o,4)}, 0")
            if not opt.get("novalu"):
                a(sh[2 * o]); a(sh[2 * o + 1])
        il = opt.get("il", 0)
        a(f"s_sub_u32 s{sREM}, s{sREM}, 1\ns_cmp_lt_u32 s{sREM}, {DP}\ns_cbranch_scc1 {Lsk[p]}")
        if il:
            for st in range(2):
                a(f"v_mad_u32_u16 v{vAD+2*st}, v{vPK+st}, s{sROWB}, v{vC1}")
                a(f"v_mad_u32_u16 v{vAD+2*st+1}, v{vPK+st}, s{sROWB}, v{vC2}")
        else:
            issue((p + DP) % NRG, vPK)
        a(f"{Lbk[p]}:")
        assert (p + DP + 1) * 32 + 19 < 256
        a(f"""
        v_mad_u32_u16 v{vT}, v{vLI}, v{vML}, v{vCL}
        ds_read_b128 {vr(vAOP,4)}, v{vT}
        ds_read2_b32 {vr(vPK,2)}, v{vS} offset0:{(p+DP+1)*32+3} offset1:{(p+DP+1)*32+19}
        ds_read_u16 v{vLI}, v{vA} offset:{(p+2)*128+14}
        s_waitcnt lgkmcnt(3)
        """)
        for st in range(2):
            L = []
            for hf in range(2):
                HXY, HZS, LXY, LZS, BZ = ACC(hf)
                rg = ring(p, st, hf); rh = vRH + 4 * st; e = vX + 4 * (2 * st + hf); t = vT + 2 * hf
                d1, d2, d3 = vD + 12 * hf + 2 * st, vD + 12 * hf + 4 + 2 * st, vD + 12 * hf + 8 + 2 * st
                L.append(f"""v_pk_fma_f32 {vr(HXY,2)}, {vr(d1,2)}, {vr(rg,2)}, {vr(HXY,2)} op_sel_hi:[0,1,1]
                v_pk_mul_f32 {vr(t,2)}, {vr(d3,2)}, {vr(rg+4,2)}
                v_pk_fma_f32 {vr(HZS,2)}, {vr(d1,2)}, {vr(rg+2,2)}, {vr(HZS,2)}
                v_pk_fma_f32 {vr(LXY,2)}, {vr(d2,2)}, {vr(e,2)}, {vr(LXY,2)} op_sel_hi:[0,1,1]
                v_pk_fma_f32 {vr(LZS,2)}, {vr(d2,2)}, {vr(e+2,2)}, {vr(LZS,2)}
                v_pk_fma_f32 {vr(BZ,2)}, {vr(t,2)}, {vr(rh+2,2)}, {vr(BZ,2)} op_sel_hi:[1,0,1]
                v_pk_fma_f32 {vr(HXY,2)}, {vr(t,2)}, {vr(rh,2)}, {vr(HXY,2)} op_sel:[1,0,0]
                v_pk_fma_f32 {vr(LXY,2)}, {vr(t,2)}, {vr(rh,2)}, {vr(LXY,2)} op_sel_hi:[0,1,1]""".split("\n"))
            bs = (p + DP) % NRG
            X4 = lambda hf: f"buffer_load_dwordx4 {vr(ring(bs,st,hf),4)}, v{vAD+2*st}, {sr(sTB,4)}, 0 offen offset:{256*hf}"
            X1 = lambda hf: f"buffer_load_dword v{ring(bs,st,hf)+5}, v{vAD+2*st+1}, {sr(sTB,4)}, 0 offen offset:{512+64*hf}"
            groups = {1: {0: [X4(0)], 3: [X4(1)], 6: [X1(0), X1(1)]}, 2: {0: [X4(0), X1(0)], 4: [X4(1), X1(1)]}, 3: {0: [X4(0), X4(1), X1(0), X1(1)]},
                      4: {0: [X4(0)], 2: [X4(1)], 4: [X1(0)], 6: [X1(1)]}}.get(il, {})
            for k, (l0, l1) in enumerate(zip(*L)):
                if k in groups:
                    Lg = a.label("K2_G")
                    a(f"s_cbranch_vccnz {Lg}")
                    for x in groups[k]: a(x)
                    a(f"{Lg}:")
                if not opt.get("novalu"):
                    a(l0); a(l1)
            a(f"ds_read_b128 {vr(vRH+4*st,4)}, v{vS} offset:{(p+1)*128+64*st}")
            if st == 1 and p == NRG - 1:
                a(f"v_add_u32 v{vS}, {128*NRG}, v{vS}\nv_add_u32 v{vA}, {128*NRG}, v{vA}")
            a(f"s_sub_u32 s{sCNT}, s{sCNT}, 1")
            if st == 1 and p == NRG - 1:
                a(f"s_cbranch_scc0 {Lph[0]}")
            else:
                a(f"s_cbranch_scc1 {Ltr[p][st]}\n{Lrt[p][st]}:")
    order = [(NRG - 1, 1)] + [(p, st) for p in range(NRG) for st in range(2) if (p, st) != (NRG - 1, 1)]
    for (p, st) in order:
        Lpw = a.label("K2_PW"); Lnx = a.label("K2_NX"); Ltb = a.label("K2_TB"); Lin = a.label("K2_IN"); Lp0 = a.label("K2_P0")
        a(f"{Ltr[p][st]}:")
        for hf in range(2):
            HXY, HZS, LXY, LZS, BZ = ACC(hf)
            R = lambda c: vE + 2 * c + hf
            a(f"""
            v_add_f32 v{LZS}, v{LZS}, v{BZ}
            v_add_f32 v{HZS}, v{HZS}, v{BZ+1}
            v_cvt_pk_bf16_f32 v{R(0)}, v{LZS+1}, v{HZS+1}
            v_cvt_pk_bf16_f32 v{R(1)}, v{LXY}, v{HXY}
            v_cvt_pk_bf16_f32 v{R(2)}, v{LXY+1}, v{HXY+1}
            v_cvt_pk_bf16_f32 v{R(3)}, v{LZS}, v{HZS}
            """)
        a(f"""
        s_waitcnt lgkmcnt(1)
        s_bitcmp1_b32 s{sOM}, s{sSLOT}
        s_cbranch_scc0 {Lpw}
        v_lshl_add_u32 v{vO}, v{vPA}, 8, v{vCO}
        """)
        for c in range(4):
            for hf in range(2):
                a(f"buffer_store_dword v{vE+2*c+hf}, v{vO}, {sr(sOUT,4)}, 0 offen offset:{512*c+64*hf} {st_fl}")
        a(f"""
{Lnx}:
        s_lshr_b32 s{sPC}, s{sPC}, 5
        s_sub_u32 s{sSLOT}, s{sSLOT}, 1
        s_cmp_eq_u32 s{sSLOT}, 0
        s_cbranch_scc1 {Ldone}
{Lin}:
        """)
        if opt.get("prio", 2):
            a(f"s_xor_b32 s{sPR}, s{sPR}, 1\ns_setprio 0\ns_cbranch_scc0 {Lp0}\ns_setprio 1\n{Lp0}:")
        acc_init()
        fetch_next()
        a(f"""
        s_and_b32 s{sCNT}, s{sPC}, 31
        s_cbranch_scc0 {Lz[p][st]}
        s_sub_u32 s{sCNT}, s{sCNT}, 1
        {f"s_waitcnt vmcnt({8*(DP-1)})" if st == 1 else ""}
        s_branch {Lrt[p][st] if st == 0 else Lph[(p+1)%NRG] + "_W"}
{Lz[p][st]}:
        s_waitcnt lgkmcnt(0)
        s_branch {Ltr[p][st]}
{Lpw}:
        """)
        for c in range(4):
            a(f"ds_write2_b32 v{vPA}, v{vE+2*c}, v{vE+2*c+1} offset0:{32*c} offset1:{32*c+16}")
        a(f"""
        s_cmp_lg_u32 s{sSLOT}, 6
        s_cbranch_scc1 {Lnx}
        s_mov_b32 s{sSLOT}, 5
        s_mov_b32 s{sPC}, s{sPC+1}
        s_waitcnt lgkmcnt(0)
        s_barrier
        """)
        r_reads()
        a(f"s_waitcnt lgkmcnt(0)\ns_branch {Lin}")
    for p in range(NRG):
        a(f"{Lsk[p]}:\ns_mov_b64 vcc, -1\ns_waitcnt vmcnt(0)\ns_branch {Lbk[p]}")
    Lfin = a.label("K2_FIN"); Lnext = a.label("K2_NEXT"); LrB = a.label("K2_RB")
    a(f"""
{Ldone}:
    s_cmp_eq_u32 s{sMORE}, 0
    s_cbranch_scc1 {Lfin}
    s_bitcmp1_b32 s{sMORE}, 0
    s_cbranch_scc1 {Lnext}
    s_add_u32 s{sCB}, s{sCB}, {CHUNK}
    v_mov_b32 v{vPEND}, 0xff
{Lnext}:
    s_mov_b32 s{sFIRST}, 0
    s_waitcnt vmcnt(0) lgkmcnt(0)
    s_barrier
    s_cmp_ge_u32 s{sW}, 4
    s_cbranch_scc1 {LrB}
    s_barrier
    s_barrier
    s_branch {Lx}
{LrB}:
    """)
    rec_loads()
    null_fill()
    zero_counters(a, pT + 1, pT + 2)
    a(f"""
    s_waitcnt vmcnt(0) lgkmcnt(0)
    s_barrier
    s_branch {Lrank}
{Lfin}:
    """)
    if stamps:
        stamp()
        a("s_memtime s[82:83]")
        a("s_waitcnt vmcnt(0)")
        stamp()
        a("s_waitcnt lgkmcnt(0)\ns_sub_u32 s80, s82, s80\ns_mov_b32 s81, 0")
        STR.append(80); nst[0] += 1
        a(f"""
        s_waitcnt lgkmcnt(0)
        s_add_u32 s{sLIST}, s24, {WS_DIAG + (1<<20)}
        s_addc_u32 s{sLIST+1}, s25, 0
        s_mov_b32 s{sLIST+2}, 0x100000
        s_lshl_b32 s{sT}, s2, 3
        s_add_u32 s{sT}, s{sT}, s{sW}
        s_lshl_b32 s{sT}, s{sT}, 7
        v_mov_b32 v1, s{sT}
        s_mov_b64 exec, 1
        """)
        for i in range(nst[0]):
            a(f"v_mov_b32 v2, s{STR[i]}\nv_mov_b32 v3, s{STR[i]+1}")
            a(f"buffer_store_dwordx2 v[2:3], v1, {sr(sLIST,4)}, 0 offen offset:{8*i}")
    a(f"{Lend}:\ns_endpgm")
    return nv, 102
```

```python
N = 10000
E = 160000
NSL = 4
NR = 64
NKEY = 160
HALF = 5000
NP = 40
EPW = E // NP
ROWB = 640
TAB_SL = N * ROWB
WS_TAB = 0
WS_LUT = WS_TAB + NSL * TAB_SL
LUT_ROWS = 2080
LUT_BYTES = LUT_ROWS * 32
M_LUT = 0
M_END = 67584
M_BOP = M_END + 16384
M_ARR = M_BOP + 24576
import os
ARRS = int(os.environ.get('ARRS', 64))
M_TOT = M_ARR + 256 * 128
M_GO = M_TOT + 512
M_EPO = M_GO + 128
MISC_BYTES = M_EPO + 128
WS_LIST = 26 * 1024 * 1024
import os
PADG = int(os.environ.get('PADG', 4))
LCAP = E + 512
LIST_STRIDE = LCAP * 16
WS_DIAG = 200 * 1024 * 1024
assert WS_LIST + NR * LIST_STRIDE <= WS_DIAG
DBASE = 0x3880
DCUT = 0x409D
LUT_THR = 1568
NRS = 512
CAPN = 30
NGEMM = 209
WG_GEMM0 = 47
SPIN_MAX = 1 << 17
WG_AGG = 46
VTOK = 12
WSY = 4
EREC = 112
ELT = 144
SEARLY = 19
```

```python
import sys, json
from asmlib import *
from layout import *
import gen_k1, gen_k2
HDR = open('standalone__molecular_angular_painn__graph.s.ref').read().split("; Override")[0]
NAME = "standalone__molecular_angular_painn__graph_kernel"
def build(opt):
    body = Asm()
    nv, ns = gen_k1.gen_k1(body, NAME, opt, gen_k2.gen_k2)
    lds = max(gen_k1.K1_LDS, gen_k2.K2_LDS)
    k = f"kernel={NAME} " if opt.get("list") else ""
    launches = [f"; @launch {k}grid=(256,1,1) block=(512,1,1) lds={lds}"]
    descs = [kernel_desc(NAME, nv, ns)]
    if opt.get("probe") is not None:
        from gen_k2 import dpp_scan
        G0 = WG_GEMM0 * 8
        K2 = 1 << 20
        items = [(0, 0, G0, 2048, "min"), (0, 0, G0, 2048, "max"), (0, 1, G0, 2048, "max"), (0, 3, G0, 2048, "min"), (0, 3, G0, 2048, "max"),
                 (0, 5, G0, 2048, "min"), (0, 5, G0, 2048, "max"), (K2, 0, 0, G0, "max"), (K2, 2, 0, 2048, "min"), (K2, 2, 0, 2048, "max"),
                 (K2, 3, 0, 2048, "min"), (K2, 3, 0, 2048, "max"), (K2, 5, 0, 2048, "min"), (K2, 5, 0, 2048, "max")]
        kernel_header(body, "probe_kernel")
        body(f"""
        s_memrealtime s[10:11]
        s_cmp_ge_u32 s2, 1
        s_cbranch_scc1 PROBE_END
        s_load_dwordx4 s[4:7], s[0:1], 72
        s_waitcnt lgkmcnt(0)
        s_add_u32 s12, s6, {WS_DIAG}
        s_addc_u32 s13, s7, 0
        s_mov_b32 s14, 0x200000
        s_mov_b32 s15, 0x20000
        s_mov_b32 s16, s4
        s_mov_b32 s17, s5
        s_mov_b32 s18, 256
        s_mov_b32 s19, 0x20000
        v_mov_b32 v40, 0
        """)
        for n, (base, col, lo, hi, op) in enumerate(items):
            cnt = (hi - lo + 63) // 64
            for k in range(cnt):
                body(f"v_add_u32 v1, {lo + 64*k}, v0\nv_min_u32 v1, {hi-1}, v1\nv_lshlrev_b32 v1, 7, v1\ns_mov_b32 s20, {base}")
                body(f"buffer_load_dword v{2+k}, v1, s[12:15], s20 offen offset:{8*col}")
            body("s_waitcnt vmcnt(0)")
            for k in range(cnt):
                body(f"v_sub_u32 v{2+k}, s10, v{2+k}")
            o = "v_max_u32" if op == "min" else "v_min_u32"
            for k in range(1, cnt): body(f"{o} v2, v2, v{2+k}")
            if op == "max": body("v_not_b32 v2, v2")
            dpp_scan(body, "v_max_u32", 2)
            body("s_nop 1\nv_readlane_b32 s21, v2, 63\ns_nop 3")
            if op == "max": body("s_not_b32 s21, s21")
            if n == 0: body("s_mov_b32 s22, s21\ns_mov_b32 s23, s21")
            else: body("s_sub_u32 s23, s22, s21")
            body(f"v_writelane_b32 v40, s23, {n}")
            if n == opt["probe"]: body("s_mov_b32 s24, s23")
        body("""
        v_lshlrev_b32 v1, 2, v0
        buffer_store_dword v40, v1, s[16:19], 0 offen
        """)
        if opt["probe"] >= 0:
            body("""
        s_min_u32 s24, s24, 20000
        s_mul_i32 s24, s24, 10
PROBE_L:
        s_memrealtime s[12:13]
        s_waitcnt lgkmcnt(0)
        s_sub_u32 s12, s12, s10
        s_cmp_lt_u32 s12, s24
        s_cbranch_scc1 PROBE_L
            """)
        body("PROBE_END:\ns_endpgm")
        launches.append("; @launch kernel=probe_kernel grid=(1,1,1) block=(64,1,1) lds=0")
        descs.append(kernel_desc("probe_kernel", 48, 32))
    if opt.get("k0"):
        g, b, l = opt["k0"]
        kernel_header(body, "first_kernel")
        body("s_endpgm")
        launches.insert(0, f"; @launch kernel=first_kernel grid=({g},1,1) block=({b},1,1) lds={l}")
        descs.append(kernel_desc("first_kernel", 8, 16))
    if opt.get("k9"):
        g, b, l = opt["k9"]
        kernel_header(body, "last_kernel")
        body("s_endpgm")
        launches.append(f"; @launch kernel=last_kernel grid=({g},1,1) block=({b},1,1) lds={l}")
        descs.append(kernel_desc("last_kernel", 8, 16))
    if opt.get("twice"): launches.append(launches[0])
    return HDR + "\n".join(launches) + "\n" + '.amdgcn_target "amdgcn-amd-amdhsa--gfx950"\n.text\n' + body.text() + '.section .rodata,"a"\n' + "".join(descs)
if __name__ == "__main__":
    opt = json.loads(sys.argv[2]) if len(sys.argv) > 2 else {}
    open(sys.argv[1], "w").write(build(opt))
```

```python
from asmlib import *
from layout import *

ROWS = 96
WG_EDGE0 = 0
WG_LUT0 = NP
NLUTWG = 4
LUT0 = LUT_ROWS - 512 * NLUTWG
assert LUT0 <= 82
assert WG_GEMM0 == NP + NLUTWG + 2 and WG_GEMM0 + NGEMM == 256
L_V = 0
R0 = L_V + 3 * ROWS * 256
R1 = R0 + 16384
L_H = R1 + 16384
GEMM_LDS = 163840
assert L_H + ROWS * 512 <= 155648
V0, V1, V2, V3 = 0, 16384, 32768, 49152
L_POS = 0
L_EH = 81920
L_DLT = L_EH + 512
L_STG = 0
K1_LDS = GEMM_LDS
WG_BOP = WG_LUT0 + NLUTWG
from gen_k2 import dpp_scan, zero_counters, sync_loads

def rne_bf16(a, dst, src):
    a(f"v_cvt_pk_bf16_f32 v{dst}, v{src}, v{src}")
    a(f"v_and_b32 v{dst}, 0xffff0000, v{dst}")

def lut_row(a, vd, out, t, sF, sC):
    rcp, fc = t, t + 1
    a(f"v_rcp_f32 v{rcp}, v{vd}")
    a(f"v_mul_f32 v{fc}, s{sC}, v{vd}")
    rne_bf16(a, fc, fc)
    a(f"v_mul_f32 v{fc}, s{sC+1}, v{fc}")
    rne_bf16(a, fc, fc)
    a(f"v_mul_f32 v{fc}, s{sC+2}, v{fc}")
    a(f"v_cos_f32 v{fc}, v{fc}")
    a("s_nop 0")
    rne_bf16(a, fc, fc)
    a(f"v_add_f32 v{fc}, 1.0, v{fc}")
    rne_bf16(a, fc, fc)
    a(f"v_mul_f32 v{fc}, 0.5, v{fc}")
    for k in range(0, 16, 2):
        x, y, p = t + 2, t + 3, t + 4
        a(f"""
        v_mul_f32 v{x}, s{sF+k}, v{vd}
        v_mul_f32 v{y}, s{sF+k+1}, v{vd}
        v_cvt_pk_bf16_f32 v{p}, v{x}, v{y}
        v_lshlrev_b32 v{x}, 16, v{p}
        v_and_b32 v{y}, 0xffff0000, v{p}
        v_mul_f32 v{x}, s{sC+2}, v{x}
        v_mul_f32 v{y}, s{sC+2}, v{y}
        v_rndne_f32 v{t+5}, v{x}
        v_rndne_f32 v{t+6}, v{y}
        v_sub_f32 v{x}, v{x}, v{t+5}
        v_sub_f32 v{y}, v{y}, v{t+6}
        v_sin_f32 v{x}, v{x}
        v_sin_f32 v{y}, v{y}
        s_nop 0
        v_cvt_pk_bf16_f32 v{p}, v{x}, v{y}
        v_lshlrev_b32 v{x}, 16, v{p}
        v_and_b32 v{y}, 0xffff0000, v{p}
        v_mul_f32 v{x}, v{x}, v{rcp}
        v_mul_f32 v{y}, v{y}, v{rcp}
        v_cvt_pk_bf16_f32 v{p}, v{x}, v{y}
        v_lshlrev_b32 v{x}, 16, v{p}
        v_and_b32 v{y}, 0xffff0000, v{p}
        v_mul_f32 v{x}, v{x}, v{fc}
        v_mul_f32 v{y}, v{y}, v{fc}
        v_cvt_pk_bf16_f32 v{out+k//2}, v{x}, v{y}
        """)

def srd(a, d, lo, off_sreg, off_imm, size):
    hi = lo + 1
    if off_sreg is None and off_imm == 0:
        a(f"s_mov_b32 s{d}, s{lo}\ns_mov_b32 s{d+1}, s{hi}")
    else:
        if off_sreg is not None:
            if off_imm:
                a(f"s_add_u32 s{off_sreg}, s{off_sreg}, {off_imm}")
            a(f"s_add_u32 s{d}, s{lo}, s{off_sreg}")
        else:
            a(f"s_add_u32 s{d}, s{lo}, {off_imm}")
        a(f"s_addc_u32 s{d+1}, s{hi}, 0")
    a(f"s_mov_b32 s{d+2}, {size}\ns_mov_b32 s{d+3}, 0x20000")

def gen_k1(a0, name, opt, phase2):
    class Sw:
        cur = a0
        def __call__(self, x): return self.cur(x)
        def label(self, b): return self.cur.label(b)
    a = Sw()
    side = Asm()
    stamps = opt.get("stamps", False)
    tab_fl = opt.get("tab_flags", "sc1")
    sST = 82
    nst = [0]
    def stamp():
        if stamps:
            a(f"s_memrealtime {sr(sST + 2 * nst[0], 2)}")
            nst[0] += 1
            assert nst[0] <= 10
    def dump_stamps(n):
        if not stamps: return
        a(f"""
        s_memrealtime {sr(sST+18,2)}
        s_waitcnt lgkmcnt(0)
        s_add_u32 s40, s24, {WS_DIAG}
        s_addc_u32 s41, s25, 0
        s_mov_b32 s42, 0x100000
        s_mov_b32 s43, 0x20000
        s_lshl_b32 s44, s2, 3
        s_add_u32 s44, s44, s3
        s_lshl_b32 s44, s44, 7
        s_mov_b64 exec, 1
        v_mov_b32 v1, s44
        """)
        for i in list(range(n)) + [9]:
            a(f"v_mov_b32 v2, s{sST+2*i}\nv_mov_b32 v3, s{sST+2*i+1}")
            a(f"buffer_store_dwordx2 v[2:3], v1, s[40:43], 0 offen offset:{8*i}")
        a("s_mov_b64 exec, -1")
    Lp2 = a.label("P2"); Lside = a.label("K1_SIDE"); Larr = a.label("K1_ARRIVE"); Lcend = a.label("CODE_END"); Lpc = a.label("PC")
    kernel_header(a, name)
    Lend = a.label("K1_END"); Lgemm = a.label("K1_GEMM"); Llut = a.label("K1_LUT")
    a(f"""
    s_cmp_ge_u32 s2, 256
    s_cbranch_scc1 {Lend}
    s_load_dwordx16 s[4:19], s[0:1], 0
    s_load_dwordx4 s[20:23], s[0:1], 64
    s_load_dwordx2 s[24:25], s[0:1], 80
    """)
    stamp()
    a(f"""
    v_lshrrev_b32 v1, 6, v0
    s_nop 0
    v_readfirstlane_b32 s3, v1
    """)
    if opt.get("cpf", 1):
        Lnc = a.label("K1_NOCPF")
        a(f"""
        s_lshr_b32 s26, s2, 3
        s_cmp_lg_u32 s26, 5
        s_cbranch_scc1 {Lnc}
        s_getpc_b64 s[28:29]
{Lpc}:
        s_mov_b32 s30, {Lcend}-{Lpc}
        s_mov_b32 s31, 0x20000
        v_lshlrev_b32 v1, 7, v0
        buffer_load_dword v255, v1, s[28:31], 0 offen
{Lnc}:
        """)
    a(f"""
    s_cmp_lt_u32 s2, {WG_GEMM0}
    s_cbranch_scc1 {Lside}
    """)
    a.cur = side
    a(f"""
{Lside}:
    s_cmp_ge_u32 s2, {WG_LUT0}
    s_cbranch_scc1 {Llut}
    """)
    nvmax = 256
    V = Regs("v", 1, 256)
    vSRC = V.alloc("src", 8, 2); vDST = V.alloc("dst", 8, 2)
    vP = V.alloc("p", 48, 2)
    vREC = V.alloc("rec", 32, 2)
    vRK = V.alloc("rk", 8)
    vT = V.alloc("t", 12, 2)
    nvmax = max(nvmax, V.hi)
    sSRC, sDST, sPOS, sDBG, sLIST, sMISC = 28, 32, 36, 40, 44, 48
    sT = 52; sACT = 60
    a("s_waitcnt lgkmcnt(0)")
    srd(a, sSRC, 8, None, 0, E * 4)
    srd(a, sDST, 10, None, 0, E * 4)
    srd(a, sPOS, 6, None, 0, N * 6)
    a(f"""
    s_mul_i32 s{sT}, s2, {EPW*4}
    s_add_u32 s{sT+1}, s{sT}, {EPW*2}
    v_lshlrev_b32 v{vT}, 4, v0
    v_mov_b32 v{vT+1}, 0x7ffffff0
    v_cmp_gt_u32 vcc, {EPW//8}, v0
    s_mov_b64 s[{sT+2}:{sT+3}], vcc
    s_nop 0
    v_cndmask_b32 v{vT+1}, v{vT+1}, v{vT}, vcc
    buffer_load_dwordx4 {vr(vSRC,4)}, v{vT+1}, {sr(sSRC,4)}, s{sT} offen
    buffer_load_dwordx4 {vr(vDST,4)}, v{vT+1}, {sr(sDST,4)}, s{sT} offen
    buffer_load_dwordx4 {vr(vSRC+4,4)}, v{vT+1}, {sr(sSRC,4)}, s{sT+1} offen
    buffer_load_dwordx4 {vr(vDST+4,4)}, v{vT+1}, {sr(sDST,4)}, s{sT+1} offen
    v_mul_u32_u24 v{vT+4}, 12, v0
    """)
    vPL = V.alloc("pl", 40, 2)
    for i in range(10):
        a(f"s_mov_b32 s{sT+5}, {i*6144}")
        a(f"buffer_load_dwordx3 {vr(vPL+4*i,3)}, v{vT+4}, {sr(sPOS,4)}, s{sT+5} offen")
    srd(a, sDBG, 22, None, 0, 256)
    srd(a, sLIST, 24, None, WS_LIST, NR * LIST_STRIDE)
    srd(a, sMISC, 24, None, WS_LUT, MISC_BYTES)
    a(f"""
    v_mov_b32 v{vT+2}, 0
    v_lshlrev_b32 v{vT+3}, 2, v0
    v_add_u32 v{vT+3}, {L_EH}, v{vT+3}
    v_cmp_gt_u32 vcc, 64, v0
    s_and_saveexec_b64 s[{sT+6}:{sT+7}], vcc
    ds_write_b32 v{vT+3}, v{vT+2}
    s_mov_b64 exec, -1
    """)
    vAS_, vAD_ = vREC, vREC + 8
    vKEY = V.alloc("key", 8); vHA = V.alloc("ha", 8); vDD = V.alloc("dd", 8, 2); vQ = V.alloc("q", 8, 2)
    a(f"""
    s_mov_b32 s{sT+4}, 0x322bcc77
    s_mov_b32 s{sT+5}, 0x322bcc77
    s_mov_b32 s{sT+1}, 0xffff0000
    s_mov_b32 s{sT+6}, {(DBASE+LUT_THR)<<16}
    v_mov_b32 v{vT+8}, {((NRS - LUT_THR - DBASE) << 16) & 0xffffffff}
    v_mov_b32 v{vT+9}, {((0x8000 - DBASE) << 16) & 0xffffffff}
    v_mov_b32 v{vT+10}, {NKEY}
    v_mov_b32 v{vT+11}, 1
    s_waitcnt vmcnt(10)
    """)
    for e in range(8):
        a(f"""
        v_cmp_le_u32 vcc, {HALF}, v{vSRC+e}
        v_lshlrev_b32 v{vAS_+e}, 3, v{vSRC+e}
        v_lshlrev_b32 v{vAD_+e}, 3, v{vDST+e}
        v_cndmask_b32 v{vT+4}, 0, v{vT+10}, vcc
        v_lshrrev_b32 v{vKEY+e}, 6, v{vDST+e}
        v_and_b32 v{vDST+e}, {NR-1}, v{vDST+e}
        v_add_u32 v{vKEY+e}, v{vKEY+e}, v{vT+4}
        v_lshlrev_b32 v{vDST+e}, 2, v{vDST+e}
        v_add_u32 v{vHA+e}, {L_EH}, v{vDST+e}
        """)
    a(f"v_add_u32 v{vT+4}, 65536, v{vT}")
    for i in range(10):
        w = vPL + 4 * i
        a(f"""
        s_waitcnt vmcnt({9-i})
        v_and_b32 v{w+3}, s{sT+1}, v{w+2}
        v_alignbit_b32 v{w+2}, v{w+2}, v{w+1}, 16
        v_lshlrev_b32 v{w+1}, 16, v{w+1}
        ds_write_b128 v{vT if i < 8 else vT+4}, {vr(w,4)} offset:{L_POS + (i%8)*8192}
        """)
    a("s_waitcnt lgkmcnt(0)\ns_barrier")
    stamp()
    def pos_read(pr):
        for e in range(2):
            a(f"ds_read_b64 {vr(vPL+8*pr+4*e,2)}, v{vAS_+2*pr+e} offset:{L_POS}")
            a(f"ds_read_b64 {vr(vPL+8*pr+4*e+2,2)}, v{vAD_+2*pr+e} offset:{L_POS}")
    def rnd2(dst, src, t):
        a(f"v_cvt_pk_bf16_f32 v{t}, v{src}, v{src+1}")
        a(f"v_lshlrev_b32 v{dst}, 16, v{t}")
        a(f"v_and_b32 v{dst+1}, s{sT+1}, v{t}")
    for pr in range(3): pos_read(pr)
    for pr in range(4):
        p = vP + 12 * pr; q = p + 6; d = vDD + 2 * pr
        a(f"s_waitcnt lgkmcnt({[8, 8, 4, 0][pr]})")
        if pr == 0: pos_read(3)
        for e in range(2):
            w = vPL + 8 * pr + 4 * e
            a(f"""
            v_lshlrev_b32 v{p+e}, 16, v{w}
            v_lshlrev_b32 v{q+e}, 16, v{w+2}
            v_and_b32 v{p+2+e}, s{sT+1}, v{w}
            v_and_b32 v{q+2+e}, s{sT+1}, v{w+2}
            v_sub_f32 v{p+4+e}, v{w+1}, v{w+3}
            """)
        for c in range(2):
            a(f"v_pk_add_f32 {vr(p+2*c,2)}, {vr(p+2*c,2)}, {vr(q+2*c,2)} neg_lo:[0,1] neg_hi:[0,1]")
        for c in range(3): rnd2(p + 2 * c, p + 2 * c, vT + 4 + c)
        for c in range(3):
            a(f"v_pk_mul_f32 {vr(q+2*c,2)}, {vr(p+2*c,2)}, {vr(p+2*c,2)}")
        for c in range(3): rnd2(q + 2 * c, q + 2 * c, vT + 4 + c)
        a(f"v_pk_add_f32 {vr(q,2)}, {vr(q,2)}, {vr(q+2,2)}")
        a(f"v_pk_add_f32 {vr(q,2)}, {vr(q,2)}, {vr(q+4,2)}")
        rnd2(q, q, vT + 4)
        a(f"v_pk_add_f32 {vr(q,2)}, {vr(q,2)}, s[{sT+4}:{sT+5}]")
        rnd2(q, q, vT + 4)
        a(f"v_sqrt_f32 v{q}, v{q}\nv_sqrt_f32 v{q+1}, v{q+1}\ns_nop 0")
        rnd2(d, q, vT + 4)
        for e in range(2):
            ee = 2 * pr + e
            a(f"""
            v_cmp_gt_u32 vcc, {DCUT<<16}, v{d+e}
            s_and_b64 {sr(sACT+2*ee,2)}, vcc, s[{sT+2}:{sT+3}]
            s_mov_b64 exec, {sr(sACT+2*ee,2)}
            ds_add_rtn_u32 v{vRK+ee}, v{vHA+ee}, v{vT+11}
            s_mov_b64 exec, -1
            """)
    a("s_waitcnt lgkmcnt(0)\ns_barrier")
    stamp()
    Lna = a.label("K1_NOATOM"); Lnb = a.label("K1_NOATOM2")
    a(f"""
    s_cmp_lg_u32 s3, 0
    s_cbranch_scc1 {Lna}
    ds_read_b32 v{vQ+4}, v{vT+3}
    v_lshlrev_b32 v{vT+5}, 2, v0
    s_waitcnt lgkmcnt(0)
    v_mov_b32 v{vQ+5}, v{vQ+4}
    v_add_u32 v{vQ+4}, {PADG-1}, v{vQ+4}
    v_and_b32 v{vQ+4}, {-PADG}, v{vQ+4}
    v_mov_b32 v{vQ+6}, v{vQ+4}
    v_mov_b32 v{vQ+7}, v{vQ+4}
    buffer_atomic_add v{vQ+6}, v{vT+5}, {sr(sDBG,4)}, 0 offen sc0
    """)
    dpp_scan(a, "v_add_u32", vQ + 7)
    a(f"""
    ds_write_b32 v{vT+3}, v{vQ+7} offset:4
    v_sub_u32 v{vQ+7}, v{vQ+7}, v{vQ+4}
    ds_write_b32 v{vT+3}, v{vQ+7}
    v_mov_b32 v{vPL}, 0xffff
    v_mov_b32 v{vPL+1}, v{vT+5}
    v_mov_b32 v{vPL+2}, 0
    v_mov_b32 v{vPL+3}, 0
    v_add_lshl_u32 v{vPL+4}, v{vQ+7}, v{vQ+5}, 4
    v_sub_u32 v{vQ+5}, v{vQ+4}, v{vQ+5}
    """)
    for k in range(PADG - 1):
        a(f"""
        v_cmp_lt_u32 vcc, {k}, v{vQ+5}
        s_and_b64 exec, exec, vcc
        ds_write_b128 v{vPL+4}, {vr(vPL,4)} offset:{L_STG + 16*k}
        """)
    a(f"""
    s_mov_b64 exec, -1
{Lna}:
    """)
    for pr in range(4):
        p = vP + 12 * pr; d = vDD + 2 * pr
        r0, r1 = vREC + 8 * pr, vREC + 8 * pr + 4
        a(f"""
        v_rcp_f32 v{vQ}, v{d}
        v_rcp_f32 v{vQ+1}, v{d+1}
        v_cmp_gt_u32 vcc, s{sT+6}, v{d}
        v_cmp_gt_u32 s[{sT+4}:{sT+5}], s{sT+6}, v{d+1}
        v_pk_mul_f32 {vr(p,2)}, {vr(p,2)}, {vr(vQ,2)}
        v_pk_mul_f32 {vr(p+2,2)}, {vr(p+2,2)}, {vr(vQ,2)}
        v_pk_mul_f32 {vr(p+4,2)}, {vr(p+4,2)}, {vr(vQ,2)}
        v_cndmask_b32 v{vQ+2}, v{vT+8}, v{vT+9}, vcc
        v_cndmask_b32 v{vQ+3}, v{vT+8}, v{vT+9}, s[{sT+4}:{sT+5}]
        v_cvt_pk_bf16_f32 v{vT+4}, v{p}, v{p+1}
        v_cvt_pk_bf16_f32 v{vT+5}, v{p+2}, v{p+3}
        v_cvt_pk_bf16_f32 v{vT+6}, v{p+4}, v{p+5}
        v_add3_u32 v{r0+3}, v{d}, v{vQ+2}, v{vSRC+2*pr}
        v_add3_u32 v{r1+3}, v{d+1}, v{vQ+3}, v{vSRC+2*pr+1}
        v_lshl_or_b32 v{r0}, v{vT+4}, 16, v{vKEY+2*pr}
        v_and_or_b32 v{r1}, v{vT+4}, s{sT+1}, v{vKEY+2*pr+1}
        v_lshl_or_b32 v{r0+1}, v{vT+5}, 16, v{vDST+2*pr}
        v_and_or_b32 v{r1+1}, v{vT+5}, s{sT+1}, v{vDST+2*pr+1}
        v_lshlrev_b32 v{r0+2}, 16, v{vT+6}
        v_and_b32 v{r1+2}, s{sT+1}, v{vT+6}
        """)
    a("s_waitcnt lgkmcnt(0)\ns_barrier")
    for e in range(8):
        a(f"ds_read_b32 v{vP+e}, v{vHA+e}")
    a(f"v_mov_b32 v{vT+8}, {L_EH}\nds_read_b32 v{vT+9}, v{vT+8} offset:256")
    a("s_waitcnt lgkmcnt(0)")
    for e in range(8):
        a(f"""
        v_add_lshl_u32 v{vP+e}, v{vP+e}, v{vRK+e}, 4
        v_add_u32 v{vP+e}, {L_STG}, v{vP+e}
        s_mov_b64 exec, {sr(sACT+2*e,2)}
        ds_write_b128 v{vP+e}, {vr(vREC+4*e,4)}
        s_mov_b64 exec, -1
        """)
    a(f"""
    v_readfirstlane_b32 s{sT+4}, v{vT+9}
    s_cmp_lg_u32 s3, 0
    s_cbranch_scc1 {Lnb}
    s_mov_b32 s{sT}, {LIST_STRIDE//16}
    s_waitcnt vmcnt(0)
    v_and_b32 v{vQ+6}, 0x3ffff, v{vQ+6}
    v_mad_u32_u24 v{vT+6}, v0, s{sT}, v{vQ+6}
    v_sub_u32 v{vT+6}, v{vT+6}, v{vQ+7}
    v_lshlrev_b32 v{vT+6}, 4, v{vT+6}
    ds_write_b32 v{vT+3}, v{vT+6} offset:{L_DLT - L_EH}
{Lnb}:
    v_lshlrev_b32 v{vT+5}, 4, v0
    v_add_u32 v{vT+2}, {L_STG}, v{vT+5}
    s_waitcnt lgkmcnt(0)
    s_barrier
    """)
    stamp()
    def copy_out(e0, n):
        for e in range(n):
            a(f"ds_read_b128 {vr(vREC+4*e,4)}, v{vT+2} offset:{e*8192}")
        for e in range(n):
            a(f"""
            s_waitcnt lgkmcnt({n-1})
            v_and_b32 v{vP+e}, 0xfc, v{vREC+4*e+1}
            v_add_u32 v{vP+e}, {L_DLT}, v{vP+e}
            ds_read_b32 v{vP+e}, v{vP+e}
            v_and_b32 v{vREC+4*e+1}, s{sT+1}, v{vREC+4*e+1}
            v_add_u32 v{vT+6}, {(e0+e)*512}, v0
            v_cmp_gt_u32 {sr(sACT+2*e,2)}, s{sT+4}, v{vT+6}
            """)
        for e in range(n):
            Ls = a.label("K1_ES")
            a(f"""
            s_waitcnt lgkmcnt({n-1-e})
            v_add_u32 v{vP+e}, v{vP+e}, v{vT+5}
            s_mov_b32 s{sT}, {(e0+e)*8192}
            s_mov_b64 exec, {sr(sACT+2*e,2)}
            s_cbranch_execz {Ls}
            buffer_store_dwordx4 {vr(vREC+4*e,4)}, v{vP+e}, {sr(sLIST,4)}, s{sT} offen sc1
{Ls}:
            s_mov_b64 exec, -1
            """)
    copy_out(0, 6)
    Lco = a.label("K1_CO")
    a(f"s_cmp_le_u32 s{sT+4}, 3072\ns_cbranch_scc1 {Lco}\nv_add_u32 v{vT+2}, {6*8192}, v{vT+2}\ns_nop 1")
    copy_out(6, 3)
    a(f"{Lco}:")
    dump_stamps(nst[0])
    a(f"""
{Larr}:
    s_cmp_lg_u32 s3, {WSY}
    s_cbranch_scc1 {Lp2}
    """)
    srd(a, 28, 22, None, 0, 256)
    a(f"""
    v_mov_b32 v1, 0
    s_mov_b64 exec, 1
    buffer_load_dwordx2 v[{VTOK}:{VTOK+1}], v1, s[28:31], 0 offen sc1
    s_mov_b64 exec, -1
    s_branch {Lp2}
    """)
    Lagg = a.label("K1_AGG")
    a(f"""
{Lagg}:
    s_cmp_lg_u32 s3, {WSY}
    s_cbranch_scc1 {Lp2}
    """)
    srd(a, 28, 22, None, 0, 256)
    srd(a, 32, 24, None, WS_LUT + M_EPO, 128)
    a(f"""
    v_mov_b32 v1, 0
    s_mov_b64 exec, 1
    buffer_load_dword v2, v1, s[32:35], 0 offen sc1
    s_waitcnt vmcnt(0)
    v_add_u32 v2, 0x09e3779b, v2
    buffer_store_dword v2, v1, s[32:35], 0 offen sc1
    v_and_b32 v3, 0x1fff, v2
    v_bfe_u32 v4, v2, 13, 13
    v_lshl_or_b32 v3, v3, 1, 1
    v_lshl_or_b32 v4, v4, 1, 1
    v_lshlrev_b32 v3, 18, v3
    v_lshlrev_b32 v4, 18, v4
    s_waitcnt vmcnt(0)
    buffer_atomic_add v3, v1, s[28:31], 0 offen
    buffer_atomic_add v4, v1, s[28:31], 0 offen offset:4
    v_mov_b32 v{VTOK}, v3
    v_mov_b32 v{VTOK+1}, v4
    s_mov_b64 exec, -1
    s_branch {Lp2}
    """)

    Lbop = a.label("K1_BOP")
    a(f"{Lbop}:")
    a(f"s_waitcnt lgkmcnt(0)\ns_cmp_lg_u32 s2, {WG_BOP}\ns_cbranch_scc1 {Lagg}")
    srd(a, 28, 18, None, 0, 16 * 768 * 2)
    srd(a, 32, 24, None, WS_LUT + M_BOP, 24576)
    a(f"""
    v_bfe_u32 v1, v0, 4, 1
    v_mul_u32_u24 v1, {8*1536}, v1
    v_and_b32 v2, 15, v0
    v_lshl_add_u32 v1, v2, 2, v1
    s_lshl_b32 s36, s3, 6
    v_add_u32 v1, s36, v1
    v_bfe_u32 v3, v0, 5, 1
    v_xor_b32 v2, 1, v3
    v_lshl_add_u32 v2, v2, 9, v1
    """)
    for m in range(8):
        a(f"s_movk_i32 s37, {m*1536}")
        a(f"buffer_load_dword v{8+m}, v2, s[28:31], s37 offen")
        a(f"buffer_load_dword v{16+m}, v1, s[28:31], s37 offen offset:1024")
    a(f"""
    s_mov_b32 s38, 0x05040100
    s_mov_b32 s39, 0x07060302
    v_mul_u32_u24 v3, 0x020202, v3
    v_lshl_or_b32 v3, v3, 8, v3
    v_add_u32 v3, s38, v3
    v_and_b32 v4, 63, v0
    v_lshlrev_b32 v4, 4, v4
    s_mul_i32 s36, s3, 3072
    s_waitcnt vmcnt(0)
    """)
    for m in range(4):
        a(f"v_perm_b32 v{24+m}, v{8+2*m+1}, v{8+2*m}, s39")
        a(f"v_perm_b32 v{28+m}, v{8+2*m+1}, v{8+2*m}, s38")
        a(f"v_perm_b32 v{32+m}, v{16+2*m+1}, v{16+2*m}, v3")
    a(f"""
    buffer_store_dwordx4 v[24:27], v4, s[32:35], s36 offen sc1
    buffer_store_dwordx4 v[28:31], v4, s[32:35], s36 offen offset:1024 sc1
    buffer_store_dwordx4 v[32:35], v4, s[32:35], s36 offen offset:2048 sc1
    s_branch {Larr}
    """)
    a(f"{Llut}:")
    a(f"""
    s_cmp_ge_u32 s2, {WG_LUT0+NLUTWG}
    s_cbranch_scc1 {Lbop}
    s_waitcnt lgkmcnt(0)
    s_load_dwordx8 s[28:35], s[12:13], 0
    """)
    srd(a, 60, 24, None, WS_LUT, LUT_BYTES)
    a(f"""
    s_sub_u32 s56, s2, {WG_LUT0}
    s_lshl_b32 s56, s56, 9
    s_add_u32 s56, s56, {LUT0}
    v_add_u32 v1, s56, v0
    v_add_u32 v2, {DBASE}, v1
    v_lshlrev_b32 v2, 16, v2
    v_lshlrev_b32 v1, 5, v1
    s_mov_b32 s52, 0x40490fdb
    s_mov_b32 s53, 0x3e4ccccd
    s_mov_b32 s54, 0x3e22f983
    s_waitcnt lgkmcnt(0)
    """)
    for k in range(8):
        a(f"s_lshl_b32 s{36+2*k}, s{28+k}, 16\ns_and_b32 s{37+2*k}, s{28+k}, 0xffff0000")
    lut_row(a, 2, 4, 12, 36, 52)
    a(f"""
    buffer_store_dwordx4 v[4:7], v1, s[60:63], 0 offen sc1
    buffer_store_dwordx4 v[8:11], v1, s[60:63], 0 offen offset:16 sc1
    s_branch {Larr}
{Lcend}:
    """)
    a.cur = a0

    a(f"{Lgemm}:")
    vD1, vD2, vD3, vDV = 1, 2, 3, 4
    vAS, vTR, vTH = 5, 7, 9
    vX0 = 11
    vHW = 12
    vW = 32
    assert vHW == VTOK
    sSV, sW1, sW2, sT4, sT1 = 28, 32, 36, 40, 44
    sT = 48; sHI = 56; sROW = 57; sM = 58; sRB = 59; sRND = 60; sL = 61; sROT = 62; sMV = 63
    sK1 = 64; sK2 = 72; sEV = 80; sCH = 26
    vT = 16
    q, j = vT + 1, vT + 2
    hi, ch = vT + 3, vT + 4
    a(f"""
    s_sub_u32 s{sT}, s2, {WG_GEMM0}
    s_lshr_b32 s{sROT}, s{sT}, 3
    s_and_b32 s{sCH}, s{sROT}, 1
    s_lshr_b32 s{sROT}, s{sROT}, 1
    s_lshl_b32 s{sROW}, s{sROT}, 3
    s_and_b32 s{sT+1}, s{sT}, 7
    s_and_b32 s{sT+2}, s{sT}, 1
    s_cmp_ge_u32 s{sT}, 208
    s_cselect_b32 s{sT+1}, 0, s{sT+1}
    s_cselect_b32 s{sCH}, s{sT+2}, s{sCH}
    s_add_u32 s{sROW}, s{sROW}, s{sT+1}
    s_and_b32 s{sROT}, s{sROT}, 7
    s_mul_i32 s{sROW}, s{sROW}, {ROWS}
    s_lshl_b32 s{sRB}, s{sROW}, 11
    s_and_b32 s{sL}, s3, 3
    s_and_b32 s{sT}, s{sL}, 1
    s_lshr_b32 s{sT+1}, s{sL}, 1
    s_lshl_b32 s{sT+2}, s{sT+1}, 2
    s_add_u32 s{sT+2}, s{sT+2}, s{sT}
    s_lshl_b32 s{sM}, s{sT+2}, 10
    v_bfe_u32 v{hi}, v0, 5, 1
    v_and_b32 v{ch}, 31, v0
    s_lshl_b32 s{sT+3}, s{sL}, 2
    v_lshl_add_u32 v{vT+5}, v{hi}, 1, s{sT+3}
    v_xor_b32 v{vT+5}, v{vT+5}, v{ch}
    v_lshlrev_b32 v{vT+5}, 4, v{vT+5}
    v_lshl_add_u32 v{vD1}, v{hi}, 9, v{vT+5}
    v_add_u32 v{vD1}, s{sM}, v{vD1}
    s_lshl_b32 s{sT+4}, s{sL}, 12
    v_lshl_add_u32 v{vT+6}, v{hi}, 11, v{vT+5}
    v_add_u32 v{vT+6}, s{sT+4}, v{vT+6}
    s_lshl_b32 s{sMV}, s{sL}, 10
    """)
    for n in range(8):
        a(f"s_xor_b32 s{sK1+n}, s{sROT}, {n}\ns_lshl_b32 s{sK1+n}, s{sK1+n}, 14")
    a("s_waitcnt lgkmcnt(0)")
    srd(a, sSV, 4, None, 0, N * 2048)
    srd(a, sW1, 14, None, 0, 256 * 512)
    units = [("w1", n) for n in range(8)] + [("a", n) for n in range(8)] + [("b", n) for n in range(4)]
    slot = [R0, R1, V0, V1, V2, V3, R0, R1, V0, V1, V2, V3, R0, R1, V0, V1, R0, R1, R0, R1]
    class C: pass
    st = C(); st.seq = []
    def dma_unit(u, which=(0, 1, 2, 3)):
        kind, n = units[u]
        for i in which:
            rr = 4 * (i & 1) + 16 * (i >> 1); kr = 2 * (i & 1) + 8 * (i >> 1)
            a(f"s_add_u32 m0, s{sM}, {slot[u] + rr*512}")
            if kind == "w1":
                a(f"s_add_u32 s{sT}, s{sK1+n}, {rr*512}")
                a(f"buffer_load_dwordx4 v{vD1}, {sr(sW1,4)}, s{sT} offen lds")
            elif kind == "a":
                a(f"s_add_u32 s{sT}, s{sK2+n}, {kr*1536}")
                a(f"buffer_load_dwordx4 v{vD2}, {sr(sW2,4)}, s{sT} offen lds")
            else:
                a(f"s_min_u32 s{sT}, s{sK2+2*n}, s{sK2+2*n+1}\ns_add_u32 s{sT}, s{sT}, {kr*1536 + 1024}")
                a(f"buffer_load_dwordx4 v{vD3}, {sr(sW2,4)}, s{sT} offen lds")
            st.seq.append(("U", u))
    def dma_s(i):
        a(f"""
        s_add_u32 m0, s{sMV}, {L_H + i*4096}
        s_add_u32 s{sT}, s{sRB}, {i*8*2048}
        buffer_load_dwordx4 v{vT+6}, {sr(sSV,4)}, s{sT} offen lds
        """)
        st.seq.append(("S", i // 6))
    def dma_v(c, i):
        a(f"""
        s_add_u32 m0, s{sMV}, {L_V + c*ROWS*256 + i*4096}
        s_add_u32 s{sT}, s{sRB}, {0x40000000 if opt.get('nov') else i*16*2048 + 512*(c+1)}
        buffer_load_dwordx4 v{vDV}, {sr(sSV,4)}, s{sT} offen lds
        """)
        st.seq.append("V")
    Lg0 = a.label("K1_G0")
    a(f"s_cmp_ge_u32 s3, 4\ns_cbranch_scc1 {Lg0}")
    for i in range(12): dma_s(i)
    for u in range(0, 4): dma_unit(u)
    seq0 = list(st.seq)
    a(f"{Lg0}:")
    for n in range(8):
        a(f"s_mul_i32 s{sK2+n}, s{sK1+n}, 3")
    srd(a, sW2, 16, None, 0, 0 if opt.get('now2') else 256 * 1536)
    a(f"""
    s_lshl_b32 s{sT+4}, s{sCH}, 1
    s_add_u32 s{sT+4}, s{sT+4}, s{sT+1}
    s_mul_i32 s{sT+4}, s{sT+4}, {TAB_SL}
    """)
    srd(a, sT4, 24, sT + 4, WS_TAB, 0 if opt.get('nowr') else TAB_SL)
    a(f"""
    s_lshl_b32 s{sT+4}, s{sCH}, 8
    v_lshl_add_u32 v{vT+7}, v{hi}, 4, s{sT+2}
    v_mul_u32_u24 v{vT+7}, 1536, v{vT+7}
    v_and_b32 v{vT+8}, 0xf0, v{vT+5}
    v_add3_u32 v{vT+7}, v{vT+7}, v{vT+8}, s{sT+4}
    v_lshrrev_b32 v{vT+8}, 4, v{ch}
    v_xor_b32 v{vT+9}, 1, v{vT+8}
    v_lshl_add_u32 v{vD2}, v{vT+9}, 9, v{vT+7}
    v_xor_b32 v{vT+8}, s{sROT}, v{vT+8}
    v_and_b32 v{vT+8}, 1, v{vT+8}
    v_mul_u32_u24 v{vT+8}, 49152, v{vT+8}
    v_add_u32 v{vD3}, v{vT+7}, v{vT+8}
    s_mov_b32 s{sHI}, 0x07060302
    s_mov_b32 s{sRND}, 0x8000
    s_mov_b32 s{sEV}, 0x55555555
    s_mov_b32 s{sEV+1}, 0x55555555
    v_bfe_u32 v{q}, v0, 4, 4
    v_and_b32 v{j}, 15, v0
    v_lshlrev_b32 v{vDV}, 11, v{q}
    v_lshl_add_u32 v{vDV}, v{j}, 4, v{vDV}
    v_add_u32 v{vDV}, s{sT+4}, v{vDV}
    v_bfe_u32 v{q}, v0, 4, 2
    v_and_b32 v{vT+3}, 7, v{j}
    v_lshlrev_b32 v{vT+3}, 1, v{vT+3}
    v_xor_b32 v{vT+3}, v{vT+3}, v{q}
    v_lshlrev_b32 v{vT+3}, 4, v{vT+3}
    v_lshl_add_u32 v{vAS}, v{j}, 9, v{vT+3}
    s_lshl_b32 s{sT+4}, s{sROT}, 6
    v_xor_b32 v{vAS}, s{sT+4}, v{vAS}
    v_add_u32 v{vAS}, {L_H}, v{vAS}
    v_lshrrev_b32 v{vT+3}, 2, v{j}
    v_and_b32 v{vT+4}, 1, v{q}
    v_lshl_or_b32 v{vT+4}, v{vT+4}, 2, v{vT+3}
    v_lshlrev_b32 v{vT+4}, 1, v{vT+4}
    v_bfe_u32 v{vT+5}, v0, 1, 1
    v_or_b32 v{vT+5}, s{sT+3}, v{vT+5}
    v_xor_b32 v{vT+4}, v{vT+4}, v{vT+5}
    v_lshl_add_u32 v{vT+3}, v{q}, 3, v{vT+3}
    v_lshlrev_b32 v{vT+3}, 9, v{vT+3}
    v_lshl_add_u32 v{vT+3}, v{vT+4}, 4, v{vT+3}
    v_and_b32 v{vT+4}, 1, v0
    v_lshl_add_u32 v{vTR}, v{vT+4}, 3, v{vT+3}
    v_xor_b32 v{vTR+1}, 32, v{vTR}
    v_add_u32 v{vTH}, {R0}, v{vTR}
    v_add_u32 v{vTH+1}, {R0}, v{vTR+1}
    v_lshrrev_b32 v{vT+3}, 2, v{j}
    v_or_b32 v{vT+3}, s{sT+3}, v{vT+3}
    v_and_b32 v{vT+4}, 1, v{q}
    v_lshlrev_b32 v{vT+4}, 3, v{vT+4}
    v_xor_b32 v{vT+3}, v{vT+3}, v{vT+4}
    v_lshlrev_b32 v{vT+3}, 4, v{vT+3}
    v_and_b32 v{vT+4}, 3, v{j}
    v_lshl_add_u32 v{vT+3}, v{vT+4}, 2, v{vT+3}
    v_lshl_add_u32 v{vT+3}, v{q}, 11, v{vT+3}
    v_add_u32 v{vHW}, {L_H}, v{vT+3}
    v_xor_b32 v{vHW+1}, 32, v{vHW}
    v_xor_b32 v{vHW+2}, 64, v{vHW}
    v_xor_b32 v{vHW+3}, 96, v{vHW}
    """)
    def af(dst, n, mt, newn=True):
        x = f"v_xor_b32 v{vAS+1}, {n*64}, v{vAS}\n" if (n and newn) else ""
        return x + f"ds_read_b128 {vr(dst,4)}, v{vAS+1 if n else vAS} offset:{mt*8192}"
    def tr_list(u, b):
        base, off = (vTH, slot[u] - R0) if slot[u] >= R0 else (vTR, slot[u])
        L = []
        for side in range(2):
            for t in range(2):
                for h in range(2):
                    if units[u][0] == "b":
                        L.append(f"ds_read_b64_tr_b16 {vr(b+8*side+4*t+2*h,2)}, v{base} offset:{off + h*2048 + side*256 + 8*t}")
                    else:
                        L.append(f"ds_read_b64_tr_b16 {vr(b+8*side+4*t+2*h,2)}, v{base+t} offset:{off + h*2048 + side*256}")
        return L
    MF = lambda acc, A, B, first: f"v_mfma_f32_16x16x32_bf16 {vr(acc,4)}, {vr(A,4)}, {vr(B,4)}, {'0' if first else vr(acc,4)}"
    def mix(M, lds=(), acts=None):
        lds = list(lds); nl = 0; acts = acts or {}
        if not M:
            for x in lds:
                if nl == 12: a("s_waitcnt lgkmcnt(6)"); nl = 6
                a(x); nl += 1
            return
        per = -(-len(lds) // len(M)) if lds else 0
        for k, m_ in enumerate(M):
            a(m_)
            for _ in range(per):
                if lds:
                    if nl == 12: a("s_waitcnt lgkmcnt(6)"); nl = 6
                    a(lds.pop(0)); nl += 1
            for f in acts.get(k, []): f()
    tr_ = opt.get("trace"); nb = [0]
    def wait_tags(tags):
        idx = [i for i, t in enumerate(st.seq) if t in tags]
        if idx: a(f"s_waitcnt vmcnt({min(63, len(st.seq) - 1 - max(idx))})")
    stb = opt.get("stb", [0, 9, 14, 16])
    def bar(us=(), extra=(), nolds=False):
        if not nolds or nb[0] == 4: a("s_waitcnt lgkmcnt(0)")
        if tr_: a("s_memtime s[98:99]")
        wait_tags([("U", u) for u in us] + list(extra))
        a("s_barrier")
        k = nb[0]
        if tr_:
            a(f"s_waitcnt lgkmcnt(0)\nv_writelane_b32 v{vX0}, s98, {2*k}\ns_memtime s[98:99]\ns_waitcnt lgkmcnt(0)\nv_writelane_b32 v{vX0}, s98, {2*k+1}")
        if k in stb: stamp()
        nb[0] += 1
    DPP = "quad_perm:[1,0,3,2] row_mask:0xf bank_mask:0xf"
    def finish():
        stamp()
        if tr_:
            a(f"""
            s_add_u32 s40, s24, {WS_DIAG + (2<<20)}
            s_addc_u32 s41, s25, 0
            s_mov_b32 s42, 0x100000
            s_mov_b32 s43, 0x20000
            s_lshl_b32 s44, s2, 3
            s_add_u32 s44, s44, s3
            s_lshl_b32 s44, s44, 8
            v_and_b32 v{vT}, 63, v0
            v_lshlrev_b32 v{vT}, 2, v{vT}
            buffer_store_dword v{vX0}, v{vT}, s[40:43], s44 offen
            """)
    LG1 = a.label("K1_G1"); Lfin = a.label("K1_GFIN")
    a(f"s_cmp_ge_u32 s3, 4\ns_cbranch_scc1 {LG1}")
    nst[0] = 1 if stamps else 0; st.seq = list(seq0); nb[0] = 0
    vACC = 160
    def prefetch():
        a(f"""
        s_lshr_b32 s{sT+1}, s2, 3
        s_add_u32 s{sT+1}, s{sT+1}, {24-6}
        s_cmp_ge_u32 s{sT+1}, 24
        s_cselect_b32 s{sT+2}, 24, 0
        s_sub_u32 s{sT+1}, s{sT+1}, s{sT+2}
        s_lshl_b32 s{sT+2}, s{sT+1}, 2
        s_add_u32 s{sT+2}, s{sT+2}, s{sL}
        s_lshl_b32 s{sT+3}, s{sT+2}, 12
        v_mbcnt_lo_u32_b32 v{vHW}, -1, 0
        v_lshlrev_b32 v{vHW}, 7, v{vHW}
        s_mov_b32 exec_hi, 0
        buffer_load_dword v{vHW+1}, v{vHW}, {sr(sW2,4)}, s{sT+3} offen
        s_mov_b64 exec, -1
        """)
        st.seq.append("PF")
    vq = [(2, i) for i in range(6)] + [(1, i) for i in range(2, 6)] + [(0, i) for i in range(6)] + [(1, 0), (1, 1)]
    def VV(n):
        for _ in range(min(n, len(vq))): dma_v(*vq.pop(0))
    class Ring:
        def __init__(self, seqn, base, R, LA):
            self.q = seqn; self.base = base; self.R = R; self.LA = LA; self.rd = 0; self.k = 0; self.lastn = None
        def read(self):
            t, n = self.q[self.rd]
            a(af(self.base + 4 * (self.rd % self.R), n, t, n != self.lastn)); self.lastn = n; self.rd += 1
        def prime(self, lim=None):
            while self.rd < min(len(self.q) if lim is None else lim, self.k + self.LA): self.read()
        def run(self, cnt, mf, lds=(), acts=None, lim=None, fresh=False):
            lds = list(lds); acts = acts or {}
            lim = len(self.q) if lim is None else lim
            log = [] if fresh else list(range(self.k, self.rd))
            per = -(-len(lds) // cnt) if lds else 0
            for g in range(cnt):
                if self.k in log:
                    p = log.index(self.k); a(f"s_waitcnt lgkmcnt({len(log) - 1 - p})"); log = log[p + 1:]
                if len(log) > 10:
                    a("s_waitcnt lgkmcnt(8)"); log = log[-8:]
                t, n = self.q[self.k]
                M = mf(t, n, self.base + 4 * (self.k % self.R))
                pend = []
                if self.rd < min(lim, self.k + 1 + self.LA):
                    t2, n2 = self.q[self.rd]
                    pend = af(self.base + 4 * (self.rd % self.R), n2, t2, n2 != self.lastn).split("\n"); self.lastn = n2
                rpos = len(M) - 2 if (len(M) > 2 and not lds) else len(M) - 1
                for f, m_ in enumerate(M):
                    a(m_)
                    if len(pend) == 2 and f == rpos - 1: a(pend.pop(0))
                    if pend and f == rpos:
                        a(pend.pop(0)); log.append(self.rd); self.rd += 1
                    elif f < per and lds:
                        a(lds.pop(0)); log.append(None)
                    assert len(log) <= 15
                for f in acts.get(g, []): f()
                self.k += 1
            assert not lds
    vq[:] = [(2, 4), (2, 5)] + [(2, i) for i in range(4)] + [(1, i) for i in range(2, 6)] + [(0, i) for i in range(6)] + [(1, 0), (1, 1)]
    g2mf = lambda t, n, A: [MF(vACC + (t * 4 + f) * 4, A, vW + n * 16 + 4 * f, n == 0) for f in range(4)]
    gv = opt.get("gv", [2, 4, 2, 3, 3, 2, 2, 0, 0])
    assert gv[0] <= 2 and sum(gv[:3]) <= 10 and sum(gv) == 18
    pfa = opt.get("pfa", -1)
    PF = lambda k: prefetch() if pfa == k else None
    TT = lambda *us: mix([], sum([tr_list(u, vW + 16 * (u - 8)) for u in us], []))
    PF(-1)
    bar([0, 1], [("S", 0), ("S", 1)]); dma_unit(4); dma_unit(5); PF(0)
    bar([2, 3]); dma_unit(6); dma_unit(7); PF(1)
    bar([4, 5]); dma_unit(8); dma_unit(9)
    bar([6, 7]); dma_unit(10); dma_unit(11)
    bar([8, 9]); dma_unit(12); dma_unit(13); TT(8, 9)
    bar([10, 11]); dma_unit(14); dma_unit(15); TT(10, 11); PF(5); VV(gv[0])
    bar([12, 13]); TT(12, 13); VV(gv[1])
    bar([14, 15]); TT(14, 15); VV(gv[2])
    bar(); VV(gv[3])
    bar(); VV(gv[4])
    gv = gv[1:]
    vVR, vVR2, vO4, vSEL = 1, 2, 3, 4
    vV = [7, 8, 9, 10, 12, 13, 14, 15, vACC + 94]
    vOB = vACC + 80; vE = vACC + 88
    AC = lambda t: vACC + (t % 5) * 16
    def epi_setup():
        a(f"""
        v_bfe_u32 v{vE}, v0, 4, 2
        v_and_b32 v{vE+1}, 15, v0
        v_and_b32 v{vE+2}, 1, v{vE+1}
        v_lshlrev_b32 v{vE+2}, 5, v{vE+2}
        v_lshrrev_b32 v{vE+3}, 1, v{vE+1}
        v_lshl_add_u32 v{vE+2}, v{vE+3}, 2, v{vE+2}
        s_lshl_b32 s{sT+4}, s{sL}, 6
        v_add_u32 v{vE+2}, s{sT+4}, v{vE+2}
        v_lshl_add_u32 v{vVR}, v{vE}, 10, v{vE+2}
        v_add_u32 v{vVR2}, {2*ROWS*256}, v{vVR}
        v_lshl_add_u32 v{vE+2}, v{vE}, 2, s{sROW}
        v_mul_u32_u24 v{vO4}, {ROWB}, v{vE+2}
        v_lshl_add_u32 v{vO4}, v{vE+1}, 4, v{vO4}
        s_and_b32 s{sT+4}, s3, 1
        s_lshl_b32 s{sT+4}, s{sT+4}, 8
        v_add_u32 v{vO4}, s{sT+4}, v{vO4}
        v_mov_b32 v{vE+2}, 0x03020706
        v_mov_b32 v{vE+3}, 0x05040100
        v_cndmask_b32 v{vSEL}, v{vE+2}, v{vE+3}, s[{sEV}:{sEV+1}]
        """)
    def v_read(pc):
        mt, r = pc // 4, pc % 4
        for c in range(3):
            d = vV[(pc % 3) * 3 + c]
            if c < 2: a(f"ds_read_b32 v{d}, v{vVR} offset:{c*ROWS*256 + (mt*16+r)*256}")
            else: a(f"ds_read_b32 v{d}, v{vVR2} offset:{(mt*16+r)*256}")
    def t4_piece(pc):
        mt, r = pc // 4, pc % 4
        A_ = lambda nt: AC(mt) + nt * 4 + r
        o = vOB + 4 * (pc % 2); vv = vV[(pc % 3) * 3:(pc % 3) * 3 + 3]
        lo, hi_, P, Q = vE, vE + 1, A_(2), A_(3)
        x = vE + 2
        a(f"""
        v_perm_b32 v{P}, v{A_(3)}, v{A_(2)}, s{sHI}
        v_mov_b32_dpp v{lo}, v{A_(1)} {DPP}
        v_mov_b32_dpp v{hi_}, v{A_(0)} {DPP}
        v_mov_b32_dpp v{Q}, v{P} {DPP}
        v_cndmask_b32 v{lo}, v{lo}, v{A_(0)}, s[{sEV}:{sEV+1}]
        v_cndmask_b32 v{hi_}, v{A_(1)}, v{hi_}, s[{sEV}:{sEV+1}]
        v_perm_b32 v{o+3}, v{Q}, v{P}, v{vSEL}
        v_lshlrev_b32 v{x}, 16, v{vv[0]}
        v_lshlrev_b32 v{x+1}, 16, v{vv[1]}
        v_lshlrev_b32 v{x+2}, 16, v{vv[2]}
        v_and_b32 v{vv[0]}, 0xffff0000, v{vv[0]}
        v_and_b32 v{vv[1]}, 0xffff0000, v{vv[1]}
        v_and_b32 v{vv[2]}, 0xffff0000, v{vv[2]}
        v_mul_f32 v{x}, v{x}, v{lo}
        v_mul_f32 v{x+2}, v{x+2}, v{lo}
        v_mul_f32 v{x+1}, v{x+1}, v{lo}
        v_mul_f32 v{vv[0]}, v{vv[0]}, v{hi_}
        v_mul_f32 v{vv[1]}, v{vv[1]}, v{hi_}
        v_mul_f32 v{vv[2]}, v{vv[2]}, v{hi_}
        v_add_u32 v{x}, s{sRND}, v{x}
        v_add_u32 v{x+2}, s{sRND}, v{x+2}
        v_perm_b32 v{o+1}, v{vv[1]}, v{x+1}, s{sHI}
        v_perm_b32 v{o}, v{vv[0]}, v{x}, s{sHI}
        v_perm_b32 v{o+2}, v{vv[2]}, v{x+2}, s{sHI}
        s_mov_b32 s{sT+4}, {mt*16*ROWB}
        buffer_store_dwordx4 {vr(o,4)}, v{vO4}, {sr(sT4,4)}, s{sT+4} offen offset:{r*ROWB} {tab_fl}
        """)
        st.seq.append("ST")
    pcc = [0]
    def pieces(n):
        if not n: return
        if pcc[0] == 0: v_read(0); v_read(1)
        for _ in range(n):
            pc = pcc[0]
            if pc + 2 < 24: v_read(pc + 2)
            a(f"s_waitcnt lgkmcnt({min(6, 3 * (23 - pc))})")
            t4_piece(pc); pcc[0] += 1
    g2mf = lambda t, n, A: [MF(AC(t) + 4 * f, A, vW + n * 16 + 4 * f, n == 0) for f in range(4)]
    b_at = opt.get("b_at", 2); ps = opt.get("ps", [0, 0, 0, 0, 6, 4])
    pfirst = min(t for t in range(6) if ps[t]); assert pfirst > b_at and sum(ps[:6]) >= 4
    rg = Ring([(t, n) for t in range(6) for n in range(8)], vT, 4, 3)
    for t in range(6):
        bar([16, 17] if t == 5 else [], ["V"] if t == pfirst else [])
        cnt = [5, 8, 8, 8, 8, 11][t]
        if t == 0: rg.prime(8)
        nv = gv[4 + t] if t < 4 else 0
        acts = {}
        for i_ in range(nv): acts.setdefault((i_ * cnt) // nv, []).append(lambda: VV(1))
        if t == b_at:
            assert not vq and not acts
            acts = {1: [lambda: dma_unit(16, (0, 1))], 3: [lambda: dma_unit(16, (2, 3))], 5: [lambda: dma_unit(17, (0, 1))], 7: [lambda: dma_unit(17, (2, 3)), epi_setup]}
        assert pcc[0] + ps[t] <= 4 * max(0, t - 1)
        pieces(ps[t])
        rg.run(cnt, g2mf, acts=acts, lim=8 * (t + 1), fresh=(t > 0))
    pl = opt.get("pl", 5)
    bar(); pieces(pl)
    bar(); pieces(24 - pcc[0])
    nbG2 = nb[0]
    finish()
    a(f"s_branch {Lfin}")
    a(f"{LG1}:")
    nst[0] = 1 if stamps else 0; st.seq = []; nb[0] = 0
    vAC1 = 160
    vAF = 208
    def silu(acc, mt, pk=False):
        for side in range(2):
            A0, A1 = acc + 8 * side, acc + 8 * side + 4
            X = [A0, A0 + 2, A1, A1 + 2]
            if opt.get("rndpre", 0):
                for r in range(4): a(f"v_cvt_pk_bf16_f32 v{vT+r}, v{A0+r}, v{A1+r}")
                for r in range(4): a(f"v_lshlrev_b32 v{A0+r}, 16, v{vT+r}\nv_and_b32 v{A1+r}, 0xffff0000, v{vT+r}")
            if pk or opt.get("silupk", 0):
                for k in range(4): a(f"v_pk_mul_f32 {vr(vT+2*k,2)}, {vr(X[k],2)}, s[{sT+6}:{sT+7}]")
                for k in range(8): a(f"v_exp_f32 v{vT+k}, v{vT+k}")
                for k in range(4): a(f"v_pk_add_f32 {vr(vT+2*k,2)}, {vr(vT+2*k,2)}, 1.0 op_sel_hi:[1,0]")
                for k in range(8): a(f"v_rcp_f32 v{vT+k}, v{vT+k}")
                for k in range(4): a(f"v_pk_mul_f32 {vr(X[k],2)}, {vr(X[k],2)}, {vr(vT+2*k,2)}")
            else:
                for k in range(8): a(f"v_mul_f32 v{vT+k}, s{sT+6}, v{A0+k}")
                for k in range(8): a(f"v_exp_f32 v{vT+k}, v{vT+k}")
                for k in range(8): a(f"v_add_f32 v{vT+k}, 1.0, v{vT+k}")
                for k in range(8): a(f"v_rcp_f32 v{vT+k}, v{vT+k}")
                for k in range(8): a(f"v_mul_f32 v{A0+k}, v{A0+k}, v{vT+k}")
            for r in range(4): a(f"v_cvt_pk_bf16_f32 v{A0+r}, v{A0+r}, v{A1+r}")
        for r in range(4): a(f"ds_write2st64_b32 v{vHW+r}, v{acc+r}, v{acc+8+r} offset0:{2*(mt*16+r)} offset1:{2*(mt*16+r)+1}")
    a(f"s_mov_b32 s{sT+6}, 0xbfb8aa3b\ns_mov_b32 s{sT+7}, 0xbfb8aa3b")
    if opt.get("g1prio", 1): a("s_setprio 1")
    vB1 = lambda n: vW + 16 * (n % 6)
    g1mf = lambda t, n, A: [MF(vAC1 + (t * 4 + f) * 4, A, vB1(n) + 4 * f, n == 0) for f in range(4)]
    rg = Ring([(t, n) for n in range(8) for t in range(6)], 128, 8, 5)
    T = lambda *us: sum([tr_list(u, vB1(u)) for u in us], [])
    bar(); mix([], T(0, 1)); a("s_waitcnt lgkmcnt(6)"); rg.prime()
    bar(); rg.run(6, g1mf, T(2, 3), fresh=True)
    bar(); rg.run(6, g1mf, T(4, 5), fresh=True)
    bar(); rg.run(6, g1mf, T(6, 7), fresh=True)
    for _ in range(5):
        bar(nolds=True); rg.run(6, g1mf, fresh=(_ == 0))
    for t in range(6):
        bar(); silu(vAC1 + 16 * t, t, t == 0)
    a("s_setprio 0")
    vBB = 192; vAC2 = 144; vAG = vW
    vO1, vSL, vRL = vD1, vD2, vDV
    bar()
    a(f"""
    v_and_b32 v{vT}, 63, v0
    v_lshrrev_b32 v{vT+1}, 4, v{vT}
    v_bfe_u32 v{vT+2}, v{vT}, 2, 2
    v_and_b32 v{vT+3}, 1, v{vT+1}
    v_lshl_or_b32 v{vT+3}, v{vT+3}, 2, v{vT+2}
    v_lshlrev_b32 v{vT+3}, 1, v{vT+3}
    v_and_b32 v{vT+4}, 3, v{vT}
    s_lshl_b32 s{sT+4}, s{sL}, 2
    v_or_b32 v{vT+5}, s{sT+4}, v{vT+4}
    v_xor_b32 v{vT+3}, v{vT+3}, v{vT+5}
    v_lshl_add_u32 v{vT+5}, v{vT+1}, 3, v{vT+2}
    v_lshlrev_b32 v{vT+5}, 9, v{vT+5}
    v_lshl_add_u32 v{vTH}, v{vT+3}, 4, v{vT+5}
    v_add_u32 v{vTH}, {R0}, v{vTH}
    v_lshl_add_u32 v{vT+1}, v{vT+1}, 2, s{sROW}
    v_mul_u32_u24 v{vT+1}, {ROWB}, v{vT+1}
    v_lshl_add_u32 v{vT+1}, v{vT+2}, 4, v{vT+1}
    v_and_b32 v{vT+3}, 1, v{vT}
    v_lshl_add_u32 v{vT+1}, v{vT+3}, 3, v{vT+1}
    v_bfe_u32 v{vT+3}, v{vT}, 1, 1
    v_lshl_add_u32 v{vT+1}, v{vT+3}, 2, v{vT+1}
    s_and_b32 s{sT+4}, s3, 1
    s_lshl_b32 s{sT+4}, s{sT+4}, 6
    s_add_u32 s{sT+4}, s{sT+4}, 512
    v_add_u32 v{vO1}, s{sT+4}, v{vT+1}
    v_mov_b32 v{vT+3}, 0x03020706
    v_mov_b32 v{vT+4}, 0x05040100
    v_mov_b32 v{vT+5}, 0x8000
    v_cndmask_b32 v{vSL}, v{vT+3}, v{vT+4}, s[{sEV}:{sEV+1}]
    v_cndmask_b32 v{vRL}, 0, v{vT+5}, s[{sEV}:{sEV+1}]
    """)
    rg = Ring([(t, n) for n in range(8) for t in range(6)], vAG, 24, 10)
    vrmf = lambda t, n, A: [MF(vAC2 + (t * 2 + tt) * 4, A, vBB + 16 * (n >> 1) + 8 * (n & 1) + 4 * tt, n == 0) for tt in range(2)]
    rg.prime()
    zero_counters(a, vT, vT + 1)
    a("s_waitcnt lgkmcnt(0)")
    mix([], tr_list(16, vBB) + tr_list(17, vBB + 16))
    bar(); dma_unit(18); dma_unit(19); rg.run(24, vrmf, fresh=True)
    bar([18, 19]); mix([], tr_list(18, vBB + 32) + tr_list(19, vBB + 48))
    srd(a, sT1, 22, None, 0, 256)
    srd(a, sW1, 24, None, WS_LUT, MISC_BYTES)
    sync_loads(a, sT1, sW1, sT + 1, vT)
    tokpos = len(st.seq)
    a("s_waitcnt lgkmcnt(0)")
    rg.run(24, vrmf, fresh=True)
    a("s_nop 7")
    for mt in range(6):
        A_ = lambda t, r: vAC2 + (mt * 2 + t) * 4 + r
        for r in range(4):
            a(f"v_add_u32 v{A_(0,r)}, v{A_(0,r)}, v{vRL}")
            a(f"v_add_u32 v{A_(1,r)}, v{A_(1,r)}, v{vRL}")
        for r in range(4):
            a(f"v_perm_b32 v{vT+r}, v{A_(1,r)}, v{A_(0,r)}, s{sHI}")
        a(f"s_mov_b32 s{sT+4}, {mt*16*ROWB}")
        for r in range(4):
            a(f"v_mov_b32_dpp v{vT+4+r}, v{vT+r} {DPP}")
        for r in range(4):
            a(f"v_perm_b32 v{A_(0,r)}, v{vT+4+r}, v{vT+r}, v{vSL}")
            a(f"buffer_store_dword v{A_(0,r)}, v{vO1}, {sr(sT4,4)}, s{sT+4} offen offset:{r*ROWB} {tab_fl}")
            st.seq.append("ST")
    opt["tokw"] = len(st.seq) - tokpos
    assert nb[0] == nbG2, (nb[0], nbG2)
    finish()
    a(f"{Lfin}:")
    dump_stamps(nst[0])
    a(f"{Lp2}:")
    phase2(a0, opt, Lend)
    a0.lines += side.lines
    return nvmax, 102
```

```python
from asmlib import *
from layout import *

CHUNK = 2048
SCAP = CHUNK // 4 + 2 * CAPN + 8 + 12
L_PARK = 0
L_STREAM = NKEY * 512
STREAM_BYTES = SCAP * 64
L_LUT = L_STREAM + STREAM_BYTES
L_CNT = 155648
assert L_CNT >= L_LUT + (NRS + 512) * 32
L_HIST = L_CNT + 1280
L_ALLOC = L_HIST + 256
L_SORT = L_ALLOC + 64
L_NADDR = L_SORT + 1280 + 256
L_PASS = L_NADDR + 1280
K2_LDS = L_PASS + 64
assert K2_LDS <= 163840 and L_CNT >= 139264
DIRS = [0, 1, 0, 1, 1] * 2

def dpp_scan(a, op, v):
    for m in ["row_shr:1", "row_shr:2", "row_shr:4", "row_shr:8"]:
        a("s_nop 1")
        a(f"{op}_dpp v{v}, v{v}, v{v} {m} row_mask:0xf bank_mask:0xf bound_ctrl:0")
    a("s_nop 1")
    a(f"{op}_dpp v{v}, v{v}, v{v} row_bcast:15 row_mask:0xa bank_mask:0xf")
    a("s_nop 1")
    a(f"{op}_dpp v{v}, v{v}, v{v} row_bcast:31 row_mask:0xc bank_mask:0xf")

def zero_counters(a, t0, t1):
    a(f"""
    v_lshlrev_b32 v{t0}, 3, v0
    v_add_u32 v{t0}, {L_CNT - 2048}, v{t0}
    v_mov_b32 v{t1}, 0
    v_cmp_gt_u32 vcc, 456, v0
    s_and_b64 exec, exec, vcc
    ds_write2_b32 v{t0}, v{t1}, v{t1} offset0:0 offset1:1
    s_mov_b64 exec, -1
    """)

def sync_loads(a, sdbg, smisc, st, vz, tok=True, gran=True):
    a(f"""
    s_lshr_b32 s{st}, s2, 3
    s_lshl_b32 s{st}, s{st}, 4
    s_and_b32 s{st+1}, s2, 1
    s_lshl_b32 s{st+1}, s{st+1}, 3
    s_add_u32 s{st}, s{st}, s{st+1}
    s_add_u32 s{st}, s{st}, {M_TOT}
    v_mov_b32 v{vz}, 0
    s_mov_b64 exec, 1
    {f"buffer_load_dwordx2 v[{VTOK}:{VTOK+1}], v{vz}, {sr(sdbg,4)}, 0 offen sc1" if tok else ""}
    {f"buffer_load_dwordx2 v[{VTOK+2}:{VTOK+3}], v{vz}, {sr(smisc,4)}, s{st} offen sc1" if gran else ""}
    s_mov_b64 exec, -1
    """)

def gen_k2(a, opt, Lend):
    stamps = opt.get("stamps", False)
    st_fl = opt.get("st_flags", "nt")
    NRG = opt.get("ring", 3); DP = NRG - 1
    V = Regs("v", 1, 256)
    vB = V.alloc("B", 24, 2)
    vC1 = V.alloc("c1"); vC2 = V.alloc("c2"); vML = V.alloc("ml"); vCL = V.alloc("cl")
    vS = V.alloc("vS"); vA = V.alloc("vA"); vPEND = V.alloc("pend"); vG4 = V.alloc("g4"); vCO = V.alloc("co")
    vEN = V.alloc("en"); vPA = V.alloc("pa"); vO = V.alloc("O"); vPN = V.alloc("pn"); vPD = V.alloc("pd")
    vACC = V.alloc("acc", 20, 2)
    vD = V.alloc("D", 24, 2)
    vRH = V.alloc("RH", 8, 2)
    vAOP = V.alloc("A", 4, 2)
    vE = V.alloc("E", 8, 2)
    vX = V.alloc("X", 16, 2)
    vR = V.alloc("R", 8, 2)
    vT = V.alloc("T", 4, 2)
    vPK = V.alloc("PK", 2, 2)
    vLI = V.alloc("LI")
    vAD = V.alloc("ad", 4)
    vRING = V.alloc("ring", 24 * NRG, 2)
    P = Regs("v", vACC, 256)
    pT = P.alloc("t", 12, 2)
    pREC = P.alloc("rec", 32, 2)
    pRANK = P.alloc("rank", 8)
    pDL = P.alloc("dl", 8)
    pEK = P.alloc("ek", 10)
    pRS = P.alloc("rs", 8)
    pNA = P.alloc("na", 8)
    pLT = P.alloc("lt", 16, 2)
    pRARE = P.alloc("rare", 64, 2)
    assert pRARE >= vRING
    nv = max(V.hi, P.hi)
    def ACC(hf): b = vACC + 10 * hf; return b, b + 2, b + 4, b + 6, b + 8

    sTB, sSV, sOUT, sLIST, sMISC, sDBG = 28, 32, 36, 40, 44, 48
    sM, sRG, sW, sCB, sTOT = 52, 53, 3, 54, 26
    sREM = 55; sPC = 56; sQ = 58; sDIR = 59; sMORE = 60; sPM = 61
    sCNT, sSLOT, sROWB, sMASK, sPS, sSPIN = 62, 63, 64, 65, 66, 67
    sN0 = 8
    sT = 68
    sFIRST = 76; sL = 77
    STR = [92, 94, 96, 98, 100, 18]
    nst = [0]
    def stamp():
        if stamps:
            a(f"s_memrealtime {sr(STR[nst[0]], 2)}")
            nst[0] += 1
    def srd(d, lo, off_sreg, off_imm, size):
        hi = lo + 1
        if off_sreg is None and off_imm == 0:
            a(f"s_mov_b32 s{d}, s{lo}\ns_mov_b32 s{d+1}, s{hi}")
        else:
            if off_sreg is not None:
                if off_imm:
                    a(f"s_add_u32 s{off_sreg}, s{off_sreg}, {off_imm}")
                a(f"s_add_u32 s{d}, s{lo}, s{off_sreg}")
            else:
                a(f"s_add_u32 s{d}, s{lo}, {off_imm}")
            a(f"s_addc_u32 s{d+1}, s{hi}, 0")
        a(f"s_mov_b32 s{d+2}, {size}\ns_mov_b32 s{d+3}, 0x20000")
    def ring(bslot, st, hf): return vRING + ((bslot * 2 + st) * 2 + hf) * 6
    def issue(bslot, pk0):
        for st in range(2):
            a(f"v_mad_u32_u16 v{vAD+2*st}, v{pk0+st}, s{sROWB}, v{vC1}")
            a(f"v_mad_u32_u16 v{vAD+2*st+1}, v{pk0+st}, s{sROWB}, v{vC2}")
        for st in range(2):
            for hf in range(2):
                a(f"buffer_load_dwordx4 {vr(ring(bslot,st,hf),4)}, v{vAD+2*st}, {sr(sTB,4)}, 0 offen offset:{256*hf}")
            for hf in range(2):
                a(f"buffer_load_dword v{ring(bslot,st,hf)+5}, v{vAD+2*st+1}, {sr(sTB,4)}, 0 offen offset:{512+64*hf}")
    plist = {0: [(i, h) for i in (4, 5, 6, 7) for h in (0, 1)], 1: [(i, h) for i in (0, 1, 2, 3, 8, 9) for h in (0, 1)]}
    def park_issue(cls, n):
        for _ in range(n):
            i, h = plist[cls].pop(0)
            a(f"""
            s_add_u32 m0, s{sPM}, {i*8192 + h*4096}
            s_add_u32 s{sT+7}, s{sPS}, {(i*16 + h*8)*64*2048}
            buffer_load_dwordx4 v{vPD}, {sr(sSV,4)}, s{sT+7} offen lds
            """)
    def park_dma(na, nb):
        if not (na or nb): return
        Ls = a.label("K2_NOPARK"); Lb = a.label("K2_PARKB")
        a(f"s_cmp_eq_u32 s{sFIRST}, 0\ns_cbranch_scc1 {Ls}\ns_cmp_ge_u32 s{sW}, 4\ns_cbranch_scc1 {Lb}")
        park_issue(0, na)
        a(f"s_branch {Ls}\n{Lb}:")
        park_issue(1, nb)
        a(f"{Ls}:")
    def r_reads():
        for c in range(4):
            a(f"ds_read2_b32 {vr(vR+2*c,2)}, v{vPN} offset0:{32*c} offset1:{32*c+16}")
    def fetch_next():
        a(f"""
        v_and_b32 v{vEN}, 0xff, v{vEN}
        s_add_u32 s{sQ}, s{sQ}, 128
        s_lshr_b32 s{sDIR}, s{sDIR}, 1
        v_lshl_add_u32 v{vPN}, v{vEN}, 9, v{vC2}
        s_bitcmp1_b32 s{sDIR}, 0
        s_cselect_b32 s{sT}, 112, 0
        s_xor_b32 s{sT}, s{sT}, s{sQ}
        v_add_u32 v{vEN}, s{sT}, v{vG4}
        """)
        r_reads()
        a(f"ds_read_b32 v{vEN}, v{vEN}")
    def acc_init():
        for hf in range(2):
            HXY, HZS, LXY, LZS, BZ = ACC(hf)
            R = lambda c: vR + 2 * c + hf
            a(f"""
            v_and_b32 v{HXY}, s{sMASK}, v{R(1)}
            v_and_b32 v{HXY+1}, s{sMASK}, v{R(2)}
            v_and_b32 v{HZS}, s{sMASK}, v{R(3)}
            v_and_b32 v{HZS+1}, s{sMASK}, v{R(0)}
            v_lshlrev_b32 v{LXY}, 16, v{R(1)}
            v_lshlrev_b32 v{LXY+1}, 16, v{R(2)}
            v_lshlrev_b32 v{LZS}, 16, v{R(3)}
            v_lshlrev_b32 v{LZS+1}, 16, v{R(0)}
            v_mov_b64 {vr(BZ,2)}, 0
            """)
        a(f"v_mov_b32 v{vPA}, v{vPN}")

    Lrank = a.label("K2_RANK"); Lx = a.label("K2_X")
    stamp()
    t16, l16 = pT + 5, pT + 6
    sTOK = 27
    INV = 0x10000
    a(f"""
    s_bfe_u32 s{sM}, s2, 0x20001
    s_lshr_b32 s{sRG}, s2, 3
    s_lshl_b32 s{sRG}, s{sRG}, 1
    s_and_b32 s{sT}, s2, 1
    s_or_b32 s{sRG}, s{sRG}, s{sT}
    s_and_b32 s{sL}, s{sW}, 3
    s_mov_b32 s{sFIRST}, 1
    """)
    srd(sDBG, 22, None, 0, 256)
    srd(sMISC, 24, None, WS_LUT, MISC_BYTES)
    a(f"s_mul_i32 s{sT}, s{sRG}, {LIST_STRIDE}")
    srd(sLIST, 24, sT, WS_LIST, LIST_STRIDE)
    srd(sSV, 4, None, 0, 0 if opt.get("nores") else N * 2048)
    def spin(body, sleep):
        L0 = a.label("K2_SPIN"); L1 = a.label("K2_SPINOK")
        a(f"s_mov_b32 s{sSPIN}, {SPIN_MAX}\n{L0}:")
        body()
        a(f"""
        s_cbranch_scc1 {L1}
        s_sub_u32 s{sSPIN}, s{sSPIN}, 1
        s_cbranch_scc1 {L1}
        s_sleep {sleep}
        s_branch {L0}
{L1}:
        """)
    def arrive():
        a(f"""
        s_mul_i32 s{sT}, s2, {ARRS}
        s_add_u32 s{sT}, s{sT}, {M_ARR}
        v_mbcnt_lo_u32_b32 v{pT+1}, -1, 0
        v_mov_b32 v{pT+3}, s{sTOK}
        v_lshlrev_b32 v{pT+1}, 2, v{pT+1}
        s_mov_b64 exec, {"0xffff" if ARRS == 64 else "0x7fffffff" if False else "0xffff"}
        {"s_mov_b32 exec_lo, -1" if ARRS == 128 else ""}
        buffer_store_dword v{pT+3}, v{pT+1}, {sr(sMISC,4)}, s{sT} offen sc1
        s_mov_b64 exec, -1
        """)
    def wait_arrivals(lo, hi, sleep):
        n = (hi - lo + 63) // 64
        a(f"v_and_b32 v{pT+1}, 63, v0")
        for i in range(n):
            a(f"v_add_u32 v{pEK+i}, {lo + 64*i}, v{pT+1}\nv_min_u32 v{pEK+i}, {hi-1}, v{pEK+i}\nv_mul_u32_u24 v{pEK+i}, {ARRS}, v{pEK+i}")
        a(f"s_mov_b32 s{sT}, {M_ARR}")
        sP = 84
        for i in range(n): a(f"s_mov_b64 {sr(sP+2*i,2)}, -1")
        def body():
            for i in range(n):
                Lq = a.label("K2_PQ")
                a(f"s_mov_b64 exec, {sr(sP+2*i,2)}\ns_cbranch_execz {Lq}")
                a(f"buffer_load_dword v{pEK+4+i}, v{pEK+i}, {sr(sMISC,4)}, s{sT} offen sc1\n{Lq}:")
            a("s_mov_b64 exec, -1\ns_waitcnt vmcnt(0)")
            for i in range(n):
                a(f"v_cmp_ne_u32 {sr(sP+2*i,2)}, s{sTOK}, v{pEK+4+i}")
            a(f"s_mov_b64 vcc, {sr(sP,2)}")
            for i in range(1, n):
                a(f"s_or_b64 vcc, vcc, {sr(sP+2*i,2)}")
            a("s_cmp_eq_u64 vcc, 0")
        spin(body, sleep)
    def consts():
        a(f"""
        v_and_b32 v{pT+1}, 63, v0
        v_lshlrev_b32 v{l16}, 4, v{pT+1}
        v_bfe_u32 v{pT+2}, v0, 5, 3
        v_bfe_u32 v{pT+3}, v0, 3, 2
        v_and_b32 v{vPD}, 7, v0
        v_lshlrev_b32 v{vPD}, 4, v{vPD}
        v_lshl_add_u32 v{vPD}, v{pT+3}, 9, v{vPD}
        v_lshl_add_u32 v{vPD}, v{pT+2}, 17, v{vPD}
        s_lshl_b32 s{sPS}, s{sRG}, 11
        s_lshl_b32 s{sT+5}, s{sM}, 7
        s_add_u32 s{sPS}, s{sPS}, s{sT+5}
        s_lshl_b32 s{sPM}, s{sL}, 10
        s_movk_i32 s{sROWB}, {ROWB}
        s_mov_b32 s{sMASK}, 0xffff0000
        s_mov_b32 s{sCB}, 0
        v_mov_b32 v{vPEND}, 0xff
        v_and_b32 v{vC1}, 7, v0
        v_bfe_u32 v{vC2}, v0, 3, 1
        v_lshlrev_b32 v{vC1}, 5, v{vC1}
        v_lshl_add_u32 v{vC1}, v{vC2}, 4, v{vC1}
        v_and_b32 v{vC2}, 15, v0
        v_lshlrev_b32 v{vC2}, 2, v{vC2}
        v_mul_u32_u24 v{vCO}, 255, v{vC2}
        v_sub_u32 v{vCO}, s{sPS}, v{vCO}
        v_bfe_u32 v{vG4}, v0, 4, 2
        v_lshlrev_b32 v{vG4}, 2, v{vG4}
        v_add_u32 v{vG4}, {L_SORT}, v{vG4}
        v_bfe_u32 v{pT+1}, v0, 5, 1
        v_and_b32 v{pT+2}, 1, v0
        v_cmp_eq_u32 vcc, v{pT+1}, v{pT+2}
        v_and_b32 v{pT+3}, 16, v0
        v_mov_b32 v{pT+4}, 32
        v_cndmask_b32 v{vML}, 0, v{pT+4}, vcc
        s_mul_i32 s{sT+5}, s{sM}, {TAB_SL}
        v_cndmask_b32 v{vCL}, 0, v{pT+3}, vcc
        v_add_u32 v{vCL}, {L_LUT}, v{vCL}
        """)
        srd(sTB, 24, sT + 5, WS_TAB, 0 if opt.get("notab") else TAB_SL)
        srd(sOUT, 20, None, 0, 0 if opt.get("nost") else N * 2048)
    def bop_loads():
        a(f"s_mul_i32 s{sT+6}, s{sM}, 6144\ns_add_u32 s{sT+6}, s{sT+6}, {M_BOP}\ns_add_u32 s{sT+7}, s{sT+6}, 3072")
        for o in range(6):
            a(f"buffer_load_dwordx4 {vr(vB+4*o,4)}, v{l16}, {sr(sMISC,4)}, s{sT+6+o//3} offen offset:{1024*(o%3)} {opt.get('bopfl', 'sc1')}")
    def rec_loads():
        a(f"v_add_u32 v{t16}, s{sCB}, v0\nv_subrev_u32 v{t16}, 256, v{t16}\nv_lshlrev_b32 v{t16}, 4, v{t16}")
        for k in range(8):
            a(f"s_movk_i32 s{sT+2}, {k*4096}")
            a(f"buffer_load_dwordx4 {vr(pREC+4*k,4)}, v{t16}, {sr(sLIST,4)}, s{sT+2} offen sc1")
    z = pT + 8
    def null_fill(t0=256):
        a(f"""
        v_mov_b32 v{z}, 0
        v_mov_b32 v{z+1}, 0
        v_mov_b32 v{z+2}, 0
        v_mov_b32 v{z+3}, 0xffff
        v_lshlrev_b32 v{pT+4}, 4, v0
        v_add_u32 v{pT+4}, {L_STREAM - 16*t0}, v{pT+4}
        """)
        nfull = STREAM_BYTES // 4096
        rem = (STREAM_BYTES - nfull * 4096) // 16
        for i in range(nfull):
            a(f"ds_write_b128 v{pT+4}, {vr(z,4)} offset:{i*4096}")
        a(f"""
        v_cmp_gt_u32 vcc, {t0 + rem}, v0
        s_and_b64 exec, exec, vcc
        ds_write_b128 v{pT+4}, {vr(z,4)} offset:{nfull*4096}
        s_mov_b64 exec, -1
        v_lshlrev_b32 v{pT+4}, 3, v0
        v_add_u32 v{pT+4}, {L_LUT - 8*t0}, v{pT+4}
        v_cmp_gt_u32 vcc, {t0+4}, v0
        s_and_b64 exec, exec, vcc
        ds_write_b64 v{pT+4}, {vr(z,2)}
        s_mov_b64 exec, -1
        """)
    Lsd = a.label("K2_SIDE"); Lsz = a.label("K2_SZ"); LA = a.label("K2_A"); Lok = a.label("K2_GOK"); Lnag = a.label("K2_NOAGG"); Ls2 = a.label("K2_S2"); Lagd = a.label("K2_AGD")
    def get_token():
        Ltk = a.label("K2_TOK")
        token_decode(a, VTOK, sTOK, sT)
        a(f"s_cbranch_scc1 {Ltk}")
        def body():
            sync_loads(a, sDBG, sMISC, sT, pT + 1, gran=False)
            a("s_waitcnt vmcnt(0)")
            token_decode(a, VTOK, sTOK, sT)
        spin(body, 8)
        a(f"{Ltk}:")
    def check():
        a(f"""
        v_readfirstlane_b32 s{sT}, v{VTOK+3}
        v_readfirstlane_b32 s{sTOT}, v{VTOK+2}
        s_nop 1
        s_cmp_eq_u32 s{sT}, s{sTOK}
        """)
    def wait_granule(sleep):
        def body():
            sync_loads(a, sDBG, sMISC, sT, pT + 1, tok=False)
            a("s_waitcnt vmcnt(0)")
            check()
        spin(body, sleep)
    a(f"""
    s_cmp_ge_u32 s2, {WG_GEMM0}
    s_cbranch_scc1 {Lsd}
    s_cmp_lt_u32 s{sW}, 4
    s_cbranch_scc1 {Lsz}
    """)
    zero_counters(a, pT + 1, pT + 2)
    a(f"""
{Lsz}:
    v_mov_b32 v{pT+7}, {L_PASS}
    s_waitcnt vmcnt(0) lgkmcnt(0)
    s_barrier
    s_cmp_lg_u32 s{sW}, {WSY}
    s_cbranch_scc1 {Ls2}
    """)
    get_token()
    arrive()
    if opt.get("aggst") == 1: a("s_waitcnt vmcnt(0)\ns_memrealtime s[92:93]")
    if opt.get("aggst") == 5: a("s_memrealtime s[92:93]")
    a(f"s_cmp_lg_u32 s2, {WG_AGG}\ns_cbranch_scc1 {Lnag}")
    wait_arrivals(0, WG_AGG, opt.get("sl0", 4))
    a(f"""
    {"s_memrealtime s[92:93]" if opt.get("aggst") == 2 else ""}
    v_lshlrev_b32 v{pT+1}, 2, v{pT+1}
    buffer_load_dword v{pT+2}, v{pT+1}, {sr(sDBG,4)}, 0 offen sc1
    v_lshlrev_b32 v{pT+1}, 1, v{pT+1}
    v_mov_b32 v{pT+3}, s{sTOK}
    s_mov_b32 s{sT}, {M_TOT}
    s_waitcnt vmcnt(0)
    buffer_store_dwordx2 {vr(pT+2,2)}, v{pT+1}, {sr(sMISC,4)}, s{sT} offen sc1
    v_readlane_b32 s{sT}, v{pT+2}, {2*(WG_AGG>>3) + (WG_AGG&1)}
    v_mov_b32 v{VTOK+3}, s{sTOK}
    s_nop 0
    v_mov_b32 v{VTOK+2}, s{sT}
    s_branch {Lagd}
{Lnag}:
    """)
    wait_granule(opt.get("sl1", 16))
    a(f"""
{Lagd}:
    {"s_memrealtime s[92:93]" if opt.get("aggst") == 3 else ""}
    s_mov_b64 exec, 1
    ds_write_b128 v{pT+7}, {vr(VTOK,4)} offset:16
    s_mov_b64 exec, -1
    s_waitcnt lgkmcnt(0)
{Ls2}:
    s_barrier
    ds_read_b128 {vr(VTOK,4)}, v{pT+7} offset:16
    s_waitcnt lgkmcnt(0)
{Lsd}:
    s_cmp_lt_u32 s{sW}, 4
    s_cbranch_scc1 {LA}
    s_waitcnt vmcnt({opt.get("tokw", 5)})
    """)
    get_token()
    check()
    a(f"s_cbranch_scc1 {Lok}")
    wait_granule(8)
    pkb = opt.get("pkb", [2, 2, 3, 3, 2, 0])
    pka = opt.get("pka", [1, 1, 0, 0, 6])
    assert sum(pkb) == 12 and sum(pka) == 8
    a(f"""
{Lok}:
    s_and_b32 s{sTOT}, s{sTOT}, 0x3ffff
    s_min_u32 s{sTOT}, s{sTOT}, {LCAP}
    s_lshl_b32 s{sLIST+2}, s{sTOT}, 4
    s_mov_b32 s{sCB}, 0
    """)
    rec_loads()
    consts()
    a(f"""
    v_mov_b32 v{pT+1}, {L_PASS}
    v_mov_b32 v{pT+2}, s{sTOT}
    v_mov_b32 v{pT+3}, s{sTOK}
    ds_write_b64 v{pT+1}, {vr(pT+2,2)}
    s_lshl_b32 s{sT+5}, s{sL}, 12
    v_add_u32 v{pT+7}, s{sT+5}, v{l16}
    v_add_u32 v{pT+7}, {L_LUT + NRS*32}, v{pT+7}
    s_add_u32 s{sT+5}, s{sT+5}, {LUT_THR*32}
    """)
    for i in range(4):
        a(f"buffer_load_dwordx4 {vr(pLT+4*i,4)}, v{l16}, {sr(sMISC,4)}, s{sT+5} offen offset:{1024*i} sc1")
    Lna = a.label("K2_NOARR")
    a(f"""
    s_waitcnt vmcnt(12) lgkmcnt(0)
    s_barrier
    s_cmp_lg_u32 s{sW}, {WSY}
    s_cbranch_scc1 {Lna}
    s_cmp_lt_u32 s2, {WG_GEMM0}
    s_cbranch_scc1 {Lna}
    """)
    arrive()
    a(f"{Lna}:")
    park_issue(1, pkb[0])
    a(f"s_waitcnt vmcnt({pkb[0]})")
    for i in range(4):
        a(f"ds_write_b128 v{pT+7}, {vr(pLT+4*i,4)} offset:{1024*i}")
    bop_loads()
    one = pT + 4; vAL = pT + 10
    a(f"""
{Lrank}:
    s_waitcnt lgkmcnt(0)
    {"s_memrealtime s[92:93]" if opt.get("aggst") == 4 else ""}
    v_mov_b32 v{one}, 1
    v_mov_b32 v{vAL}, {L_ALLOC}
    s_sub_u32 s{sT+2}, s{sTOT}, s{sCB}
    s_add_u32 s{sT+2}, s{sT+2}, 256
    """)
    for k in range(8):
        r0 = pREC + 4 * k
        Lskip = a.label("K2_NORARE")
        a(f"""
        v_add_u32 v{pT+5}, {k*256}, v0
        v_and_b32 v{pT+6}, {1<<k}, v{vPEND}
        v_cmp_gt_u32 vcc, s{sT+2}, v{pT+5}
        v_cmp_ne_u32 s[{sT}:{sT+1}], 0, v{pT+6}
        v_and_b32 v{pDL+k}, 0x1ff, v{r0}
        v_mov_b32 v{pRANK+k}, {INV}
        s_and_b64 s[{sT}:{sT+1}], vcc, s[{sT}:{sT+1}]
        v_cmp_gt_u32 vcc, {2*NKEY}, v{pDL+k}
        v_lshlrev_b32 v{pDL+k}, 2, v{pDL+k}
        v_add_u32 v{pDL+k}, {L_CNT}, v{pDL+k}
        v_mov_b32 v{pRS+k}, 0
        s_and_b64 s[{sT}:{sT+1}], vcc, s[{sT}:{sT+1}]
        v_cmp_gt_i32 vcc, 0, v{r0+3}
        v_and_b32 v{r0}, s{sMASK}, v{r0}
        {f"v_and_b32 v{r0+3}, {0xffff0000 | opt['srcmask']}, v{r0+3}" if opt.get("srcmask") else ""}
        s_and_b64 exec, vcc, s[{sT}:{sT+1}]
        s_cbranch_execz {Lskip}
        ds_add_rtn_u32 v{pT+8}, v{vAL}, v{one} offset:8
        v_bfe_u32 v{pT+7}, v{r0+3}, 16, 15
        v_lshlrev_b32 v{pT+7}, 5, v{pT+7}
        buffer_load_dwordx4 {vr(pRARE+8*k,4)}, v{pT+7}, {sr(sMISC,4)}, 0 offen sc1
        buffer_load_dwordx4 {vr(pRARE+8*k+4,4)}, v{pT+7}, {sr(sMISC,4)}, 0 offen offset:16 sc1
        v_and_b32 v{r0+3}, 0xffff, v{r0+3}
        v_mov_b32 v{pRANK+k}, {INV-1}
        s_waitcnt lgkmcnt(0)
        v_add_u32 v{pT+8}, 1, v{pT+8}
        v_cmp_le_u32 vcc, {NRS}, v{pT+8}
        v_lshl_or_b32 v{r0+3}, v{pT+8}, 16, v{r0+3}
        v_lshlrev_b32 v{pT+8}, 5, v{pT+8}
        s_andn2_b64 s[{sT}:{sT+1}], s[{sT}:{sT+1}], vcc
        s_andn2_b64 exec, exec, vcc
        v_add_u32 v{pRS+k}, {L_LUT}, v{pT+8}
{Lskip}:
        s_mov_b64 exec, s[{sT}:{sT+1}]
        ds_add_rtn_u32 v{pRANK+k}, v{pDL+k}, v{one}
        s_mov_b64 exec, -1
        """)
    Lnp1 = a.label("K2_NP1")
    a(f"s_cmp_eq_u32 s{sFIRST}, 0\ns_cbranch_scc1 {Lnp1}")
    park_issue(1, pkb[1])
    a(f"""
{Lnp1}:
    s_waitcnt lgkmcnt(0)
    s_barrier
    s_branch {Lx}
    """)
    a(f"{LA}:")
    consts()
    a(f"""
    v_mov_b32 v{pT+7}, {L_PASS}
    s_waitcnt vmcnt(0)
    s_barrier
    ds_read_b64 {vr(pT+2,2)}, v{pT+7}
    s_waitcnt lgkmcnt(0)
    v_readfirstlane_b32 s{sTOT}, v{pT+2}
    v_readfirstlane_b32 s{sTOK}, v{pT+3}
    """)
    null_fill(0)
    park_issue(0, pka[4])
    bop_loads()
    a(f"""
    s_waitcnt lgkmcnt(0)
    s_barrier
{Lx}:
    v_mov_b32 v{one}, 1
    v_mov_b32 v{vAL}, {L_ALLOC}
    """)
    stamp()
    L7 = a.label("K2_P7"); L8 = a.label("K2_P8")
    deg, rk, hh, bn = pT + 5, pT + 6, pT + 7, pT + 11
    a(f"""
    s_cmp_ge_u32 s{sW}, 5
    s_cbranch_scc1 {L7}
    v_lshlrev_b32 v{pT+8}, 2, v0
    v_add_u32 v{pT+8}, {L_CNT}, v{pT+8}
    ds_read_b32 v{deg}, v{pT+8}
    v_cmp_le_u32 vcc, {NKEY}, v0
    v_mov_b32 v{bn}, 31
    v_mov_b32 v{pT+9}, 63
    v_cndmask_b32 v{bn}, v{bn}, v{pT+9}, vcc
    s_waitcnt lgkmcnt(0)
    v_min_u32 v{deg}, {CAPN}, v{deg}
    v_sub_u32 v{bn}, v{bn}, v{deg}
    v_lshlrev_b32 v{bn}, 2, v{bn}
    v_add_u32 v{pT+8}, {L_HIST}, v{bn}
    ds_add_rtn_u32 v{rk}, v{pT+8}, v{one}
    s_waitcnt lgkmcnt(0)
{L7}:
    """)
    park_dma(pka[0], pkb[2])
    a(f"""
    s_barrier
    s_cmp_ge_u32 s{sW}, 5
    s_cbranch_scc1 {L8}
    v_and_b32 v{pT+8}, 63, v0
    v_lshlrev_b32 v{pT+8}, 2, v{pT+8}
    v_add_u32 v{pT+8}, {L_HIST}, v{pT+8}
    ds_read_b32 v{hh}, v{pT+8}
    v_subrev_u32 v{pT+8}, {NKEY}, v0
    v_min_u32 v{pT+8}, v{pT+8}, v0
    v_lshl_or_b32 v{deg}, v{deg}, 16, v{pT+8}
    s_waitcnt lgkmcnt(0)
    v_mov_b32 v{pT+9}, v{hh}
    """)
    dpp_scan(a, "v_add_u32", hh)
    a(f"""
    v_sub_u32 v{hh}, v{hh}, v{pT+9}
    ds_bpermute_b32 v{pT+9}, v{bn}, v{hh}
    s_waitcnt lgkmcnt(0)
    v_add_lshl_u32 v{pT+9}, v{pT+9}, v{rk}, 2
    v_add_u32 v{pT+9}, {L_SORT}, v{pT+9}
    ds_write_b32 v{pT+9}, v{deg}
    s_waitcnt lgkmcnt(0)
{L8}:
    """)
    park_dma(pka[1], pkb[3])
    assert L_SORT % 128 == 0 or True
    ek = pEK
    a(f"""
    s_barrier
    s_lshl_b32 s{sQ}, s{sW}, 4
    s_xor_b32 s{sT+1}, s{sQ}, 112
    v_add_u32 v{pT+6}, s{sQ}, v{vG4}
    v_add_u32 v{pT+7}, s{sT+1}, v{vG4}
    """)
    for k in range(10):
        a(f"ds_read_b32 v{ek+k}, v{pT+6+DIRS[k]} offset:{128*k}")
    a("s_waitcnt lgkmcnt(0)")
    for k in range(10):
        a(f"v_readfirstlane_b32 s{sN0+k}, v{ek+k}")
    a(f"v_mov_b32 v{vEN}, v{ek}\ns_mov_b32 s{sDIR}, {sum(d << k for k, d in enumerate(DIRS))}")
    a(f"s_mov_b64 {sr(sPC,2)}, 0\ns_mov_b32 s{sREM}, 0")
    for k in range(10):
        a(f"s_lshr_b32 s{sT}, s{sN0+k}, 16")
        a(f"s_mov_b32 s{sN0+k}, s{sREM}\ns_add_u32 s{sREM}, s{sREM}, s{sT}")
        a(f"s_lshl_b32 s{sT}, s{sT}, {5*(k%5)}\ns_or_b32 s{sPC+k//5}, s{sPC+k//5}, s{sT}")
    a(f"""
    s_add_u32 s{sREM}, s{sREM}, 1
    s_lshr_b32 s{sREM}, s{sREM}, 1
    v_mov_b32 v{pT+8}, s{sREM}
    s_mov_b64 exec, 1
    ds_add_rtn_u32 v{pT+9}, v{vAL}, v{pT+8}
    s_mov_b64 exec, -1
    """)
    for k in range(10):
        a(f"v_and_b32 v{ek+k}, 0xff, v{ek+k}")
        a(f"v_lshlrev_b32 v{ek+k}, 2, v{ek+k}")
        a(f"v_add_u32 v{ek+k}, {L_NADDR + (NKEY*4 if k >= 5 else 0)}, v{ek+k}")
    a(f"""
    v_bfe_u32 v{pT+5}, v0, 4, 2
    v_bfe_u32 v{pT+6}, v0, 1, 1
    v_bfe_u32 v{pT+7}, v0, 2, 2
    v_lshlrev_b32 v{pT+6}, 6, v{pT+6}
    v_lshl_add_u32 v{pT+6}, v{pT+7}, 4, v{pT+6}
    s_waitcnt lgkmcnt(0)
    v_readfirstlane_b32 s{sT}, v{pT+9}
    s_nop 1
    s_lshl_b32 s{sT}, s{sT}, 7
    s_add_u32 s{sT}, s{sT}, {L_STREAM}
    v_lshl_add_u32 v{vS}, v{pT+5}, 4, s{sT}
    v_add_u32 v{vA}, s{sT}, v{pT+6}
    """)
    for k in range(10):
        a(f"v_lshl_add_u32 v{pT+7+(k&1)}, s{sN0+k}, 6, v{vS}")
        a(f"ds_write_b32 v{ek+k}, v{pT+7+(k&1)}")
    park_dma(pka[2], pkb[4])
    a("s_waitcnt lgkmcnt(0)\ns_barrier")
    LsA = a.label("K2_SCA"); Lse = a.label("K2_SCE")
    a(f"s_cmp_lt_u32 s{sW}, 4\ns_cbranch_scc1 {LsA}")
    for k in range(8):
        a(f"ds_read_b32 v{pNA+k}, v{pDL+k} offset:{L_NADDR - L_CNT}")
    a(f"v_mov_b32 v{vPEND}, 0\ns_mov_b32 s{sT+2}, {INV}")
    for k in range(8):
        r0 = pREC + 4 * k
        Lnpd = a.label("K2_NOPEND")
        a(f"""
        v_cmp_gt_u32 vcc, {CAPN}, v{pRANK+k}
        v_cmp_gt_u32 s[{sT}:{sT+1}], s{sT+2}, v{pRANK+k}
        {"s_waitcnt lgkmcnt(0)" if k == 0 else ""}
        v_lshl_add_u32 v{pNA+k}, v{pRANK+k}, 6, v{pNA+k}
        s_mov_b64 exec, vcc
        ds_write_b128 v{pNA+k}, {vr(r0,4)}
        s_andn2_b64 exec, s[{sT}:{sT+1}], vcc
        s_cbranch_execz {Lnpd}
        v_or_b32 v{vPEND}, {1<<k}, v{vPEND}
        ds_write_b32 v{vAL}, v{one} offset:4
{Lnpd}:
        s_mov_b64 exec, -1
        """)
    for k in range(8):
        Lskip = a.label("K2_NORARE2")
        a(f"""
        v_cmp_ne_u32 vcc, 0, v{pRS+k}
        s_and_b64 exec, exec, vcc
        s_cbranch_execz {Lskip}
        s_waitcnt vmcnt(0) lgkmcnt(0)
        ds_write_b128 v{pRS+k}, {vr(pRARE+8*k,4)}
        ds_write_b128 v{pRS+k}, {vr(pRARE+8*k+4,4)} offset:16
{Lskip}:
        s_mov_b64 exec, -1
        """)
    Lnag2 = a.label("K2_NOAGG2")
    a(f"""
    s_branch {Lse}
{LsA}:
    s_cmp_eq_u32 s{sFIRST}, 0
    s_cbranch_scc1 {Lse}
    s_cmp_lg_u32 s{sW}, 3
    s_cbranch_scc1 {Lse}
    s_cmp_lg_u32 s2, {WG_AGG}
    s_cbranch_scc1 {Lnag2}
    """)
    wait_arrivals(WG_GEMM0, 256, opt.get("sl3", 1))
    if opt.get("aggst") in (6, 8): a("s_memrealtime s[92:93]")
    a(f"""
    s_mov_b32 s{sT}, {M_GO}
    v_lshlrev_b32 v{pT+1}, 2, v{pT+1}
    v_mov_b32 v{pT+3}, s{sTOK}
    s_mov_b32 exec_hi, 0
    buffer_store_dword v{pT+3}, v{pT+1}, {sr(sMISC,4)}, s{sT} offen sc1
    s_mov_b64 exec, -1
{Lnag2}:
    """)
    pre = opt.get("prepoll", 1)
    if pre: park_issue(0, pka[3]); plist[0] = [(7, 0), (7, 1)][-pka[3]:] if pka[3] else []
    a(f"""
    s_mov_b32 s{sT}, {M_GO}
    v_mov_b32 v{pT+1}, 0
    s_mov_b64 exec, 1
    """)
    def body():
        a(f"""
        buffer_load_dword v{pT+2}, v{pT+1}, {sr(sMISC,4)}, s{sT} offen sc1
        s_waitcnt vmcnt(0)
        v_readfirstlane_b32 s{sT+1}, v{pT+2}
        s_nop 1
        s_cmp_eq_u32 s{sT+1}, s{sTOK}
        """)
    spin(body, opt.get("sl2", 2))
    Lsf = a.label("K2_SCF")
    a(f"""
    s_mov_b64 exec, -1
    {"buffer_inv sc1" if opt.get("inv", 0) else ""}
    s_waitcnt vmcnt(0)
    {f"s_branch {Lsf}" if pre else ""}
{Lse}:
    """)
    park_dma(pka[3], pkb[5])
    nob7 = opt.get("nob7", 1)
    a(f"{Lsf}:\ns_waitcnt {'vmcnt(0) ' if nob7 else ''}lgkmcnt(0)\ns_barrier")
    stamp()
    a(f"ds_read_b32 v{vT}, v{vAL} offset:4")
    for b in range(DP):
        a(f"ds_read2_b32 {vr(vD+2*b,2)}, v{vS} offset0:{32*b+3} offset1:{32*b+19}")
    a(f"ds_read_u16 v{vLI}, v{vA} offset:14")
    a("s_waitcnt lgkmcnt(0)")
    a(f"v_readfirstlane_b32 s{sMORE}, v{vT}")
    for b in range(DP):
        issue(b, vD + 2 * b)
    a(f"""
    s_add_u32 s{sT}, s{sCB}, {CHUNK}
    s_cmp_lt_u32 s{sT}, s{sTOT}
    s_cselect_b32 s{sT}, 2, 0
    s_or_b32 s{sMORE}, s{sMORE}, s{sT}
    s_mov_b32 s{sSLOT}, 10
    s_mov_b64 vcc, {-1 if opt.get("novmem") else 0}
    v_mad_u32_u16 v{vAD}, v{vLI}, v{vML}, v{vCL}
    {"" if nob7 else f"s_waitcnt vmcnt({8*DP})"}
    {"" if nob7 else "s_barrier"}
    ds_read_b128 {vr(vAOP,4)}, v{vAD}
    ds_read2_b32 {vr(vPK,2)}, v{vS} offset0:{32*DP+3} offset1:{32*DP+19}
    ds_read_u16 v{vLI}, v{vA} offset:{128+14}
    ds_read_b128 {vr(vRH,4)}, v{vS}
    ds_read_b128 {vr(vRH+4,4)}, v{vS} offset:64
    """)
    if stamps:
        stamp(); a("s_memtime s[80:81]\ns_waitcnt lgkmcnt(0)")
    Lph = [a.label(f"K2_PH{p}") for p in range(NRG)]
    Lsk = [a.label(f"K2_SK{p}") for p in range(NRG)]
    Lbk = [a.label(f"K2_BK{p}") for p in range(NRG)]
    Ltr = [[a.label(f"K2_EP{p}{st}") for st in range(2)] for p in range(NRG)]
    Lz = [[a.label(f"K2_EZ{p}{st}") for st in range(2)] for p in range(NRG)]
    Lrt = [[a.label(f"K2_RT{p}{st}") for st in range(2)] for p in range(NRG)]
    Lrt[NRG - 1][1] = Lph[0]
    Ldone = a.label("K2_DONE")
    sOM = 78; sPR = 79
    a(f"""
    s_cmp_eq_u32 s{sMORE}, 0
    s_cselect_b32 s{sOM}, 0x3e, 0
    s_lshr_b32 s{sPR}, s{sW}, 2
    """)
    fetch_next()
    a("s_waitcnt lgkmcnt(0)")
    acc_init()
    fetch_next()
    a(f"""
    s_and_b32 s{sCNT}, s{sPC}, 31
    s_cbranch_scc0 {Lz[NRG-1][1]}
    s_sub_u32 s{sCNT}, s{sCNT}, 1
    """)
    for p in range(NRG):
        a(f"{Lph[p]}:")
        a(f"s_waitcnt vmcnt({8*(DP-1)}) lgkmcnt(2)\n{Lph[p]}_W:")
        sh = []
        for st in range(2):
            for hf in range(2):
                rg = ring(p, st, hf); e = vX + 4 * (2 * st + hf)
                sh += [f"v_lshlrev_b64 {vr(e,2)}, 16, {vr(rg,2)}", f"v_lshlrev_b64 {vr(e+2,2)}, 16, {vr(rg+2,2)}", f"v_lshlrev_b32 v{rg+4}, 16, v{rg+5}"]
        for o in range(6):
            if not opt.get("nomfma"):
                a(f"v_mfma_f32_16x16x32_bf16 {vr(vD+4*o,4)}, {vr(vAOP,4)}, {vr(vB+4*o,4)}, 0")
            if not opt.get("novalu"):
                a(sh[2 * o]); a(sh[2 * o + 1])
        il = opt.get("il", 0)
        a(f"s_sub_u32 s{sREM}, s{sREM}, 1\ns_cmp_lt_u32 s{sREM}, {DP}\ns_cbranch_scc1 {Lsk[p]}")
        if il:
            for st in range(2):
                a(f"v_mad_u32_u16 v{vAD+2*st}, v{vPK+st}, s{sROWB}, v{vC1}")
                a(f"v_mad_u32_u16 v{vAD+2*st+1}, v{vPK+st}, s{sROWB}, v{vC2}")
        else:
            issue((p + DP) % NRG, vPK)
        a(f"{Lbk[p]}:")
        assert (p + DP + 1) * 32 + 19 < 256
        a(f"""
        v_mad_u32_u16 v{vT}, v{vLI}, v{vML}, v{vCL}
        ds_read_b128 {vr(vAOP,4)}, v{vT}
        ds_read2_b32 {vr(vPK,2)}, v{vS} offset0:{(p+DP+1)*32+3} offset1:{(p+DP+1)*32+19}
        ds_read_u16 v{vLI}, v{vA} offset:{(p+2)*128+14}
        s_waitcnt lgkmcnt(3)
        """)
        for st in range(2):
            L = []
            for hf in range(2):
                HXY, HZS, LXY, LZS, BZ = ACC(hf)
                rg = ring(p, st, hf); rh = vRH + 4 * st; e = vX + 4 * (2 * st + hf); t = vT + 2 * hf
                d1, d2, d3 = vD + 12 * hf + 2 * st, vD + 12 * hf + 4 + 2 * st, vD + 12 * hf + 8 + 2 * st
                L.append(f"""v_pk_fma_f32 {vr(HXY,2)}, {vr(d1,2)}, {vr(rg,2)}, {vr(HXY,2)} op_sel_hi:[0,1,1]
                v_pk_mul_f32 {vr(t,2)}, {vr(d3,2)}, {vr(rg+4,2)}
                v_pk_fma_f32 {vr(HZS,2)}, {vr(d1,2)}, {vr(rg+2,2)}, {vr(HZS,2)}
                v_pk_fma_f32 {vr(LXY,2)}, {vr(d2,2)}, {vr(e,2)}, {vr(LXY,2)} op_sel_hi:[0,1,1]
                v_pk_fma_f32 {vr(LZS,2)}, {vr(d2,2)}, {vr(e+2,2)}, {vr(LZS,2)}
                v_pk_fma_f32 {vr(BZ,2)}, {vr(t,2)}, {vr(rh+2,2)}, {vr(BZ,2)} op_sel_hi:[1,0,1]
                v_pk_fma_f32 {vr(HXY,2)}, {vr(t,2)}, {vr(rh,2)}, {vr(HXY,2)} op_sel:[1,0,0]
                v_pk_fma_f32 {vr(LXY,2)}, {vr(t,2)}, {vr(rh,2)}, {vr(LXY,2)} op_sel_hi:[0,1,1]""".split("\n"))
            bs = (p + DP) % NRG
            X4 = lambda hf: f"buffer_load_dwordx4 {vr(ring(bs,st,hf),4)}, v{vAD+2*st}, {sr(sTB,4)}, 0 offen offset:{256*hf}"
            X1 = lambda hf: f"buffer_load_dword v{ring(bs,st,hf)+5}, v{vAD+2*st+1}, {sr(sTB,4)}, 0 offen offset:{512+64*hf}"
            groups = {1: {0: [X4(0)], 3: [X4(1)], 6: [X1(0), X1(1)]}, 2: {0: [X4(0), X1(0)], 4: [X4(1), X1(1)]}, 3: {0: [X4(0), X4(1), X1(0), X1(1)]},
                      4: {0: [X4(0)], 2: [X4(1)], 4: [X1(0)], 6: [X1(1)]}}.get(il, {})
            for k, (l0, l1) in enumerate(zip(*L)):
                if k in groups:
                    Lg = a.label("K2_G")
                    a(f"s_cbranch_vccnz {Lg}")
                    for x in groups[k]: a(x)
                    a(f"{Lg}:")
                if not opt.get("novalu"):
                    a(l0); a(l1)
            a(f"ds_read_b128 {vr(vRH+4*st,4)}, v{vS} offset:{(p+1)*128+64*st}")
            if st == 1 and p == NRG - 1:
                a(f"v_add_u32 v{vS}, {128*NRG}, v{vS}\nv_add_u32 v{vA}, {128*NRG}, v{vA}")
            a(f"s_sub_u32 s{sCNT}, s{sCNT}, 1")
            if st == 1 and p == NRG - 1:
                a(f"s_cbranch_scc0 {Lph[0]}")
            else:
                a(f"s_cbranch_scc1 {Ltr[p][st]}\n{Lrt[p][st]}:")
    order = [(NRG - 1, 1)] + [(p, st) for p in range(NRG) for st in range(2) if (p, st) != (NRG - 1, 1)]
    for (p, st) in order:
        Lpw = a.label("K2_PW"); Lnx = a.label("K2_NX"); Ltb = a.label("K2_TB"); Lin = a.label("K2_IN"); Lp0 = a.label("K2_P0")
        a(f"{Ltr[p][st]}:")
        for hf in range(2):
            HXY, HZS, LXY, LZS, BZ = ACC(hf)
            R = lambda c: vE + 2 * c + hf
            a(f"""
            v_add_f32 v{LZS}, v{LZS}, v{BZ}
            v_add_f32 v{HZS}, v{HZS}, v{BZ+1}
            v_cvt_pk_bf16_f32 v{R(0)}, v{LZS+1}, v{HZS+1}
            v_cvt_pk_bf16_f32 v{R(1)}, v{LXY}, v{HXY}
            v_cvt_pk_bf16_f32 v{R(2)}, v{LXY+1}, v{HXY+1}
            v_cvt_pk_bf16_f32 v{R(3)}, v{LZS}, v{HZS}
            """)
        a(f"""
        s_waitcnt lgkmcnt(1)
        s_bitcmp1_b32 s{sOM}, s{sSLOT}
        s_cbranch_scc0 {Lpw}
        v_lshl_add_u32 v{vO}, v{vPA}, 8, v{vCO}
        """)
        for c in range(4):
            for hf in range(2):
                a(f"buffer_store_dword v{vE+2*c+hf}, v{vO}, {sr(sOUT,4)}, 0 offen offset:{512*c+64*hf} {st_fl}")
        a(f"""
{Lnx}:
        s_lshr_b32 s{sPC}, s{sPC}, 5
        s_sub_u32 s{sSLOT}, s{sSLOT}, 1
        s_cmp_eq_u32 s{sSLOT}, 0
        s_cbranch_scc1 {Ldone}
{Lin}:
        """)
        if opt.get("prio", 2):
            a(f"s_xor_b32 s{sPR}, s{sPR}, 1\ns_setprio 0\ns_cbranch_scc0 {Lp0}\ns_setprio 1\n{Lp0}:")
        acc_init()
        fetch_next()
        a(f"""
        s_and_b32 s{sCNT}, s{sPC}, 31
        s_cbranch_scc0 {Lz[p][st]}
        s_sub_u32 s{sCNT}, s{sCNT}, 1
        {f"s_waitcnt vmcnt({8*(DP-1)})" if st == 1 else ""}
        s_branch {Lrt[p][st] if st == 0 else Lph[(p+1)%NRG] + "_W"}
{Lz[p][st]}:
        s_waitcnt lgkmcnt(0)
        s_branch {Ltr[p][st]}
{Lpw}:
        """)
        for c in range(4):
            a(f"ds_write2_b32 v{vPA}, v{vE+2*c}, v{vE+2*c+1} offset0:{32*c} offset1:{32*c+16}")
        a(f"""
        s_cmp_lg_u32 s{sSLOT}, 6
        s_cbranch_scc1 {Lnx}
        s_mov_b32 s{sSLOT}, 5
        s_mov_b32 s{sPC}, s{sPC+1}
        s_waitcnt lgkmcnt(0)
        s_barrier
        """)
        r_reads()
        a(f"s_waitcnt lgkmcnt(0)\ns_branch {Lin}")
    for p in range(NRG):
        a(f"{Lsk[p]}:\ns_mov_b64 vcc, -1\ns_waitcnt vmcnt(0)\ns_branch {Lbk[p]}")
    Lfin = a.label("K2_FIN"); Lnext = a.label("K2_NEXT"); LrB = a.label("K2_RB")
    a(f"""
{Ldone}:
    s_cmp_eq_u32 s{sMORE}, 0
    s_cbranch_scc1 {Lfin}
    s_bitcmp1_b32 s{sMORE}, 0
    s_cbranch_scc1 {Lnext}
    s_add_u32 s{sCB}, s{sCB}, {CHUNK}
    v_mov_b32 v{vPEND}, 0xff
{Lnext}:
    s_mov_b32 s{sFIRST}, 0
    s_waitcnt vmcnt(0) lgkmcnt(0)
    s_barrier
    s_cmp_ge_u32 s{sW}, 4
    s_cbranch_scc1 {LrB}
    s_barrier
    s_barrier
    s_branch {Lx}
{LrB}:
    """)
    rec_loads()
    null_fill()
    zero_counters(a, pT + 1, pT + 2)
    a(f"""
    s_waitcnt vmcnt(0) lgkmcnt(0)
    s_barrier
    s_branch {Lrank}
{Lfin}:
    """)
    if stamps:
        stamp()
        a("s_memtime s[82:83]")
        a("s_waitcnt vmcnt(0)")
        stamp()
        a("s_waitcnt lgkmcnt(0)\ns_sub_u32 s80, s82, s80\ns_mov_b32 s81, 0")
        STR.append(80); nst[0] += 1
        a(f"""
        s_waitcnt lgkmcnt(0)
        s_add_u32 s{sLIST}, s24, {WS_DIAG + (1<<20)}
        s_addc_u32 s{sLIST+1}, s25, 0
        s_mov_b32 s{sLIST+2}, 0x100000
        s_lshl_b32 s{sT}, s2, 3
        s_add_u32 s{sT}, s{sT}, s{sW}
        s_lshl_b32 s{sT}, s{sT}, 7
        v_mov_b32 v1, s{sT}
        s_mov_b64 exec, 1
        """)
        for i in range(nst[0]):
            a(f"v_mov_b32 v2, s{STR[i]}\nv_mov_b32 v3, s{STR[i]+1}")
            a(f"buffer_store_dwordx2 v[2:3], v1, {sr(sLIST,4)}, 0 offen offset:{8*i}")
    a(f"{Lend}:\ns_endpgm")
    return nv, 102
```

```python
N = 10000
E = 160000
NSL = 4
NR = 64
NKEY = 160
HALF = 5000
NP = 40
EPW = E // NP
ROWB = 640
TAB_SL = N * ROWB
WS_TAB = 0
WS_LUT = WS_TAB + NSL * TAB_SL
LUT_ROWS = 2080
LUT_BYTES = LUT_ROWS * 32
M_LUT = 0
M_END = 67584
M_BOP = M_END + 16384
M_ARR = M_BOP + 24576
import os
ARRS = int(os.environ.get('ARRS', 64))
M_TOT = M_ARR + 256 * 128
M_GO = M_TOT + 512
M_EPO = M_GO + 128
MISC_BYTES = M_EPO + 128
WS_LIST = 26 * 1024 * 1024
import os
PADG = int(os.environ.get('PADG', 4))
LCAP = E + 512
LIST_STRIDE = LCAP * 16
WS_DIAG = 200 * 1024 * 1024
assert WS_LIST + NR * LIST_STRIDE <= WS_DIAG
DBASE = 0x3880
DCUT = 0x409D
LUT_THR = 1568
NRS = 512
CAPN = 30
NGEMM = 210
WG_GEMM0 = 46
SPIN_MAX = 1 << 17
WG_AGG = 45
VTOK = 12
WSY = 4
```

```python
from asmlib import *
from layout import *

ROWS = 96
WG_EDGE0 = 0
WG_LUT0 = NP
NLUTWG = 4
LUT0 = LUT_ROWS - 512 * NLUTWG
assert LUT0 <= 82
assert WG_GEMM0 == NP + NLUTWG + 2 and WG_GEMM0 + NGEMM == 256
L_V = 0
R0 = L_V + 3 * ROWS * 256
R1 = R0 + 16384
L_H = R1 + 16384
GEMM_LDS = 163840
assert L_H + ROWS * 512 <= 155648
V0, V1, V2, V3 = 0, 16384, 32768, 49152
L_POS = 0
L_EH = 81920
L_DLT = L_EH + 512
L_STG = 0
K1_LDS = GEMM_LDS
WG_BOP = WG_LUT0 + NLUTWG
from gen_k2 import dpp_scan, zero_counters, sync_loads

def rne_bf16(a, dst, src):
    a(f"v_cvt_pk_bf16_f32 v{dst}, v{src}, v{src}")
    a(f"v_and_b32 v{dst}, 0xffff0000, v{dst}")

def lut_row(a, vd, out, t, sF, sC):
    rcp, fc = t, t + 1
    a(f"v_rcp_f32 v{rcp}, v{vd}")
    a(f"v_mul_f32 v{fc}, s{sC}, v{vd}")
    rne_bf16(a, fc, fc)
    a(f"v_mul_f32 v{fc}, s{sC+1}, v{fc}")
    rne_bf16(a, fc, fc)
    a(f"v_mul_f32 v{fc}, s{sC+2}, v{fc}")
    a(f"v_cos_f32 v{fc}, v{fc}")
    a("s_nop 0")
    rne_bf16(a, fc, fc)
    a(f"v_add_f32 v{fc}, 1.0, v{fc}")
    rne_bf16(a, fc, fc)
    a(f"v_mul_f32 v{fc}, 0.5, v{fc}")
    for k in range(0, 16, 2):
        x, y, p = t + 2, t + 3, t + 4
        a(f"""
        v_mul_f32 v{x}, s{sF+k}, v{vd}
        v_mul_f32 v{y}, s{sF+k+1}, v{vd}
        v_cvt_pk_bf16_f32 v{p}, v{x}, v{y}
        v_lshlrev_b32 v{x}, 16, v{p}
        v_and_b32 v{y}, 0xffff0000, v{p}
        v_mul_f32 v{x}, s{sC+2}, v{x}
        v_mul_f32 v{y}, s{sC+2}, v{y}
        v_rndne_f32 v{t+5}, v{x}
        v_rndne_f32 v{t+6}, v{y}
        v_sub_f32 v{x}, v{x}, v{t+5}
        v_sub_f32 v{y}, v{y}, v{t+6}
        v_sin_f32 v{x}, v{x}
        v_sin_f32 v{y}, v{y}
        s_nop 0
        v_cvt_pk_bf16_f32 v{p}, v{x}, v{y}
        v_lshlrev_b32 v{x}, 16, v{p}
        v_and_b32 v{y}, 0xffff0000, v{p}
        v_mul_f32 v{x}, v{x}, v{rcp}
        v_mul_f32 v{y}, v{y}, v{rcp}
        v_cvt_pk_bf16_f32 v{p}, v{x}, v{y}
        v_lshlrev_b32 v{x}, 16, v{p}
        v_and_b32 v{y}, 0xffff0000, v{p}
        v_mul_f32 v{x}, v{x}, v{fc}
        v_mul_f32 v{y}, v{y}, v{fc}
        v_cvt_pk_bf16_f32 v{out+k//2}, v{x}, v{y}
        """)

def srd(a, d, lo, off_sreg, off_imm, size):
    hi = lo + 1
    if off_sreg is None and off_imm == 0:
        a(f"s_mov_b32 s{d}, s{lo}\ns_mov_b32 s{d+1}, s{hi}")
    else:
        if off_sreg is not None:
            if off_imm:
                a(f"s_add_u32 s{off_sreg}, s{off_sreg}, {off_imm}")
            a(f"s_add_u32 s{d}, s{lo}, s{off_sreg}")
        else:
            a(f"s_add_u32 s{d}, s{lo}, {off_imm}")
        a(f"s_addc_u32 s{d+1}, s{hi}, 0")
    a(f"s_mov_b32 s{d+2}, {size}\ns_mov_b32 s{d+3}, 0x20000")

def gen_k1(a0, name, opt, phase2):
    class Sw:
        cur = a0
        def __call__(self, x): return self.cur(x)
        def label(self, b): return self.cur.label(b)
    a = Sw()
    side = Asm()
    stamps = opt.get("stamps", False)
    tab_fl = opt.get("tab_flags", "sc1")
    sST = 82
    nst = [0]
    def stamp():
        if stamps:
            a(f"s_memrealtime {sr(sST + 2 * nst[0], 2)}")
            nst[0] += 1
            assert nst[0] <= 10
    def dump_stamps(n):
        if not stamps: return
        a(f"""
        s_memrealtime {sr(sST+18,2)}
        s_waitcnt lgkmcnt(0)
        s_add_u32 s40, s24, {WS_DIAG}
        s_addc_u32 s41, s25, 0
        s_mov_b32 s42, 0x100000
        s_mov_b32 s43, 0x20000
        s_lshl_b32 s44, s2, 3
        s_add_u32 s44, s44, s3
        s_lshl_b32 s44, s44, 7
        s_mov_b64 exec, 1
        v_mov_b32 v1, s44
        """)
        for i in list(range(n)) + [9]:
            a(f"v_mov_b32 v2, s{sST+2*i}\nv_mov_b32 v3, s{sST+2*i+1}")
            a(f"buffer_store_dwordx2 v[2:3], v1, s[40:43], 0 offen offset:{8*i}")
        a("s_mov_b64 exec, -1")
    Lp2 = a.label("P2"); Lside = a.label("K1_SIDE"); Larr = a.label("K1_ARRIVE"); Lcend = a.label("CODE_END"); Lpc = a.label("PC")
    kernel_header(a, name)
    Lend = a.label("K1_END"); Lgemm = a.label("K1_GEMM"); Llut = a.label("K1_LUT")
    a(f"""
    s_cmp_ge_u32 s2, 256
    s_cbranch_scc1 {Lend}
    s_load_dwordx16 s[4:19], s[0:1], 0
    s_load_dwordx4 s[20:23], s[0:1], 64
    s_load_dwordx2 s[24:25], s[0:1], 80
    """)
    stamp()
    a(f"""
    v_lshrrev_b32 v1, 6, v0
    s_nop 0
    v_readfirstlane_b32 s3, v1
    """)
    if opt.get("cpf", 1):
        Lnc = a.label("K1_NOCPF")
        a(f"""
        s_lshr_b32 s26, s2, 3
        s_cmp_lg_u32 s26, 5
        s_cbranch_scc1 {Lnc}
        s_getpc_b64 s[28:29]
{Lpc}:
        s_mov_b32 s30, {Lcend}-{Lpc}
        s_mov_b32 s31, 0x20000
        v_lshlrev_b32 v1, 7, v0
        buffer_load_dword v255, v1, s[28:31], 0 offen
{Lnc}:
        """)
    a(f"""
    s_cmp_lt_u32 s2, {WG_GEMM0}
    s_cbranch_scc1 {Lside}
    """)
    a.cur = side
    a(f"""
{Lside}:
    s_cmp_ge_u32 s2, {WG_LUT0}
    s_cbranch_scc1 {Llut}
    """)
    nvmax = 256
    V = Regs("v", 1, 256)
    vSRC = V.alloc("src", 8, 2); vDST = V.alloc("dst", 8, 2)
    vP = V.alloc("p", 48, 2)
    vREC = V.alloc("rec", 32, 2)
    vRK = V.alloc("rk", 8)
    vT = V.alloc("t", 12, 2)
    nvmax = max(nvmax, V.hi)
    sSRC, sDST, sPOS, sDBG, sLIST, sMISC = 28, 32, 36, 40, 44, 48
    sT = 52; sACT = 60
    a("s_waitcnt lgkmcnt(0)")
    srd(a, sSRC, 8, None, 0, E * 4)
    srd(a, sDST, 10, None, 0, E * 4)
    srd(a, sPOS, 6, None, 0, N * 6)
    a(f"""
    s_mul_i32 s{sT}, s2, {EPW*4}
    s_add_u32 s{sT+1}, s{sT}, {EPW*2}
    v_lshlrev_b32 v{vT}, 4, v0
    v_mov_b32 v{vT+1}, 0x7ffffff0
    v_cmp_gt_u32 vcc, {EPW//8}, v0
    s_mov_b64 s[{sT+2}:{sT+3}], vcc
    s_nop 0
    v_cndmask_b32 v{vT+1}, v{vT+1}, v{vT}, vcc
    buffer_load_dwordx4 {vr(vSRC,4)}, v{vT+1}, {sr(sSRC,4)}, s{sT} offen
    buffer_load_dwordx4 {vr(vDST,4)}, v{vT+1}, {sr(sDST,4)}, s{sT} offen
    buffer_load_dwordx4 {vr(vSRC+4,4)}, v{vT+1}, {sr(sSRC,4)}, s{sT+1} offen
    buffer_load_dwordx4 {vr(vDST+4,4)}, v{vT+1}, {sr(sDST,4)}, s{sT+1} offen
    v_mul_u32_u24 v{vT+4}, 12, v0
    """)
    vPL = V.alloc("pl", 40, 2)
    for i in range(10):
        a(f"s_mov_b32 s{sT+5}, {i*6144}")
        a(f"buffer_load_dwordx3 {vr(vPL+4*i,3)}, v{vT+4}, {sr(sPOS,4)}, s{sT+5} offen")
    srd(a, sDBG, 22, None, 0, 256)
    srd(a, sLIST, 24, None, WS_LIST, NR * LIST_STRIDE)
    srd(a, sMISC, 24, None, WS_LUT, MISC_BYTES)
    a(f"""
    v_mov_b32 v{vT+2}, 0
    v_lshlrev_b32 v{vT+3}, 2, v0
    v_add_u32 v{vT+3}, {L_EH}, v{vT+3}
    v_cmp_gt_u32 vcc, 64, v0
    s_and_saveexec_b64 s[{sT+6}:{sT+7}], vcc
    ds_write_b32 v{vT+3}, v{vT+2}
    s_mov_b64 exec, -1
    """)
    vAS_, vAD_ = vREC, vREC + 8
    vKEY = V.alloc("key", 8); vHA = V.alloc("ha", 8); vDD = V.alloc("dd", 8, 2); vQ = V.alloc("q", 8, 2)
    a(f"""
    s_mov_b32 s{sT+4}, 0x322bcc77
    s_mov_b32 s{sT+5}, 0x322bcc77
    s_mov_b32 s{sT+1}, 0xffff0000
    s_mov_b32 s{sT+6}, {(DBASE+LUT_THR)<<16}
    v_mov_b32 v{vT+8}, {((NRS - LUT_THR - DBASE) << 16) & 0xffffffff}
    v_mov_b32 v{vT+9}, {((0x8000 - DBASE) << 16) & 0xffffffff}
    v_mov_b32 v{vT+10}, {NKEY}
    v_mov_b32 v{vT+11}, 1
    s_waitcnt vmcnt(10)
    """)
    for e in range(8):
        a(f"""
        v_cmp_le_u32 vcc, {HALF}, v{vSRC+e}
        v_lshlrev_b32 v{vAS_+e}, 3, v{vSRC+e}
        v_lshlrev_b32 v{vAD_+e}, 3, v{vDST+e}
        v_cndmask_b32 v{vT+4}, 0, v{vT+10}, vcc
        v_lshrrev_b32 v{vKEY+e}, 6, v{vDST+e}
        v_and_b32 v{vDST+e}, {NR-1}, v{vDST+e}
        v_add_u32 v{vKEY+e}, v{vKEY+e}, v{vT+4}
        v_lshlrev_b32 v{vDST+e}, 2, v{vDST+e}
        v_add_u32 v{vHA+e}, {L_EH}, v{vDST+e}
        """)
    a(f"v_add_u32 v{vT+4}, 65536, v{vT}")
    for i in range(10):
        w = vPL + 4 * i
        a(f"""
        s_waitcnt vmcnt({9-i})
        v_and_b32 v{w+3}, s{sT+1}, v{w+2}
        v_alignbit_b32 v{w+2}, v{w+2}, v{w+1}, 16
        v_lshlrev_b32 v{w+1}, 16, v{w+1}
        ds_write_b128 v{vT if i < 8 else vT+4}, {vr(w,4)} offset:{L_POS + (i%8)*8192}
        """)
    a("s_waitcnt lgkmcnt(0)\ns_barrier")
    stamp()
    def pos_read(pr):
        for e in range(2):
            a(f"ds_read_b64 {vr(vPL+8*pr+4*e,2)}, v{vAS_+2*pr+e} offset:{L_POS}")
            a(f"ds_read_b64 {vr(vPL+8*pr+4*e+2,2)}, v{vAD_+2*pr+e} offset:{L_POS}")
    def rnd2(dst, src, t):
        a(f"v_cvt_pk_bf16_f32 v{t}, v{src}, v{src+1}")
        a(f"v_lshlrev_b32 v{dst}, 16, v{t}")
        a(f"v_and_b32 v{dst+1}, s{sT+1}, v{t}")
    for pr in range(3): pos_read(pr)
    for pr in range(4):
        p = vP + 12 * pr; q = p + 6; d = vDD + 2 * pr
        a(f"s_waitcnt lgkmcnt({[8, 8, 4, 0][pr]})")
        if pr == 0: pos_read(3)
        for e in range(2):
            w = vPL + 8 * pr + 4 * e
            a(f"""
            v_lshlrev_b32 v{p+e}, 16, v{w}
            v_lshlrev_b32 v{q+e}, 16, v{w+2}
            v_and_b32 v{p+2+e}, s{sT+1}, v{w}
            v_and_b32 v{q+2+e}, s{sT+1}, v{w+2}
            v_sub_f32 v{p+4+e}, v{w+1}, v{w+3}
            """)
        for c in range(2):
            a(f"v_pk_add_f32 {vr(p+2*c,2)}, {vr(p+2*c,2)}, {vr(q+2*c,2)} neg_lo:[0,1] neg_hi:[0,1]")
        for c in range(3): rnd2(p + 2 * c, p + 2 * c, vT + 4 + c)
        for c in range(3):
            a(f"v_pk_mul_f32 {vr(q+2*c,2)}, {vr(p+2*c,2)}, {vr(p+2*c,2)}")
        for c in range(3): rnd2(q + 2 * c, q + 2 * c, vT + 4 + c)
        a(f"v_pk_add_f32 {vr(q,2)}, {vr(q,2)}, {vr(q+2,2)}")
        a(f"v_pk_add_f32 {vr(q,2)}, {vr(q,2)}, {vr(q+4,2)}")
        rnd2(q, q, vT + 4)
        a(f"v_pk_add_f32 {vr(q,2)}, {vr(q,2)}, s[{sT+4}:{sT+5}]")
        rnd2(q, q, vT + 4)
        a(f"v_sqrt_f32 v{q}, v{q}\nv_sqrt_f32 v{q+1}, v{q+1}\ns_nop 0")
        rnd2(d, q, vT + 4)
        for e in range(2):
            ee = 2 * pr + e
            a(f"""
            v_cmp_gt_u32 vcc, {DCUT<<16}, v{d+e}
            s_and_b64 {sr(sACT+2*ee,2)}, vcc, s[{sT+2}:{sT+3}]
            s_mov_b64 exec, {sr(sACT+2*ee,2)}
            ds_add_rtn_u32 v{vRK+ee}, v{vHA+ee}, v{vT+11}
            s_mov_b64 exec, -1
            """)
    a("s_waitcnt lgkmcnt(0)\ns_barrier")
    stamp()
    Lna = a.label("K1_NOATOM"); Lnb = a.label("K1_NOATOM2")
    a(f"""
    s_cmp_lg_u32 s3, 0
    s_cbranch_scc1 {Lna}
    ds_read_b32 v{vQ+4}, v{vT+3}
    v_lshlrev_b32 v{vT+5}, 2, v0
    s_waitcnt lgkmcnt(0)
    v_mov_b32 v{vQ+5}, v{vQ+4}
    v_add_u32 v{vQ+4}, {PADG-1}, v{vQ+4}
    v_and_b32 v{vQ+4}, {-PADG}, v{vQ+4}
    v_mov_b32 v{vQ+6}, v{vQ+4}
    v_mov_b32 v{vQ+7}, v{vQ+4}
    buffer_atomic_add v{vQ+6}, v{vT+5}, {sr(sDBG,4)}, 0 offen sc0
    """)
    dpp_scan(a, "v_add_u32", vQ + 7)
    a(f"""
    ds_write_b32 v{vT+3}, v{vQ+7} offset:4
    v_sub_u32 v{vQ+7}, v{vQ+7}, v{vQ+4}
    ds_write_b32 v{vT+3}, v{vQ+7}
    v_mov_b32 v{vPL}, 0xffff
    v_mov_b32 v{vPL+1}, v{vT+5}
    v_mov_b32 v{vPL+2}, 0
    v_mov_b32 v{vPL+3}, 0
    v_add_lshl_u32 v{vPL+4}, v{vQ+7}, v{vQ+5}, 4
    v_sub_u32 v{vQ+5}, v{vQ+4}, v{vQ+5}
    """)
    for k in range(PADG - 1):
        a(f"""
        v_cmp_lt_u32 vcc, {k}, v{vQ+5}
        s_and_b64 exec, exec, vcc
        ds_write_b128 v{vPL+4}, {vr(vPL,4)} offset:{L_STG + 16*k}
        """)
    a(f"""
    s_mov_b64 exec, -1
{Lna}:
    """)
    for pr in range(4):
        p = vP + 12 * pr; d = vDD + 2 * pr
        r0, r1 = vREC + 8 * pr, vREC + 8 * pr + 4
        a(f"""
        v_rcp_f32 v{vQ}, v{d}
        v_rcp_f32 v{vQ+1}, v{d+1}
        v_cmp_gt_u32 vcc, s{sT+6}, v{d}
        v_cmp_gt_u32 s[{sT+4}:{sT+5}], s{sT+6}, v{d+1}
        v_pk_mul_f32 {vr(p,2)}, {vr(p,2)}, {vr(vQ,2)}
        v_pk_mul_f32 {vr(p+2,2)}, {vr(p+2,2)}, {vr(vQ,2)}
        v_pk_mul_f32 {vr(p+4,2)}, {vr(p+4,2)}, {vr(vQ,2)}
        v_cndmask_b32 v{vQ+2}, v{vT+8}, v{vT+9}, vcc
        v_cndmask_b32 v{vQ+3}, v{vT+8}, v{vT+9}, s[{sT+4}:{sT+5}]
        v_cvt_pk_bf16_f32 v{vT+4}, v{p}, v{p+1}
        v_cvt_pk_bf16_f32 v{vT+5}, v{p+2}, v{p+3}
        v_cvt_pk_bf16_f32 v{vT+6}, v{p+4}, v{p+5}
        v_add3_u32 v{r0+3}, v{d}, v{vQ+2}, v{vSRC+2*pr}
        v_add3_u32 v{r1+3}, v{d+1}, v{vQ+3}, v{vSRC+2*pr+1}
        v_lshl_or_b32 v{r0}, v{vT+4}, 16, v{vKEY+2*pr}
        v_and_or_b32 v{r1}, v{vT+4}, s{sT+1}, v{vKEY+2*pr+1}
        v_lshl_or_b32 v{r0+1}, v{vT+5}, 16, v{vDST+2*pr}
        v_and_or_b32 v{r1+1}, v{vT+5}, s{sT+1}, v{vDST+2*pr+1}
        v_lshlrev_b32 v{r0+2}, 16, v{vT+6}
        v_and_b32 v{r1+2}, s{sT+1}, v{vT+6}
        """)
    a("s_waitcnt lgkmcnt(0)\ns_barrier")
    for e in range(8):
        a(f"ds_read_b32 v{vP+e}, v{vHA+e}")
    a(f"v_mov_b32 v{vT+8}, {L_EH}\nds_read_b32 v{vT+9}, v{vT+8} offset:256")
    a("s_waitcnt lgkmcnt(0)")
    for e in range(8):
        a(f"""
        v_add_lshl_u32 v{vP+e}, v{vP+e}, v{vRK+e}, 4
        v_add_u32 v{vP+e}, {L_STG}, v{vP+e}
        s_mov_b64 exec, {sr(sACT+2*e,2)}
        ds_write_b128 v{vP+e}, {vr(vREC+4*e,4)}
        s_mov_b64 exec, -1
        """)
    a(f"""
    v_readfirstlane_b32 s{sT+4}, v{vT+9}
    s_cmp_lg_u32 s3, 0
    s_cbranch_scc1 {Lnb}
    s_mov_b32 s{sT}, {LIST_STRIDE//16}
    s_waitcnt vmcnt(0)
    v_and_b32 v{vQ+6}, 0x3ffff, v{vQ+6}
    v_mad_u32_u24 v{vT+6}, v0, s{sT}, v{vQ+6}
    v_sub_u32 v{vT+6}, v{vT+6}, v{vQ+7}
    v_lshlrev_b32 v{vT+6}, 4, v{vT+6}
    ds_write_b32 v{vT+3}, v{vT+6} offset:{L_DLT - L_EH}
{Lnb}:
    v_lshlrev_b32 v{vT+5}, 4, v0
    v_add_u32 v{vT+2}, {L_STG}, v{vT+5}
    s_waitcnt lgkmcnt(0)
    s_barrier
    """)
    stamp()
    def copy_out(e0, n):
        for e in range(n):
            a(f"ds_read_b128 {vr(vREC+4*e,4)}, v{vT+2} offset:{e*8192}")
        for e in range(n):
            a(f"""
            s_waitcnt lgkmcnt({n-1})
            v_and_b32 v{vP+e}, 0xfc, v{vREC+4*e+1}
            v_add_u32 v{vP+e}, {L_DLT}, v{vP+e}
            ds_read_b32 v{vP+e}, v{vP+e}
            v_and_b32 v{vREC+4*e+1}, s{sT+1}, v{vREC+4*e+1}
            v_add_u32 v{vT+6}, {(e0+e)*512}, v0
            v_cmp_gt_u32 {sr(sACT+2*e,2)}, s{sT+4}, v{vT+6}
            """)
        for e in range(n):
            Ls = a.label("K1_ES")
            a(f"""
            s_waitcnt lgkmcnt({n-1-e})
            v_add_u32 v{vP+e}, v{vP+e}, v{vT+5}
            s_mov_b32 s{sT}, {(e0+e)*8192}
            s_mov_b64 exec, {sr(sACT+2*e,2)}
            s_cbranch_execz {Ls}
            buffer_store_dwordx4 {vr(vREC+4*e,4)}, v{vP+e}, {sr(sLIST,4)}, s{sT} offen sc1
{Ls}:
            s_mov_b64 exec, -1
            """)
    copy_out(0, 6)
    Lco = a.label("K1_CO")
    a(f"s_cmp_le_u32 s{sT+4}, 3072\ns_cbranch_scc1 {Lco}\nv_add_u32 v{vT+2}, {6*8192}, v{vT+2}\ns_nop 1")
    copy_out(6, 3)
    a(f"{Lco}:")
    dump_stamps(nst[0])
    a(f"""
{Larr}:
    s_cmp_lg_u32 s3, {WSY}
    s_cbranch_scc1 {Lp2}
    """)
    srd(a, 28, 22, None, 0, 256)
    a(f"""
    v_mov_b32 v1, 0
    s_mov_b64 exec, 1
    buffer_load_dwordx2 v[{VTOK}:{VTOK+1}], v1, s[28:31], 0 offen sc1
    s_mov_b64 exec, -1
    s_branch {Lp2}
    """)
    Lagg = a.label("K1_AGG")
    a(f"""
{Lagg}:
    s_cmp_lg_u32 s3, {WSY}
    s_cbranch_scc1 {Lp2}
    """)
    srd(a, 28, 22, None, 0, 256)
    srd(a, 32, 24, None, WS_LUT + M_EPO, 128)
    a(f"""
    v_mov_b32 v1, 0
    s_mov_b64 exec, 1
    buffer_load_dword v2, v1, s[32:35], 0 offen sc1
    s_waitcnt vmcnt(0)
    v_add_u32 v2, 0x09e3779b, v2
    buffer_store_dword v2, v1, s[32:35], 0 offen sc1
    v_and_b32 v3, 0x1fff, v2
    v_bfe_u32 v4, v2, 13, 13
    v_lshl_or_b32 v3, v3, 1, 1
    v_lshl_or_b32 v4, v4, 1, 1
    v_lshlrev_b32 v3, 18, v3
    v_lshlrev_b32 v4, 18, v4
    s_waitcnt vmcnt(0)
    buffer_atomic_add v3, v1, s[28:31], 0 offen
    buffer_atomic_add v4, v1, s[28:31], 0 offen offset:4
    v_mov_b32 v{VTOK}, v3
    v_mov_b32 v{VTOK+1}, v4
    s_mov_b64 exec, -1
    s_branch {Lp2}
    """)

    Lbop = a.label("K1_BOP")
    a(f"{Lbop}:")
    a(f"s_waitcnt lgkmcnt(0)\ns_cmp_lg_u32 s2, {WG_BOP}\ns_cbranch_scc1 {Lagg}")
    srd(a, 28, 18, None, 0, 16 * 768 * 2)
    srd(a, 32, 24, None, WS_LUT + M_BOP, 24576)
    a(f"""
    v_bfe_u32 v1, v0, 4, 1
    v_mul_u32_u24 v1, {8*1536}, v1
    v_and_b32 v2, 15, v0
    v_lshl_add_u32 v1, v2, 2, v1
    s_lshl_b32 s36, s3, 6
    v_add_u32 v1, s36, v1
    v_bfe_u32 v3, v0, 5, 1
    v_xor_b32 v2, 1, v3
    v_lshl_add_u32 v2, v2, 9, v1
    """)
    for m in range(8):
        a(f"s_movk_i32 s37, {m*1536}")
        a(f"buffer_load_dword v{8+m}, v2, s[28:31], s37 offen")
        a(f"buffer_load_dword v{16+m}, v1, s[28:31], s37 offen offset:1024")
    a(f"""
    s_mov_b32 s38, 0x05040100
    s_mov_b32 s39, 0x07060302
    v_mul_u32_u24 v3, 0x020202, v3
    v_lshl_or_b32 v3, v3, 8, v3
    v_add_u32 v3, s38, v3
    v_and_b32 v4, 63, v0
    v_lshlrev_b32 v4, 4, v4
    s_mul_i32 s36, s3, 3072
    s_waitcnt vmcnt(0)
    """)
    for m in range(4):
        a(f"v_perm_b32 v{24+m}, v{8+2*m+1}, v{8+2*m}, s39")
        a(f"v_perm_b32 v{28+m}, v{8+2*m+1}, v{8+2*m}, s38")
        a(f"v_perm_b32 v{32+m}, v{16+2*m+1}, v{16+2*m}, v3")
    a(f"""
    buffer_store_dwordx4 v[24:27], v4, s[32:35], s36 offen sc1
    buffer_store_dwordx4 v[28:31], v4, s[32:35], s36 offen offset:1024 sc1
    buffer_store_dwordx4 v[32:35], v4, s[32:35], s36 offen offset:2048 sc1
    s_branch {Larr}
    """)
    a(f"{Llut}:")
    if opt.get("spf", 1):
        a("s_waitcnt lgkmcnt(0)")
        srd(a, 28, 16, None, 0, 256 * 1536)
        a(f"""
        s_sub_u32 s26, s2, {WG_LUT0}
        s_lshl_b32 s26, s26, 16
        v_lshlrev_b32 v1, 7, v0
        buffer_load_dword v254, v1, s[28:31], s26 offen
        """)
    a(f"""
    s_cmp_ge_u32 s2, {WG_LUT0+NLUTWG}
    s_cbranch_scc1 {Lbop}
    s_waitcnt lgkmcnt(0)
    s_load_dwordx8 s[28:35], s[12:13], 0
    """)
    srd(a, 60, 24, None, WS_LUT, LUT_BYTES)
    a(f"""
    s_sub_u32 s56, s2, {WG_LUT0}
    s_lshl_b32 s56, s56, 9
    s_add_u32 s56, s56, {LUT0}
    v_add_u32 v1, s56, v0
    v_add_u32 v2, {DBASE}, v1
    v_lshlrev_b32 v2, 16, v2
    v_lshlrev_b32 v1, 5, v1
    s_mov_b32 s52, 0x40490fdb
    s_mov_b32 s53, 0x3e4ccccd
    s_mov_b32 s54, 0x3e22f983
    s_waitcnt lgkmcnt(0)
    """)
    for k in range(8):
        a(f"s_lshl_b32 s{36+2*k}, s{28+k}, 16\ns_and_b32 s{37+2*k}, s{28+k}, 0xffff0000")
    lut_row(a, 2, 4, 12, 36, 52)
    a(f"""
    buffer_store_dwordx4 v[4:7], v1, s[60:63], 0 offen sc1
    buffer_store_dwordx4 v[8:11], v1, s[60:63], 0 offen offset:16 sc1
    s_branch {Larr}
{Lcend}:
    """)
    a.cur = a0

    a(f"{Lgemm}:")
    vD1, vD2, vD3, vDV = 1, 2, 3, 4
    vAS, vTR, vTH = 5, 7, 9
    vX0 = 11
    vHW = 12
    vW = 32
    assert vHW == VTOK
    sSV, sW1, sW2, sT4, sT1 = 28, 32, 36, 40, 44
    sT = 48; sHI = 56; sROW = 57; sM = 58; sRB = 59; sRND = 60; sL = 61; sROT = 62; sMV = 63
    sK1 = 64; sK2 = 72; sEV = 80; sCH = 26
    vT = 16
    q, j = vT + 1, vT + 2
    hi, ch = vT + 3, vT + 4
    a(f"""
    s_sub_u32 s{sT}, s2, {WG_GEMM0}
    s_lshr_b32 s{sROT}, s{sT}, 3
    s_and_b32 s{sCH}, s{sROT}, 1
    s_lshr_b32 s{sROT}, s{sROT}, 1
    s_lshl_b32 s{sROW}, s{sROT}, 3
    s_and_b32 s{sT+1}, s{sT}, 7
    s_and_b32 s{sT+2}, s{sT}, 1
    s_cmp_ge_u32 s{sT}, 208
    s_cselect_b32 s{sT+1}, 0, s{sT+1}
    s_cselect_b32 s{sCH}, s{sT+2}, s{sCH}
    s_add_u32 s{sROW}, s{sROW}, s{sT+1}
    s_and_b32 s{sROT}, s{sROT}, 7
    s_mul_i32 s{sROW}, s{sROW}, {ROWS}
    s_lshl_b32 s{sRB}, s{sROW}, 11
    s_and_b32 s{sL}, s3, 3
    s_and_b32 s{sT}, s{sL}, 1
    s_lshr_b32 s{sT+1}, s{sL}, 1
    s_lshl_b32 s{sT+2}, s{sT+1}, 2
    s_add_u32 s{sT+2}, s{sT+2}, s{sT}
    s_lshl_b32 s{sM}, s{sT+2}, 10
    v_bfe_u32 v{hi}, v0, 5, 1
    v_and_b32 v{ch}, 31, v0
    s_lshl_b32 s{sT+3}, s{sL}, 2
    v_lshl_add_u32 v{vT+5}, v{hi}, 1, s{sT+3}
    v_xor_b32 v{vT+5}, v{vT+5}, v{ch}
    v_lshlrev_b32 v{vT+5}, 4, v{vT+5}
    v_lshl_add_u32 v{vD1}, v{hi}, 9, v{vT+5}
    v_add_u32 v{vD1}, s{sM}, v{vD1}
    s_lshl_b32 s{sT+4}, s{sL}, 12
    v_lshl_add_u32 v{vT+6}, v{hi}, 11, v{vT+5}
    v_add_u32 v{vT+6}, s{sT+4}, v{vT+6}
    s_lshl_b32 s{sMV}, s{sL}, 10
    """)
    for n in range(8):
        a(f"s_xor_b32 s{sK1+n}, s{sROT}, {n}\ns_lshl_b32 s{sK1+n}, s{sK1+n}, 14")
    a("s_waitcnt lgkmcnt(0)")
    srd(a, sSV, 4, None, 0, N * 2048)
    srd(a, sW1, 14, None, 0, 256 * 512)
    units = [("w1", n) for n in range(8)] + [("a", n) for n in range(8)] + [("b", n) for n in range(4)]
    slot = [R0, R1, V0, V1, V2, V3, R0, R1, V0, V1, V2, V3, R0, R1, V0, V1, R0, R1, R0, R1]
    class C: pass
    st = C(); st.seq = []
    def dma_unit(u, which=(0, 1, 2, 3)):
        kind, n = units[u]
        for i in which:
            rr = 4 * (i & 1) + 16 * (i >> 1); kr = 2 * (i & 1) + 8 * (i >> 1)
            a(f"s_add_u32 m0, s{sM}, {slot[u] + rr*512}")
            if kind == "w1":
                a(f"s_add_u32 s{sT}, s{sK1+n}, {rr*512}")
                a(f"buffer_load_dwordx4 v{vD1}, {sr(sW1,4)}, s{sT} offen lds")
            elif kind == "a":
                a(f"s_add_u32 s{sT}, s{sK2+n}, {kr*1536}")
                a(f"buffer_load_dwordx4 v{vD2}, {sr(sW2,4)}, s{sT} offen lds")
            else:
                a(f"s_min_u32 s{sT}, s{sK2+2*n}, s{sK2+2*n+1}\ns_add_u32 s{sT}, s{sT}, {kr*1536 + 1024}")
                a(f"buffer_load_dwordx4 v{vD3}, {sr(sW2,4)}, s{sT} offen lds")
            st.seq.append(("U", u))
    def dma_s(i):
        a(f"""
        s_add_u32 m0, s{sMV}, {L_H + i*4096}
        s_add_u32 s{sT}, s{sRB}, {i*8*2048}
        buffer_load_dwordx4 v{vT+6}, {sr(sSV,4)}, s{sT} offen lds
        """)
        st.seq.append(("S", i // 6))
    def dma_v(c, i):
        a(f"""
        s_add_u32 m0, s{sMV}, {L_V + c*ROWS*256 + i*4096}
        s_add_u32 s{sT}, s{sRB}, {0x40000000 if opt.get('nov') else i*16*2048 + 512*(c+1)}
        buffer_load_dwordx4 v{vDV}, {sr(sSV,4)}, s{sT} offen lds
        """)
        st.seq.append("V")
    Lg0 = a.label("K1_G0")
    a(f"s_cmp_ge_u32 s3, 4\ns_cbranch_scc1 {Lg0}")
    for i in range(12): dma_s(i)
    for u in range(0, 4): dma_unit(u)
    seq0 = list(st.seq)
    a(f"{Lg0}:")
    for n in range(8):
        a(f"s_mul_i32 s{sK2+n}, s{sK1+n}, 3")
    srd(a, sW2, 16, None, 0, 0 if opt.get('now2') else 256 * 1536)
    a(f"""
    s_lshl_b32 s{sT+4}, s{sCH}, 1
    s_add_u32 s{sT+4}, s{sT+4}, s{sT+1}
    s_mul_i32 s{sT+4}, s{sT+4}, {TAB_SL}
    """)
    srd(a, sT4, 24, sT + 4, WS_TAB, 0 if opt.get('nowr') else TAB_SL)
    a(f"""
    s_lshl_b32 s{sT+4}, s{sCH}, 8
    v_lshl_add_u32 v{vT+7}, v{hi}, 4, s{sT+2}
    v_mul_u32_u24 v{vT+7}, 1536, v{vT+7}
    v_and_b32 v{vT+8}, 0xf0, v{vT+5}
    v_add3_u32 v{vT+7}, v{vT+7}, v{vT+8}, s{sT+4}
    v_lshrrev_b32 v{vT+8}, 4, v{ch}
    v_xor_b32 v{vT+9}, 1, v{vT+8}
    v_lshl_add_u32 v{vD2}, v{vT+9}, 9, v{vT+7}
    v_xor_b32 v{vT+8}, s{sROT}, v{vT+8}
    v_and_b32 v{vT+8}, 1, v{vT+8}
    v_mul_u32_u24 v{vT+8}, 49152, v{vT+8}
    v_add_u32 v{vD3}, v{vT+7}, v{vT+8}
    s_mov_b32 s{sHI}, 0x07060302
    s_mov_b32 s{sRND}, 0x8000
    s_mov_b32 s{sEV}, 0x55555555
    s_mov_b32 s{sEV+1}, 0x55555555
    v_bfe_u32 v{q}, v0, 4, 4
    v_and_b32 v{j}, 15, v0
    v_lshlrev_b32 v{vDV}, 11, v{q}
    v_lshl_add_u32 v{vDV}, v{j}, 4, v{vDV}
    v_add_u32 v{vDV}, s{sT+4}, v{vDV}
    v_bfe_u32 v{q}, v0, 4, 2
    v_and_b32 v{vT+3}, 7, v{j}
    v_lshlrev_b32 v{vT+3}, 1, v{vT+3}
    v_xor_b32 v{vT+3}, v{vT+3}, v{q}
    v_lshlrev_b32 v{vT+3}, 4, v{vT+3}
    v_lshl_add_u32 v{vAS}, v{j}, 9, v{vT+3}
    s_lshl_b32 s{sT+4}, s{sROT}, 6
    v_xor_b32 v{vAS}, s{sT+4}, v{vAS}
    v_add_u32 v{vAS}, {L_H}, v{vAS}
    v_lshrrev_b32 v{vT+3}, 2, v{j}
    v_and_b32 v{vT+4}, 1, v{q}
    v_lshl_or_b32 v{vT+4}, v{vT+4}, 2, v{vT+3}
    v_lshlrev_b32 v{vT+4}, 1, v{vT+4}
    v_bfe_u32 v{vT+5}, v0, 1, 1
    v_or_b32 v{vT+5}, s{sT+3}, v{vT+5}
    v_xor_b32 v{vT+4}, v{vT+4}, v{vT+5}
    v_lshl_add_u32 v{vT+3}, v{q}, 3, v{vT+3}
    v_lshlrev_b32 v{vT+3}, 9, v{vT+3}
    v_lshl_add_u32 v{vT+3}, v{vT+4}, 4, v{vT+3}
    v_and_b32 v{vT+4}, 1, v0
    v_lshl_add_u32 v{vTR}, v{vT+4}, 3, v{vT+3}
    v_xor_b32 v{vTR+1}, 32, v{vTR}
    v_add_u32 v{vTH}, {R0}, v{vTR}
    v_add_u32 v{vTH+1}, {R0}, v{vTR+1}
    v_lshrrev_b32 v{vT+3}, 2, v{j}
    v_or_b32 v{vT+3}, s{sT+3}, v{vT+3}
    v_and_b32 v{vT+4}, 1, v{q}
    v_lshlrev_b32 v{vT+4}, 3, v{vT+4}
    v_xor_b32 v{vT+3}, v{vT+3}, v{vT+4}
    v_lshlrev_b32 v{vT+3}, 4, v{vT+3}
    v_and_b32 v{vT+4}, 3, v{j}
    v_lshl_add_u32 v{vT+3}, v{vT+4}, 2, v{vT+3}
    v_lshl_add_u32 v{vT+3}, v{q}, 11, v{vT+3}
    v_add_u32 v{vHW}, {L_H}, v{vT+3}
    v_xor_b32 v{vHW+1}, 32, v{vHW}
    v_xor_b32 v{vHW+2}, 64, v{vHW}
    v_xor_b32 v{vHW+3}, 96, v{vHW}
    """)
    def af(dst, n, mt, newn=True):
        x = f"v_xor_b32 v{vAS+1}, {n*64}, v{vAS}\n" if (n and newn) else ""
        return x + f"ds_read_b128 {vr(dst,4)}, v{vAS+1 if n else vAS} offset:{mt*8192}"
    def tr_list(u, b):
        base, off = (vTH, slot[u] - R0) if slot[u] >= R0 else (vTR, slot[u])
        L = []
        for side in range(2):
            for t in range(2):
                for h in range(2):
                    if units[u][0] == "b":
                        L.append(f"ds_read_b64_tr_b16 {vr(b+8*side+4*t+2*h,2)}, v{base} offset:{off + h*2048 + side*256 + 8*t}")
                    else:
                        L.append(f"ds_read_b64_tr_b16 {vr(b+8*side+4*t+2*h,2)}, v{base+t} offset:{off + h*2048 + side*256}")
        return L
    MF = lambda acc, A, B, first: f"v_mfma_f32_16x16x32_bf16 {vr(acc,4)}, {vr(A,4)}, {vr(B,4)}, {'0' if first else vr(acc,4)}"
    def mix(M, lds=(), acts=None):
        lds = list(lds); nl = 0; acts = acts or {}
        if not M:
            for x in lds:
                if nl == 12: a("s_waitcnt lgkmcnt(6)"); nl = 6
                a(x); nl += 1
            return
        per = -(-len(lds) // len(M)) if lds else 0
        for k, m_ in enumerate(M):
            a(m_)
            for _ in range(per):
                if lds:
                    if nl == 12: a("s_waitcnt lgkmcnt(6)"); nl = 6
                    a(lds.pop(0)); nl += 1
            for f in acts.get(k, []): f()
    tr_ = opt.get("trace"); nb = [0]
    def wait_tags(tags):
        idx = [i for i, t in enumerate(st.seq) if t in tags]
        if idx: a(f"s_waitcnt vmcnt({min(63, len(st.seq) - 1 - max(idx))})")
    stb = opt.get("stb", [0, 9, 14, 16])
    def bar(us=(), extra=(), nolds=False):
        if not nolds or nb[0] == 4: a("s_waitcnt lgkmcnt(0)")
        if tr_: a("s_memtime s[98:99]")
        wait_tags([("U", u) for u in us] + list(extra))
        a("s_barrier")
        k = nb[0]
        if tr_:
            a(f"s_waitcnt lgkmcnt(0)\nv_writelane_b32 v{vX0}, s98, {2*k}\ns_memtime s[98:99]\ns_waitcnt lgkmcnt(0)\nv_writelane_b32 v{vX0}, s98, {2*k+1}")
        if k in stb: stamp()
        nb[0] += 1
    DPP = "quad_perm:[1,0,3,2] row_mask:0xf bank_mask:0xf"
    def finish():
        stamp()
        if tr_:
            a(f"""
            s_add_u32 s40, s24, {WS_DIAG + (2<<20)}
            s_addc_u32 s41, s25, 0
            s_mov_b32 s42, 0x100000
            s_mov_b32 s43, 0x20000
            s_lshl_b32 s44, s2, 3
            s_add_u32 s44, s44, s3
            s_lshl_b32 s44, s44, 8
            v_and_b32 v{vT}, 63, v0
            v_lshlrev_b32 v{vT}, 2, v{vT}
            buffer_store_dword v{vX0}, v{vT}, s[40:43], s44 offen
            """)
    LG1 = a.label("K1_G1"); Lfin = a.label("K1_GFIN")
    a(f"s_cmp_ge_u32 s3, 4\ns_cbranch_scc1 {LG1}")
    nst[0] = 1 if stamps else 0; st.seq = list(seq0); nb[0] = 0
    vACC = 160
    def prefetch():
        a(f"""
        s_lshr_b32 s{sT+1}, s2, 3
        s_add_u32 s{sT+1}, s{sT+1}, {24-6}
        s_cmp_ge_u32 s{sT+1}, 24
        s_cselect_b32 s{sT+2}, 24, 0
        s_sub_u32 s{sT+1}, s{sT+1}, s{sT+2}
        s_lshl_b32 s{sT+2}, s{sT+1}, 2
        s_add_u32 s{sT+2}, s{sT+2}, s{sL}
        s_lshl_b32 s{sT+3}, s{sT+2}, 12
        v_mbcnt_lo_u32_b32 v{vHW}, -1, 0
        v_lshlrev_b32 v{vHW}, 7, v{vHW}
        s_mov_b32 exec_hi, 0
        buffer_load_dword v{vHW+1}, v{vHW}, {sr(sW2,4)}, s{sT+3} offen
        s_mov_b64 exec, -1
        """)
        st.seq.append("PF")
    vq = [(2, i) for i in range(6)] + [(1, i) for i in range(2, 6)] + [(0, i) for i in range(6)] + [(1, 0), (1, 1)]
    def VV(n):
        for _ in range(min(n, len(vq))): dma_v(*vq.pop(0))
    class Ring:
        def __init__(self, seqn, base, R, LA):
            self.q = seqn; self.base = base; self.R = R; self.LA = LA; self.rd = 0; self.k = 0; self.lastn = None
        def read(self):
            t, n = self.q[self.rd]
            a(af(self.base + 4 * (self.rd % self.R), n, t, n != self.lastn)); self.lastn = n; self.rd += 1
        def prime(self, lim=None):
            while self.rd < min(len(self.q) if lim is None else lim, self.k + self.LA): self.read()
        def run(self, cnt, mf, lds=(), acts=None, lim=None, fresh=False):
            lds = list(lds); acts = acts or {}
            lim = len(self.q) if lim is None else lim
            log = [] if fresh else list(range(self.k, self.rd))
            per = -(-len(lds) // cnt) if lds else 0
            for g in range(cnt):
                if self.k in log:
                    p = log.index(self.k); a(f"s_waitcnt lgkmcnt({len(log) - 1 - p})"); log = log[p + 1:]
                if len(log) > 10:
                    a("s_waitcnt lgkmcnt(8)"); log = log[-8:]
                t, n = self.q[self.k]
                M = mf(t, n, self.base + 4 * (self.k % self.R))
                pend = []
                if self.rd < min(lim, self.k + 1 + self.LA):
                    t2, n2 = self.q[self.rd]
                    pend = af(self.base + 4 * (self.rd % self.R), n2, t2, n2 != self.lastn).split("\n"); self.lastn = n2
                rpos = len(M) - 2 if (len(M) > 2 and not lds) else len(M) - 1
                for f, m_ in enumerate(M):
                    a(m_)
                    if len(pend) == 2 and f == rpos - 1: a(pend.pop(0))
                    if pend and f == rpos:
                        a(pend.pop(0)); log.append(self.rd); self.rd += 1
                    elif f < per and lds:
                        a(lds.pop(0)); log.append(None)
                    assert len(log) <= 15
                for f in acts.get(g, []): f()
                self.k += 1
            assert not lds
    vq[:] = [(2, 4), (2, 5)] + [(2, i) for i in range(4)] + [(1, i) for i in range(2, 6)] + [(0, i) for i in range(6)] + [(1, 0), (1, 1)]
    g2mf = lambda t, n, A: [MF(vACC + (t * 4 + f) * 4, A, vW + n * 16 + 4 * f, n == 0) for f in range(4)]
    gv = opt.get("gv", [2, 4, 2, 3, 3, 2, 2, 0, 0])
    assert gv[0] <= 2 and sum(gv[:3]) <= 10 and sum(gv) == 18
    pfa = opt.get("pfa", 99)
    PF = lambda k: prefetch() if pfa == k else None
    TT = lambda *us: mix([], sum([tr_list(u, vW + 16 * (u - 8)) for u in us], []))
    PF(-1)
    bar([0, 1], [("S", 0), ("S", 1)]); dma_unit(4); dma_unit(5); PF(0)
    bar([2, 3]); dma_unit(6); dma_unit(7); PF(1)
    bar([4, 5]); dma_unit(8); dma_unit(9)
    bar([6, 7]); dma_unit(10); dma_unit(11)
    bar([8, 9]); dma_unit(12); dma_unit(13); TT(8, 9)
    bar([10, 11]); dma_unit(14); dma_unit(15); TT(10, 11); PF(5); VV(gv[0])
    bar([12, 13]); TT(12, 13); VV(gv[1])
    bar([14, 15]); TT(14, 15); VV(gv[2])
    bar(); VV(gv[3])
    bar(); VV(gv[4])
    gv = gv[1:]
    vVR, vVR2, vO4, vSEL = 1, 2, 3, 4
    vV = [7, 8, 9, 10, 12, 13, 14, 15, vACC + 94]
    vOB = vACC + 80; vE = vACC + 88
    AC = lambda t: vACC + (t % 5) * 16
    def epi_setup():
        a(f"""
        v_bfe_u32 v{vE}, v0, 4, 2
        v_and_b32 v{vE+1}, 15, v0
        v_and_b32 v{vE+2}, 1, v{vE+1}
        v_lshlrev_b32 v{vE+2}, 5, v{vE+2}
        v_lshrrev_b32 v{vE+3}, 1, v{vE+1}
        v_lshl_add_u32 v{vE+2}, v{vE+3}, 2, v{vE+2}
        s_lshl_b32 s{sT+4}, s{sL}, 6
        v_add_u32 v{vE+2}, s{sT+4}, v{vE+2}
        v_lshl_add_u32 v{vVR}, v{vE}, 10, v{vE+2}
        v_add_u32 v{vVR2}, {2*ROWS*256}, v{vVR}
        v_lshl_add_u32 v{vE+2}, v{vE}, 2, s{sROW}
        v_mul_u32_u24 v{vO4}, {ROWB}, v{vE+2}
        v_lshl_add_u32 v{vO4}, v{vE+1}, 4, v{vO4}
        s_and_b32 s{sT+4}, s3, 1
        s_lshl_b32 s{sT+4}, s{sT+4}, 8
        v_add_u32 v{vO4}, s{sT+4}, v{vO4}
        v_mov_b32 v{vE+2}, 0x03020706
        v_mov_b32 v{vE+3}, 0x05040100
        v_cndmask_b32 v{vSEL}, v{vE+2}, v{vE+3}, s[{sEV}:{sEV+1}]
        """)
    def v_read(pc):
        mt, r = pc // 4, pc % 4
        for c in range(3):
            d = vV[(pc % 3) * 3 + c]
            if c < 2: a(f"ds_read_b32 v{d}, v{vVR} offset:{c*ROWS*256 + (mt*16+r)*256}")
            else: a(f"ds_read_b32 v{d}, v{vVR2} offset:{(mt*16+r)*256}")
    def t4_piece(pc):
        mt, r = pc // 4, pc % 4
        A_ = lambda nt: AC(mt) + nt * 4 + r
        o = vOB + 4 * (pc % 2); vv = vV[(pc % 3) * 3:(pc % 3) * 3 + 3]
        lo, hi_, P, Q = vE, vE + 1, A_(2), A_(3)
        x = vE + 2
        a(f"""
        v_perm_b32 v{P}, v{A_(3)}, v{A_(2)}, s{sHI}
        v_mov_b32_dpp v{lo}, v{A_(1)} {DPP}
        v_mov_b32_dpp v{hi_}, v{A_(0)} {DPP}
        v_mov_b32_dpp v{Q}, v{P} {DPP}
        v_cndmask_b32 v{lo}, v{lo}, v{A_(0)}, s[{sEV}:{sEV+1}]
        v_cndmask_b32 v{hi_}, v{A_(1)}, v{hi_}, s[{sEV}:{sEV+1}]
        v_perm_b32 v{o+3}, v{Q}, v{P}, v{vSEL}
        v_lshlrev_b32 v{x}, 16, v{vv[0]}
        v_lshlrev_b32 v{x+1}, 16, v{vv[1]}
        v_lshlrev_b32 v{x+2}, 16, v{vv[2]}
        v_and_b32 v{vv[0]}, 0xffff0000, v{vv[0]}
        v_and_b32 v{vv[1]}, 0xffff0000, v{vv[1]}
        v_and_b32 v{vv[2]}, 0xffff0000, v{vv[2]}
        v_mul_f32 v{x}, v{x}, v{lo}
        v_mul_f32 v{x+2}, v{x+2}, v{lo}
        v_mul_f32 v{x+1}, v{x+1}, v{lo}
        v_mul_f32 v{vv[0]}, v{vv[0]}, v{hi_}
        v_mul_f32 v{vv[1]}, v{vv[1]}, v{hi_}
        v_mul_f32 v{vv[2]}, v{vv[2]}, v{hi_}
        v_add_u32 v{x}, s{sRND}, v{x}
        v_add_u32 v{x+2}, s{sRND}, v{x+2}
        v_perm_b32 v{o+1}, v{vv[1]}, v{x+1}, s{sHI}
        v_perm_b32 v{o}, v{vv[0]}, v{x}, s{sHI}
        v_perm_b32 v{o+2}, v{vv[2]}, v{x+2}, s{sHI}
        s_mov_b32 s{sT+4}, {mt*16*ROWB}
        buffer_store_dwordx4 {vr(o,4)}, v{vO4}, {sr(sT4,4)}, s{sT+4} offen offset:{r*ROWB} {tab_fl}
        """)
        st.seq.append("ST")
    pcc = [0]
    def pieces(n):
        if not n: return
        if pcc[0] == 0: v_read(0); v_read(1)
        for _ in range(n):
            pc = pcc[0]
            if pc + 2 < 24: v_read(pc + 2)
            a(f"s_waitcnt lgkmcnt({min(6, 3 * (23 - pc))})")
            t4_piece(pc); pcc[0] += 1
    g2mf = lambda t, n, A: [MF(AC(t) + 4 * f, A, vW + n * 16 + 4 * f, n == 0) for f in range(4)]
    b_at = opt.get("b_at", 2); ps = opt.get("ps", [0, 0, 0, 0, 8, 6])
    pfirst = min(t for t in range(6) if ps[t]); assert pfirst > b_at and sum(ps[:6]) >= 4
    rg = Ring([(t, n) for t in range(6) for n in range(8)], vT, 4, 3)
    for t in range(6):
        bar([16, 17] if t == 5 else [], ["V"] if t == pfirst else [])
        cnt = [5, 8, 8, 8, 8, 11][t]
        if t == 0: rg.prime(8)
        nv = gv[4 + t] if t < 4 else 0
        acts = {}
        for i_ in range(nv): acts.setdefault((i_ * cnt) // nv, []).append(lambda: VV(1))
        if t == b_at:
            assert not vq and not acts
            acts = {1: [lambda: dma_unit(16, (0, 1))], 3: [lambda: dma_unit(16, (2, 3))], 5: [lambda: dma_unit(17, (0, 1))], 7: [lambda: dma_unit(17, (2, 3)), epi_setup]}
        assert pcc[0] + ps[t] <= 4 * max(0, t - 1)
        pieces(ps[t])
        rg.run(cnt, g2mf, acts=acts, lim=8 * (t + 1), fresh=(t > 0))
    pl = opt.get("pl", 4)
    bar(); pieces(pl)
    bar(); pieces(24 - pcc[0])
    nbG2 = nb[0]
    finish()
    a(f"s_branch {Lfin}")
    a(f"{LG1}:")
    nst[0] = 1 if stamps else 0; st.seq = []; nb[0] = 0
    vAC1 = 160
    vAF = 208
    def silu(acc, mt, pk=False):
        for side in range(2):
            A0, A1 = acc + 8 * side, acc + 8 * side + 4
            X = [A0, A0 + 2, A1, A1 + 2]
            if opt.get("rndpre", 0):
                for r in range(4): a(f"v_cvt_pk_bf16_f32 v{vT+r}, v{A0+r}, v{A1+r}")
                for r in range(4): a(f"v_lshlrev_b32 v{A0+r}, 16, v{vT+r}\nv_and_b32 v{A1+r}, 0xffff0000, v{vT+r}")
            if pk or opt.get("silupk", 0):
                for k in range(4): a(f"v_pk_mul_f32 {vr(vT+2*k,2)}, {vr(X[k],2)}, s[{sT+6}:{sT+7}]")
                for k in range(8): a(f"v_exp_f32 v{vT+k}, v{vT+k}")
                for k in range(4): a(f"v_pk_add_f32 {vr(vT+2*k,2)}, {vr(vT+2*k,2)}, 1.0 op_sel_hi:[1,0]")
                for k in range(8): a(f"v_rcp_f32 v{vT+k}, v{vT+k}")
                for k in range(4): a(f"v_pk_mul_f32 {vr(X[k],2)}, {vr(X[k],2)}, {vr(vT+2*k,2)}")
            else:
                for k in range(8): a(f"v_mul_f32 v{vT+k}, s{sT+6}, v{A0+k}")
                for k in range(8): a(f"v_exp_f32 v{vT+k}, v{vT+k}")
                for k in range(8): a(f"v_add_f32 v{vT+k}, 1.0, v{vT+k}")
                for k in range(8): a(f"v_rcp_f32 v{vT+k}, v{vT+k}")
                for k in range(8): a(f"v_mul_f32 v{A0+k}, v{A0+k}, v{vT+k}")
            for r in range(4): a(f"v_cvt_pk_bf16_f32 v{A0+r}, v{A0+r}, v{A1+r}")
        for r in range(4): a(f"ds_write2st64_b32 v{vHW+r}, v{acc+r}, v{acc+8+r} offset0:{2*(mt*16+r)} offset1:{2*(mt*16+r)+1}")
    a(f"s_mov_b32 s{sT+6}, 0xbfb8aa3b\ns_mov_b32 s{sT+7}, 0xbfb8aa3b")
    if opt.get("g1prio", 1): a("s_setprio 1")
    vB1 = lambda n: vW + 16 * (n % 6)
    g1mf = lambda t, n, A: [MF(vAC1 + (t * 4 + f) * 4, A, vB1(n) + 4 * f, n == 0) for f in range(4)]
    rg = Ring([(t, n) for n in range(8) for t in range(6)], 128, 8, 5)
    T = lambda *us: sum([tr_list(u, vB1(u)) for u in us], [])
    bar(); mix([], T(0, 1)); a("s_waitcnt lgkmcnt(6)"); rg.prime()
    bar(); rg.run(6, g1mf, T(2, 3), fresh=True)
    bar(); rg.run(6, g1mf, T(4, 5), fresh=True)
    bar(); rg.run(6, g1mf, T(6, 7), fresh=True)
    for _ in range(5):
        bar(nolds=True); rg.run(6, g1mf, fresh=(_ == 0))
    for t in range(6):
        bar(); silu(vAC1 + 16 * t, t, t == 0)
    a("s_setprio 0")
    vBB = 192; vAC2 = 144; vAG = vW
    vO1, vSL, vRL = vD1, vD2, vDV
    bar()
    a(f"""
    v_and_b32 v{vT}, 63, v0
    v_lshrrev_b32 v{vT+1}, 4, v{vT}
    v_bfe_u32 v{vT+2}, v{vT}, 2, 2
    v_and_b32 v{vT+3}, 1, v{vT+1}
    v_lshl_or_b32 v{vT+3}, v{vT+3}, 2, v{vT+2}
    v_lshlrev_b32 v{vT+3}, 1, v{vT+3}
    v_and_b32 v{vT+4}, 3, v{vT}
    s_lshl_b32 s{sT+4}, s{sL}, 2
    v_or_b32 v{vT+5}, s{sT+4}, v{vT+4}
    v_xor_b32 v{vT+3}, v{vT+3}, v{vT+5}
    v_lshl_add_u32 v{vT+5}, v{vT+1}, 3, v{vT+2}
    v_lshlrev_b32 v{vT+5}, 9, v{vT+5}
    v_lshl_add_u32 v{vTH}, v{vT+3}, 4, v{vT+5}
    v_add_u32 v{vTH}, {R0}, v{vTH}
    v_lshl_add_u32 v{vT+1}, v{vT+1}, 2, s{sROW}
    v_mul_u32_u24 v{vT+1}, {ROWB}, v{vT+1}
    v_lshl_add_u32 v{vT+1}, v{vT+2}, 4, v{vT+1}
    v_and_b32 v{vT+3}, 1, v{vT}
    v_lshl_add_u32 v{vT+1}, v{vT+3}, 3, v{vT+1}
    v_bfe_u32 v{vT+3}, v{vT}, 1, 1
    v_lshl_add_u32 v{vT+1}, v{vT+3}, 2, v{vT+1}
    s_and_b32 s{sT+4}, s3, 1
    s_lshl_b32 s{sT+4}, s{sT+4}, 6
    s_add_u32 s{sT+4}, s{sT+4}, 512
    v_add_u32 v{vO1}, s{sT+4}, v{vT+1}
    v_mov_b32 v{vT+3}, 0x03020706
    v_mov_b32 v{vT+4}, 0x05040100
    v_mov_b32 v{vT+5}, 0x8000
    v_cndmask_b32 v{vSL}, v{vT+3}, v{vT+4}, s[{sEV}:{sEV+1}]
    v_cndmask_b32 v{vRL}, 0, v{vT+5}, s[{sEV}:{sEV+1}]
    """)
    rg = Ring([(t, n) for n in range(8) for t in range(6)], vAG, 24, 10)
    vrmf = lambda t, n, A: [MF(vAC2 + (t * 2 + tt) * 4, A, vBB + 16 * (n >> 1) + 8 * (n & 1) + 4 * tt, n == 0) for tt in range(2)]
    rg.prime()
    zero_counters(a, vT, vT + 1)
    a("s_waitcnt lgkmcnt(0)")
    mix([], tr_list(16, vBB) + tr_list(17, vBB + 16))
    bar(); dma_unit(18); dma_unit(19); rg.run(24, vrmf, fresh=True)
    bar([18, 19]); mix([], tr_list(18, vBB + 32) + tr_list(19, vBB + 48))
    srd(a, sT1, 22, None, 0, 256)
    srd(a, sW1, 24, None, WS_LUT, MISC_BYTES)
    sync_loads(a, sT1, sW1, sT + 1, vT)
    tokpos = len(st.seq)
    a("s_waitcnt lgkmcnt(0)")
    rg.run(24, vrmf, fresh=True)
    a("s_nop 7")
    for mt in range(6):
        A_ = lambda t, r: vAC2 + (mt * 2 + t) * 4 + r
        for r in range(4):
            a(f"v_add_u32 v{A_(0,r)}, v{A_(0,r)}, v{vRL}")
            a(f"v_add_u32 v{A_(1,r)}, v{A_(1,r)}, v{vRL}")
        for r in range(4):
            a(f"v_perm_b32 v{vT+r}, v{A_(1,r)}, v{A_(0,r)}, s{sHI}")
        a(f"s_mov_b32 s{sT+4}, {mt*16*ROWB}")
        for r in range(4):
            a(f"v_mov_b32_dpp v{vT+4+r}, v{vT+r} {DPP}")
        for r in range(4):
            a(f"v_perm_b32 v{A_(0,r)}, v{vT+4+r}, v{vT+r}, v{vSL}")
            a(f"buffer_store_dword v{A_(0,r)}, v{vO1}, {sr(sT4,4)}, s{sT+4} offen offset:{r*ROWB} {tab_fl}")
            st.seq.append("ST")
    opt["tokw"] = len(st.seq) - tokpos
    assert nb[0] == nbG2, (nb[0], nbG2)
    finish()
    a(f"{Lfin}:")
    dump_stamps(nst[0])
    a(f"{Lp2}:")
    phase2(a0, opt, Lend)
    a0.lines += side.lines
    return nvmax, 102
```

```python
from asmlib import *
from layout import *

CHUNK = 2048
SCAP = CHUNK // 4 + 2 * CAPN + 8 + 12
L_PARK = 0
L_STREAM = NKEY * 512
STREAM_BYTES = SCAP * 64
L_LUT = L_STREAM + STREAM_BYTES
L_CNT = 155648
assert L_CNT >= L_LUT + (NRS + 512) * 32
L_HIST = L_CNT + 1280
L_ALLOC = L_HIST + 256
L_SORT = L_ALLOC + 64
L_NADDR = L_SORT + 1280 + 256
L_PASS = L_NADDR + 1280
K2_LDS = L_PASS + 64
assert K2_LDS <= 163840 and L_CNT >= 139264
DIRS = [0, 1, 0, 1, 1] * 2

def dpp_scan(a, op, v):
    for m in ["row_shr:1", "row_shr:2", "row_shr:4", "row_shr:8"]:
        a("s_nop 1")
        a(f"{op}_dpp v{v}, v{v}, v{v} {m} row_mask:0xf bank_mask:0xf bound_ctrl:0")
    a("s_nop 1")
    a(f"{op}_dpp v{v}, v{v}, v{v} row_bcast:15 row_mask:0xa bank_mask:0xf")
    a("s_nop 1")
    a(f"{op}_dpp v{v}, v{v}, v{v} row_bcast:31 row_mask:0xc bank_mask:0xf")

def zero_counters(a, t0, t1):
    a(f"""
    v_lshlrev_b32 v{t0}, 3, v0
    v_add_u32 v{t0}, {L_CNT - 2048}, v{t0}
    v_mov_b32 v{t1}, 0
    v_cmp_gt_u32 vcc, 456, v0
    s_and_b64 exec, exec, vcc
    ds_write2_b32 v{t0}, v{t1}, v{t1} offset0:0 offset1:1
    s_mov_b64 exec, -1
    """)

def sync_loads(a, sdbg, smisc, st, vz, tok=True, gran=True):
    a(f"""
    s_lshr_b32 s{st}, s2, 3
    s_lshl_b32 s{st}, s{st}, 4
    s_and_b32 s{st+1}, s2, 1
    s_lshl_b32 s{st+1}, s{st+1}, 3
    s_add_u32 s{st}, s{st}, s{st+1}
    s_add_u32 s{st}, s{st}, {M_TOT}
    v_mov_b32 v{vz}, 0
    s_mov_b64 exec, 1
    {f"buffer_load_dwordx2 v[{VTOK}:{VTOK+1}], v{vz}, {sr(sdbg,4)}, 0 offen sc1" if tok else ""}
    {f"buffer_load_dwordx2 v[{VTOK+2}:{VTOK+3}], v{vz}, {sr(smisc,4)}, s{st} offen sc1" if gran else ""}
    s_mov_b64 exec, -1
    """)

def gen_k2(a, opt, Lend):
    stamps = opt.get("stamps", False)
    st_fl = opt.get("st_flags", "nt")
    NRG = opt.get("ring", 3); DP = NRG - 1
    V = Regs("v", 1, 256)
    vB = V.alloc("B", 24, 2)
    vC1 = V.alloc("c1"); vC2 = V.alloc("c2"); vML = V.alloc("ml"); vCL = V.alloc("cl")
    vS = V.alloc("vS"); vA = V.alloc("vA"); vPEND = V.alloc("pend"); vG4 = V.alloc("g4"); vCO = V.alloc("co")
    vEN = V.alloc("en"); vPA = V.alloc("pa"); vO = V.alloc("O"); vPN = V.alloc("pn"); vPD = V.alloc("pd")
    vACC = V.alloc("acc", 20, 2)
    vD = V.alloc("D", 24, 2)
    vRH = V.alloc("RH", 8, 2)
    vAOP = V.alloc("A", 4, 2)
    vE = V.alloc("E", 8, 2)
    vX = V.alloc("X", 16, 2)
    vR = V.alloc("R", 8, 2)
    vT = V.alloc("T", 4, 2)
    vPK = V.alloc("PK", 2, 2)
    vLI = V.alloc("LI")
    vAD = V.alloc("ad", 4)
    vRING = V.alloc("ring", 24 * NRG, 2)
    P = Regs("v", vACC, 256)
    pT = P.alloc("t", 12, 2)
    pREC = P.alloc("rec", 32, 2)
    pRANK = P.alloc("rank", 8)
    pDL = P.alloc("dl", 8)
    pEK = P.alloc("ek", 10)
    pRS = P.alloc("rs", 8)
    pNA = P.alloc("na", 8)
    pLT = P.alloc("lt", 16, 2)
    pRARE = P.alloc("rare", 64, 2)
    assert pRARE >= vRING
    nv = max(V.hi, P.hi)
    def ACC(hf): b = vACC + 10 * hf; return b, b + 2, b + 4, b + 6, b + 8

    sTB, sSV, sOUT, sLIST, sMISC, sDBG = 28, 32, 36, 40, 44, 48
    sM, sRG, sW, sCB, sTOT = 52, 53, 3, 54, 26
    sREM = 55; sPC = 56; sQ = 58; sDIR = 59; sMORE = 60; sPM = 61
    sCNT, sSLOT, sROWB, sMASK, sPS, sSPIN = 62, 63, 64, 65, 66, 67
    sN0 = 8
    sT = 68
    sFIRST = 76; sL = 77
    STR = [92, 94, 96, 98, 100, 18]
    nst = [0]
    def stamp():
        if stamps:
            a(f"s_memrealtime {sr(STR[nst[0]], 2)}")
            nst[0] += 1
    def srd(d, lo, off_sreg, off_imm, size):
        hi = lo + 1
        if off_sreg is None and off_imm == 0:
            a(f"s_mov_b32 s{d}, s{lo}\ns_mov_b32 s{d+1}, s{hi}")
        else:
            if off_sreg is not None:
                if off_imm:
                    a(f"s_add_u32 s{off_sreg}, s{off_sreg}, {off_imm}")
                a(f"s_add_u32 s{d}, s{lo}, s{off_sreg}")
            else:
                a(f"s_add_u32 s{d}, s{lo}, {off_imm}")
            a(f"s_addc_u32 s{d+1}, s{hi}, 0")
        a(f"s_mov_b32 s{d+2}, {size}\ns_mov_b32 s{d+3}, 0x20000")
    def ring(bslot, st, hf): return vRING + ((bslot * 2 + st) * 2 + hf) * 6
    def issue(bslot, pk0):
        for st in range(2):
            a(f"v_mad_u32_u16 v{vAD+2*st}, v{pk0+st}, s{sROWB}, v{vC1}")
            a(f"v_mad_u32_u16 v{vAD+2*st+1}, v{pk0+st}, s{sROWB}, v{vC2}")
        for st in range(2):
            for hf in range(2):
                a(f"buffer_load_dwordx4 {vr(ring(bslot,st,hf),4)}, v{vAD+2*st}, {sr(sTB,4)}, 0 offen offset:{256*hf}")
            for hf in range(2):
                a(f"buffer_load_dword v{ring(bslot,st,hf)+5}, v{vAD+2*st+1}, {sr(sTB,4)}, 0 offen offset:{512+64*hf}")
    plist = {0: [(i, h) for i in (4, 5, 6, 7) for h in (0, 1)], 1: [(i, h) for i in (0, 1, 2, 3, 8, 9) for h in (0, 1)]}
    def park_issue(cls, n):
        for _ in range(n):
            i, h = plist[cls].pop(0)
            a(f"""
            s_add_u32 m0, s{sPM}, {i*8192 + h*4096}
            s_add_u32 s{sT+7}, s{sPS}, {(i*16 + h*8)*64*2048}
            buffer_load_dwordx4 v{vPD}, {sr(sSV,4)}, s{sT+7} offen lds
            """)
    def park_dma(na, nb):
        if not (na or nb): return
        Ls = a.label("K2_NOPARK"); Lb = a.label("K2_PARKB")
        a(f"s_cmp_eq_u32 s{sFIRST}, 0\ns_cbranch_scc1 {Ls}\ns_cmp_ge_u32 s{sW}, 4\ns_cbranch_scc1 {Lb}")
        park_issue(0, na)
        a(f"s_branch {Ls}\n{Lb}:")
        park_issue(1, nb)
        a(f"{Ls}:")
    def r_reads():
        for c in range(4):
            a(f"ds_read2_b32 {vr(vR+2*c,2)}, v{vPN} offset0:{32*c} offset1:{32*c+16}")
    def fetch_next():
        a(f"""
        v_and_b32 v{vEN}, 0xff, v{vEN}
        s_add_u32 s{sQ}, s{sQ}, 128
        s_lshr_b32 s{sDIR}, s{sDIR}, 1
        v_lshl_add_u32 v{vPN}, v{vEN}, 9, v{vC2}
        s_bitcmp1_b32 s{sDIR}, 0
        s_cselect_b32 s{sT}, 112, 0
        s_xor_b32 s{sT}, s{sT}, s{sQ}
        v_add_u32 v{vEN}, s{sT}, v{vG4}
        """)
        r_reads()
        a(f"ds_read_b32 v{vEN}, v{vEN}")
    def acc_init():
        for hf in range(2):
            HXY, HZS, LXY, LZS, BZ = ACC(hf)
            R = lambda c: vR + 2 * c + hf
            a(f"""
            v_and_b32 v{HXY}, s{sMASK}, v{R(1)}
            v_and_b32 v{HXY+1}, s{sMASK}, v{R(2)}
            v_and_b32 v{HZS}, s{sMASK}, v{R(3)}
            v_and_b32 v{HZS+1}, s{sMASK}, v{R(0)}
            v_lshlrev_b32 v{LXY}, 16, v{R(1)}
            v_lshlrev_b32 v{LXY+1}, 16, v{R(2)}
            v_lshlrev_b32 v{LZS}, 16, v{R(3)}
            v_lshlrev_b32 v{LZS+1}, 16, v{R(0)}
            v_mov_b64 {vr(BZ,2)}, 0
            """)
        a(f"v_mov_b32 v{vPA}, v{vPN}")

    Lrank = a.label("K2_RANK"); Lx = a.label("K2_X")
    stamp()
    t16, l16 = pT + 5, pT + 6
    sTOK = 27
    INV = 0x10000
    a(f"""
    s_bfe_u32 s{sM}, s2, 0x20001
    s_lshr_b32 s{sRG}, s2, 3
    s_lshl_b32 s{sRG}, s{sRG}, 1
    s_and_b32 s{sT}, s2, 1
    s_or_b32 s{sRG}, s{sRG}, s{sT}
    s_and_b32 s{sL}, s{sW}, 3
    s_mov_b32 s{sFIRST}, 1
    """)
    srd(sDBG, 22, None, 0, 256)
    srd(sMISC, 24, None, WS_LUT, MISC_BYTES)
    a(f"s_mul_i32 s{sT}, s{sRG}, {LIST_STRIDE}")
    srd(sLIST, 24, sT, WS_LIST, LIST_STRIDE)
    srd(sSV, 4, None, 0, 0 if opt.get("nores") else N * 2048)
    def spin(body, sleep):
        L0 = a.label("K2_SPIN"); L1 = a.label("K2_SPINOK")
        a(f"s_mov_b32 s{sSPIN}, {SPIN_MAX}\n{L0}:")
        body()
        a(f"""
        s_cbranch_scc1 {L1}
        s_sub_u32 s{sSPIN}, s{sSPIN}, 1
        s_cbranch_scc1 {L1}
        s_sleep {sleep}
        s_branch {L0}
{L1}:
        """)
    def arrive():
        a(f"""
        s_mul_i32 s{sT}, s2, {ARRS}
        s_add_u32 s{sT}, s{sT}, {M_ARR}
        v_mbcnt_lo_u32_b32 v{pT+1}, -1, 0
        v_mov_b32 v{pT+3}, s{sTOK}
        v_lshlrev_b32 v{pT+1}, 2, v{pT+1}
        s_mov_b64 exec, {"0xffff" if ARRS == 64 else "0x7fffffff" if False else "0xffff"}
        {"s_mov_b32 exec_lo, -1" if ARRS == 128 else ""}
        buffer_store_dword v{pT+3}, v{pT+1}, {sr(sMISC,4)}, s{sT} offen sc1
        s_mov_b64 exec, -1
        """)
    def wait_arrivals(lo, hi, sleep):
        n = (hi - lo + 63) // 64
        a(f"v_and_b32 v{pT+1}, 63, v0")
        for i in range(n):
            a(f"v_add_u32 v{pEK+i}, {lo + 64*i}, v{pT+1}\nv_min_u32 v{pEK+i}, {hi-1}, v{pEK+i}\nv_mul_u32_u24 v{pEK+i}, {ARRS}, v{pEK+i}")
        a(f"s_mov_b32 s{sT}, {M_ARR}")
        sP = 84
        for i in range(n): a(f"s_mov_b64 {sr(sP+2*i,2)}, -1")
        def body():
            for i in range(n):
                Lq = a.label("K2_PQ")
                a(f"s_mov_b64 exec, {sr(sP+2*i,2)}\ns_cbranch_execz {Lq}")
                a(f"buffer_load_dword v{pEK+4+i}, v{pEK+i}, {sr(sMISC,4)}, s{sT} offen sc1\n{Lq}:")
            a("s_mov_b64 exec, -1\ns_waitcnt vmcnt(0)")
            for i in range(n):
                a(f"v_cmp_ne_u32 {sr(sP+2*i,2)}, s{sTOK}, v{pEK+4+i}")
            a(f"s_mov_b64 vcc, {sr(sP,2)}")
            for i in range(1, n):
                a(f"s_or_b64 vcc, vcc, {sr(sP+2*i,2)}")
            a("s_cmp_eq_u64 vcc, 0")
        spin(body, sleep)
    def consts():
        a(f"""
        v_and_b32 v{pT+1}, 63, v0
        v_lshlrev_b32 v{l16}, 4, v{pT+1}
        v_bfe_u32 v{pT+2}, v0, 5, 3
        v_bfe_u32 v{pT+3}, v0, 3, 2
        v_and_b32 v{vPD}, 7, v0
        v_lshlrev_b32 v{vPD}, 4, v{vPD}
        v_lshl_add_u32 v{vPD}, v{pT+3}, 9, v{vPD}
        v_lshl_add_u32 v{vPD}, v{pT+2}, 17, v{vPD}
        s_lshl_b32 s{sPS}, s{sRG}, 11
        s_lshl_b32 s{sT+5}, s{sM}, 7
        s_add_u32 s{sPS}, s{sPS}, s{sT+5}
        s_lshl_b32 s{sPM}, s{sL}, 10
        s_movk_i32 s{sROWB}, {ROWB}
        s_mov_b32 s{sMASK}, 0xffff0000
        s_mov_b32 s{sCB}, 0
        v_mov_b32 v{vPEND}, 0xff
        v_and_b32 v{vC1}, 7, v0
        v_bfe_u32 v{vC2}, v0, 3, 1
        v_lshlrev_b32 v{vC1}, 5, v{vC1}
        v_lshl_add_u32 v{vC1}, v{vC2}, 4, v{vC1}
        v_and_b32 v{vC2}, 15, v0
        v_lshlrev_b32 v{vC2}, 2, v{vC2}
        v_mul_u32_u24 v{vCO}, 255, v{vC2}
        v_sub_u32 v{vCO}, s{sPS}, v{vCO}
        v_bfe_u32 v{vG4}, v0, 4, 2
        v_lshlrev_b32 v{vG4}, 2, v{vG4}
        v_add_u32 v{vG4}, {L_SORT}, v{vG4}
        v_bfe_u32 v{pT+1}, v0, 5, 1
        v_and_b32 v{pT+2}, 1, v0
        v_cmp_eq_u32 vcc, v{pT+1}, v{pT+2}
        v_and_b32 v{pT+3}, 16, v0
        v_mov_b32 v{pT+4}, 32
        v_cndmask_b32 v{vML}, 0, v{pT+4}, vcc
        s_mul_i32 s{sT+5}, s{sM}, {TAB_SL}
        v_cndmask_b32 v{vCL}, 0, v{pT+3}, vcc
        v_add_u32 v{vCL}, {L_LUT}, v{vCL}
        """)
        srd(sTB, 24, sT + 5, WS_TAB, 0 if opt.get("notab") else TAB_SL)
        srd(sOUT, 20, None, 0, 0 if opt.get("nost") else N * 2048)
    def bop_loads():
        a(f"s_mul_i32 s{sT+6}, s{sM}, 6144\ns_add_u32 s{sT+6}, s{sT+6}, {M_BOP}\ns_add_u32 s{sT+7}, s{sT+6}, 3072")
        for o in range(6):
            a(f"buffer_load_dwordx4 {vr(vB+4*o,4)}, v{l16}, {sr(sMISC,4)}, s{sT+6+o//3} offen offset:{1024*(o%3)} {opt.get('bopfl', 'sc1')}")
    def rec_loads():
        a(f"v_add_u32 v{t16}, s{sCB}, v0\nv_subrev_u32 v{t16}, 256, v{t16}\nv_lshlrev_b32 v{t16}, 4, v{t16}")
        for k in range(8):
            a(f"s_movk_i32 s{sT+2}, {k*4096}")
            a(f"buffer_load_dwordx4 {vr(pREC+4*k,4)}, v{t16}, {sr(sLIST,4)}, s{sT+2} offen sc1")
    z = pT + 8
    def null_fill(t0=256):
        a(f"""
        v_mov_b32 v{z}, 0
        v_mov_b32 v{z+1}, 0
        v_mov_b32 v{z+2}, 0
        v_mov_b32 v{z+3}, 0xffff
        v_lshlrev_b32 v{pT+4}, 4, v0
        v_add_u32 v{pT+4}, {L_STREAM - 16*t0}, v{pT+4}
        """)
        nfull = STREAM_BYTES // 4096
        rem = (STREAM_BYTES - nfull * 4096) // 16
        for i in range(nfull):
            a(f"ds_write_b128 v{pT+4}, {vr(z,4)} offset:{i*4096}")
        a(f"""
        v_cmp_gt_u32 vcc, {t0 + rem}, v0
        s_and_b64 exec, exec, vcc
        ds_write_b128 v{pT+4}, {vr(z,4)} offset:{nfull*4096}
        s_mov_b64 exec, -1
        v_lshlrev_b32 v{pT+4}, 3, v0
        v_add_u32 v{pT+4}, {L_LUT - 8*t0}, v{pT+4}
        v_cmp_gt_u32 vcc, {t0+4}, v0
        s_and_b64 exec, exec, vcc
        ds_write_b64 v{pT+4}, {vr(z,2)}
        s_mov_b64 exec, -1
        """)
    Lsd = a.label("K2_SIDE"); Lsz = a.label("K2_SZ"); LA = a.label("K2_A"); Lok = a.label("K2_GOK"); Lnag = a.label("K2_NOAGG"); Ls2 = a.label("K2_S2"); Lagd = a.label("K2_AGD")
    def get_token():
        Ltk = a.label("K2_TOK")
        token_decode(a, VTOK, sTOK, sT)
        a(f"s_cbranch_scc1 {Ltk}")
        def body():
            sync_loads(a, sDBG, sMISC, sT, pT + 1, gran=False)
            a("s_waitcnt vmcnt(0)")
            token_decode(a, VTOK, sTOK, sT)
        spin(body, 8)
        a(f"{Ltk}:")
    def check():
        a(f"""
        v_readfirstlane_b32 s{sT}, v{VTOK+3}
        v_readfirstlane_b32 s{sTOT}, v{VTOK+2}
        s_nop 1
        s_cmp_eq_u32 s{sT}, s{sTOK}
        """)
    def wait_granule(sleep):
        def body():
            sync_loads(a, sDBG, sMISC, sT, pT + 1, tok=False)
            a("s_waitcnt vmcnt(0)")
            check()
        spin(body, sleep)
    a(f"""
    s_cmp_ge_u32 s2, {WG_GEMM0}
    s_cbranch_scc1 {Lsd}
    s_cmp_lt_u32 s{sW}, 4
    s_cbranch_scc1 {Lsz}
    """)
    zero_counters(a, pT + 1, pT + 2)
    a(f"""
{Lsz}:
    v_mov_b32 v{pT+7}, {L_PASS}
    s_waitcnt vmcnt(0) lgkmcnt(0)
    s_barrier
    s_cmp_lg_u32 s{sW}, {WSY}
    s_cbranch_scc1 {Ls2}
    """)
    get_token()
    arrive()
    if opt.get("aggst") == 1: a("s_waitcnt vmcnt(0)\ns_memrealtime s[92:93]")
    if opt.get("aggst") == 5: a("s_memrealtime s[92:93]")
    a(f"s_cmp_lg_u32 s2, {WG_AGG}\ns_cbranch_scc1 {Lnag}")
    wait_arrivals(0, WG_AGG, opt.get("sl0", 4))
    a(f"""
    {"s_memrealtime s[92:93]" if opt.get("aggst") == 2 else ""}
    v_lshlrev_b32 v{pT+1}, 2, v{pT+1}
    buffer_load_dword v{pT+2}, v{pT+1}, {sr(sDBG,4)}, 0 offen sc1
    v_lshlrev_b32 v{pT+1}, 1, v{pT+1}
    v_mov_b32 v{pT+3}, s{sTOK}
    s_mov_b32 s{sT}, {M_TOT}
    s_waitcnt vmcnt(0)
    buffer_store_dwordx2 {vr(pT+2,2)}, v{pT+1}, {sr(sMISC,4)}, s{sT} offen sc1
    v_readlane_b32 s{sT}, v{pT+2}, {2*(WG_AGG>>3) + (WG_AGG&1)}
    v_mov_b32 v{VTOK+3}, s{sTOK}
    s_nop 0
    v_mov_b32 v{VTOK+2}, s{sT}
    s_branch {Lagd}
{Lnag}:
    """)
    wait_granule(opt.get("sl1", 16))
    a(f"""
{Lagd}:
    {"s_memrealtime s[92:93]" if opt.get("aggst") == 3 else ""}
    s_mov_b64 exec, 1
    ds_write_b128 v{pT+7}, {vr(VTOK,4)} offset:16
    s_mov_b64 exec, -1
    s_waitcnt lgkmcnt(0)
{Ls2}:
    s_barrier
    ds_read_b128 {vr(VTOK,4)}, v{pT+7} offset:16
    s_waitcnt lgkmcnt(0)
{Lsd}:
    s_cmp_lt_u32 s{sW}, 4
    s_cbranch_scc1 {LA}
    s_waitcnt vmcnt({opt.get("tokw", 5)})
    """)
    get_token()
    check()
    a(f"s_cbranch_scc1 {Lok}")
    wait_granule(8)
    pkb = opt.get("pkb", [2, 2, 3, 3, 2, 0])
    pka = opt.get("pka", [1, 1, 0, 0, 6])
    assert sum(pkb) == 12 and sum(pka) == 8
    a(f"""
{Lok}:
    s_and_b32 s{sTOT}, s{sTOT}, 0x3ffff
    s_min_u32 s{sTOT}, s{sTOT}, {LCAP}
    s_lshl_b32 s{sLIST+2}, s{sTOT}, 4
    s_mov_b32 s{sCB}, 0
    """)
    rec_loads()
    consts()
    a(f"""
    v_mov_b32 v{pT+1}, {L_PASS}
    v_mov_b32 v{pT+2}, s{sTOT}
    v_mov_b32 v{pT+3}, s{sTOK}
    ds_write_b64 v{pT+1}, {vr(pT+2,2)}
    s_lshl_b32 s{sT+5}, s{sL}, 12
    v_add_u32 v{pT+7}, s{sT+5}, v{l16}
    v_add_u32 v{pT+7}, {L_LUT + NRS*32}, v{pT+7}
    s_add_u32 s{sT+5}, s{sT+5}, {LUT_THR*32}
    """)
    for i in range(4):
        a(f"buffer_load_dwordx4 {vr(pLT+4*i,4)}, v{l16}, {sr(sMISC,4)}, s{sT+5} offen offset:{1024*i} sc1")
    Lna = a.label("K2_NOARR")
    a(f"""
    s_waitcnt vmcnt(12) lgkmcnt(0)
    s_barrier
    s_cmp_lg_u32 s{sW}, {WSY}
    s_cbranch_scc1 {Lna}
    s_cmp_lt_u32 s2, {WG_GEMM0}
    s_cbranch_scc1 {Lna}
    """)
    arrive()
    a(f"{Lna}:")
    park_issue(1, pkb[0])
    a(f"s_waitcnt vmcnt({pkb[0]})")
    for i in range(4):
        a(f"ds_write_b128 v{pT+7}, {vr(pLT+4*i,4)} offset:{1024*i}")
    bop_loads()
    one = pT + 4; vAL = pT + 10
    a(f"""
{Lrank}:
    s_waitcnt lgkmcnt(0)
    {"s_memrealtime s[92:93]" if opt.get("aggst") == 4 else ""}
    v_mov_b32 v{one}, 1
    v_mov_b32 v{vAL}, {L_ALLOC}
    s_sub_u32 s{sT+2}, s{sTOT}, s{sCB}
    s_add_u32 s{sT+2}, s{sT+2}, 256
    """)
    for k in range(8):
        r0 = pREC + 4 * k
        Lskip = a.label("K2_NORARE")
        a(f"""
        v_add_u32 v{pT+5}, {k*256}, v0
        v_and_b32 v{pT+6}, {1<<k}, v{vPEND}
        v_cmp_gt_u32 vcc, s{sT+2}, v{pT+5}
        v_cmp_ne_u32 s[{sT}:{sT+1}], 0, v{pT+6}
        v_and_b32 v{pDL+k}, 0x1ff, v{r0}
        v_mov_b32 v{pRANK+k}, {INV}
        s_and_b64 s[{sT}:{sT+1}], vcc, s[{sT}:{sT+1}]
        v_cmp_gt_u32 vcc, {2*NKEY}, v{pDL+k}
        v_lshlrev_b32 v{pDL+k}, 2, v{pDL+k}
        v_add_u32 v{pDL+k}, {L_CNT}, v{pDL+k}
        v_mov_b32 v{pRS+k}, 0
        s_and_b64 s[{sT}:{sT+1}], vcc, s[{sT}:{sT+1}]
        v_cmp_gt_i32 vcc, 0, v{r0+3}
        v_and_b32 v{r0}, s{sMASK}, v{r0}
        {f"v_and_b32 v{r0+3}, {0xffff0000 | opt['srcmask']}, v{r0+3}" if opt.get("srcmask") else ""}
        s_and_b64 exec, vcc, s[{sT}:{sT+1}]
        s_cbranch_execz {Lskip}
        ds_add_rtn_u32 v{pT+8}, v{vAL}, v{one} offset:8
        v_bfe_u32 v{pT+7}, v{r0+3}, 16, 15
        v_lshlrev_b32 v{pT+7}, 5, v{pT+7}
        buffer_load_dwordx4 {vr(pRARE+8*k,4)}, v{pT+7}, {sr(sMISC,4)}, 0 offen sc1
        buffer_load_dwordx4 {vr(pRARE+8*k+4,4)}, v{pT+7}, {sr(sMISC,4)}, 0 offen offset:16 sc1
        v_and_b32 v{r0+3}, 0xffff, v{r0+3}
        v_mov_b32 v{pRANK+k}, {INV-1}
        s_waitcnt lgkmcnt(0)
        v_add_u32 v{pT+8}, 1, v{pT+8}
        v_cmp_le_u32 vcc, {NRS}, v{pT+8}
        v_lshl_or_b32 v{r0+3}, v{pT+8}, 16, v{r0+3}
        v_lshlrev_b32 v{pT+8}, 5, v{pT+8}
        s_andn2_b64 s[{sT}:{sT+1}], s[{sT}:{sT+1}], vcc
        s_andn2_b64 exec, exec, vcc
        v_add_u32 v{pRS+k}, {L_LUT}, v{pT+8}
{Lskip}:
        s_mov_b64 exec, s[{sT}:{sT+1}]
        ds_add_rtn_u32 v{pRANK+k}, v{pDL+k}, v{one}
        s_mov_b64 exec, -1
        """)
    Lnp1 = a.label("K2_NP1")
    a(f"s_cmp_eq_u32 s{sFIRST}, 0\ns_cbranch_scc1 {Lnp1}")
    park_issue(1, pkb[1])
    a(f"""
{Lnp1}:
    s_waitcnt lgkmcnt(0)
    s_barrier
    s_branch {Lx}
    """)
    a(f"{LA}:")
    consts()
    a(f"""
    v_mov_b32 v{pT+7}, {L_PASS}
    s_waitcnt vmcnt(0)
    s_barrier
    ds_read_b64 {vr(pT+2,2)}, v{pT+7}
    s_waitcnt lgkmcnt(0)
    v_readfirstlane_b32 s{sTOT}, v{pT+2}
    v_readfirstlane_b32 s{sTOK}, v{pT+3}
    """)
    null_fill(0)
    park_issue(0, pka[4])
    bop_loads()
    a(f"""
    s_waitcnt lgkmcnt(0)
    s_barrier
{Lx}:
    v_mov_b32 v{one}, 1
    v_mov_b32 v{vAL}, {L_ALLOC}
    """)
    stamp()
    L7 = a.label("K2_P7"); L8 = a.label("K2_P8")
    deg, rk, hh, bn = pT + 5, pT + 6, pT + 7, pT + 11
    a(f"""
    s_cmp_ge_u32 s{sW}, 5
    s_cbranch_scc1 {L7}
    v_lshlrev_b32 v{pT+8}, 2, v0
    v_add_u32 v{pT+8}, {L_CNT}, v{pT+8}
    ds_read_b32 v{deg}, v{pT+8}
    v_cmp_le_u32 vcc, {NKEY}, v0
    v_mov_b32 v{bn}, 31
    v_mov_b32 v{pT+9}, 63
    v_cndmask_b32 v{bn}, v{bn}, v{pT+9}, vcc
    s_waitcnt lgkmcnt(0)
    v_min_u32 v{deg}, {CAPN}, v{deg}
    v_sub_u32 v{bn}, v{bn}, v{deg}
    v_lshlrev_b32 v{bn}, 2, v{bn}
    v_add_u32 v{pT+8}, {L_HIST}, v{bn}
    ds_add_rtn_u32 v{rk}, v{pT+8}, v{one}
    s_waitcnt lgkmcnt(0)
{L7}:
    """)
    park_dma(pka[0], pkb[2])
    a(f"""
    s_barrier
    s_cmp_ge_u32 s{sW}, 5
    s_cbranch_scc1 {L8}
    v_and_b32 v{pT+8}, 63, v0
    v_lshlrev_b32 v{pT+8}, 2, v{pT+8}
    v_add_u32 v{pT+8}, {L_HIST}, v{pT+8}
    ds_read_b32 v{hh}, v{pT+8}
    v_subrev_u32 v{pT+8}, {NKEY}, v0
    v_min_u32 v{pT+8}, v{pT+8}, v0
    v_lshl_or_b32 v{deg}, v{deg}, 16, v{pT+8}
    s_waitcnt lgkmcnt(0)
    v_mov_b32 v{pT+9}, v{hh}
    """)
    dpp_scan(a, "v_add_u32", hh)
    a(f"""
    v_sub_u32 v{hh}, v{hh}, v{pT+9}
    ds_bpermute_b32 v{pT+9}, v{bn}, v{hh}
    s_waitcnt lgkmcnt(0)
    v_add_lshl_u32 v{pT+9}, v{pT+9}, v{rk}, 2
    v_add_u32 v{pT+9}, {L_SORT}, v{pT+9}
    ds_write_b32 v{pT+9}, v{deg}
    s_waitcnt lgkmcnt(0)
{L8}:
    """)
    park_dma(pka[1], pkb[3])
    assert L_SORT % 128 == 0 or True
    ek = pEK
    a(f"""
    s_barrier
    s_lshl_b32 s{sQ}, s{sW}, 4
    s_xor_b32 s{sT+1}, s{sQ}, 112
    v_add_u32 v{pT+6}, s{sQ}, v{vG4}
    v_add_u32 v{pT+7}, s{sT+1}, v{vG4}
    """)
    for k in range(10):
        a(f"ds_read_b32 v{ek+k}, v{pT+6+DIRS[k]} offset:{128*k}")
    a("s_waitcnt lgkmcnt(0)")
    for k in range(10):
        a(f"v_readfirstlane_b32 s{sN0+k}, v{ek+k}")
    a(f"v_mov_b32 v{vEN}, v{ek}\ns_mov_b32 s{sDIR}, {sum(d << k for k, d in enumerate(DIRS))}")
    a(f"s_mov_b64 {sr(sPC,2)}, 0\ns_mov_b32 s{sREM}, 0")
    for k in range(10):
        a(f"s_lshr_b32 s{sT}, s{sN0+k}, 16")
        a(f"s_mov_b32 s{sN0+k}, s{sREM}\ns_add_u32 s{sREM}, s{sREM}, s{sT}")
        a(f"s_lshl_b32 s{sT}, s{sT}, {5*(k%5)}\ns_or_b32 s{sPC+k//5}, s{sPC+k//5}, s{sT}")
    a(f"""
    s_add_u32 s{sREM}, s{sREM}, 1
    s_lshr_b32 s{sREM}, s{sREM}, 1
    v_mov_b32 v{pT+8}, s{sREM}
    s_mov_b64 exec, 1
    ds_add_rtn_u32 v{pT+9}, v{vAL}, v{pT+8}
    s_mov_b64 exec, -1
    """)
    for k in range(10):
        a(f"v_and_b32 v{ek+k}, 0xff, v{ek+k}")
        a(f"v_lshlrev_b32 v{ek+k}, 2, v{ek+k}")
        a(f"v_add_u32 v{ek+k}, {L_NADDR + (NKEY*4 if k >= 5 else 0)}, v{ek+k}")
    a(f"""
    v_bfe_u32 v{pT+5}, v0, 4, 2
    v_bfe_u32 v{pT+6}, v0, 1, 1
    v_bfe_u32 v{pT+7}, v0, 2, 2
    v_lshlrev_b32 v{pT+6}, 6, v{pT+6}
    v_lshl_add_u32 v{pT+6}, v{pT+7}, 4, v{pT+6}
    s_waitcnt lgkmcnt(0)
    v_readfirstlane_b32 s{sT}, v{pT+9}
    s_nop 1
    s_lshl_b32 s{sT}, s{sT}, 7
    s_add_u32 s{sT}, s{sT}, {L_STREAM}
    v_lshl_add_u32 v{vS}, v{pT+5}, 4, s{sT}
    v_add_u32 v{vA}, s{sT}, v{pT+6}
    """)
    for k in range(10):
        a(f"v_lshl_add_u32 v{pT+7+(k&1)}, s{sN0+k}, 6, v{vS}")
        a(f"ds_write_b32 v{ek+k}, v{pT+7+(k&1)}")
    park_dma(pka[2], pkb[4])
    a("s_waitcnt lgkmcnt(0)\ns_barrier")
    LsA = a.label("K2_SCA"); Lse = a.label("K2_SCE")
    a(f"s_cmp_lt_u32 s{sW}, 4\ns_cbranch_scc1 {LsA}")
    for k in range(8):
        a(f"ds_read_b32 v{pNA+k}, v{pDL+k} offset:{L_NADDR - L_CNT}")
    a(f"v_mov_b32 v{vPEND}, 0\ns_mov_b32 s{sT+2}, {INV}")
    for k in range(8):
        r0 = pREC + 4 * k
        Lnpd = a.label("K2_NOPEND")
        a(f"""
        v_cmp_gt_u32 vcc, {CAPN}, v{pRANK+k}
        v_cmp_gt_u32 s[{sT}:{sT+1}], s{sT+2}, v{pRANK+k}
        {"s_waitcnt lgkmcnt(0)" if k == 0 else ""}
        v_lshl_add_u32 v{pNA+k}, v{pRANK+k}, 6, v{pNA+k}
        s_mov_b64 exec, vcc
        ds_write_b128 v{pNA+k}, {vr(r0,4)}
        s_andn2_b64 exec, s[{sT}:{sT+1}], vcc
        s_cbranch_execz {Lnpd}
        v_or_b32 v{vPEND}, {1<<k}, v{vPEND}
        ds_write_b32 v{vAL}, v{one} offset:4
{Lnpd}:
        s_mov_b64 exec, -1
        """)
    for k in range(8):
        Lskip = a.label("K2_NORARE2")
        a(f"""
        v_cmp_ne_u32 vcc, 0, v{pRS+k}
        s_and_b64 exec, exec, vcc
        s_cbranch_execz {Lskip}
        s_waitcnt vmcnt(0) lgkmcnt(0)
        ds_write_b128 v{pRS+k}, {vr(pRARE+8*k,4)}
        ds_write_b128 v{pRS+k}, {vr(pRARE+8*k+4,4)} offset:16
{Lskip}:
        s_mov_b64 exec, -1
        """)
    Lnag2 = a.label("K2_NOAGG2")
    a(f"""
    s_branch {Lse}
{LsA}:
    s_cmp_eq_u32 s{sFIRST}, 0
    s_cbranch_scc1 {Lse}
    s_cmp_lg_u32 s{sW}, 3
    s_cbranch_scc1 {Lse}
    s_cmp_lg_u32 s2, {WG_AGG}
    s_cbranch_scc1 {Lnag2}
    """)
    wait_arrivals(WG_GEMM0, 256, opt.get("sl3", 1))
    if opt.get("aggst") in (6, 8): a("s_memrealtime s[92:93]")
    a(f"""
    s_mov_b32 s{sT}, {M_GO}
    v_lshlrev_b32 v{pT+1}, 2, v{pT+1}
    v_mov_b32 v{pT+3}, s{sTOK}
    s_mov_b32 exec_hi, 0
    buffer_store_dword v{pT+3}, v{pT+1}, {sr(sMISC,4)}, s{sT} offen sc1
    s_mov_b64 exec, -1
{Lnag2}:
    """)
    pre = opt.get("prepoll", 1)
    if pre: park_issue(0, pka[3]); plist[0] = [(7, 0), (7, 1)][-pka[3]:] if pka[3] else []
    a(f"""
    s_mov_b32 s{sT}, {M_GO}
    v_mov_b32 v{pT+1}, 0
    s_mov_b64 exec, 1
    """)
    def body():
        a(f"""
        buffer_load_dword v{pT+2}, v{pT+1}, {sr(sMISC,4)}, s{sT} offen sc1
        s_waitcnt vmcnt(0)
        v_readfirstlane_b32 s{sT+1}, v{pT+2}
        s_nop 1
        s_cmp_eq_u32 s{sT+1}, s{sTOK}
        """)
    spin(body, opt.get("sl2", 2))
    Lsf = a.label("K2_SCF")
    a(f"""
    s_mov_b64 exec, -1
    {"buffer_inv sc1" if opt.get("inv", 0) else ""}
    s_waitcnt vmcnt(0)
    {f"s_branch {Lsf}" if pre else ""}
{Lse}:
    """)
    park_dma(pka[3], pkb[5])
    nob7 = opt.get("nob7", 1)
    a(f"{Lsf}:\ns_waitcnt {'vmcnt(0) ' if nob7 else ''}lgkmcnt(0)\ns_barrier")
    stamp()
    a(f"ds_read_b32 v{vT}, v{vAL} offset:4")
    for b in range(DP):
        a(f"ds_read2_b32 {vr(vD+2*b,2)}, v{vS} offset0:{32*b+3} offset1:{32*b+19}")
    a(f"ds_read_u16 v{vLI}, v{vA} offset:14")
    a("s_waitcnt lgkmcnt(0)")
    a(f"v_readfirstlane_b32 s{sMORE}, v{vT}")
    for b in range(DP):
        issue(b, vD + 2 * b)
    a(f"""
    s_add_u32 s{sT}, s{sCB}, {CHUNK}
    s_cmp_lt_u32 s{sT}, s{sTOT}
    s_cselect_b32 s{sT}, 2, 0
    s_or_b32 s{sMORE}, s{sMORE}, s{sT}
    s_mov_b32 s{sSLOT}, 10
    s_mov_b64 vcc, {-1 if opt.get("novmem") else 0}
    v_mad_u32_u16 v{vAD}, v{vLI}, v{vML}, v{vCL}
    {"" if nob7 else f"s_waitcnt vmcnt({8*DP})"}
    {"" if nob7 else "s_barrier"}
    ds_read_b128 {vr(vAOP,4)}, v{vAD}
    ds_read2_b32 {vr(vPK,2)}, v{vS} offset0:{32*DP+3} offset1:{32*DP+19}
    ds_read_u16 v{vLI}, v{vA} offset:{128+14}
    ds_read_b128 {vr(vRH,4)}, v{vS}
    ds_read_b128 {vr(vRH+4,4)}, v{vS} offset:64
    """)
    if stamps:
        stamp(); a("s_memtime s[80:81]\ns_waitcnt lgkmcnt(0)")
    Lph = [a.label(f"K2_PH{p}") for p in range(NRG)]
    Lsk = [a.label(f"K2_SK{p}") for p in range(NRG)]
    Lbk = [a.label(f"K2_BK{p}") for p in range(NRG)]
    Ltr = [[a.label(f"K2_EP{p}{st}") for st in range(2)] for p in range(NRG)]
    Lz = [[a.label(f"K2_EZ{p}{st}") for st in range(2)] for p in range(NRG)]
    Lrt = [[a.label(f"K2_RT{p}{st}") for st in range(2)] for p in range(NRG)]
    Lrt[NRG - 1][1] = Lph[0]
    Ldone = a.label("K2_DONE")
    sOM = 78; sPR = 79; sLO = sDBG; sLR = 84; sLW = 85; sRET = 6
    Llr = a.label("K2_LOREAD"); Llw = a.label("K2_LOWRITE")
    a(f"""
    s_cmp_eq_u32 s{sMORE}, 0
    s_cselect_b32 s{sOM}, 0x3e, 0
    s_lshr_b32 s{sPR}, s{sW}, 2
    s_cmp_eq_u32 s{sFIRST}, 0
    s_cselect_b32 s{sLR}, 1, 0
    s_or_b32 s{sLW}, s{sLR}, s{sMORE}
    s_mul_i32 s{sT}, s2, {NKEY*512}
    """)
    srd(sLO, 24, sT, WS_LO, NKEY * 512)
    def lo_call(flag, target):
        Lq = a.label("K2_LQ")
        a(f"s_cmp_eq_u32 s{flag}, 0\ns_cbranch_scc1 {Lq}\ns_call_b64 {sr(sRET,2)}, {target}\n{Lq}:")
    fetch_next()
    a("s_waitcnt lgkmcnt(0)")
    acc_init()
    lo_call(sLR, Llr)
    fetch_next()
    a(f"""
    s_and_b32 s{sCNT}, s{sPC}, 31
    s_cbranch_scc0 {Lz[NRG-1][1]}
    s_sub_u32 s{sCNT}, s{sCNT}, 1
    """)
    for p in range(NRG):
        a(f"{Lph[p]}:")
        a(f"s_waitcnt vmcnt({8*(DP-1)}) lgkmcnt(2)\n{Lph[p]}_W:")
        sh = []
        for st in range(2):
            for hf in range(2):
                rg = ring(p, st, hf); e = vX + 4 * (2 * st + hf)
                sh += [f"v_lshlrev_b64 {vr(e,2)}, 16, {vr(rg,2)}", f"v_lshlrev_b64 {vr(e+2,2)}, 16, {vr(rg+2,2)}", f"v_lshlrev_b32 v{rg+4}, 16, v{rg+5}"]
        for o in range(6):
            if not opt.get("nomfma"):
                a(f"v_mfma_f32_16x16x32_bf16 {vr(vD+4*o,4)}, {vr(vAOP,4)}, {vr(vB+4*o,4)}, 0")
            if not opt.get("novalu"):
                a(sh[2 * o]); a(sh[2 * o + 1])
        il = opt.get("il", 0)
        a(f"s_sub_u32 s{sREM}, s{sREM}, 1\ns_cmp_lt_u32 s{sREM}, {DP}\ns_cbranch_scc1 {Lsk[p]}")
        if il:
            for st in range(2):
                a(f"v_mad_u32_u16 v{vAD+2*st}, v{vPK+st}, s{sROWB}, v{vC1}")
                a(f"v_mad_u32_u16 v{vAD+2*st+1}, v{vPK+st}, s{sROWB}, v{vC2}")
        else:
            issue((p + DP) % NRG, vPK)
        a(f"{Lbk[p]}:")
        assert (p + DP + 1) * 32 + 19 < 256
        a(f"""
        v_mad_u32_u16 v{vT}, v{vLI}, v{vML}, v{vCL}
        ds_read_b128 {vr(vAOP,4)}, v{vT}
        ds_read2_b32 {vr(vPK,2)}, v{vS} offset0:{(p+DP+1)*32+3} offset1:{(p+DP+1)*32+19}
        ds_read_u16 v{vLI}, v{vA} offset:{(p+2)*128+14}
        s_waitcnt lgkmcnt(3)
        """)
        for st in range(2):
            L = []
            for hf in range(2):
                HXY, HZS, LXY, LZS, BZ = ACC(hf)
                rg = ring(p, st, hf); rh = vRH + 4 * st; e = vX + 4 * (2 * st + hf); t = vT + 2 * hf
                d1, d2, d3 = vD + 12 * hf + 2 * st, vD + 12 * hf + 4 + 2 * st, vD + 12 * hf + 8 + 2 * st
                L.append(f"""v_pk_fma_f32 {vr(HXY,2)}, {vr(d1,2)}, {vr(rg,2)}, {vr(HXY,2)} op_sel_hi:[0,1,1]
                v_pk_mul_f32 {vr(t,2)}, {vr(d3,2)}, {vr(rg+4,2)}
                v_pk_fma_f32 {vr(HZS,2)}, {vr(d1,2)}, {vr(rg+2,2)}, {vr(HZS,2)}
                v_pk_fma_f32 {vr(LXY,2)}, {vr(d2,2)}, {vr(e,2)}, {vr(LXY,2)} op_sel_hi:[0,1,1]
                v_pk_fma_f32 {vr(LZS,2)}, {vr(d2,2)}, {vr(e+2,2)}, {vr(LZS,2)}
                v_pk_fma_f32 {vr(BZ,2)}, {vr(t,2)}, {vr(rh+2,2)}, {vr(BZ,2)} op_sel_hi:[1,0,1]
                v_pk_fma_f32 {vr(HXY,2)}, {vr(t,2)}, {vr(rh,2)}, {vr(HXY,2)} op_sel:[1,0,0]
                v_pk_fma_f32 {vr(LXY,2)}, {vr(t,2)}, {vr(rh,2)}, {vr(LXY,2)} op_sel_hi:[0,1,1]""".split("\n"))
            bs = (p + DP) % NRG
            X4 = lambda hf: f"buffer_load_dwordx4 {vr(ring(bs,st,hf),4)}, v{vAD+2*st}, {sr(sTB,4)}, 0 offen offset:{256*hf}"
            X1 = lambda hf: f"buffer_load_dword v{ring(bs,st,hf)+5}, v{vAD+2*st+1}, {sr(sTB,4)}, 0 offen offset:{512+64*hf}"
            groups = {1: {0: [X4(0)], 3: [X4(1)], 6: [X1(0), X1(1)]}, 2: {0: [X4(0), X1(0)], 4: [X4(1), X1(1)]}, 3: {0: [X4(0), X4(1), X1(0), X1(1)]},
                      4: {0: [X4(0)], 2: [X4(1)], 4: [X1(0)], 6: [X1(1)]}}.get(il, {})
            for k, (l0, l1) in enumerate(zip(*L)):
                if k in groups:
                    Lg = a.label("K2_G")
                    a(f"s_cbranch_vccnz {Lg}")
                    for x in groups[k]: a(x)
                    a(f"{Lg}:")
                if not opt.get("novalu"):
                    a(l0); a(l1)
            a(f"ds_read_b128 {vr(vRH+4*st,4)}, v{vS} offset:{(p+1)*128+64*st}")
            if st == 1 and p == NRG - 1:
                a(f"v_add_u32 v{vS}, {128*NRG}, v{vS}\nv_add_u32 v{vA}, {128*NRG}, v{vA}")
            a(f"s_sub_u32 s{sCNT}, s{sCNT}, 1")
            if st == 1 and p == NRG - 1:
                a(f"s_cbranch_scc0 {Lph[0]}")
            else:
                a(f"s_cbranch_scc1 {Ltr[p][st]}\n{Lrt[p][st]}:")
    order = [(NRG - 1, 1)] + [(p, st) for p in range(NRG) for st in range(2) if (p, st) != (NRG - 1, 1)]
    for (p, st) in order:
        Lpw = a.label("K2_PW"); Lnx = a.label("K2_NX"); Ltb = a.label("K2_TB"); Lin = a.label("K2_IN"); Lp0 = a.label("K2_P0"); Lwc = a.label("K2_WC"); Lwb = a.label("K2_WB")
        a(f"{Ltr[p][st]}:")
        for hf in range(2):
            HXY, HZS, LXY, LZS, BZ = ACC(hf)
            R = lambda c: vE + 2 * c + hf
            a(f"""
            v_add_f32 v{LZS}, v{LZS}, v{BZ}
            v_add_f32 v{HZS}, v{HZS}, v{BZ+1}
            v_cvt_pk_bf16_f32 v{R(0)}, v{LZS+1}, v{HZS+1}
            v_cvt_pk_bf16_f32 v{R(1)}, v{LXY}, v{HXY}
            v_cvt_pk_bf16_f32 v{R(2)}, v{LXY+1}, v{HXY+1}
            v_cvt_pk_bf16_f32 v{R(3)}, v{LZS}, v{HZS}
            """)
        a(f"""
        s_waitcnt lgkmcnt(1)
        s_bitcmp1_b32 s{sOM}, s{sSLOT}
        s_cbranch_scc0 {Lpw}
        v_lshl_add_u32 v{vO}, v{vPA}, 8, v{vCO}
        """)
        for c in range(4):
            for hf in range(2):
                a(f"buffer_store_dword v{vE+2*c+hf}, v{vO}, {sr(sOUT,4)}, 0 offen offset:{512*c+64*hf} {st_fl}")
        a(f"""
{Lnx}:
        s_lshr_b32 s{sPC}, s{sPC}, 5
        s_sub_u32 s{sSLOT}, s{sSLOT}, 1
        s_cmp_eq_u32 s{sSLOT}, 0
        s_cbranch_scc1 {Ldone}
{Lin}:
        """)
        if opt.get("prio", 2):
            a(f"s_xor_b32 s{sPR}, s{sPR}, 1\ns_setprio 0\ns_cbranch_scc0 {Lp0}\ns_setprio 1\n{Lp0}:")
        acc_init()
        Lrc = a.label("K2_RC"); Lrb = a.label("K2_RB")
        a(f"s_cmp_lg_u32 s{sLR}, 0\ns_cbranch_scc1 {Lrc}\n{Lrb}:")
        fetch_next()
        a(f"""
        s_and_b32 s{sCNT}, s{sPC}, 31
        s_cbranch_scc0 {Lz[p][st]}
        s_sub_u32 s{sCNT}, s{sCNT}, 1
        {f"s_waitcnt vmcnt({8*(DP-1)})" if st == 1 else ""}
        s_branch {Lrt[p][st] if st == 0 else Lph[(p+1)%NRG] + "_W"}
{Lz[p][st]}:
        s_waitcnt lgkmcnt(0)
        s_branch {Ltr[p][st]}
{Lrc}:
        s_call_b64 {sr(sRET,2)}, {Llr}
        s_branch {Lrb}
{Lwc}:
        s_call_b64 {sr(sRET,2)}, {Llw}
        s_branch {Lwb}
{Lpw}:
        """)
        for c in range(4):
            a(f"ds_write2_b32 v{vPA}, v{vE+2*c}, v{vE+2*c+1} offset0:{32*c} offset1:{32*c+16}")
        a(f"""
        s_cmp_lg_u32 s{sLW}, 0
        s_cbranch_scc1 {Lwc}
{Lwb}:
        s_cmp_lg_u32 s{sSLOT}, 6
        s_cbranch_scc1 {Lnx}
        s_mov_b32 s{sLR}, s{sLW}
        s_mov_b32 s{sSLOT}, 5
        s_mov_b32 s{sPC}, s{sPC+1}
        s_waitcnt lgkmcnt(0)
        s_barrier
        """)
        r_reads()
        a(f"s_waitcnt lgkmcnt(0)\ns_branch {Lin}")
    for p in range(NRG):
        a(f"{Lsk[p]}:\ns_mov_b64 vcc, -1\ns_waitcnt vmcnt(0)\ns_branch {Lbk[p]}")
    def lohi(c, hf):
        HXY, HZS, LXY, LZS, BZ = ACC(hf)
        return [LZS + 1, LXY, LXY + 1, LZS][c], [HZS + 1, HXY, HXY + 1, HZS][c]
    a(f"{Llw}:")
    for c in range(4):
        for hf in range(2):
            lo, hi = lohi(c, hf); e = vE + 2 * c + hf
            a(f"""
            v_lshlrev_b32 v{vT}, 16, v{e}
            v_and_b32 v{vT+1}, s{sMASK}, v{e}
            v_sub_f32 v{lo}, v{lo}, v{vT}
            v_sub_f32 v{hi}, v{hi}, v{vT+1}
            v_cvt_pk_bf16_f32 v{lo}, v{lo}, v{hi}
            buffer_store_dword v{lo}, v{vPA}, {sr(sLO,4)}, 0 offen offset:{128*c + 64*hf}
            """)
    a(f"s_waitcnt vmcnt(0)\ns_setpc_b64 {sr(sRET,2)}")
    a(f"{Llr}:")
    for c in range(4):
        for hf in range(2):
            a(f"buffer_load_dword v{vE+2*c+hf}, v{vPA}, {sr(sLO,4)}, 0 offen offset:{128*c + 64*hf} sc1")
    a("s_waitcnt vmcnt(0)")
    for c in range(4):
        for hf in range(2):
            lo, hi = lohi(c, hf); e = vE + 2 * c + hf
            a(f"""
            v_lshlrev_b32 v{vT}, 16, v{e}
            v_and_b32 v{vT+1}, s{sMASK}, v{e}
            v_add_f32 v{lo}, v{lo}, v{vT}
            v_add_f32 v{hi}, v{hi}, v{vT+1}
            """)
    a(f"s_setpc_b64 {sr(sRET,2)}")
    Lfin = a.label("K2_FIN"); Lnext = a.label("K2_NEXT"); LrB = a.label("K2_RB")
    a(f"""
{Ldone}:
    s_cmp_eq_u32 s{sMORE}, 0
    s_cbranch_scc1 {Lfin}
    s_bitcmp1_b32 s{sMORE}, 0
    s_cbranch_scc1 {Lnext}
    s_add_u32 s{sCB}, s{sCB}, {CHUNK}
    v_mov_b32 v{vPEND}, 0xff
{Lnext}:
    s_mov_b32 s{sFIRST}, 0
    s_waitcnt vmcnt(0) lgkmcnt(0)
    s_barrier
    s_cmp_ge_u32 s{sW}, 4
    s_cbranch_scc1 {LrB}
    s_barrier
    s_barrier
    s_branch {Lx}
{LrB}:
    """)
    rec_loads()
    null_fill()
    zero_counters(a, pT + 1, pT + 2)
    a(f"""
    s_waitcnt vmcnt(0) lgkmcnt(0)
    s_barrier
    s_branch {Lrank}
{Lfin}:
    """)
    if stamps:
        stamp()
        a("s_memtime s[82:83]")
        a("s_waitcnt vmcnt(0)")
        stamp()
        a("s_waitcnt lgkmcnt(0)\ns_sub_u32 s80, s82, s80\ns_mov_b32 s81, 0")
        STR.append(80); nst[0] += 1
        a(f"""
        s_waitcnt lgkmcnt(0)
        s_add_u32 s{sLIST}, s24, {WS_DIAG + (1<<20)}
        s_addc_u32 s{sLIST+1}, s25, 0
        s_mov_b32 s{sLIST+2}, 0x100000
        s_lshl_b32 s{sT}, s2, 3
        s_add_u32 s{sT}, s{sT}, s{sW}
        s_lshl_b32 s{sT}, s{sT}, 7
        v_mov_b32 v1, s{sT}
        s_mov_b64 exec, 1
        """)
        for i in range(nst[0]):
            a(f"v_mov_b32 v2, s{STR[i]}\nv_mov_b32 v3, s{STR[i]+1}")
            a(f"buffer_store_dwordx2 v[2:3], v1, {sr(sLIST,4)}, 0 offen offset:{8*i}")
    a(f"{Lend}:\ns_endpgm")
    return nv, 102
```

```python
N = 10000
E = 160000
NSL = 4
NR = 64
NKEY = 160
HALF = 5000
NP = 40
EPW = E // NP
ROWB = 640
TAB_SL = N * ROWB
WS_TAB = 0
WS_LUT = WS_TAB + NSL * TAB_SL
LUT_ROWS = 2080
LUT_BYTES = LUT_ROWS * 32
M_LUT = 0
M_END = 67584
M_BOP = M_END + 16384
M_ARR = M_BOP + 24576
import os
ARRS = int(os.environ.get('ARRS', 64))
M_TOT = M_ARR + 256 * 128
M_GO = M_TOT + 512
M_EPO = M_GO + 128
MISC_BYTES = M_EPO + 128
WS_LIST = 26 * 1024 * 1024
import os
PADG = int(os.environ.get('PADG', 4))
LCAP = E + 512
LIST_STRIDE = LCAP * 16
WS_LO = WS_LIST + NR * LIST_STRIDE
WS_DIAG = 230 * 1024 * 1024
assert WS_LO + 256 * NKEY * 512 <= WS_DIAG and WS_LO % 128 == 0
DBASE = 0x3880
DCUT = 0x409D
LUT_THR = 1568
NRS = 512
CAPN = 30
NGEMM = 210
WG_GEMM0 = 46
SPIN_MAX = 1 << 17
WG_AGG = 45
VTOK = 12
WSY = 4
VPARK = 176
```

```python
from asmlib import *
from layout import *

CHUNK = 2048
SCAP = CHUNK // 4 + 2 * CAPN + 8 + 12
L_PARK = 0
L_STREAM = NKEY * 512
STREAM_BYTES = SCAP * 64
L_LUT = L_STREAM + STREAM_BYTES
L_CNT = 155648
assert L_CNT >= L_LUT + (NRS + 512) * 32
L_HIST = L_CNT + 1280
L_ALLOC = L_HIST + 256
L_SORT = L_ALLOC + 64
L_NADDR = L_SORT + 1280 + 256
L_PASS = L_NADDR + 1280
K2_LDS = L_PASS + 64
assert K2_LDS <= 163840 and L_CNT >= 139264
DIRS = [0, 1, 0, 1, 1] * 2

def dpp_scan(a, op, v):
    for m in ["row_shr:1", "row_shr:2", "row_shr:4", "row_shr:8"]:
        a("s_nop 1")
        a(f"{op}_dpp v{v}, v{v}, v{v} {m} row_mask:0xf bank_mask:0xf bound_ctrl:0")
    a("s_nop 1")
    a(f"{op}_dpp v{v}, v{v}, v{v} row_bcast:15 row_mask:0xa bank_mask:0xf")
    a("s_nop 1")
    a(f"{op}_dpp v{v}, v{v}, v{v} row_bcast:31 row_mask:0xc bank_mask:0xf")

def zero_counters(a, t0, t1):
    a(f"""
    v_lshlrev_b32 v{t0}, 3, v0
    v_add_u32 v{t0}, {L_CNT - 2048}, v{t0}
    v_mov_b32 v{t1}, 0
    v_cmp_gt_u32 vcc, 456, v0
    s_and_b64 exec, exec, vcc
    ds_write2_b32 v{t0}, v{t1}, v{t1} offset0:0 offset1:1
    s_mov_b64 exec, -1
    """)

def sync_loads(a, sdbg, smisc, st, vz, tok=True, gran=True):
    a(f"""
    s_lshr_b32 s{st}, s2, 3
    s_lshl_b32 s{st}, s{st}, 4
    s_and_b32 s{st+1}, s2, 1
    s_lshl_b32 s{st+1}, s{st+1}, 3
    s_add_u32 s{st}, s{st}, s{st+1}
    s_add_u32 s{st}, s{st}, {M_TOT}
    v_mov_b32 v{vz}, 0
    s_mov_b64 exec, 1
    {f"buffer_load_dwordx2 v[{VTOK}:{VTOK+1}], v{vz}, {sr(sdbg,4)}, 0 offen sc1" if tok else ""}
    {f"buffer_load_dwordx2 v[{VTOK+2}:{VTOK+3}], v{vz}, {sr(smisc,4)}, s{st} offen sc1" if gran else ""}
    s_mov_b64 exec, -1
    """)

def gen_k2(a, opt, Lend):
    stamps = opt.get("stamps", False)
    st_fl = opt.get("st_flags", "nt")
    NRG = opt.get("ring", 3); DP = NRG - 1
    V = Regs("v", 1, 256)
    vB = V.alloc("B", 24, 2)
    vC1 = V.alloc("c1"); vC2 = V.alloc("c2"); vML = V.alloc("ml"); vCL = V.alloc("cl")
    vS = V.alloc("vS"); vA = V.alloc("vA"); vPEND = V.alloc("pend"); vG4 = V.alloc("g4"); vCO = V.alloc("co")
    vEN = V.alloc("en"); vPA = V.alloc("pa"); vO = V.alloc("O"); vPN = V.alloc("pn"); vPD = V.alloc("pd")
    vACC = V.alloc("acc", 20, 2)
    vD = V.alloc("D", 24, 2)
    vRH = V.alloc("RH", 8, 2)
    vAOP = V.alloc("A", 4, 2)
    vE = V.alloc("E", 8, 2)
    vX = V.alloc("X", 16, 2)
    vR = V.alloc("R", 8, 2)
    vT = V.alloc("T", 4, 2)
    vPK = V.alloc("PK", 2, 2)
    vLI = V.alloc("LI")
    vAD = V.alloc("ad", 4)
    vRING = V.alloc("ring", 24 * NRG, 2)
    P = Regs("v", vACC, 256)
    pT = P.alloc("t", 12, 2)
    pREC = P.alloc("rec", 32, 2)
    pRANK = P.alloc("rank", 8)
    pDL = P.alloc("dl", 8)
    pEK = P.alloc("ek", 10)
    pRS = P.alloc("rs", 8)
    pNA = P.alloc("na", 8)
    pLT = P.alloc("lt", 16, 2)
    pRARE = P.alloc("rare", 64, 2)
    assert pRARE >= vRING
    nv = max(V.hi, P.hi)
    def ACC(hf): b = vACC + 10 * hf; return b, b + 2, b + 4, b + 6, b + 8

    sTB, sSV, sOUT, sLIST, sMISC, sDBG = 28, 32, 36, 40, 44, 48
    sM, sRG, sW, sCB, sTOT = 52, 53, 3, 54, 26
    sREM = 55; sPC = 56; sQ = 58; sDIR = 59; sMORE = 60; sPM = 61
    sCNT, sSLOT, sROWB, sMASK, sPS, sSPIN = 62, 63, 64, 65, 66, 67
    sN0 = 8
    sT = 68
    sFIRST = 76; sL = 77
    STR = [92, 94, 96, 98, 100, 18]
    nst = [0]
    def stamp():
        if stamps:
            a(f"s_memrealtime {sr(STR[nst[0]], 2)}")
            nst[0] += 1
    def srd(d, lo, off_sreg, off_imm, size):
        hi = lo + 1
        if off_sreg is None and off_imm == 0:
            a(f"s_mov_b32 s{d}, s{lo}\ns_mov_b32 s{d+1}, s{hi}")
        else:
            if off_sreg is not None:
                if off_imm:
                    a(f"s_add_u32 s{off_sreg}, s{off_sreg}, {off_imm}")
                a(f"s_add_u32 s{d}, s{lo}, s{off_sreg}")
            else:
                a(f"s_add_u32 s{d}, s{lo}, {off_imm}")
            a(f"s_addc_u32 s{d+1}, s{hi}, 0")
        a(f"s_mov_b32 s{d+2}, {size}\ns_mov_b32 s{d+3}, 0x20000")
    def ring(bslot, st, hf): return vRING + ((bslot * 2 + st) * 2 + hf) * 6
    def issue(bslot, pk0):
        for st in range(2):
            a(f"v_mad_u32_u16 v{vAD+2*st}, v{pk0+st}, s{sROWB}, v{vC1}")
            a(f"v_mad_u32_u16 v{vAD+2*st+1}, v{pk0+st}, s{sROWB}, v{vC2}")
        for st in range(2):
            for hf in range(2):
                a(f"buffer_load_dwordx4 {vr(ring(bslot,st,hf),4)}, v{vAD+2*st}, {sr(sTB,4)}, 0 offen offset:{256*hf}")
            for hf in range(2):
                a(f"buffer_load_dword v{ring(bslot,st,hf)+5}, v{vAD+2*st+1}, {sr(sTB,4)}, 0 offen offset:{512+64*hf}")
    plist = {0: [(i, h) for i in (4, 5, 6, 7) for h in (0, 1)], 1: [(i, h) for i in (0, 1, 2, 3, 8, 9) for h in (0, 1)]}
    def park_issue(cls, n):
        for _ in range(n):
            i, h = plist[cls].pop(0)
            a(f"""
            s_add_u32 m0, s{sPM}, {i*8192 + h*4096}
            s_add_u32 s{sT+7}, s{sPS}, {(i*16 + h*8)*64*2048}
            buffer_load_dwordx4 v{vPD}, {sr(sSV,4)}, s{sT+7} offen lds
            """)
    def park_dma(na, nb):
        if not (na or nb): return
        Ls = a.label("K2_NOPARK"); Lb = a.label("K2_PARKB")
        a(f"s_cmp_eq_u32 s{sFIRST}, 0\ns_cbranch_scc1 {Ls}\ns_cmp_ge_u32 s{sW}, 4\ns_cbranch_scc1 {Lb}")
        park_issue(0, na)
        a(f"s_branch {Ls}\n{Lb}:")
        park_issue(1, nb)
        a(f"{Ls}:")
    def r_reads():
        for c in range(4):
            a(f"ds_read2_b32 {vr(vR+2*c,2)}, v{vPN} offset0:{32*c} offset1:{32*c+16}")
    def fetch_next():
        a(f"""
        v_and_b32 v{vEN}, 0xff, v{vEN}
        s_add_u32 s{sQ}, s{sQ}, 128
        s_lshr_b32 s{sDIR}, s{sDIR}, 1
        v_lshl_add_u32 v{vPN}, v{vEN}, 9, v{vC2}
        s_bitcmp1_b32 s{sDIR}, 0
        s_cselect_b32 s{sT}, 112, 0
        s_xor_b32 s{sT}, s{sT}, s{sQ}
        v_add_u32 v{vEN}, s{sT}, v{vG4}
        """)
        r_reads()
        a(f"ds_read_b32 v{vEN}, v{vEN}")
    def acc_init():
        for hf in range(2):
            HXY, HZS, LXY, LZS, BZ = ACC(hf)
            R = lambda c: vR + 2 * c + hf
            a(f"""
            v_and_b32 v{HXY}, s{sMASK}, v{R(1)}
            v_and_b32 v{HXY+1}, s{sMASK}, v{R(2)}
            v_and_b32 v{HZS}, s{sMASK}, v{R(3)}
            v_and_b32 v{HZS+1}, s{sMASK}, v{R(0)}
            v_lshlrev_b32 v{LXY}, 16, v{R(1)}
            v_lshlrev_b32 v{LXY+1}, 16, v{R(2)}
            v_lshlrev_b32 v{LZS}, 16, v{R(3)}
            v_lshlrev_b32 v{LZS+1}, 16, v{R(0)}
            v_mov_b64 {vr(BZ,2)}, 0
            """)
        a(f"v_mov_b32 v{vPA}, v{vPN}")

    Lrank = a.label("K2_RANK"); Lx = a.label("K2_X")
    stamp()
    t16, l16 = pT + 5, pT + 6
    sTOK = 27
    INV = 0x10000
    a(f"""
    s_bfe_u32 s{sM}, s2, 0x20001
    s_and_b32 s{sL}, s{sW}, 3
    s_mov_b32 s{sFIRST}, 1
    """)
    srd(sDBG, 22, None, 0, 256)
    srd(sMISC, 24, None, WS_LUT, MISC_BYTES)
    srd(sSV, 4, None, 0, 0 if opt.get("nores") else N * 2048)
    def spin(body, sleep):
        L0 = a.label("K2_SPIN"); L1 = a.label("K2_SPINOK")
        a(f"s_mov_b32 s{sSPIN}, {SPIN_MAX}\n{L0}:")
        body()
        a(f"""
        s_cbranch_scc1 {L1}
        s_sub_u32 s{sSPIN}, s{sSPIN}, 1
        s_cbranch_scc1 {L1}
        s_sleep {sleep}
        s_branch {L0}
{L1}:
        """)
    def arrive():
        a(f"""
        s_mul_i32 s{sT}, s2, {ARRS}
        s_add_u32 s{sT}, s{sT}, {M_ARR}
        v_mbcnt_lo_u32_b32 v{pT+1}, -1, 0
        v_mov_b32 v{pT+3}, s{sTOK}
        v_lshlrev_b32 v{pT+1}, 2, v{pT+1}
        s_mov_b64 exec, {"0xffff" if ARRS == 64 else "0x7fffffff" if False else "0xffff"}
        {"s_mov_b32 exec_lo, -1" if ARRS == 128 else ""}
        buffer_store_dword v{pT+3}, v{pT+1}, {sr(sMISC,4)}, s{sT} offen sc1
        s_mov_b64 exec, -1
        """)
    def wait_arrivals(lo, hi, sleep):
        n = (hi - lo + 63) // 64
        a(f"v_and_b32 v{pT+1}, 63, v0")
        for i in range(n):
            a(f"v_add_u32 v{pEK+i}, {lo + 64*i}, v{pT+1}\nv_min_u32 v{pEK+i}, {hi-1}, v{pEK+i}\nv_mul_u32_u24 v{pEK+i}, {ARRS}, v{pEK+i}")
        a(f"s_mov_b32 s{sT}, {M_ARR}")
        sP = 84
        for i in range(n): a(f"s_mov_b64 {sr(sP+2*i,2)}, -1")
        def body():
            for i in range(n):
                Lq = a.label("K2_PQ")
                a(f"s_mov_b64 exec, {sr(sP+2*i,2)}\ns_cbranch_execz {Lq}")
                a(f"buffer_load_dword v{pEK+4+i}, v{pEK+i}, {sr(sMISC,4)}, s{sT} offen sc1\n{Lq}:")
            a("s_mov_b64 exec, -1\ns_waitcnt vmcnt(0)")
            for i in range(n):
                a(f"v_cmp_ne_u32 {sr(sP+2*i,2)}, s{sTOK}, v{pEK+4+i}")
            a(f"s_mov_b64 vcc, {sr(sP,2)}")
            for i in range(1, n):
                a(f"s_or_b64 vcc, vcc, {sr(sP+2*i,2)}")
            a("s_cmp_eq_u64 vcc, 0")
        spin(body, sleep)
    def consts():
        a(f"""
        v_and_b32 v{pT+1}, 63, v0
        v_lshlrev_b32 v{l16}, 4, v{pT+1}
        v_bfe_u32 v{pT+2}, v0, 5, 3
        v_bfe_u32 v{pT+3}, v0, 3, 2
        v_and_b32 v{vPD}, 7, v0
        v_lshlrev_b32 v{vPD}, 4, v{vPD}
        v_lshl_add_u32 v{vPD}, v{pT+3}, 9, v{vPD}
        v_lshl_add_u32 v{vPD}, v{pT+2}, 17, v{vPD}
        s_lshl_b32 s{sPM}, s{sL}, 10
        s_movk_i32 s{sROWB}, {ROWB}
        s_mov_b32 s{sMASK}, 0xffff0000
        s_mov_b32 s{sCB}, 0
        v_mov_b32 v{vPEND}, 0xff
        v_and_b32 v{vC1}, 7, v0
        v_bfe_u32 v{vC2}, v0, 3, 1
        v_lshlrev_b32 v{vC1}, 5, v{vC1}
        v_lshl_add_u32 v{vC1}, v{vC2}, 4, v{vC1}
        v_and_b32 v{vC2}, 15, v0
        v_lshlrev_b32 v{vC2}, 2, v{vC2}
        v_mul_u32_u24 v{vCO}, 255, v{vC2}
        v_bfe_u32 v{vG4}, v0, 4, 2
        v_lshlrev_b32 v{vG4}, 2, v{vG4}
        v_add_u32 v{vG4}, {L_SORT}, v{vG4}
        v_bfe_u32 v{pT+1}, v0, 5, 1
        v_and_b32 v{pT+2}, 1, v0
        v_cmp_eq_u32 vcc, v{pT+1}, v{pT+2}
        v_and_b32 v{pT+3}, 16, v0
        v_mov_b32 v{pT+4}, 32
        v_cndmask_b32 v{vML}, 0, v{pT+4}, vcc
        s_mul_i32 s{sT+5}, s{sM}, {TAB_SL}
        v_cndmask_b32 v{vCL}, 0, v{pT+3}, vcc
        v_add_u32 v{vCL}, {L_LUT}, v{vCL}
        """)
        srd(sTB, 24, sT + 5, WS_TAB, 0 if opt.get("notab") else TAB_SL)
        srd(sOUT, 20, None, 0, 0 if opt.get("nost") else N * 2048)
    def unpack_word():
        a(f"""
        s_bfe_u32 s{sRG}, s{sTOT}, 0x60014
        s_and_b32 s{sTOT}, s{sTOT}, 0x3ffff
        s_min_u32 s{sTOT}, s{sTOT}, {LCAP}
        s_lshl_b32 s{sPS}, s{sRG}, 11
        s_lshl_b32 s{sT+5}, s{sM}, 7
        s_add_u32 s{sPS}, s{sPS}, s{sT+5}
        """)
    def bop_loads():
        a(f"s_mul_i32 s{sT+6}, s{sM}, 6144\ns_add_u32 s{sT+6}, s{sT+6}, {M_BOP}\ns_add_u32 s{sT+7}, s{sT+6}, 3072")
        for o in range(6):
            a(f"buffer_load_dwordx4 {vr(vB+4*o,4)}, v{l16}, {sr(sMISC,4)}, s{sT+6+o//3} offen offset:{1024*(o%3)} {opt.get('bopfl', 'sc1')}")
    def rec_loads():
        a(f"v_add_u32 v{t16}, s{sCB}, v0\nv_subrev_u32 v{t16}, 256, v{t16}\nv_lshlrev_b32 v{t16}, 4, v{t16}")
        for k in range(8):
            a(f"s_movk_i32 s{sT+2}, {k*4096}")
            a(f"buffer_load_dwordx4 {vr(pREC+4*k,4)}, v{t16}, {sr(sLIST,4)}, s{sT+2} offen sc1")
    z = pT + 8
    def null_fill(t0=256):
        a(f"""
        v_mov_b32 v{z}, 0
        v_mov_b32 v{z+1}, 0
        v_mov_b32 v{z+2}, 0
        v_mov_b32 v{z+3}, 0xffff
        v_lshlrev_b32 v{pT+4}, 4, v0
        v_add_u32 v{pT+4}, {L_STREAM - 16*t0}, v{pT+4}
        """)
        nfull = STREAM_BYTES // 4096
        rem = (STREAM_BYTES - nfull * 4096) // 16
        for i in range(nfull):
            a(f"ds_write_b128 v{pT+4}, {vr(z,4)} offset:{i*4096}")
        a(f"""
        v_cmp_gt_u32 vcc, {t0 + rem}, v0
        s_and_b64 exec, exec, vcc
        ds_write_b128 v{pT+4}, {vr(z,4)} offset:{nfull*4096}
        s_mov_b64 exec, -1
        v_lshlrev_b32 v{pT+4}, 3, v0
        v_add_u32 v{pT+4}, {L_LUT - 8*t0}, v{pT+4}
        v_cmp_gt_u32 vcc, {t0+4}, v0
        s_and_b64 exec, exec, vcc
        ds_write_b64 v{pT+4}, {vr(z,2)}
        s_mov_b64 exec, -1
        """)
    Lsd = a.label("K2_SIDE"); Lsz = a.label("K2_SZ"); LA = a.label("K2_A"); Lok = a.label("K2_GOK"); Lnag = a.label("K2_NOAGG"); Ls2 = a.label("K2_S2"); Lagd = a.label("K2_AGD"); Lrk = a.label("K2_RK")
    def get_token():
        Ltk = a.label("K2_TOK")
        token_decode(a, VTOK, sTOK, sT)
        a(f"s_cbranch_scc1 {Ltk}")
        def body():
            sync_loads(a, sDBG, sMISC, sT, pT + 1, gran=False)
            a("s_waitcnt vmcnt(0)")
            token_decode(a, VTOK, sTOK, sT)
        spin(body, 8)
        a(f"{Ltk}:")
    def check():
        a(f"""
        v_readfirstlane_b32 s{sT}, v{VTOK+3}
        v_readfirstlane_b32 s{sTOT}, v{VTOK+2}
        s_nop 1
        s_cmp_eq_u32 s{sT}, s{sTOK}
        """)
    def wait_granule(sleep):
        def body():
            sync_loads(a, sDBG, sMISC, sT, pT + 1, tok=False)
            a("s_waitcnt vmcnt(0)")
            check()
        spin(body, sleep)
    a(f"""
    s_cmp_ge_u32 s2, {WG_GEMM0}
    s_cbranch_scc1 {Lsd}
    s_cmp_lt_u32 s{sW}, 4
    s_cbranch_scc1 {Lsz}
    """)
    zero_counters(a, pT + 1, pT + 2)
    a(f"""
{Lsz}:
    v_mov_b32 v{pT+7}, {L_PASS}
    s_waitcnt vmcnt(0) lgkmcnt(0)
    s_barrier
    s_cmp_lg_u32 s{sW}, {WSY}
    s_cbranch_scc1 {Ls2}
    """)
    get_token()
    arrive()
    if opt.get("aggst") == 1: a("s_waitcnt vmcnt(0)\ns_memrealtime s[92:93]")
    if opt.get("aggst") == 5: a("s_memrealtime s[92:93]")
    a(f"s_cmp_lg_u32 s2, {WG_AGG}\ns_cbranch_scc1 {Lnag}")
    wait_arrivals(0, WG_AGG, opt.get("sl0", 4))
    a(f"""
    {"s_memrealtime s[92:93]" if opt.get("aggst") == 2 else ""}
    v_lshlrev_b32 v{pT+1}, 2, v{pT+1}
    buffer_load_dword v{pT+2}, v{pT+1}, {sr(sDBG,4)}, 0 offen sc1
    v_lshrrev_b32 v{pT+1}, 2, v{pT+1}
    v_mov_b32 v{pT+3}, s{sTOK}
    v_mov_b32 v{pT+4}, 0
    s_waitcnt vmcnt(0)
    v_and_b32 v{pT+2}, 0x3ffff, v{pT+2}
    v_lshl_or_b32 v{pT+5}, v{pT+2}, 6, v{pT+1}
    v_lshl_or_b32 v{pT+2}, v{pT+1}, 20, v{pT+2}
    v_lshlrev_b32 v{pT+8}, 2, v{pT+1}
    v_mov_b32 v{pT+9}, 0
    ds_write_b32 v{pT+8}, v{pT+5}
    """)
    for h in range(2):
        for k in range(8):
            a(f"ds_read_b128 {vr(pRARE+32*h+4*k,4)}, v{pT+4} offset:{128*h + 16*k}")
        if h == 0: a("s_waitcnt lgkmcnt(4)")
    for h in range(2):
        a(f"s_waitcnt lgkmcnt({8 - 8*h})")
        for k in range(32):
            a(f"v_sub_u32 v{pRARE+32*h+k}, v{pT+5}, v{pRARE+32*h+k}")
        for k in range(32):
            a(f"v_alignbit_b32 v{pT+8+h}, v{pT+8+h}, v{pRARE+32*h+k}, 31")
    a(f"""
    v_bcnt_u32_b32 v{pT+4}, v{pT+8}, 0
    v_bcnt_u32_b32 v{pT+4}, v{pT+9}, v{pT+4}
    {"" if opt.get("sortr", 1) else f"v_mov_b32 v{pT+4}, v{pT+1}"}
    v_lshlrev_b32 v{pT+4}, 2, v{pT+4}
    ds_permute_b32 v{pT+2}, v{pT+4}, v{pT+2}
    v_lshlrev_b32 v{pT+1}, 3, v{pT+1}
    s_mov_b32 s{sT}, {M_TOT}
    s_waitcnt lgkmcnt(0)
    buffer_store_dwordx2 {vr(pT+2,2)}, v{pT+1}, {sr(sMISC,4)}, s{sT} offen sc1
    v_readlane_b32 s{sT}, v{pT+2}, {2*(WG_AGG>>3) + (WG_AGG&1)}
    v_mov_b32 v{VTOK+3}, s{sTOK}
    s_nop 0
    v_mov_b32 v{VTOK+2}, s{sT}
    s_branch {Lagd}
{Lnag}:
    """)
    wait_granule(opt.get("sl1", 16))
    a(f"""
{Lagd}:
    {"s_memrealtime s[92:93]" if opt.get("aggst") == 3 else ""}
    s_mov_b64 exec, 1
    ds_write_b128 v{pT+7}, {vr(VTOK,4)} offset:16
    s_mov_b64 exec, -1
    s_waitcnt lgkmcnt(0)
{Ls2}:
    s_barrier
    ds_read_b128 {vr(VTOK,4)}, v{pT+7} offset:16
    s_waitcnt lgkmcnt(0)
{Lsd}:
    s_cmp_lt_u32 s{sW}, 4
    s_cbranch_scc1 {LA}
    s_waitcnt vmcnt({opt.get("tokw", 5)})
    """)
    get_token()
    check()
    a(f"s_cbranch_scc1 {Lok}")
    wait_granule(8)
    pkb = opt.get("pkb", [2, 2, 3, 3, 2, 0])
    pka = opt.get("pka", [1, 1, 0, 0, 6])
    assert sum(pkb) == 12 and sum(pka) == 8
    a(f"""
{Lok}:
    s_mov_b32 s{sREM}, s{sTOT}
    s_mov_b32 s{sCB}, 0
    """)
    unpack_word()
    a(f"s_mul_i32 s{sT}, s{sRG}, {LIST_STRIDE}")
    srd(sLIST, 24, sT, WS_LIST, 0)
    a(f"s_lshl_b32 s{sLIST+2}, s{sTOT}, 4")
    rec_loads()
    consts()
    a(f"""
    v_sub_u32 v{vCO}, s{sPS}, v{vCO}
    v_mov_b32 v{pT+1}, {L_PASS}
    v_mov_b32 v{pT+2}, s{sREM}
    v_mov_b32 v{pT+3}, s{sTOK}
    ds_write_b64 v{pT+1}, {vr(pT+2,2)}
    s_lshl_b32 s{sT+5}, s{sL}, 12
    v_add_u32 v{pT+7}, s{sT+5}, v{l16}
    v_add_u32 v{pT+7}, {L_LUT + NRS*32}, v{pT+7}
    s_add_u32 s{sT+5}, s{sT+5}, {LUT_THR*32}
    """)
    for i in range(4):
        a(f"buffer_load_dwordx4 {vr(pLT+4*i,4)}, v{l16}, {sr(sMISC,4)}, s{sT+5} offen offset:{1024*i} sc1")
    Lna = a.label("K2_NOARR")
    a(f"""
    s_waitcnt vmcnt(12) lgkmcnt(0)
    s_barrier
    s_cmp_lg_u32 s{sW}, {WSY}
    s_cbranch_scc1 {Lna}
    s_cmp_lt_u32 s2, {WG_GEMM0}
    s_cbranch_scc1 {Lna}
    """)
    arrive()
    a(f"{Lna}:")
    park_issue(1, pkb[0])
    a(f"s_waitcnt vmcnt({pkb[0]})")
    for i in range(4):
        a(f"ds_write_b128 v{pT+7}, {vr(pLT+4*i,4)} offset:{1024*i}")
    bop_loads()
    one = pT + 4; vAL = pT + 10
    a(f"""
{Lrank}:
    s_waitcnt lgkmcnt(0)
    {"s_memrealtime s[92:93]" if opt.get("aggst") == 4 else ""}
    v_mov_b32 v{one}, 1
    v_mov_b32 v{vAL}, {L_ALLOC}
    s_sub_u32 s{sT+2}, s{sTOT}, s{sCB}
    s_add_u32 s{sT+2}, s{sT+2}, 256
    """)
    for k in range(8):
        r0 = pREC + 4 * k
        Lskip = a.label("K2_NORARE")
        a(f"""
        v_add_u32 v{pT+5}, {k*256}, v0
        v_and_b32 v{pT+6}, {1<<k}, v{vPEND}
        v_cmp_gt_u32 vcc, s{sT+2}, v{pT+5}
        v_cmp_ne_u32 s[{sT}:{sT+1}], 0, v{pT+6}
        v_and_b32 v{pDL+k}, 0x1ff, v{r0}
        v_mov_b32 v{pRANK+k}, {INV}
        s_and_b64 s[{sT}:{sT+1}], vcc, s[{sT}:{sT+1}]
        v_cmp_gt_u32 vcc, {2*NKEY}, v{pDL+k}
        v_lshlrev_b32 v{pDL+k}, 2, v{pDL+k}
        v_add_u32 v{pDL+k}, {L_CNT}, v{pDL+k}
        v_mov_b32 v{pRS+k}, 0
        s_and_b64 s[{sT}:{sT+1}], vcc, s[{sT}:{sT+1}]
        v_cmp_gt_i32 vcc, 0, v{r0+3}
        v_and_b32 v{r0}, s{sMASK}, v{r0}
        {f"v_and_b32 v{r0+3}, {0xffff0000 | opt['srcmask']}, v{r0+3}" if opt.get("srcmask") else ""}
        s_and_b64 exec, vcc, s[{sT}:{sT+1}]
        s_cbranch_execz {Lskip}
        ds_add_rtn_u32 v{pT+8}, v{vAL}, v{one} offset:8
        v_bfe_u32 v{pT+7}, v{r0+3}, 16, 15
        v_lshlrev_b32 v{pT+7}, 5, v{pT+7}
        buffer_load_dwordx4 {vr(pRARE+8*k,4)}, v{pT+7}, {sr(sMISC,4)}, 0 offen sc1
        buffer_load_dwordx4 {vr(pRARE+8*k+4,4)}, v{pT+7}, {sr(sMISC,4)}, 0 offen offset:16 sc1
        v_and_b32 v{r0+3}, 0xffff, v{r0+3}
        v_mov_b32 v{pRANK+k}, {INV-1}
        s_waitcnt lgkmcnt(0)
        v_add_u32 v{pT+8}, 1, v{pT+8}
        v_cmp_le_u32 vcc, {NRS}, v{pT+8}
        v_lshl_or_b32 v{r0+3}, v{pT+8}, 16, v{r0+3}
        v_lshlrev_b32 v{pT+8}, 5, v{pT+8}
        s_andn2_b64 s[{sT}:{sT+1}], s[{sT}:{sT+1}], vcc
        s_andn2_b64 exec, exec, vcc
        v_add_u32 v{pRS+k}, {L_LUT}, v{pT+8}
{Lskip}:
        s_mov_b64 exec, s[{sT}:{sT+1}]
        ds_add_rtn_u32 v{pRANK+k}, v{pDL+k}, v{one}
        s_mov_b64 exec, -1
        """)
    Lnp1 = a.label("K2_NP1")
    a(f"s_cmp_eq_u32 s{sFIRST}, 0\ns_cbranch_scc1 {Lnp1}")
    park_issue(1, pkb[1])
    a(f"""
{Lnp1}:
    s_waitcnt lgkmcnt(0)
    s_barrier
    s_branch {Lx}
    """)
    a(f"{LA}:")
    consts()
    a(f"""
    v_mov_b32 v{pT+7}, {L_PASS}
    s_waitcnt vmcnt(0)
    s_barrier
    ds_read_b64 {vr(pT+2,2)}, v{pT+7}
    s_waitcnt lgkmcnt(0)
    v_readfirstlane_b32 s{sTOT}, v{pT+2}
    v_readfirstlane_b32 s{sTOK}, v{pT+3}
    s_nop 1
    """)
    unpack_word()
    a(f"v_sub_u32 v{vCO}, s{sPS}, v{vCO}")
    srd(sLIST, 24, None, WS_LIST, 0)
    null_fill(0)
    park_issue(0, pka[4])
    bop_loads()
    a(f"""
    s_waitcnt lgkmcnt(0)
    s_barrier
{Lx}:
    v_mov_b32 v{one}, 1
    v_mov_b32 v{vAL}, {L_ALLOC}
    """)
    stamp()
    L7 = a.label("K2_P7"); L8 = a.label("K2_P8")
    deg, rk, hh, bn = pT + 5, pT + 6, pT + 7, pT + 11
    a(f"""
    s_cmp_ge_u32 s{sW}, 5
    s_cbranch_scc1 {L7}
    v_lshlrev_b32 v{pT+8}, 2, v0
    v_add_u32 v{pT+8}, {L_CNT}, v{pT+8}
    ds_read_b32 v{deg}, v{pT+8}
    v_cmp_le_u32 vcc, {NKEY}, v0
    v_mov_b32 v{bn}, 31
    v_mov_b32 v{pT+9}, 63
    v_cndmask_b32 v{bn}, v{bn}, v{pT+9}, vcc
    s_waitcnt lgkmcnt(0)
    v_min_u32 v{deg}, {CAPN}, v{deg}
    v_sub_u32 v{bn}, v{bn}, v{deg}
    v_lshlrev_b32 v{bn}, 2, v{bn}
    v_add_u32 v{pT+8}, {L_HIST}, v{bn}
    ds_add_rtn_u32 v{rk}, v{pT+8}, v{one}
    s_waitcnt lgkmcnt(0)
{L7}:
    """)
    park_dma(pka[0], pkb[2])
    a(f"""
    s_barrier
    s_cmp_ge_u32 s{sW}, 5
    s_cbranch_scc1 {L8}
    v_and_b32 v{pT+8}, 63, v0
    v_lshlrev_b32 v{pT+8}, 2, v{pT+8}
    v_add_u32 v{pT+8}, {L_HIST}, v{pT+8}
    ds_read_b32 v{hh}, v{pT+8}
    v_subrev_u32 v{pT+8}, {NKEY}, v0
    v_min_u32 v{pT+8}, v{pT+8}, v0
    v_lshl_or_b32 v{deg}, v{deg}, 16, v{pT+8}
    s_waitcnt lgkmcnt(0)
    v_mov_b32 v{pT+9}, v{hh}
    """)
    dpp_scan(a, "v_add_u32", hh)
    a(f"""
    v_sub_u32 v{hh}, v{hh}, v{pT+9}
    ds_bpermute_b32 v{pT+9}, v{bn}, v{hh}
    s_waitcnt lgkmcnt(0)
    v_add_lshl_u32 v{pT+9}, v{pT+9}, v{rk}, 2
    v_add_u32 v{pT+9}, {L_SORT}, v{pT+9}
    ds_write_b32 v{pT+9}, v{deg}
    s_waitcnt lgkmcnt(0)
{L8}:
    """)
    park_dma(pka[1], pkb[3])
    assert L_SORT % 128 == 0 or True
    ek = pEK
    a(f"""
    s_barrier
    s_lshl_b32 s{sQ}, s{sW}, 4
    s_xor_b32 s{sT+1}, s{sQ}, 112
    v_add_u32 v{pT+6}, s{sQ}, v{vG4}
    v_add_u32 v{pT+7}, s{sT+1}, v{vG4}
    """)
    for k in range(10):
        a(f"ds_read_b32 v{ek+k}, v{pT+6+DIRS[k]} offset:{128*k}")
    a("s_waitcnt lgkmcnt(0)")
    for k in range(10):
        a(f"v_readfirstlane_b32 s{sN0+k}, v{ek+k}")
    a(f"v_mov_b32 v{vEN}, v{ek}\ns_mov_b32 s{sDIR}, {sum(d << k for k, d in enumerate(DIRS))}")
    a(f"s_mov_b64 {sr(sPC,2)}, 0\ns_mov_b32 s{sREM}, 0")
    for k in range(10):
        a(f"s_lshr_b32 s{sT}, s{sN0+k}, 16")
        a(f"s_mov_b32 s{sN0+k}, s{sREM}\ns_add_u32 s{sREM}, s{sREM}, s{sT}")
        a(f"s_lshl_b32 s{sT}, s{sT}, {5*(k%5)}\ns_or_b32 s{sPC+k//5}, s{sPC+k//5}, s{sT}")
    a(f"""
    s_add_u32 s{sREM}, s{sREM}, 1
    s_lshr_b32 s{sREM}, s{sREM}, 1
    v_mov_b32 v{pT+8}, s{sREM}
    s_mov_b64 exec, 1
    ds_add_rtn_u32 v{pT+9}, v{vAL}, v{pT+8}
    s_mov_b64 exec, -1
    """)
    for k in range(10):
        a(f"v_and_b32 v{ek+k}, 0xff, v{ek+k}")
        a(f"v_lshlrev_b32 v{ek+k}, 2, v{ek+k}")
        a(f"v_add_u32 v{ek+k}, {L_NADDR + (NKEY*4 if k >= 5 else 0)}, v{ek+k}")
    a(f"""
    v_bfe_u32 v{pT+5}, v0, 4, 2
    v_bfe_u32 v{pT+6}, v0, 1, 1
    v_bfe_u32 v{pT+7}, v0, 2, 2
    v_lshlrev_b32 v{pT+6}, 6, v{pT+6}
    v_lshl_add_u32 v{pT+6}, v{pT+7}, 4, v{pT+6}
    s_waitcnt lgkmcnt(0)
    v_readfirstlane_b32 s{sT}, v{pT+9}
    s_nop 1
    s_lshl_b32 s{sT}, s{sT}, 7
    s_add_u32 s{sT}, s{sT}, {L_STREAM}
    v_lshl_add_u32 v{vS}, v{pT+5}, 4, s{sT}
    v_add_u32 v{vA}, s{sT}, v{pT+6}
    """)
    for k in range(10):
        a(f"v_lshl_add_u32 v{pT+7+(k&1)}, s{sN0+k}, 6, v{vS}")
        a(f"ds_write_b32 v{ek+k}, v{pT+7+(k&1)}")
    park_dma(pka[2], pkb[4])
    a("s_waitcnt lgkmcnt(0)\ns_barrier")
    LsA = a.label("K2_SCA"); Lse = a.label("K2_SCE")
    a(f"s_cmp_lt_u32 s{sW}, 4\ns_cbranch_scc1 {LsA}")
    for k in range(8):
        a(f"ds_read_b32 v{pNA+k}, v{pDL+k} offset:{L_NADDR - L_CNT}")
    a(f"v_mov_b32 v{vPEND}, 0\ns_mov_b32 s{sT+2}, {INV}")
    for k in range(8):
        r0 = pREC + 4 * k
        Lnpd = a.label("K2_NOPEND")
        a(f"""
        v_cmp_gt_u32 vcc, {CAPN}, v{pRANK+k}
        v_cmp_gt_u32 s[{sT}:{sT+1}], s{sT+2}, v{pRANK+k}
        {"s_waitcnt lgkmcnt(0)" if k == 0 else ""}
        v_lshl_add_u32 v{pNA+k}, v{pRANK+k}, 6, v{pNA+k}
        s_mov_b64 exec, vcc
        ds_write_b128 v{pNA+k}, {vr(r0,4)}
        s_andn2_b64 exec, s[{sT}:{sT+1}], vcc
        s_cbranch_execz {Lnpd}
        v_or_b32 v{vPEND}, {1<<k}, v{vPEND}
        ds_write_b32 v{vAL}, v{one} offset:4
{Lnpd}:
        s_mov_b64 exec, -1
        """)
    for k in range(8):
        Lskip = a.label("K2_NORARE2")
        a(f"""
        v_cmp_ne_u32 vcc, 0, v{pRS+k}
        s_and_b64 exec, exec, vcc
        s_cbranch_execz {Lskip}
        s_waitcnt vmcnt(0) lgkmcnt(0)
        ds_write_b128 v{pRS+k}, {vr(pRARE+8*k,4)}
        ds_write_b128 v{pRS+k}, {vr(pRARE+8*k+4,4)} offset:16
{Lskip}:
        s_mov_b64 exec, -1
        """)
    Lnag2 = a.label("K2_NOAGG2")
    a(f"""
    s_branch {Lse}
{LsA}:
    s_cmp_eq_u32 s{sFIRST}, 0
    s_cbranch_scc1 {Lse}
    s_cmp_lg_u32 s{sW}, 3
    s_cbranch_scc1 {Lse}
    s_cmp_lg_u32 s2, {WG_AGG}
    s_cbranch_scc1 {Lnag2}
    """)
    wait_arrivals(WG_GEMM0, 256, opt.get("sl3", 1))
    if opt.get("aggst") in (6, 8): a("s_memrealtime s[92:93]")
    a(f"""
    s_mov_b32 s{sT}, {M_GO}
    v_lshlrev_b32 v{pT+1}, 2, v{pT+1}
    v_mov_b32 v{pT+3}, s{sTOK}
    s_mov_b32 exec_hi, 0
    buffer_store_dword v{pT+3}, v{pT+1}, {sr(sMISC,4)}, s{sT} offen sc1
    s_mov_b64 exec, -1
{Lnag2}:
    """)
    pre = opt.get("prepoll", 1)
    if pre: park_issue(0, pka[3]); plist[0] = [(7, 0), (7, 1)][-pka[3]:] if pka[3] else []
    a(f"""
    s_mov_b32 s{sT}, {M_GO}
    v_mov_b32 v{pT+1}, 0
    s_mov_b64 exec, 1
    """)
    def body():
        a(f"""
        buffer_load_dword v{pT+2}, v{pT+1}, {sr(sMISC,4)}, s{sT} offen sc1
        s_waitcnt vmcnt(0)
        v_readfirstlane_b32 s{sT+1}, v{pT+2}
        s_nop 1
        s_cmp_eq_u32 s{sT+1}, s{sTOK}
        """)
    spin(body, opt.get("sl2", 2))
    Lsf = a.label("K2_SCF")
    a(f"""
    s_mov_b64 exec, -1
    {"buffer_inv sc1" if opt.get("inv", 0) else ""}
    s_waitcnt vmcnt(0)
    {f"s_branch {Lsf}" if pre else ""}
{Lse}:
    """)
    park_dma(pka[3], pkb[5])
    nob7 = opt.get("nob7", 1)
    a(f"{Lsf}:\ns_waitcnt {'vmcnt(0) ' if nob7 else ''}lgkmcnt(0)\ns_barrier")
    stamp()
    a(f"ds_read_b32 v{vT}, v{vAL} offset:4")
    for b in range(DP):
        a(f"ds_read2_b32 {vr(vD+2*b,2)}, v{vS} offset0:{32*b+3} offset1:{32*b+19}")
    a(f"ds_read_u16 v{vLI}, v{vA} offset:14")
    a("s_waitcnt lgkmcnt(0)")
    a(f"v_readfirstlane_b32 s{sMORE}, v{vT}")
    for b in range(DP):
        issue(b, vD + 2 * b)
    a(f"""
    s_add_u32 s{sT}, s{sCB}, {CHUNK}
    s_cmp_lt_u32 s{sT}, s{sTOT}
    s_cselect_b32 s{sT}, 2, 0
    s_or_b32 s{sMORE}, s{sMORE}, s{sT}
    s_mov_b32 s{sSLOT}, 10
    s_mov_b64 vcc, {-1 if opt.get("novmem") else 0}
    v_mad_u32_u16 v{vAD}, v{vLI}, v{vML}, v{vCL}
    {"" if nob7 else f"s_waitcnt vmcnt({8*DP})"}
    {"" if nob7 else "s_barrier"}
    ds_read_b128 {vr(vAOP,4)}, v{vAD}
    ds_read2_b32 {vr(vPK,2)}, v{vS} offset0:{32*DP+3} offset1:{32*DP+19}
    ds_read_u16 v{vLI}, v{vA} offset:{128+14}
    ds_read_b128 {vr(vRH,4)}, v{vS}
    ds_read_b128 {vr(vRH+4,4)}, v{vS} offset:64
    """)
    if stamps:
        stamp(); a("s_memtime s[80:81]\ns_waitcnt lgkmcnt(0)")
    Lph = [a.label(f"K2_PH{p}") for p in range(NRG)]
    Lsk = [a.label(f"K2_SK{p}") for p in range(NRG)]
    Lbk = [a.label(f"K2_BK{p}") for p in range(NRG)]
    Ltr = [[a.label(f"K2_EP{p}{st}") for st in range(2)] for p in range(NRG)]
    Lz = [[a.label(f"K2_EZ{p}{st}") for st in range(2)] for p in range(NRG)]
    Lrt = [[a.label(f"K2_RT{p}{st}") for st in range(2)] for p in range(NRG)]
    Lrt[NRG - 1][1] = Lph[0]
    Ldone = a.label("K2_DONE")
    sOM = 78; sPR = 79; sLO = sDBG; sLR = 84; sLW = 85; sRET = 6
    Llr = a.label("K2_LOREAD"); Llw = a.label("K2_LOWRITE")
    a(f"""
    s_cmp_eq_u32 s{sMORE}, 0
    s_cselect_b32 s{sOM}, 0x3e, 0
    s_lshr_b32 s{sPR}, s{sW}, 2
    s_cmp_eq_u32 s{sFIRST}, 0
    s_cselect_b32 s{sLR}, 1, 0
    s_or_b32 s{sLW}, s{sLR}, s{sMORE}
    s_mul_i32 s{sT}, s2, {NKEY*512}
    """)
    srd(sLO, 24, sT, WS_LO, NKEY * 512)
    def lo_call(flag, target):
        Lq = a.label("K2_LQ")
        a(f"s_cmp_eq_u32 s{flag}, 0\ns_cbranch_scc1 {Lq}\ns_call_b64 {sr(sRET,2)}, {target}\n{Lq}:")
    fetch_next()
    a("s_waitcnt lgkmcnt(0)")
    acc_init()
    lo_call(sLR, Llr)
    fetch_next()
    a(f"""
    s_and_b32 s{sCNT}, s{sPC}, 31
    s_cbranch_scc0 {Lz[NRG-1][1]}
    s_sub_u32 s{sCNT}, s{sCNT}, 1
    """)
    for p in range(NRG):
        a(f"{Lph[p]}:")
        a(f"s_waitcnt vmcnt({8*(DP-1)}) lgkmcnt(2)\n{Lph[p]}_W:")
        sh = []
        for st in range(2):
            for hf in range(2):
                rg = ring(p, st, hf); e = vX + 4 * (2 * st + hf)
                sh += [f"v_lshlrev_b64 {vr(e,2)}, 16, {vr(rg,2)}", f"v_lshlrev_b64 {vr(e+2,2)}, 16, {vr(rg+2,2)}", f"v_lshlrev_b32 v{rg+4}, 16, v{rg+5}"]
        for o in range(6):
            if not opt.get("nomfma"):
                a(f"v_mfma_f32_16x16x32_bf16 {vr(vD+4*o,4)}, {vr(vAOP,4)}, {vr(vB+4*o,4)}, 0")
            if not opt.get("novalu"):
                a(sh[2 * o]); a(sh[2 * o + 1])
        il = opt.get("il", 0)
        a(f"s_sub_u32 s{sREM}, s{sREM}, 1\ns_cmp_lt_u32 s{sREM}, {DP}\ns_cbranch_scc1 {Lsk[p]}")
        if il:
            for st in range(2):
                a(f"v_mad_u32_u16 v{vAD+2*st}, v{vPK+st}, s{sROWB}, v{vC1}")
                a(f"v_mad_u32_u16 v{vAD+2*st+1}, v{vPK+st}, s{sROWB}, v{vC2}")
        else:
            issue((p + DP) % NRG, vPK)
        a(f"{Lbk[p]}:")
        assert (p + DP + 1) * 32 + 19 < 256
        a(f"""
        v_mad_u32_u16 v{vT}, v{vLI}, v{vML}, v{vCL}
        ds_read_b128 {vr(vAOP,4)}, v{vT}
        ds_read2_b32 {vr(vPK,2)}, v{vS} offset0:{(p+DP+1)*32+3} offset1:{(p+DP+1)*32+19}
        ds_read_u16 v{vLI}, v{vA} offset:{(p+2)*128+14}
        s_waitcnt lgkmcnt(3)
        """)
        for st in range(2):
            L = []
            for hf in range(2):
                HXY, HZS, LXY, LZS, BZ = ACC(hf)
                rg = ring(p, st, hf); rh = vRH + 4 * st; e = vX + 4 * (2 * st + hf); t = vT + 2 * hf
                d1, d2, d3 = vD + 12 * hf + 2 * st, vD + 12 * hf + 4 + 2 * st, vD + 12 * hf + 8 + 2 * st
                L.append(f"""v_pk_fma_f32 {vr(HXY,2)}, {vr(d1,2)}, {vr(rg,2)}, {vr(HXY,2)} op_sel_hi:[0,1,1]
                v_pk_mul_f32 {vr(t,2)}, {vr(d3,2)}, {vr(rg+4,2)}
                v_pk_fma_f32 {vr(HZS,2)}, {vr(d1,2)}, {vr(rg+2,2)}, {vr(HZS,2)}
                v_pk_fma_f32 {vr(LXY,2)}, {vr(d2,2)}, {vr(e,2)}, {vr(LXY,2)} op_sel_hi:[0,1,1]
                v_pk_fma_f32 {vr(LZS,2)}, {vr(d2,2)}, {vr(e+2,2)}, {vr(LZS,2)}
                v_pk_fma_f32 {vr(BZ,2)}, {vr(t,2)}, {vr(rh+2,2)}, {vr(BZ,2)} op_sel_hi:[1,0,1]
                v_pk_fma_f32 {vr(HXY,2)}, {vr(t,2)}, {vr(rh,2)}, {vr(HXY,2)} op_sel:[1,0,0]
                v_pk_fma_f32 {vr(LXY,2)}, {vr(t,2)}, {vr(rh,2)}, {vr(LXY,2)} op_sel_hi:[0,1,1]""".split("\n"))
            bs = (p + DP) % NRG
            X4 = lambda hf: f"buffer_load_dwordx4 {vr(ring(bs,st,hf),4)}, v{vAD+2*st}, {sr(sTB,4)}, 0 offen offset:{256*hf}"
            X1 = lambda hf: f"buffer_load_dword v{ring(bs,st,hf)+5}, v{vAD+2*st+1}, {sr(sTB,4)}, 0 offen offset:{512+64*hf}"
            groups = {1: {0: [X4(0)], 3: [X4(1)], 6: [X1(0), X1(1)]}, 2: {0: [X4(0), X1(0)], 4: [X4(1), X1(1)]}, 3: {0: [X4(0), X4(1), X1(0), X1(1)]},
                      4: {0: [X4(0)], 2: [X4(1)], 4: [X1(0)], 6: [X1(1)]}}.get(il, {})
            for k, (l0, l1) in enumerate(zip(*L)):
                if k in groups:
                    Lg = a.label("K2_G")
                    a(f"s_cbranch_vccnz {Lg}")
                    for x in groups[k]: a(x)
                    a(f"{Lg}:")
                if not opt.get("novalu"):
                    a(l0); a(l1)
            a(f"ds_read_b128 {vr(vRH+4*st,4)}, v{vS} offset:{(p+1)*128+64*st}")
            if st == 1 and p == NRG - 1:
                a(f"v_add_u32 v{vS}, {128*NRG}, v{vS}\nv_add_u32 v{vA}, {128*NRG}, v{vA}")
            a(f"s_sub_u32 s{sCNT}, s{sCNT}, 1")
            if st == 1 and p == NRG - 1:
                a(f"s_cbranch_scc0 {Lph[0]}")
            else:
                a(f"s_cbranch_scc1 {Ltr[p][st]}\n{Lrt[p][st]}:")
    order = [(NRG - 1, 1)] + [(p, st) for p in range(NRG) for st in range(2) if (p, st) != (NRG - 1, 1)]
    for (p, st) in order:
        Lpw = a.label("K2_PW"); Lnx = a.label("K2_NX"); Ltb = a.label("K2_TB"); Lin = a.label("K2_IN"); Lp0 = a.label("K2_P0"); Lwc = a.label("K2_WC"); Lwb = a.label("K2_WB")
        a(f"{Ltr[p][st]}:")
        for hf in range(2):
            HXY, HZS, LXY, LZS, BZ = ACC(hf)
            R = lambda c: vE + 2 * c + hf
            a(f"""
            v_add_f32 v{LZS}, v{LZS}, v{BZ}
            v_add_f32 v{HZS}, v{HZS}, v{BZ+1}
            v_cvt_pk_bf16_f32 v{R(0)}, v{LZS+1}, v{HZS+1}
            v_cvt_pk_bf16_f32 v{R(1)}, v{LXY}, v{HXY}
            v_cvt_pk_bf16_f32 v{R(2)}, v{LXY+1}, v{HXY+1}
            v_cvt_pk_bf16_f32 v{R(3)}, v{LZS}, v{HZS}
            """)
        a(f"""
        s_waitcnt lgkmcnt(1)
        s_bitcmp1_b32 s{sOM}, s{sSLOT}
        s_cbranch_scc0 {Lpw}
        v_lshl_add_u32 v{vO}, v{vPA}, 8, v{vCO}
        """)
        for c in range(4):
            for hf in range(2):
                a(f"buffer_store_dword v{vE+2*c+hf}, v{vO}, {sr(sOUT,4)}, 0 offen offset:{512*c+64*hf} {st_fl}")
        a(f"""
{Lnx}:
        s_lshr_b32 s{sPC}, s{sPC}, 5
        s_sub_u32 s{sSLOT}, s{sSLOT}, 1
        s_cmp_eq_u32 s{sSLOT}, 0
        s_cbranch_scc1 {Ldone}
{Lin}:
        """)
        if opt.get("prio", 2):
            a(f"s_xor_b32 s{sPR}, s{sPR}, 1\ns_setprio 0\ns_cbranch_scc0 {Lp0}\ns_setprio 1\n{Lp0}:")
        acc_init()
        Lrc = a.label("K2_RC"); Lrb = a.label("K2_RB")
        a(f"s_cmp_lg_u32 s{sLR}, 0\ns_cbranch_scc1 {Lrc}\n{Lrb}:")
        fetch_next()
        a(f"""
        s_and_b32 s{sCNT}, s{sPC}, 31
        s_cbranch_scc0 {Lz[p][st]}
        s_sub_u32 s{sCNT}, s{sCNT}, 1
        {f"s_waitcnt vmcnt({8*(DP-1)})" if st == 1 else ""}
        s_branch {Lrt[p][st] if st == 0 else Lph[(p+1)%NRG] + "_W"}
{Lz[p][st]}:
        s_waitcnt lgkmcnt(0)
        s_branch {Ltr[p][st]}
{Lrc}:
        s_call_b64 {sr(sRET,2)}, {Llr}
        s_branch {Lrb}
{Lwc}:
        s_call_b64 {sr(sRET,2)}, {Llw}
        s_branch {Lwb}
{Lpw}:
        """)
        for c in range(4):
            a(f"ds_write2_b32 v{vPA}, v{vE+2*c}, v{vE+2*c+1} offset0:{32*c} offset1:{32*c+16}")
        a(f"""
        s_cmp_lg_u32 s{sLW}, 0
        s_cbranch_scc1 {Lwc}
{Lwb}:
        s_cmp_lg_u32 s{sSLOT}, 6
        s_cbranch_scc1 {Lnx}
        s_mov_b32 s{sLR}, s{sLW}
        s_mov_b32 s{sSLOT}, 5
        s_mov_b32 s{sPC}, s{sPC+1}
        s_waitcnt lgkmcnt(0)
        s_barrier
        """)
        r_reads()
        a(f"s_waitcnt lgkmcnt(0)\ns_branch {Lin}")
    for p in range(NRG):
        a(f"{Lsk[p]}:\ns_mov_b64 vcc, -1\ns_waitcnt vmcnt(0)\ns_branch {Lbk[p]}")
    def lohi(c, hf):
        HXY, HZS, LXY, LZS, BZ = ACC(hf)
        return [LZS + 1, LXY, LXY + 1, LZS][c], [HZS + 1, HXY, HXY + 1, HZS][c]
    a(f"{Llw}:")
    for c in range(4):
        for hf in range(2):
            lo, hi = lohi(c, hf); e = vE + 2 * c + hf
            a(f"""
            v_lshlrev_b32 v{vT}, 16, v{e}
            v_and_b32 v{vT+1}, s{sMASK}, v{e}
            v_sub_f32 v{lo}, v{lo}, v{vT}
            v_sub_f32 v{hi}, v{hi}, v{vT+1}
            v_cvt_pk_bf16_f32 v{lo}, v{lo}, v{hi}
            buffer_store_dword v{lo}, v{vPA}, {sr(sLO,4)}, 0 offen offset:{128*c + 64*hf}
            """)
    a(f"s_waitcnt vmcnt(0)\ns_setpc_b64 {sr(sRET,2)}")
    a(f"{Llr}:")
    for c in range(4):
        for hf in range(2):
            a(f"buffer_load_dword v{vE+2*c+hf}, v{vPA}, {sr(sLO,4)}, 0 offen offset:{128*c + 64*hf} sc1")
    a("s_waitcnt vmcnt(0)")
    for c in range(4):
        for hf in range(2):
            lo, hi = lohi(c, hf); e = vE + 2 * c + hf
            a(f"""
            v_lshlrev_b32 v{vT}, 16, v{e}
            v_and_b32 v{vT+1}, s{sMASK}, v{e}
            v_add_f32 v{lo}, v{lo}, v{vT}
            v_add_f32 v{hi}, v{hi}, v{vT+1}
            """)
    a(f"s_setpc_b64 {sr(sRET,2)}")
    Lfin = a.label("K2_FIN"); Lnext = a.label("K2_NEXT"); LrB = a.label("K2_RB")
    a(f"""
{Ldone}:
    s_cmp_eq_u32 s{sMORE}, 0
    s_cbranch_scc1 {Lfin}
    s_bitcmp1_b32 s{sMORE}, 0
    s_cbranch_scc1 {Lnext}
    s_add_u32 s{sCB}, s{sCB}, {CHUNK}
    v_mov_b32 v{vPEND}, 0xff
{Lnext}:
    s_mov_b32 s{sFIRST}, 0
    s_waitcnt vmcnt(0) lgkmcnt(0)
    s_barrier
    s_cmp_ge_u32 s{sW}, 4
    s_cbranch_scc1 {LrB}
    s_barrier
    s_barrier
    s_branch {Lx}
{LrB}:
    """)
    rec_loads()
    null_fill()
    zero_counters(a, pT + 1, pT + 2)
    a(f"""
    s_waitcnt vmcnt(0) lgkmcnt(0)
    s_barrier
    s_branch {Lrank}
{Lfin}:
    """)
    if stamps:
        stamp()
        a("s_memtime s[82:83]")
        a("s_waitcnt vmcnt(0)")
        stamp()
        a("s_waitcnt lgkmcnt(0)\ns_sub_u32 s80, s82, s80\ns_mov_b32 s81, 0")
        STR.append(80); nst[0] += 1
        a(f"""
        s_waitcnt lgkmcnt(0)
        s_add_u32 s{sLIST}, s24, {WS_DIAG + (1<<20)}
        s_addc_u32 s{sLIST+1}, s25, 0
        s_mov_b32 s{sLIST+2}, 0x100000
        s_lshl_b32 s{sT}, s2, 3
        s_add_u32 s{sT}, s{sT}, s{sW}
        s_lshl_b32 s{sT}, s{sT}, 7
        v_mov_b32 v1, s{sT}
        s_mov_b64 exec, 1
        """)
        for i in range(nst[0]):
            a(f"v_mov_b32 v2, s{STR[i]}\nv_mov_b32 v3, s{STR[i]+1}")
            a(f"buffer_store_dwordx2 v[2:3], v1, {sr(sLIST,4)}, 0 offen offset:{8*i}")
    a(f"{Lend}:\ns_endpgm")
    return nv, 102
```
